```python
import torch

def _softmax(x, axis=-1):
    return torch.softmax(x, dim=axis)
def _gelu(x):
    return torch.nn.functional.gelu(x, approximate="tanh")
def _silu(x):
    return torch.nn.functional.silu(x)
def _sigmoid(x):
    return torch.sigmoid(x)
def _layernorm(x, axis=-1, eps=1e-5):
    m = x.mean(dim=axis, keepdim=True)
    v = x.var(dim=axis, keepdim=True, unbiased=False)
    return (x - m) / torch.sqrt(v + eps)
def _scatter_add(tgt, idx, src, axis=0):
    return tgt.clone().index_add_(axis, idx, src)
def _segment_sum(src, seg, n):
    out = torch.zeros((n,) + src.shape[1:], dtype=src.dtype)
    return out.index_add_(0, seg, src)
def _pad(x, pw):
    flat = tuple(v for pair in reversed(pw) for v in pair)
    return torch.nn.functional.pad(x, flat)

kernel_name = 'concat_heads__compressed_kv_cla__linear_kernel_hedgehog__prompt'

def setup_inputs():

    _w = (lambda a: (lambda t: t.to(torch.bfloat16) if t.is_floating_point() else t)(torch.as_tensor(a)))
    def _A_setup():
        B, H, Sq, Sk, D, M = 1, 32, 2048, 2048, 128, 576
        Dc = 4 * D
        return {
            "x": _w((lambda *s: torch.randn(*s, dtype=torch.bfloat16) * 0.8)(B, Sq, M)),
            "c_kv": _w((lambda *s: torch.randn(*s, dtype=torch.bfloat16) * 0.4)(B, Sk, Dc)),
            "w_q": _w((lambda *s: torch.randn(*s, dtype=torch.bfloat16) * 6.4)(M, H, D) * (M ** -0.5)),
            "w_uk": _w((lambda *s: torch.randn(*s, dtype=torch.bfloat16) * 6.4)(Dc, H, D) * (Dc ** -0.5)),
            "w_uv": _w((lambda *s: torch.randn(*s, dtype=torch.bfloat16) * 0.4)(Dc, H, D) * (Dc ** -0.5)),
            "w_o": _w((lambda *s: torch.randn(*s, dtype=torch.bfloat16) * 0.4)(H, D, M) * ((H * D) ** -0.5)),
        }
    _A_in = _A_setup()

    def _B_setup():
        B, S, D, H = 1, 2048, 576, 32
        Dh = D // H
        return {
            "x": _w((lambda *s: torch.randn(*s, dtype=torch.bfloat16) * 0.4)(B, S, D)),
            "wqkv": _w((lambda *s: torch.randn(*s, dtype=torch.bfloat16) * 0.4)(D, 3 * D)),
            "w_phi": _w((lambda *s: torch.randn(*s, dtype=torch.bfloat16) * 0.4)(H, Dh, Dh) * (Dh ** -0.5)),
            "wo": _w((lambda *s: torch.randn(*s, dtype=torch.bfloat16) * 0.05)(D, D)),
        }
    _B_in = _B_setup()

    return {
        "A_x": _A_in["x"],
        "A_c_kv": _A_in["c_kv"],
        "A_w_q": _A_in["w_q"],
        "A_w_uk": _A_in["w_uk"],
        "A_w_uv": _A_in["w_uv"],
        "A_w_o": _A_in["w_o"],
        "B_x": _B_in["x"],
        "B_wqkv": _B_in["wqkv"],
        "B_w_phi": _B_in["w_phi"],
        "B_wo": _B_in["wo"],
    }

def reference(A_x, A_c_kv, A_w_q, A_w_uk, A_w_uv, A_w_o, B_x, B_wqkv, B_w_phi, B_wo):
    def _A_ref(x, c_kv, w_q, w_uk, w_uv, w_o):
        B, Sq, M = x.shape[0], x.shape[1], x.shape[2]
        Sk = c_kv.shape[1]
        H, D = w_q.shape[1], w_q.shape[2]
        q = torch.einsum("bqm,mhd->bhqd", x, w_q)
        k = torch.einsum("bkc,chd->bhkd", c_kv, w_uk)
        v = torch.einsum("bkc,chd->bhkd", c_kv, w_uv)
        scores = torch.einsum("bhqd,bhkd->bhqk", q, k) * (D ** -0.5)
        off = Sk - Sq
        qi = torch.arange(Sq)[:, None]
        kj = torch.arange(Sk)[None, :]
        cmask = kj <= (qi + off)
        scores = torch.where(cmask[None, None], scores, -1e9)
        p = _softmax(scores, axis=-1)
        ctx = torch.einsum("bhqk,bhkd->bhqd", p, v)
        return torch.einsum("bhqd,hdm->bqm", ctx, w_o)

    def _B_ref(x, wqkv, w_phi, wo):
        B, S, D = x.shape
        H = 32; Dh = D // H
        qkv = (lambda x, *d: x.permute(*d))((x @ wqkv).reshape(B, S, 3, H, Dh), 2, 0, 3, 1, 4)
        q, k, v = qkv[0], qkv[1], qkv[2]
        pq = torch.einsum("bhsd,hdf->bhsf", q, w_phi)
        pk = torch.einsum("bhsd,hdf->bhsf", k, w_phi)
        phi_q = torch.concatenate([_softmax(pq, axis=-1), _softmax(-pq, axis=-1)], axis=-1)
        phi_k = torch.concatenate([_softmax(pk, axis=-1), _softmax(-pk, axis=-1)], axis=-1)
        kv = torch.einsum("bhsf,bhsd->bhfd", phi_k, v)
        z  = torch.einsum("bhsf->bhf", phi_k)
        num = torch.einsum("bhqf,bhfd->bhqd", phi_q, kv)
        den = torch.einsum("bhqf,bhf->bhq", phi_q, z)[..., None] + 1e-6
        o = num / den
        return (lambda x, *d: x.permute(*d))(o, 0, 2, 1, 3).reshape(B, S, D) @ wo

    a = _A_ref(A_x, A_c_kv, A_w_q, A_w_uk, A_w_uv, A_w_o)
    b = _B_ref(B_x, B_wqkv, B_w_phi, B_wo)
    return torch.concatenate([a, b], axis=-1)
```

```python
import copy


class R:
    __slots__ = ("k", "i", "n")

    def __init__(self, k, i, n=1):
        self.k, self.i, self.n = k, i, n

    def __str__(self):
        if self.k in ("vcc", "m0", "exec", "scc"):
            return self.k
        if self.n == 1:
            return f"{self.k}{self.i}"
        return f"{self.k}[{self.i}:{self.i + self.n - 1}]"

    __repr__ = __str__

    def regs(self):
        if self.k in ("vcc", "m0", "exec", "scc"):
            return [(self.k, 0)]
        return [(self.k, self.i + j) for j in range(self.n)]

    def __getitem__(self, x):
        if isinstance(x, slice):
            a = x.start or 0
            b = self.n if x.stop is None else x.stop
            assert 0 <= a < b <= self.n, (self, x)
            return R(self.k, self.i + a, b - a)
        assert 0 <= x < self.n, (self, x)
        return R(self.k, self.i + x, 1)

    def sub(self, a, n):
        return self[a:a + n]


def v(i, n=1):
    return R("v", i, n)


def a(i, n=1):
    return R("a", i, n)


def s(i, n=1):
    return R("s", i, n)


VCC = R("vcc", 0, 2)
M0 = R("m0", 0)
EXEC = R("exec", 0, 2)


class Neg:
    def __init__(self, r):
        self.r = r

    def __str__(self):
        return f"-{self.r}"


TRANS = ("v_exp_f32", "v_log_f32", "v_rcp_f32", "v_rsq_f32", "v_sqrt_f32", "v_sin_f32", "v_cos_f32", "v_rcp_iflag_f32")


class I:
    def __init__(self, name, ops=(), mods="", cls=None, dst=None, src=None, comment=None):
        self.name, self.ops, self.mods = name, list(ops), mods
        self.comment = comment
        self.passes = 0
        self.A = self.B = self.C = self.D = None
        self.tag = None
        regs = lambda o: (o.r.regs() if isinstance(o, Neg) else o.regs()) if isinstance(o, (R, Neg)) else []
        ops = self.ops
        d, sr = [], []
        if cls is None:
            n = name
            if n.startswith("v_mfma"):
                cls = "mfma"
                self.D, self.A, self.B, self.C = ops[0], ops[1], ops[2], ops[3]
                self.passes = 8 if "32x32x16" in n else 4 if "16x16x32" in n else None
                assert self.passes
                d = regs(ops[0])
                sr = regs(ops[1]) + regs(ops[2]) + regs(ops[3])
            elif n.startswith("v_"):
                cls = "trans" if n in TRANS else "valu"
                if n.startswith("v_permlane") and "swap" in n:
                    d = regs(ops[0]) + regs(ops[1])
                    sr = list(d)
                elif n.startswith("v_add_co") or n.startswith("v_sub_co") or n.startswith("v_addc_co"):
                    d = regs(ops[0]) + regs(ops[1])
                    for o in ops[2:]:
                        sr += regs(o)
                else:
                    d = regs(ops[0])
                    for o in ops[1:]:
                        sr += regs(o)
                    if n.startswith("v_fmac") or n.startswith("v_dot2c") or n.startswith("v_pk_fmac"):
                        sr += d
            elif n.startswith("ds_read") or n.startswith("ds_bpermute") or n.startswith("ds_swizzle"):
                cls = "dsr"
                d = regs(ops[0])
                for o in ops[1:]:
                    sr += regs(o)
            elif n.startswith("ds_write"):
                cls = "dsw"
                for o in ops:
                    sr += regs(o)
            elif n.startswith("buffer_load") or n.startswith("global_load"):
                if " lds" in (" " + mods):
                    cls = "dma"
                    for o in ops:
                        sr += regs(o)
                    sr += [("m0", 0)]
                else:
                    cls = "vld"
                    d = regs(ops[0])
                    for o in ops[1:]:
                        sr += regs(o)
            elif n.startswith("buffer_store") or n.startswith("global_store"):
                cls = "vst"
                for o in ops:
                    sr += regs(o)
            elif n.startswith("buffer_atomic") or n.startswith("global_atomic"):
                cls = "vatom"
                for o in ops:
                    sr += regs(o)
                if "sc0" in mods:
                    d = regs(ops[0])
            elif n in ("buffer_wbl2", "buffer_inv"):
                cls = "vst"
            elif n.startswith("s_load"):
                cls = "smem"
                d = regs(ops[0])
                sr = regs(ops[1])
            elif n == "s_waitcnt":
                cls = "wait"
            elif n == "s_barrier":
                cls = "bar"
            elif n == "s_nop":
                cls = "nop"
            elif n.startswith("s_cbranch") or n in ("s_branch", "s_endpgm", "s_setpc_b64"):
                cls = "br"
            elif n.startswith("s_cmp") or n in ("s_setprio", "s_sleep"):
                cls = "salu"
                for o in ops:
                    sr += regs(o)
            elif n.startswith("s_"):
                cls = "salu"
                d = regs(ops[0])
                for o in ops[1:]:
                    sr += regs(o)
            else:
                raise ValueError(name)
        self.cls = cls
        self.dst = d if dst is None else dst
        self.src = sr if src is None else src

    def text(self):
        if self.cls == "label":
            return f"{self.name}:"
        if self.cls == "raw":
            return self.name
        t = self.name
        if self.ops:
            t += " " + ", ".join(fmt(o) for o in self.ops)
        if self.mods:
            t += " " + self.mods
        if self.comment:
            t += "  ; " + self.comment
        return t


def fmt(o):
    if isinstance(o, float):
        import struct
        if o in (0.5, 1.0, 2.0, 4.0, -0.5, -1.0, -2.0, -4.0):
            return repr(o)
        if o == 0.0:
            return "0"
        return hex(struct.unpack("<I", struct.pack("<f", o))[0])
    if isinstance(o, int):
        if -16 <= o <= 64:
            return str(o)
        return hex(o & 0xFFFFFFFF)
    return str(o)


def label(name):
    return I(name, cls="label")


def raw(text):
    return I(text, cls="raw")


def waitcnt(vm=None, lgkm=None):
    m = []
    if vm is not None:
        assert 0 <= vm <= 63, vm
        m.append(f"vmcnt({vm})")
    if lgkm is not None:
        assert 0 <= lgkm <= 15, lgkm
        m.append(f"lgkmcnt({lgkm})")
    i = I("s_waitcnt", mods=" ".join(m))
    i.vm, i.lgkm = vm, lgkm
    return i


def nop(n):
    assert 1 <= n <= 16
    i = I("s_nop", [n - 1])
    i.states = n
    return i


HORIZON = 24


class State:
    def __init__(self):
        self.ev = {}
        self.lg = {}
        self.vm = {}
        self.smem = False

    def copy(self):
        return copy.deepcopy(self)

    def merge(self, o):
        r = State()
        for k in set(self.ev) | set(o.ev):
            x, y = self.ev.get(k), o.ev.get(k)
            if x is None:
                r.ev[k] = y
            elif y is None:
                r.ev[k] = x
            else:
                if x[1] != y[1]:
                    ex = (max(x[1][0], y[1][0]), None) if isinstance(x[1], tuple) else max(x[1], y[1])
                    r.ev[k] = (min(x[0], y[0]), ex)
                else:
                    r.ev[k] = (min(x[0], y[0]), x[1])
        for nm in ("lg", "vm"):
            A, B, C = getattr(self, nm), getattr(o, nm), getattr(r, nm)
            for k in set(A) | set(B):
                C[k] = min(A.get(k, 1 << 30), B.get(k, 1 << 30))
        r.smem = self.smem or o.smem
        return r

    def same(self, o):
        return self.ev == o.ev and self.lg == o.lg and self.vm == o.vm and self.smem == o.smem

    def tick(self, n):
        self.ev = {k: (x[0] + n, x[1]) for k, x in self.ev.items() if x[0] + n < HORIZON}


def _need(st, ins):
    need = 0
    ev = st.ev

    def req(kind, reg, n):
        nonlocal need
        e = ev.get((kind, reg))
        if e is not None and n - e[0] > need:
            need = n - e[0]

    def mf(reg, n8, n4):
        e = ev.get(("mw", reg))
        if e is not None:
            req("mw", reg, n8 if e[1][0] == 8 else n4)

    c = ins.cls
    isv = c in ("valu", "trans")
    ismem = c in ("dsr", "dsw", "vld", "vst", "dma", "vatom")
    if c == "mfma":
        cregs = set(ins.C.regs()) if isinstance(ins.C, R) else set()
        ab = set(ins.A.regs()) | set(ins.B.regs())
        for r in cregs | ab:
            req("vw", r, 2)
        for r in cregs:
            e = ev.get(("mw", r))
            if e is not None:
                same = e[1][1] == (ins.C.k, ins.C.i, ins.C.n) and e[1][0] == ins.passes
                if not same:
                    mf(r, 10, 6)
        for r in ab:
            mf(r, 12, 8)
        req("exw", ("exec", 0), 4)
    elif isv:
        n = ins.name
        for r in ins.src:
            if r[0] in "va":
                mf(r, 12, 8)
                if c != "trans":
                    req("tw", r, 1)
                if n.startswith("v_permlane") or "dpp" in n or "row_" in ins.mods or "quad_perm" in ins.mods:
                    req("vw", r, 2)
                if n.startswith("v_readfirstlane") or n.startswith("v_readlane"):
                    req("vw", r, 1)
            else:
                req("sw", r, 4 if "lane" in n else 2)
        for r in ins.dst:
            if r[0] in "va":
                mf(r, 12, 8)
                e = ev.get(("cr", r))
                if e is not None:
                    req("cr", r, 7 if e[1] == 8 else 3)
                req("sd", r, 2)
    elif ismem:
        for r in ins.src:
            if r[0] in "va":
                mf(r, 12, 8)
                req("tw", r, 1)
            elif r[0] == "m0":
                req("m0w", r, 1)
            else:
                req("sw", r, 5)
        for r in ins.dst:
            mf(r, 12, 8)
            e = ev.get(("cr", r))
            if e is not None:
                req("cr", r, 7 if e[1] == 8 else 3)
            req("sd", r, 1)
    elif c == "salu" or c == "br" or c == "smem":
        for r in ins.src:
            req("sw", r, 1)
    return need


def _record(st, ins):
    c = ins.cls
    ev = st.ev
    if c == "mfma":
        for r in ins.dst:
            ev[("mw", r)] = (0, (ins.passes, (ins.D.k, ins.D.i, ins.D.n)))
            ev.pop(("vw", r), None)
            ev.pop(("tw", r), None)
        if isinstance(ins.C, R):
            for r in ins.C.regs():
                ev[("cr", r)] = (0, ins.passes)
    elif c in ("valu", "trans"):
        for r in ins.dst:
            if r[0] in "va":
                ev[("vw", r)] = (0, 0)
                ev.pop(("mw", r), None)
                if c == "trans":
                    ev[("tw", r)] = (0, 0)
                else:
                    ev.pop(("tw", r), None)
            elif r[0] == "exec":
                ev[("exw", r)] = (0, 0)
            else:
                ev[("sw", r)] = (0, 0)
    elif c == "salu":
        for r in ins.dst:
            if r[0] == "m0":
                ev[("m0w", r)] = (0, 0)
            ev.pop(("sw", r), None)
    elif c == "vst":
        if "x4" in ins.name or "x3" in ins.name:
            data = ins.ops[0] if ins.name.startswith("buffer") else ins.ops[1]
            for r in data.regs():
                ev[("sd", r)] = (0, 0)


def resolve(instrs, st, saved=None):
    st = st.copy()
    out = []
    saved = {} if saved is None else saved
    uncond = False

    def emit(i):
        out.append(i)
        st.tick(getattr(i, "states", 1))

    def do_wait(vm=None, lgkm=None):
        w = waitcnt(vm, lgkm)
        apply_wait(w)
        emit(w)

    def apply_wait(w):
        if w.lgkm is not None:
            st.lg = {k: x for k, x in st.lg.items() if x < w.lgkm}
            if w.lgkm == 0:
                st.smem = False
        if w.vm is not None:
            st.vm = {k: x for k, x in st.vm.items() if x < w.vm}

    for ins in instrs:
        if ins.cls in ("label", "raw"):
            out.append(ins)
            if ins.cls == "label" and ins.name in saved:
                m = saved[ins.name].copy() if uncond else st.merge(saved[ins.name])
                st.ev, st.lg, st.vm, st.smem = m.ev, m.lg, m.vm, m.smem
            if ins.cls == "label":
                uncond = False
            continue
        uncond = ins.name in ("s_branch", "s_endpgm")
        if ins.cls == "wait":
            apply_wait(ins)
            emit(ins)
            continue
        touched = list(ins.src) + list(ins.dst)
        nl = [st.lg[r] for r in touched if r in st.lg]
        nv = [st.vm[r] for r in touched if r in st.vm]
        if nl or nv:
            lg = min(min(nl), 15) if nl else None
            if lg is not None and st.smem:
                lg = 0
            do_wait(min(min(nv), 63) if nv else None, lg)
        n = _need(st, ins)
        while n > 0:
            k = min(n, 16)
            emit(nop(k))
            n -= k
        emit(ins)
        _record(st, ins)
        c = ins.cls
        if c == "br" and ins.ops and isinstance(ins.ops[0], str):
            t = ins.ops[0]
            saved[t] = saved[t].merge(st) if t in saved else st.copy()
        if c in ("dsr", "dsw", "smem"):
            st.lg = {k: x + 1 for k, x in st.lg.items()}
            for r in ins.dst:
                st.lg[r] = 0
            if c == "smem":
                st.smem = True
        if c in ("vld", "vst", "dma", "vatom"):
            st.vm = {k: x + 1 for k, x in st.vm.items()}
            for r in ins.dst:
                st.vm[r] = 0
    return out, st


class Prog:
    def __init__(self):
        self.out = []
        self.st = State()
        self.saved = {}

    def add(self, instrs):
        o, self.st = resolve(instrs, self.st, self.saved)
        self.out += o

    def loop(self, head, body, extra_in=()):
        st = self.st
        for e in extra_in:
            st = st.merge(e)
        for _ in range(8):
            o, so = resolve(body, st, self.saved)
            m = st.merge(so)
            if m.same(st):
                break
            st = m
        else:
            raise RuntimeError("loop state did not converge")
        self.out.append(label(head))
        self.out += o
        self.st = so

    def save(self, name):
        if name in self.saved:
            self.saved[name] = self.saved[name].merge(self.st)
        else:
            self.saved[name] = self.st.copy()

    def join(self, name, fallthrough=True):
        self.out.append(label(name))
        sv = self.saved.get(name)
        if sv is not None:
            self.st = self.st.merge(sv) if fallthrough else sv.copy()

    def text(self):
        return "\n".join(("" if i.cls in ("label", "raw") else "  ") + i.text() for i in self.out) + "\n"


def interleave(main, fill, start=0, end=None):
    n = len(main)
    end = n if end is None else end
    gaps = [[] for _ in range(n)]
    cost = lambda i: 2.0 if i.cls == "trans" else 1.0
    tot = sum(cost(i) for i in fill)
    ng = end - start
    acc = 0.0
    for f in fill:
        g = start + min(ng - 1, int((acc + cost(f) * 0.5) / tot * ng)) if tot else start
        gaps[g].append(f)
        acc += cost(f)
    return gaps


def weave(main, *gaplists):
    out = []
    for j, m in enumerate(main):
        out.append(m)
        for g in gaplists:
            out += g[j]
    return out


def kernel_text(name, prog, nvgpr, accum, nsgpr=96):
    t = f".globl {name}\n.p2align 8\n.type {name},@function\n{name}:\n" + prog.text()
    kd = (f".amdhsa_kernel {name}\n  .amdhsa_next_free_vgpr {nvgpr}\n  .amdhsa_next_free_sgpr {nsgpr}\n"
          f"  .amdhsa_accum_offset {accum}\n  .amdhsa_group_segment_fixed_size 0\n  .amdhsa_kernarg_size 104\n"
          "  .amdhsa_user_sgpr_count 2\n  .amdhsa_user_sgpr_kernarg_segment_ptr 1\n"
          "  .amdhsa_system_sgpr_workgroup_id_x 1\n.end_amdhsa_kernel\n")
    return t, kd
```

```python
from asmgen import *

KA = dict(A_x=0, A_c_kv=8, A_w_q=16, A_w_uk=24, A_w_uv=32, A_w_o=40, B_x=48, B_wqkv=56, B_w_phi=64, B_wo=72,
          out=80, dbg=88, ws=96)
NBYTES = dict(A_x=2048 * 576 * 2, A_c_kv=2048 * 512 * 2, A_w_q=576 * 4096 * 2, A_w_uk=512 * 4096 * 2,
              A_w_uv=512 * 4096 * 2, A_w_o=4096 * 576 * 2, B_x=2048 * 576 * 2, B_wqkv=576 * 1728 * 2,
              B_w_phi=32 * 18 * 18 * 2, B_wo=576 * 576 * 2, out=2048 * 1152 * 2, dbg=256, ws=268435456)
MB = 1 << 20
WS_KF = 0
WS_VF = 16 * MB
WS_CTX = 32 * MB
WS_PART = 48 * MB
WS_B = 96 * MB

MF32 = "v_mfma_f32_32x32x16_bf16"
MF16 = "v_mfma_f32_16x16x32_bf16"


def load_srds(names, first_srd, tmp=s(64, 2)):
    o = []
    srds = {}
    for i, n in enumerate(names):
        r = s(first_srd + 4 * i, 4)
        srds[n] = r
        o.append(I("s_load_dwordx2", [r[0:2], s(0, 2), KA[n]]))
    o.append(waitcnt(lgkm=0))
    for i, n in enumerate(names):
        r = srds[n]
        o.append(I("s_mov_b32", [r[2], NBYTES[n]]))
        o.append(I("s_mov_b32", [r[3], 0x20000]))
    return o, srds


def mfma(D, A, B, C, name=MF32):
    return I(name, [D, A, B, C])


def dsr128(dst, addr, off=0):
    assert 0 <= off < 65536
    return I("ds_read_b128", [dst, addr], f"offset:{off}" if off else "")


def dsrtr(dst, addr, off=0):
    assert 0 <= off < 65536
    return I("ds_read_b64_tr_b16", [dst, addr], f"offset:{off}" if off else "")


def dma(voff, srd, soff, off=0):
    assert 0 <= off < 4096
    return I("buffer_load_dwordx4", [voff, srd, soff], f"offen offset:{off} lds" if off else "offen lds")


def bload4(dst, voff, srd, soff, off=0, mods=""):
    assert 0 <= off < 4096
    return I("buffer_load_dwordx4", [dst, voff, srd, soff], (f"offen offset:{off}" if off else "offen") + (" " + mods if mods else ""))


def bstore4(src, voff, srd, soff, off=0, mods=""):
    assert 0 <= off < 4096
    return I("buffer_store_dwordx4", [src, voff, srd, soff], (f"offen offset:{off}" if off else "offen") + (" " + mods if mods else ""))


def V(name, *ops, mods=""):
    return I(name, list(ops), mods)


S = V
```

```python
from common import *


def gemm_phase(P, name, NE, NSLOT, ndma, dma_chunk, reads, mfmas, addr_update, sE, extra=None, prologue=True,
               vm_extra=0, rd_span=None):
    o = []
    if prologue:
        for c in range(min(NSLOT - 1, NE)):
            o += dma_chunk()

    def body(e_first, with_dma, vm, fill=()):
        b = [waitcnt(vm=min(vm, 63), lgkm=0), I("s_barrier")]
        b += addr_update()
        d = dma_chunk() if with_dma else []
        fill = list(fill)
        h = len(fill) // 2
        if e_first:
            b += reads(0, 0)
            b += d
            m0 = mfmas(0, True)
            n = len(m0)
            b += weave(m0, interleave(m0, reads(1, 1), 0, rd_span or max(1, n * 3 // 4)), interleave(m0, fill, 0, n))
        else:
            m1 = mfmas(1, False)
            n = len(m1)
            sp = rd_span or max(1, n * 3 // 4)
            b += weave(m1, interleave(m1, reads(0, 0), 0, sp), interleave(m1, d, 0, n), interleave(m1, fill[:h], 0, n))
            m0 = mfmas(0, False)
            b += weave(m0, interleave(m0, reads(1, 1), 0, sp), interleave(m0, fill[h:], 0, n))
        return b

    last_dma = NE - NSLOT
    steady = ndma * (NSLOT - 2) + vm_extra
    ex = extra or {}
    o += body(True, 0 <= last_dma, min(steady, ndma * (NE - 1)), ex.get(0, ()))
    if extra is None and last_dma >= 2:
        o.append(S("s_mov_b32", sE, 1))
        P.add(o)
        lb = body(False, True, steady)
        lb.append(S("s_add_u32", sE, sE, 1))
        lb.append(S("s_cmp_le_u32", sE, last_dma))
        lb.append(I("s_cbranch_scc1", [name + "_LOOP"]))
        P.loop(name + "_LOOP", lb)
        o = []
        first_tail = last_dma + 1
    else:
        first_tail = 1
    for e in range(first_tail, NE):
        if e <= last_dma:
            o += body(False, True, steady, ex.get(e, ()))
        else:
            o += body(False, False, ndma * (NE - 1 - e), ex.get(e, ()))
    o += mfmas(1, False)
    P.add(o)


def ring_advance(regs, slot, nslot, tmp, base=0):
    d = []
    for r in regs:
        d.append(S("s_add_u32", r, r, slot))
    d.append(S("s_cmp_ge_u32", regs[0], base + nslot * slot))
    d.append(S("s_cselect_b32", tmp, nslot * slot, 0))
    for r in regs:
        d.append(S("s_sub_u32", r, r, tmp))
    return d


class Stamps:
    def __init__(self, on, base=80):
        self.on, self.base = on, base

    def __call__(self, i, real=False):
        if not self.on:
            return []
        r = s(self.base + 2 * i, 2)
        return [I("s_memrealtime" if real else "s_memtime", [r], cls="smem", dst=r.regs(), src=[]), waitcnt(lgkm=0)]

    def dump(self, sWS, sWV, nw, t0, t1, sT0, n=8, off=200 * MB):
        if not self.on:
            return []
        o = [S("s_mul_i32", sT0, s(2), nw), S("s_add_u32", sT0, sT0, sWV), S("s_lshl_b32", sT0, sT0, 6),
             S("s_add_u32", sT0, sT0, off), V("v_mov_b32", t0, 0)]
        for i in range(2 * n):
            o.append(V("v_mov_b32", t1, s(self.base + i)))
            o.append(I("buffer_store_dword", [t1, t0, sWS, sT0], f"offen offset:{4 * i}"))
        return o
```

```python
from common import *
from gemm import *

NSLOT = 5
SLOT = 32768


def gen_k1(name="k1_kernel", store_mods="", stamps=False, exp=""):
    P = Prog()
    o = []
    A = o.append
    st = Stamps(stamps)
    sWV, sHEAD, sRB, sE, sXO, sWO, sRD, sWR, sT0, sT1, sWM, sWN, sWRW = [s(24 + i) for i in range(13)]
    A(S("s_cmp_ge_u32", s(2), 256))
    A(I("s_cbranch_scc1", ["K1_END"]))
    o += st(0) + st(5, True)
    ld, srd = load_srds(["A_c_kv", "A_w_uk", "A_w_uv", "ws"], 8)
    o += ld[:4]
    vL = v(1)
    A(V("v_lshrrev_b32", v(2), 6, v(0)))
    A(V("v_and_b32", vL, 63, v(0)))
    A(V("v_readfirstlane_b32", sWV, v(2)))
    A(S("s_and_b32", sT0, s(2), 7))
    A(S("s_lshl_b32", sT0, sT0, 2))
    A(S("s_lshr_b32", sT1, s(2), 3))
    A(S("s_and_b32", sT1, sT1, 3))
    A(S("s_add_u32", sHEAD, sT0, sT1))
    A(S("s_lshr_b32", sRB, s(2), 5))
    A(S("s_and_b32", sWM, sWV, 1))
    A(S("s_lshr_b32", sWN, sWV, 1))
    vXg = [v(4), v(5)]
    vWg = v(6)
    vXc = [v(7), v(8)]
    vWc = v(9)
    vXa = [v(10), v(11)]
    vWa = v(12)
    t0, t1, t2, t3 = v(13), v(14), v(15), v(16)
    vST = v(17)
    A(S("s_lshl_b32", sT0, sRB, 8))
    A(S("s_lshl_b32", sT1, sWV, 5))
    A(S("s_add_u32", sT0, sT0, sT1))
    A(V("v_lshrrev_b32", t0, 2, vL))
    A(V("v_add_u32", t0, sT0, t0))
    A(V("v_lshlrev_b32", t0, 10, t0))
    A(V("v_lshrrev_b32", t1, 4, vL))
    A(V("v_xor_b32", t1, t1, vL))
    A(V("v_and_b32", t1, 3, t1))
    A(V("v_lshl_add_u32", vXg[0], t1, 4, t0))
    A(V("v_add_u32", vXg[1], 16384 - 1024, vXg[0]))
    A(S("s_lshl_b32", sT0, sWV, 2))
    A(V("v_lshrrev_b32", t0, 4, vL))
    A(V("v_add_u32", t1, sT0, t0))
    A(V("v_lshlrev_b32", t1, 13, t1))
    A(V("v_lshrrev_b32", t2, 2, vL))
    A(V("v_xor_b32", t2, t2, t0))
    A(V("v_and_b32", t2, 3, t2))
    A(V("v_and_b32", t3, 3, vL))
    A(V("v_lshl_add_u32", t2, t2, 2, t3))
    A(V("v_lshl_add_u32", t1, t2, 4, t1))
    A(S("s_lshl_b32", sT0, sHEAD, 8))
    A(V("v_add_u32", vWg, sT0, t1))
    o += ld[4:]
    sX, sWk, sWv, sWS = srd["A_c_kv"], srd["A_w_uk"], srd["A_w_uv"], srd["ws"]
    A(S("s_mov_b32", sXO, 0))
    A(S("s_mov_b32", sWO, 0))
    A(S("s_lshl_b32", sWR, sWV, 11))
    A(S("s_lshl_b32", sWRW, sWV, 10))
    A(S("s_add_u32", sWRW, sWRW, 16384))
    A(S("s_mov_b32", sRD, 0))

    def dma_chunk():
        d = [S("s_mov_b32", M0, sWR)]
        for i in range(2):
            d.append(dma(vXg[i], sX, sXO, i * 1024))
        d.append(S("s_mov_b32", M0, sWRW))
        d.append(dma(vWg, sWk, sWO))
        d.append(S("s_add_u32", M0, sWRW, 8192))
        d.append(dma(vWg, sWv, sWO))
        d.append(S("s_add_u32", sXO, sXO, 64))
        d.append(S("s_add_u32", sWO, sWO, 32 * 8192))
        d += ring_advance([sWR, sWRW], SLOT, NSLOT, sT0)
        return d

    for c in range(NSLOT - 1):
        o += dma_chunk()
    A(V("v_and_b32", t0, 31, vL))
    A(S("s_lshl_b32", sT0, sWM, 13))
    A(V("v_lshlrev_b32", t1, 6, t0))
    A(V("v_add_u32", t1, sT0, t1))
    A(V("v_lshrrev_b32", t2, 5, vL))
    A(V("v_bfe_u32", t3, vL, 2, 2))
    A(V("v_xor_b32", t2, t2, t3))
    A(V("v_lshl_add_u32", vXc[0], t2, 4, t1))
    A(V("v_xor_b32", vXc[1], 32, vXc[0]))
    A(V("v_lshrrev_b32", t0, 5, vL))
    A(V("v_bfe_u32", t1, vL, 2, 2))
    A(V("v_lshl_add_u32", t0, t0, 3, t1))
    A(V("v_lshlrev_b32", t0, 8, t0))
    A(V("v_bfe_u32", t2, vL, 4, 1))
    A(V("v_lshl_add_u32", t0, t2, 5, t0))
    A(V("v_and_b32", t2, 3, vL))
    A(V("v_lshl_add_u32", t0, t2, 3, t0))
    A(V("v_xor_b32", t1, sWN, t1))
    A(V("v_lshl_add_u32", vWc, t1, 6, t0))

    acc = [[a((m * 2 + j) * 16, 16) for j in range(2)] for m in range(4)]
    Xf = [[v(32 + (b * 4 + m) * 4, 4) for m in range(4)] for b in range(2)]
    Wf = [[v(64 + (b * 2 + j) * 4, 4) for j in range(2)] for b in range(2)]

    def reads(ks, b):
        r = [dsr128(Xf[b][0], vXa[ks], 0)]
        for j in range(2):
            for t in range(2):
                r.append(dsrtr(Wf[b][j][2 * t:2 * t + 2], vWa, 16384 + j * 8192 + (16 * ks + 4 * t) * 256))
        for m in range(1, 4):
            r.append(dsr128(Xf[b][m], vXa[ks], m * 2048))
        return r

    def mfmas(b, first):
        r = []
        for m in range(4):
            for j in range(2):
                C = 0 if first else acc[m][j]
                if j == 0:
                    r.append(mfma(acc[m][j], Wf[b][j], Xf[b][m], C))
                else:
                    r.append(mfma(acc[m][j], Xf[b][m], Wf[b][j], C))
        return r

    def addr_update():
        r = [V("v_add_u32", vXa[i], sRD, vXc[i]) for i in range(2)]
        r.append(V("v_add_u32", vWa, sRD, vWc))
        r.append(S("s_add_u32", sRD, sRD, SLOT))
        r.append(S("s_cmp_ge_u32", sRD, NSLOT * SLOT))
        r.append(S("s_cselect_b32", sRD, 0, sRD))
        return r

    if stamps:
        A(waitcnt(vm=4 * (NSLOT - 2)))
        o += st(1)
    P.add(o)
    gemm_phase(P, "K1", 16, NSLOT, 4, dma_chunk, reads, mfmas, addr_update, sE, prologue=False)
    o = []
    A = o.append
    o += st(2)
    A(S("s_lshl_b32", sT0, sHEAD, 19))
    A(S("s_lshl_b32", sT1, sRB, 16))
    A(S("s_add_u32", sT0, sT0, sT1))
    A(S("s_lshl_b32", sT1, sWM, 15))
    A(S("s_add_u32", sT0, sT0, sT1))
    A(V("v_lshlrev_b32", vST, 4, vL))
    A(V("v_add_u32", vST, sT0, vST))
    sK, sV0, sV1 = s(44), s(45), s(46)
    A(S("s_lshl_b32", sK, sWN, 11))
    A(S("s_lshl_b32", sV0, sWN, 10))
    A(S("s_add_u32", sK, sK, WS_KF))
    A(S("s_add_u32", sV0, sV0, WS_VF))
    A(S("s_add_u32", sV1, sV0, 4096))
    tmp = [v(80 + 16 * i, 16) for i in range(3)]
    pk = [v(32 + 8 * i, 8) for i in range(6)]
    n = 0
    for m in range(4):
        for j in range(2):
            T, Pk = tmp[n % 3], pk[n % 6]
            n += 1
            for r in range(16):
                A(V("v_accvgpr_read_b32", T[r], acc[m][j][r]))
            for r in range(8):
                A(V("v_cvt_pk_bf16_f32", Pk[r], T[2 * r], T[2 * r + 1]))
            for b in range(2):
                if j == 0:
                    A(bstore4(Pk[4 * b:4 * b + 4], vST, sWS, sK, b * 1024, store_mods))
                else:
                    A(bstore4(Pk[4 * b:4 * b + 4], vST, sWS, sV1 if b else sV0, 0, store_mods))
        for r in (sK, sV0, sV1):
            A(S("s_add_u32", r, r, 8192))
    if stamps:
        o += st(3)
        A(waitcnt(vm=0))
        o += st(4) + st(6, True)
        o += st.dump(sWS, sWV, 8, t0, t1, sT0)
    P.add(o)
    P.out.append(label("K1_END"))
    P.out.append(I("s_endpgm"))
    return kernel_text(name, P, 256, 128, nsgpr=100)
```

```python
from common import *
from gemm import *
import math

QSLOT = 24576
QNSLOT = 4
QBASE = 65536
ASLOT = 32768
LA = 6
THR_LOG2 = 60.0
HEADROOM = 40.0
CSCALE = (128 ** -0.5) * math.log2(math.e)


def gen_k2(name="k2_kernel", store_mods="", stamps=False, exp=""):
    P = Prog()
    o = []
    A = o.append
    st = Stamps(stamps)
    (sWV, sHEAD, sPI, sE, sXO, sWO, sRD, sWR, sT0, sT1, sWRW, sSUB, sWQ, sQB, sN, sKO, sVO, sQ0, sCNT, sNB,
     sREM) = [s(32 + i) for i in range(21)]
    sM = [s(56 + 2 * i, 2) for i in range(4)]
    A(S("s_cmp_ge_u32", s(2), 256))
    A(I("s_cbranch_scc1", ["K2_END"]))
    o += st(0) + st(6, True)
    ld, srd = load_srds(["A_x", "A_w_q", "ws"], 8)
    o += ld[:3]
    sX, sWq, sWS = srd["A_x"], srd["A_w_q"], srd["ws"]
    sK, sV = s(20, 4), s(24, 4)
    vL = v(1)
    A(V("v_lshrrev_b32", v(2), 6, v(0)))
    A(V("v_and_b32", vL, 63, v(0)))
    A(V("v_readfirstlane_b32", sWV, v(2)))
    A(S("s_and_b32", sT0, s(2), 7))
    A(S("s_lshl_b32", sT0, sT0, 2))
    A(S("s_lshr_b32", sT1, s(2), 3))
    A(S("s_and_b32", sT1, sT1, 3))
    A(S("s_add_u32", sHEAD, sT0, sT1))
    A(S("s_lshr_b32", sPI, s(2), 5))
    A(S("s_lshr_b32", sSUB, sWV, 2))
    A(S("s_and_b32", sWQ, sWV, 3))
    A(S("s_sub_u32", sT0, 15, sPI))
    A(S("s_cmp_eq_u32", sSUB, 0))
    A(S("s_cselect_b32", sQB, sPI, sT0))
    A(S("s_add_u32", sN, sQB, 1))
    A(S("s_lshl_b32", sN, sN, 2))
    A(S("s_add_u32", sNB, sT0, 1))
    A(S("s_lshl_b32", sNB, sNB, 2))
    A(S("s_lshl_b32", sQ0, sQB, 7))
    A(S("s_lshl_b32", sT1, sWQ, 5))
    A(S("s_add_u32", sQ0, sQ0, sT1))
    vXg = [v(3), v(4)]
    vWg = v(5)
    vXc = [v(6), v(7)]
    vWc = v(8)
    vXa = [v(9), v(10)]
    vWa = [v(11), v(12), v(13), v(14)]
    t0, t1, t2, t3 = v(15), v(16), v(17), v(18)
    vKVg, vAc, vAn, vL16 = v(19), v(20), v(21), v(22)
    vLs, vThr, vLB, vD, vNINF = v(23), v(24), v(25), v(26), v(27)
    vB = [v(28), v(29)]
    vF, vDl = v(30), v(31)
    Sb = [v(32, 16), v(48, 16)]
    NEGM = v(64, 16)
    Pb = [v(80, 8), v(88, 8)]
    T = [v(96 + i) for i in range(16)]
    O = [a(16 * i, 16) for i in range(4)]
    Q = [a(64 + 4 * i, 4) for i in range(8)]
    FR = [a(96 + 4 * i, 4) for i in range(8)]
    A(V("v_lshrrev_b32", t0, 2, vL))
    A(V("v_add_u32", t0, sQ0, t0))
    A(V("v_mul_u32_u24", t0, 1152, t0))
    A(V("v_lshrrev_b32", t1, 4, vL))
    A(V("v_xor_b32", t1, t1, vL))
    A(V("v_and_b32", t1, 3, t1))
    A(V("v_lshl_add_u32", vXg[0], t1, 4, t0))
    A(V("v_add_u32", vXg[1], 16 * 1152 - 1024, vXg[0]))
    A(S("s_lshl_b32", sT0, sWV, 2))
    A(V("v_lshrrev_b32", t0, 4, vL))
    A(V("v_add_u32", t1, sT0, t0))
    A(V("v_lshlrev_b32", t1, 13, t1))
    A(V("v_lshrrev_b32", t2, 2, vL))
    A(V("v_xor_b32", t2, t2, t0))
    A(V("v_and_b32", t2, 3, t2))
    A(V("v_and_b32", t3, 3, vL))
    A(V("v_lshl_add_u32", t2, t2, 2, t3))
    A(V("v_lshl_add_u32", t1, t2, 4, t1))
    A(S("s_lshl_b32", sT0, sHEAD, 8))
    A(V("v_add_u32", vWg, sT0, t1))
    A(V("v_lshlrev_b32", vL16, 4, vL))
    A(S("s_lshl_b32", sT0, sWQ, 12))
    A(V("v_add_u32", vKVg, sT0, vL16))
    o += ld[3:]
    A(S("s_lshl_b32", sT0, sHEAD, 19))
    A(S("s_add_u32", sK[0], sWS[0], sT0))
    A(S("s_addc_u32", sK[1], sWS[1], 0))
    A(S("s_lshl_b32", sK[2], sNB, 13))
    A(S("s_mov_b32", sK[3], 0x20000))
    A(S("s_add_u32", sV[0], sK[0], WS_VF - WS_KF))
    A(S("s_addc_u32", sV[1], sK[1], 0))
    A(S("s_mov_b32", sV[2], sK[2]))
    A(S("s_mov_b32", sV[3], 0x20000))
    assert WS_KF == 0
    A(S("s_mov_b32", sXO, 0))
    A(S("s_mov_b32", sWO, 0))
    A(S("s_lshl_b32", sWR, sWV, 11))
    A(S("s_add_u32", sWR, sWR, QBASE))
    A(S("s_lshl_b32", sWRW, sWV, 10))
    A(S("s_add_u32", sWRW, sWRW, QBASE + 16384))
    A(S("s_mov_b32", sRD, QBASE))

    def qdma_chunk():
        d = [S("s_mov_b32", M0, sWR)]
        for i in range(2):
            d.append(dma(vXg[i], sX, sXO, i * 1024))
        d.append(S("s_mov_b32", M0, sWRW))
        d.append(dma(vWg, sWq, sWO))
        d.append(S("s_add_u32", sXO, sXO, 64))
        d.append(S("s_add_u32", sWO, sWO, 32 * 8192))
        d += ring_advance([sWR, sWRW], QSLOT, QNSLOT, sT0, QBASE)
        return d

    o += qdma_chunk()
    A(S("s_lshl_b32", sT0, sSUB, 15))
    A(S("s_lshl_b32", sT1, sWQ, 12))
    A(S("s_add_u32", sT0, sT0, sT1))
    A(S("s_mov_b32", M0, sT0))
    A(S("s_lshl_b32", sT1, sSUB, 14))
    A(S("s_add_u32", sT1, sT1, 8192))
    for i in range(4):
        A(dma(vKVg, sK, sT1, i * 1024))
    A(S("s_add_u32", M0, sT0, 16384))
    A(S("s_cmp_eq_u32", sSUB, 1))
    A(I("s_cbranch_scc1", ["K2_PV1"]))
    A(S("s_cmp_ge_u32", sWQ, 2))
    A(I("s_cbranch_scc1", ["K2_PV0"]))
    for i in range(4):
        A(dma(vKVg, sK, 0, i * 1024))
    A(I("s_branch", ["K2_PVD"]))
    A(label("K2_PV0"))
    A(V("v_add_u32", t0, -8192, vKVg))
    for i in range(4):
        A(dma(t0, sV, 0, i * 1024))
    A(I("s_branch", ["K2_PVD"]))
    A(label("K2_PV1"))
    A(S("s_mov_b32", sT1, 8192))
    for i in range(4):
        A(dma(vKVg, sV, sT1, i * 1024))
    A(label("K2_PVD"))
    for c in range(1, QNSLOT - 1):
        o += qdma_chunk()
    A(V("v_and_b32", t0, 31, vL))
    A(S("s_lshl_b32", sT0, sWV, 11))
    A(V("v_lshlrev_b32", t1, 6, t0))
    A(V("v_add_u32", t1, sT0, t1))
    A(V("v_lshrrev_b32", t2, 5, vL))
    A(V("v_bfe_u32", t3, vL, 2, 2))
    A(V("v_xor_b32", t2, t2, t3))
    A(V("v_lshl_add_u32", vXc[0], t2, 4, t1))
    A(V("v_xor_b32", vXc[1], 32, vXc[0]))
    A(V("v_lshrrev_b32", t0, 5, vL))
    A(V("v_bfe_u32", t1, vL, 2, 2))
    A(V("v_lshl_add_u32", t0, t0, 3, t1))
    A(V("v_lshlrev_b32", t0, 8, t0))
    A(V("v_bfe_u32", t2, vL, 4, 1))
    A(V("v_lshl_add_u32", t0, t2, 5, t0))
    A(V("v_and_b32", t2, 3, vL))
    A(V("v_lshl_add_u32", t0, t2, 3, t0))
    A(V("v_lshl_add_u32", vWc, t1, 6, t0))
    for dt in range(4):
        for r in range(16):
            A(V("v_accvgpr_write_b32", O[dt][r], 0))
    A(V("v_mov_b32", vLs, 0))
    A(V("v_mov_b32", vThr, -1.0))
    A(V("v_mov_b32", vNINF, 0xff800000))
    A(V("v_mov_b32", vLB, 0xff800000))
    A(V("v_and_b32", t0, 31, vL))
    A(V("v_lshrrev_b32", t1, 5, vL))
    A(V("v_lshlrev_b32", t1, 2, t1))
    A(V("v_sub_u32", t0, t0, t1))
    A(V("v_add_u32", vD, sQ0, t0))

    qacc = [v(32 + 16 * j, 16) for j in range(4)]
    Xf = [v(112, 4), v(116, 4)]
    Wf = [[FR[b * 4 + j] for j in range(4)] for b in range(2)]

    def qreads(ks, b):
        r = [dsr128(Xf[b], vXa[ks], 0)]
        for j in range(4):
            for t in range(2):
                r.append(dsrtr(Wf[b][j][2 * t:2 * t + 2], vWa[j], 16384 + (16 * ks + 4 * t) * 256))
        return r

    def qmfmas(b, first):
        return [mfma(qacc[j], Wf[b][j], Xf[b], 0 if first else qacc[j]) for j in range(4)]

    def qaddr():
        r = [V("v_add_u32", vXa[i], sRD, vXc[i]) for i in range(2)]
        r.append(V("v_add_u32", vWa[0], sRD, vWc))
        for j in range(1, 4):
            r.append(V("v_xor_b32", vWa[j], j << 6, vWa[0]))
        r.append(S("s_add_u32", sRD, sRD, QSLOT))
        r.append(S("s_cmp_ge_u32", sRD, QBASE + QNSLOT * QSLOT))
        r.append(S("s_cselect_b32", sRD, QBASE, sRD))
        return r

    o += st(1)
    P.add(o)
    gemm_phase(P, "K2Q", 18, QNSLOT, 3, qdma_chunk, qreads, qmfmas, qaddr, sE, prologue=False, rd_span=4)
    o = []
    A = o.append
    o += st(2)
    A(waitcnt(vm=0, lgkm=0))
    A(I("s_barrier"))

    sWRA = sWR

    def kvdma():
        d = [S("s_mov_b32", M0, sWRA)]
        for i in range(4):
            d.append(dma(vKVg, sK, sKO, i * 1024))
        d.append(S("s_add_u32", M0, sWRA, 16384))
        for i in range(4):
            d.append(dma(vKVg, sV, sVO, i * 1024))
        d.append(S("s_add_u32", sKO, sKO, 16384))
        d.append(S("s_add_u32", sVO, sVO, 16384))
        d.append(S("s_add_u32", sWRA, sWRA, ASLOT))
        d.append(S("s_and_b32", sWRA, sWRA, 4 * ASLOT - 1))
        return d

    nlab = [0]

    def guarded_dma():
        nlab[0] += 1
        lb = f"K2_ND{nlab[0]}"
        return [S("s_cmp_lg_u32", sSUB, 0), I("s_cbranch_scc1", [lb])] + kvdma() + [label(lb)]

    A(S("s_lshl_b32", sWRA, sWQ, 12))
    A(S("s_add_u32", sWRA, sWRA, 2 * ASLOT))
    A(S("s_mov_b32", sKO, 5 * 8192))
    A(S("s_mov_b32", sVO, 3 * 8192))
    o += guarded_dma()
    for db in range(8):
        A(dsr128(FR[db], vL16, 16384 + db * 1024))
    sC = sT1
    A(S("s_mov_b32", sC, float(CSCALE)))
    for j in range(4):
        for r in range(16):
            A(V("v_mul_f32", qacc[j][r], sC, qacc[j][r]))
        for r in range(8):
            A(V("v_cvt_pk_bf16_f32", T[r], qacc[j][2 * r], qacc[j][2 * r + 1]))
        for r in range(8):
            A(V("v_accvgpr_write_b32", Q[2 * j + r // 4][r % 4], T[r]))
    for r in range(16):
        A(V("v_mov_b32", NEGM[r], 0))
    for db in range(8):
        A(mfma(Sb[0], FR[db], Q[db], NEGM if db == 0 else Sb[0]))
    A(S("s_mov_b32", sRD, 0))
    A(V("v_mov_b32", vAn, vL16))

    def frag_read(n, half, nxt, has_pv=True):
        base = vAn if nxt else vAc
        if n < 8:
            off = 16384 + half * 8192 + n * 1024
        else:
            off = half * 8192 + (n - 8) * 1024
        return dsr128(FR[n % 8], base, off)

    def softmax(cb, masked):
        S_, P_ = Sb[cb], Pb[cb]
        r = []
        if masked:
            for g in range(4):
                for k in range(4):
                    c = 8 * g + k
                    r.append(V("v_cmp_lt_i32", sM[k], vD, c))
                for k in range(4):
                    r.append(V("v_cndmask_b32", S_[4 * g + k], S_[4 * g + k], vNINF, sM[k]))
        for p in range(8):
            e0, e1 = T[(2 * p) % 8], T[(2 * p + 1) % 8]
            r.append(V("v_exp_f32", e0, S_[2 * p]))
            r.append(V("v_exp_f32", e1, S_[2 * p + 1]))
            if p > 0:
                q0, q1 = T[(2 * p - 2) % 8], T[(2 * p - 1) % 8]
                r += tail_pair(p - 1, q0, q1, P_)
        r += tail_pair(7, T[6], T[7], P_)
        r.append(V("v_add_f32", vB[0], vB[0], vB[1]))
        return r

    def tail_pair(p, q0, q1, P_):
        r = []
        if p == 0:
            r.append(V("v_mov_b32", vB[0], q0))
            r.append(V("v_mov_b32", vB[1], q1))
        else:
            r.append(V("v_add_f32", vB[0], vB[0], q0))
            r.append(V("v_add_f32", vB[1], vB[1], q1))
        r.append(V("v_cvt_pk_bf16_f32", P_[p], q0, q1))
        return r

    slow_sites = []

    def step(half, has_pv, has_qk, masked, next_has_pv=True, tag=""):
        cb, nb = half, 1 - half
        M, frs = [], []
        if has_pv:
            for vb in range(2):
                for dt in range(4):
                    M.append(mfma(O[dt], FR[(4 * vb + dt) % 8], Pb[nb][4 * vb:4 * vb + 4], O[dt]))
                    frs.append(4 * vb + dt)
        if has_qk:
            for db in range(8):
                M.append(mfma(Sb[nb], FR[db], Q[db], NEGM if db == 0 else Sb[nb]))
                frs.append(8 + db)
        nxt_half, nxt_slot = (1, False) if half == 0 else (0, True)
        seq = [(n, half, False) for n in frs] + [(n, nxt_half, nxt_slot) for n in range(16)]
        gaps = [[] for _ in M]
        for j in range(len(M)):
            n, hf, nx = seq[j + LA]
            gaps[j].append(frag_read(n, hf, nx))
        sm = softmax(cb, masked)
        first = 2 if has_pv else 1
        g2 = interleave(M, sm, first, len(M))
        b = weave(M, gaps, g2)
        nlab[0] += 1
        sl, rt = f"K2_SLOW{nlab[0]}", f"K2_RET{nlab[0]}"
        b.append(V("v_cmp_gt_f32", VCC, vB[0], vThr))
        if masked:
            b.append(V("v_subrev_u32", vD, 32, vD))
        else:
            b.append(nop(1))
        b.append(I("s_cbranch_vccnz", [sl]))
        b.append(label(rt))
        b.append(V("v_add_f32", vLs, vLs, vB[0]))
        slow_sites.append((sl, rt, cb, has_qk))
        return b

    def pair_head():
        b = [waitcnt(vm=8), I("s_barrier")]
        b.append(V("v_mov_b32", vAc, vAn))
        b.append(S("s_add_u32", sRD, sRD, ASLOT))
        b.append(S("s_and_b32", sRD, sRD, 4 * ASLOT - 1))
        b.append(V("v_add_u32", vAn, sRD, vL16))
        b += guarded_dma()
        return b

    for n in range(LA):
        A(dsr128(FR[n], vL16, n * 1024))
    o += pair_head()
    o += step(0, False, True, True)
    o += step(1, True, True, True)
    A(S("s_cmp_eq_u32", sN, 4))
    A(I("s_cbranch_scc1", ["K2_PF"]))
    A(S("s_sub_u32", sT0, sN, 6))
    A(S("s_lshl_b32", sT0, sT0, 5))
    A(V("v_subrev_u32", vD, sT0, vD))
    A(S("s_lshr_b32", sCNT, sN, 1))
    A(S("s_sub_u32", sCNT, sCNT, 3))
    P.add(o)
    lb = pair_head() + step(0, True, True, False) + step(1, True, True, False)
    lb.append(S("s_sub_u32", sCNT, sCNT, 1))
    lb.append(S("s_cmp_lg_u32", sCNT, 0))
    lb.append(I("s_cbranch_scc1", ["K2_LOOP"]))
    P.loop("K2_LOOP", lb)
    P.add(pair_head() + step(0, True, True, True) + step(1, True, True, True))
    o = [label("K2_PF")]
    A = o.append
    o += pair_head() + step(0, True, True, True) + step(1, True, False, True)
    o += st(3)
    A(S("s_cmp_lg_u32", sSUB, 0))
    A(I("s_cbranch_scc1", ["K2_FIN"]))
    A(waitcnt(vm=8))
    A(I("s_barrier"))
    o += kvdma()
    A(label("K2_FIN"))
    M = []
    for vb in range(2):
        for dt in range(4):
            M.append(mfma(O[dt], FR[4 * vb + dt], Pb[1][4 * vb:4 * vb + 4], O[dt]))
    gaps = [[] for _ in M]
    for j in range(8 - LA):
        gaps[j].append(frag_read(j + LA, 0, True))
    o += weave(M, gaps)
    A(V("v_mov_b32", t0, vLs))
    A(V("v_permlane32_swap_b32", t0, vLs))
    A(V("v_add_f32", t0, t0, vLs))
    A(V("v_rcp_f32", vF, t0))
    A(S("s_lshl_b32", sT0, sQ0, 13))
    A(S("s_lshl_b32", sT1, sHEAD, 13))
    A(S("s_add_u32", sT0, sT0, sT1))
    A(S("s_add_u32", sT0, sT0, WS_CTX))
    A(S("s_add_u32", sT1, sT0, 4096))
    for dt in range(4):
        Tm = Sb[dt % 2]
        Pk = Pb[dt % 2]
        for r in range(16):
            A(V("v_accvgpr_read_b32", Tm[r], O[dt][r]))
        for r in range(16):
            A(V("v_mul_f32", Tm[r], Tm[r], vF))
        for r in range(8):
            A(V("v_cvt_pk_bf16_f32", Pk[r], Tm[2 * r], Tm[2 * r + 1]))
        for b in range(2):
            db = 2 * dt + b
            A(bstore4(Pk[4 * b:4 * b + 4], vL16, sWS, sT0 if db < 4 else sT1, (db % 4) * 1024, store_mods))
    A(S("s_cmp_lg_u32", sSUB, 0))
    A(I("s_cbranch_scc1", ["K2_DONE"]))
    A(S("s_sub_u32", sREM, sNB, sN))
    A(S("s_lshr_b32", sREM, sREM, 1))
    A(S("s_sub_u32", sREM, sREM, 1))
    P.add(o)
    lb = [waitcnt(vm=8), I("s_barrier")] + kvdma()
    lb += [S("s_sub_u32", sREM, sREM, 1), S("s_cmp_lg_u32", sREM, 0), I("s_cbranch_scc1", ["K2_DL"])]
    P.loop("K2_DL", lb)
    o = [label("K2_DONE")]
    if stamps:
        o += st(4) + [waitcnt(vm=0)] + st(5) + st(7, True)
        o += st.dump(sWS, sWV, 8, t0, t1, sT0)
    P.add(o)
    P.out.append(label("K2_END"))
    P.out.append(I("s_endpgm"))

    for sl, rt, cb, has_qk in slow_sites:
        P.st = State()
        nb = 1 - cb
        S_ = Sb[cb]
        b = [label(sl), nop(16), nop(4)]
        B = b.append
        B(V("v_max3_f32", t0, S_[0], S_[1], S_[2]))
        for r in range(3, 15, 2):
            B(V("v_max3_f32", t0, t0, S_[r], S_[r + 1]))
        B(V("v_max_f32", t0, t0, S_[15]))
        B(V("v_mov_b32", t1, t0))
        B(V("v_permlane32_swap_b32", t0, t1))
        B(V("v_max_f32", t0, t0, t1))
        B(V("v_add_f32", t0, HEADROOM, t0))
        B(V("v_max_f32", vDl, t0, vLB))
        B(V("v_max_f32", t0, 0, vDl))
        B(V("v_exp_f32", vF, Neg(t0)))
        for r in range(16):
            B(V("v_sub_f32", NEGM[r], NEGM[r], vDl))
            B(V("v_sub_f32", S_[r], S_[r], vDl))
            if has_qk:
                B(V("v_sub_f32", Sb[nb][r], Sb[nb][r], vDl))
        B(V("v_mul_f32", vLs, vLs, vF))
        for dt in range(4):
            for r0 in range(0, 16, 8):
                for r in range(8):
                    B(V("v_accvgpr_read_b32", T[8 + r], O[dt][r0 + r]))
                for r in range(8):
                    B(V("v_mul_f32", T[8 + r], T[8 + r], vF))
                for r in range(8):
                    B(V("v_accvgpr_write_b32", O[dt][r0 + r], T[8 + r]))
        b += softmax(cb, False)
        B(V("v_mov_b32", vThr, float(2.0 ** THR_LOG2)))
        B(V("v_mov_b32", vLB, 0))
        B(nop(4))
        B(I("s_branch", [rt]))
        P.add(b)
    return kernel_text(name, P, 256, 128, nsgpr=100)
```

```python
from common import *
from gemm import *

D = 4
WSL = 3072
RSTR = 400


def gen_k3(name="k3_kernel", stamps=False, exp=""):
    P = Prog()
    o = []
    A = o.append
    st = Stamps(stamps)
    sWV, sRT, sCT, sT0, sT1, sCO, sWO, sLB, sE, sCO1 = [s(24 + i) for i in range(10)]
    A(S("s_cmp_ge_u32", s(2), 192))
    A(I("s_cbranch_scc1", ["K3_END"]))
    o += st(0) + st(6, True)
    ld, srd = load_srds(["A_w_o", "ws", "out"], 8)
    o += ld[:3]
    sW, sWS, sOUT = srd["A_w_o"], srd["ws"], srd["out"]
    vL = v(1)
    A(V("v_lshrrev_b32", v(2), 6, v(0)))
    A(V("v_and_b32", vL, 63, v(0)))
    A(V("v_readfirstlane_b32", sWV, v(2)))
    A(S("s_and_b32", sT0, s(2), 7))
    A(S("s_lshr_b32", sT1, s(2), 3))
    A(S("s_lshr_b32", sRT, sT0, 1))
    A(S("s_lshl_b32", sRT, sRT, 3))
    A(S("s_and_b32", sCT, sT1, 7))
    A(S("s_add_u32", sRT, sRT, sCT))
    A(S("s_and_b32", sT0, sT0, 1))
    A(S("s_mul_i32", sCT, sT0, 3))
    A(S("s_lshr_b32", sT1, sT1, 3))
    A(S("s_add_u32", sCT, sCT, sT1))
    vWg = [v(3), v(4), v(5)]
    vL16, vWa = v(6), v(7)
    t0, t1, t2, t3 = v(8), v(9), v(10), v(11)
    A(S("s_mul_i32", sT0, sWV, 16 * 1152))
    A(S("s_mul_i32", sT1, sCT, 192))
    A(S("s_add_u32", sT0, sT0, sT1))
    for i in range(3):
        A(V("v_add_u32", t0, 64 * i, vL))
        A(V("v_mul_u32_u24", t1, 43691, t0))
        A(V("v_lshrrev_b32", t1, 19, t1))
        A(V("v_mul_u32_u24", t2, 1152 - 192, t1))
        A(V("v_lshl_add_u32", t2, t0, 4, t2))
        A(V("v_add_u32", t2, sT0, t2))
        A(V("v_subrev_u32", vWg[i], 1024 * i, t2) if i else V("v_mov_b32", vWg[i], t2))
    A(V("v_lshlrev_b32", vL16, 4, vL))
    A(S("s_mul_i32", sLB, sWV, D * WSL))
    A(V("v_lshrrev_b32", t0, 5, vL))
    A(V("v_bfe_u32", t1, vL, 2, 2))
    A(V("v_lshl_add_u32", t0, t0, 2, t1))
    A(V("v_mul_u32_u24", t0, 192, t0))
    A(V("v_bfe_u32", t2, vL, 4, 1))
    A(V("v_lshl_add_u32", t0, t2, 5, t0))
    A(V("v_and_b32", t2, 3, vL))
    A(V("v_lshl_add_u32", t0, t2, 3, t0))
    A(V("v_add_u32", vWa, sLB, t0))
    A(S("s_lshl_b32", sCO, sRT, 19))
    A(S("s_lshl_b32", sT0, sWV, 10))
    A(S("s_add_u32", sCO, sCO, sT0))
    A(S("s_add_u32", sCO, sCO, WS_CTX))
    A(S("s_add_u32", sCO1, sCO, 32 * 8192))
    A(S("s_mov_b32", sWO, 0))
    o += ld[3:]
    acc = [[a((qb * 3 + j) * 16, 16) for j in range(3)] for qb in range(2)]
    Cf = [[v(16 + (d * 2 + qb) * 4, 4) for qb in range(2)] for d in range(D)]
    Wf = [[v(48 + (b * 3 + j) * 4, 4) for j in range(3)] for b in range(2)]

    def loads(slot):
        d = [bload4(Cf[slot][0], vL16, sWS, sCO), bload4(Cf[slot][1], vL16, sWS, sCO1)]
        d.append(S("s_add_u32", M0, sLB, slot * WSL))
        for i in range(3):
            d.append(dma(vWg[i], sW, sWO, i * 1024))
        d.append(S("s_add_u32", sCO, sCO, 8192))
        d.append(S("s_add_u32", sCO1, sCO1, 8192))
        d.append(S("s_add_u32", sWO, sWO, 128 * 1152))
        return d

    def reads(slot, b):
        return [dsrtr(Wf[b][j][2 * t:2 * t + 2], vWa, slot * WSL + 8 * t * 192 + 64 * j) for j in range(3) for t in range(2)]

    def mf(slot, b, first=False):
        return [mfma(acc[qb][j], Wf[b][j], Cf[slot][qb], 0 if first else acc[qb][j]) for j in range(3) for qb in range(2)]

    for d in range(D):
        o += loads(d)
    for qb in range(2):
        for j in range(3):
            for r in range(16):
                A(V("v_accvgpr_write_b32", acc[qb][j][r], 0))
    o += st(1)
    A(waitcnt(vm=5 * (D - 1)))
    o += reads(0, 0)
    A(S("s_mov_b32", sE, 0))
    P.add(o)

    def group(with_loads, last):
        b = []
        for d in range(D):
            fin = last and d == D - 1
            if not fin:
                rem = (D - 2) if with_loads else (D - 2 - d)
                b.append(waitcnt(vm=5 * rem))
                rd = reads((d + 1) % D, (d + 1) % 2)
            else:
                rd = []
            m = mf(d, d % 2)
            b += weave(m, interleave(m, rd, 0, 3))
            if with_loads:
                b += loads(d)
        return b

    lb = group(True, False)
    lb += [S("s_add_u32", sE, sE, 1), S("s_cmp_lt_u32", sE, 32 // D - 1), I("s_cbranch_scc1", ["K3_LOOP"])]
    P.loop("K3_LOOP", lb)
    o = group(False, True)
    A = o.append
    o += st(2)
    o += reduce_store("K3", acc, sWV, sRT, sCT, sT0, sOUT, vL, 0)
    if stamps:
        o += st(3) + st(4) + [waitcnt(vm=0)] + st(5) + st(7, True)
        o += st.dump(sWS, sWV, 8, t0, t1, sT0)
    P.add(o)
    P.out.append(label("K3_END"))
    P.out.append(I("s_endpgm"))
    return kernel_text(name, P, 256, 128, nsgpr=100)


def reduce_store(tag, acc, sWV, sRT, sCT, sT0, sOUT, vL, col0):
    o = []
    A = o.append
    t0, t1, t2, t3 = v(8), v(9), v(10), v(11)
    vWr, vRd, vSt = v(12), v(13), v(14)
    A(V("v_and_b32", t0, 31, vL))
    A(V("v_mul_u32_u24", t0, RSTR, t0))
    A(V("v_lshrrev_b32", t1, 5, vL))
    A(V("v_lshl_add_u32", t0, t1, 4, t0))
    A(S("s_mul_i32", sT0, sWV, 32 * RSTR))
    A(V("v_add_u32", vWr, sT0, t0))
    A(V("v_mul_u32_u24", t1, 43691, v(0)))
    A(V("v_lshrrev_b32", t1, 19, t1))
    A(V("v_mul_u32_u24", t2, 12, t1))
    A(V("v_sub_u32", t2, v(0), t2))
    A(V("v_mul_u32_u24", t0, RSTR, t1))
    A(V("v_lshl_add_u32", vRd, t2, 5, t0))
    A(S("s_lshl_b32", sT0, sRT, 6))
    A(V("v_add_u32", t1, sT0, t1))
    A(V("v_mul_u32_u24", t1, 2304, t1))
    A(V("v_lshl_add_u32", t1, t2, 4, t1))
    A(S("s_mul_i32", sT0, sCT, 192))
    A(V("v_add_u32", vSt, sT0, t1))
    vRd2 = v(15)
    A(V("v_add_u32", vRd2, 4 * 32 * RSTR, vRd))
    R = [v(16 + 8 * w, 8) for w in range(8)]
    for qb in range(2):
        A(waitcnt(lgkm=0))
        A(I("s_barrier"))
        for j in range(3):
            for g in range(4):
                A(I("ds_write_b128", [vWr, acc[qb][j][4 * g:4 * g + 4]], f"offset:{(32 * j + 8 * g) * 4}"))
        A(waitcnt(lgkm=0))
        A(I("s_barrier"))
        A(S("s_cmp_ge_u32", sWV, 6))
        A(I("s_cbranch_scc1", [f"{tag}_SK{qb}"]))
        for w in range(8):
            base = vRd if w < 4 else vRd2
            for hh in range(2):
                A(dsr128(R[w][4 * hh:4 * hh + 4], base, (w % 4) * 32 * RSTR + 16 * hh))
        for step in (1, 2, 4):
            for w in range(0, 8, 2 * step):
                for r in range(8):
                    A(V("v_add_f32", R[w][r], R[w][r], R[w + step][r]))
        for r in range(4):
            A(V("v_cvt_pk_bf16_f32", R[1][r], R[0][2 * r], R[0][2 * r + 1]))
        A(S("s_mov_b32", sT0, qb * 32 * 2304 + col0))
        A(bstore4(R[1][0:4], vSt, sOUT, sT0))
        A(label(f"{tag}_SK{qb}"))
    return o


def gen_k3b(name="k3b_kernel"):
    from kb import WS_OF
    P = Prog()
    o = []
    A = o.append
    sWV, sRT, sCT, sT0, sT1, sCO, sWO, sLB, sE, sCO1 = [s(24 + i) for i in range(10)]
    sM = s(40, 2)
    A(S("s_cmp_ge_u32", s(2), 192))
    A(I("s_cbranch_scc1", ["K3B_END"]))
    ld, srd = load_srds(["B_wo", "ws", "out"], 8)
    o += ld[:3]
    sW, sWS, sOUT = srd["B_wo"], srd["ws"], srd["out"]
    vL = v(1)
    A(V("v_lshrrev_b32", v(2), 6, v(0)))
    A(V("v_and_b32", vL, 63, v(0)))
    A(V("v_readfirstlane_b32", sWV, v(2)))
    A(S("s_and_b32", sT0, s(2), 7))
    A(S("s_lshr_b32", sT1, s(2), 3))
    A(S("s_lshr_b32", sRT, sT0, 1))
    A(S("s_lshl_b32", sRT, sRT, 3))
    A(S("s_and_b32", sCT, sT1, 7))
    A(S("s_add_u32", sRT, sRT, sCT))
    A(S("s_and_b32", sT0, sT0, 1))
    A(S("s_mul_i32", sCT, sT0, 3))
    A(S("s_lshr_b32", sT1, sT1, 3))
    A(S("s_add_u32", sCT, sCT, sT1))
    vWg = [v(3), v(4), v(5)]
    vWx = [v(12), v(13), v(14)]
    vL16, vWa, vLx = v(6), v(7), v(15)
    t0, t1, t2, t3 = v(8), v(9), v(10), v(11)
    vBig = v(2)
    A(V("v_mov_b32", vBig, 0x7fffff00))
    A(S("s_cmp_lt_u32", sWV, 4))
    A(S("s_cselect_b64", sM, -1, 0))
    A(S("s_mul_i32", sT1, sCT, 192))
    for i in range(3):
        A(V("v_add_u32", t0, 64 * i, vL))
        A(V("v_mul_u32_u24", t1, 43691, t0))
        A(V("v_lshrrev_b32", t1, 19, t1))
        A(V("v_mul_u32_u24", t2, 12, t1))
        A(V("v_sub_u32", t0, t0, t2))
        A(V("v_lshlrev_b32", t0, 4, t0))
        A(V("v_add_u32", t0, sT1, t0))
        A(V("v_subrev_u32", t0, 1024 * i, t0))
        A(V("v_lshrrev_b32", t2, 3, t1))
        A(V("v_and_b32", t3, 3, t1))
        A(V("v_lshl_add_u32", t2, t2, 2, t3))
        A(V("v_bfe_u32", t3, t1, 2, 1))
        A(V("v_mul_u32_u24", t3, 9, t3))
        A(S("s_mul_i32", sT0, sWV, 18))
        A(V("v_add3_u32", t1, t2, t3, sT0))
        A(V("v_mul_u32_u24", t1, 1152, t1))
        A(V("v_add_u32", vWg[i], t1, t0))
        A(S("s_lshl_b32", sT0, sWV, 3))
        A(V("v_add_u32", t2, sT0, t2))
        A(V("v_mul_u32_u24", t2, 18, t2))
        A(V("v_add3_u32", t2, t2, t3, 8))
        A(V("v_mul_u32_u24", t2, 1152, t2))
        A(V("v_add_u32", t2, t2, t0))
        A(V("v_cndmask_b32", vWx[i], vBig, t2, sM))
    A(V("v_lshlrev_b32", vL16, 4, vL))
    A(V("v_cndmask_b32", vLx, vBig, vL16, sM))
    NI = 5
    A(S("s_mul_i32", sLB, sWV, NI * WSL))
    A(V("v_lshrrev_b32", t0, 5, vL))
    A(V("v_bfe_u32", t1, vL, 2, 2))
    A(V("v_lshl_add_u32", t0, t0, 2, t1))
    A(V("v_mul_u32_u24", t0, 192, t0))
    A(V("v_bfe_u32", t2, vL, 4, 1))
    A(V("v_lshl_add_u32", t0, t2, 5, t0))
    A(V("v_and_b32", t2, 3, vL))
    A(V("v_lshl_add_u32", t0, t2, 3, t0))
    A(V("v_add_u32", vWa, sLB, t0))
    A(S("s_mul_i32", sCO, sRT, 72))
    A(S("s_add_u32", sCO, sCO, sWV))
    A(S("s_lshl_b32", sCO, sCO, 10))
    A(S("s_add_u32", sCO, sCO, WS_OF))
    A(S("s_add_u32", sCO1, sCO, 36 * 1024))
    A(S("s_mov_b32", sWO, 0))
    o += ld[3:]
    acc = [[a((qb * 3 + j) * 16, 16) for j in range(3)] for qb in range(2)]
    Cf = [[v(16 + (d * 2 + qb) * 4, 4) for qb in range(2)] for d in range(NI)]
    Wf = [[v(56 + (b * 3 + j) * 4, 4) for j in range(3)] for b in range(2)]
    for it in range(NI):
        x = it == NI - 1
        A(bload4(Cf[it][0], vLx if x else vL16, sWS, sCO))
        A(bload4(Cf[it][1], vLx if x else vL16, sWS, sCO1))
        A(S("s_add_u32", M0, sLB, it * WSL))
        for i in range(3):
            A(dma(vWx[i] if x else vWg[i], sW, 0 if x else sWO, i * 1024))
        A(S("s_add_u32", sCO, sCO, 8192))
        A(S("s_add_u32", sCO1, sCO1, 8192))
        A(S("s_add_u32", sWO, sWO, 144 * 1152))
    for it in range(NI):
        A(waitcnt(vm=5 * (NI - 1 - it)))
        b = it % 2
        for j in range(3):
            for t in range(2):
                A(dsrtr(Wf[b][j][2 * t:2 * t + 2], vWa, it * WSL + 8 * t * 192 + 64 * j))
        for j in range(3):
            for qb in range(2):
                A(mfma(acc[qb][j], Wf[b][j], Cf[it][qb], 0 if it == 0 else acc[qb][j]))
    o += reduce_store("K3B", acc, sWV, sRT, sCT, sT0, sOUT, vL, 1152)
    P.add(o)
    P.out.append(label("K3B_END"))
    P.out.append(I("s_endpgm"))
    return kernel_text(name, P, 256, 128, nsgpr=100)
```

```python
from common import *
from gemm import *
import math

LOG2E = math.log2(math.e)
WS_PHIQ = WS_B
WS_KVP = WS_B + 8 * MB
WS_KVF = WS_B + 15 * MB
WS_OF = WS_B + 16 * MB

B1_SLOT = 19456
B1_NSLOT = 6
B1_IMG = B1_SLOT * B1_NSLOT
IMG_RS = 144
PHI_RS = 112


def gen_kb1(name="kb1_kernel", stamps=False):
    P = Prog()
    o = []
    A = o.append
    st = Stamps(stamps)
    (sWV, sRB, sG, sE, sRD, sT0, sT1, sT2, sHD) = [s(32 + i) for i in range(9)]
    sSO = [s(44 + i) for i in range(3)]
    sSt = [s(47 + i) for i in range(3)]
    sLD = [s(50 + i) for i in range(3)]
    sM = s(56, 2)
    A(S("s_cmp_ge_u32", s(2), 256))
    A(I("s_cbranch_scc1", ["KB1_END"]))
    o += st(0) + st(6, True)
    ld, srd = load_srds(["B_x", "B_wqkv", "B_w_phi", "ws"], 8)
    o += ld[:4]
    sX, sW, sPH, sWS = srd["B_x"], srd["B_wqkv"], srd["B_w_phi"], srd["ws"]
    sB2 = s(24, 4)
    vL = v(1)
    A(V("v_lshrrev_b32", v(2), 6, v(0)))
    A(V("v_and_b32", vL, 63, v(0)))
    A(V("v_readfirstlane_b32", sWV, v(2)))
    A(S("s_and_b32", sT0, s(2), 7))
    A(S("s_lshr_b32", sT1, s(2), 3))
    A(S("s_lshr_b32", sRB, sT0, 1))
    A(S("s_lshl_b32", sRB, sRB, 3))
    A(S("s_and_b32", sT2, sT1, 7))
    A(S("s_add_u32", sRB, sRB, sT2))
    A(S("s_and_b32", sG, sT0, 1))
    A(S("s_lshl_b32", sG, sG, 2))
    A(S("s_lshr_b32", sT1, sT1, 3))
    A(S("s_add_u32", sG, sG, sT1))
    vG = [v(3), v(4), v(5)]
    vXc = [v(6), v(7)]
    vWc = v(8)
    vXa = [v(9), v(10)]
    vWa = v(11)
    t0, t1, t2, t3, t4 = v(12), v(13), v(14), v(15), v(16)
    vL16 = v(17)

    def w_off(dst, sidx):
        A(S("s_lshl_b32", sT0, sidx, 6))
        A(V("v_add_u32", t0, sT0, vL))
        A(V("v_mul_u32_u24", t1, 9363, t0))
        A(V("v_lshrrev_b32", t1, 18, t1))
        A(V("v_mul_u32_u24", t2, 28, t1))
        A(V("v_sub_u32", t2, t0, t2))
        A(V("v_mul_u32_u24", t3, 57, t2))
        A(V("v_lshrrev_b32", t3, 9, t3))
        A(V("v_min_u32", t3, 2, t3))
        A(V("v_mul_u32_u24", t4, 1152 - 144, t3))
        A(V("v_lshl_add_u32", t4, t2, 4, t4))
        A(V("v_mul_u32_u24", t1, 3456, t1))
        A(V("v_add_u32", t4, t4, t1))
        A(S("s_mul_i32", sT0, sG, 144))
        A(V("v_add_u32", dst, sT0, t4))

    def x_off(dst, sidx):
        A(S("s_lshl_b32", sT0, sRB, 6))
        A(S("s_lshl_b32", sT1, sidx, 4))
        A(S("s_add_u32", sT0, sT0, sT1))
        A(V("v_lshrrev_b32", t0, 2, vL))
        A(V("v_add_u32", t0, sT0, t0))
        A(V("v_mul_u32_u24", t0, 1152, t0))
        A(V("v_lshrrev_b32", t1, 4, vL))
        A(V("v_xor_b32", t1, t1, vL))
        A(V("v_and_b32", t1, 3, t1))
        A(V("v_lshl_add_u32", dst, t1, 4, t0))

    w_off(vG[0], sWV)
    A(S("s_add_u32", sT2, sWV, 8))
    w_off(vG[1], sT2)
    A(S("s_sub_u32", sT2, sWV, 6))
    x_off(vG[2], sT2)
    A(S("s_cmp_ge_u32", sWV, 6))
    A(S("s_cselect_b64", sM, -1, 0))
    A(V("v_cndmask_b32", vG[1], vG[1], vG[2], sM))
    A(S("s_add_u32", sT2, sWV, 2))
    x_off(vG[2], sT2)
    A(V("v_mov_b32", t0, 0x7fffff00))
    A(S("s_cmp_ge_u32", sWV, 2))
    A(S("s_cselect_b64", sM, -1, 0))
    A(V("v_cndmask_b32", vG[2], vG[2], t0, sM))
    o += ld[4:]
    A(S("s_cmp_ge_u32", sWV, 6))
    A(S("s_cselect_b32", sB2[0], sX[0], sW[0]))
    A(S("s_cselect_b32", sB2[1], sX[1], sW[1]))
    A(S("s_cselect_b32", sB2[2], sX[2], sW[2]))
    A(S("s_mov_b32", sB2[3], 0x20000))
    A(S("s_cselect_b32", sSt[1], 64, 32 * 3456))
    A(S("s_lshl_b32", sT0, sWV, 10))
    A(S("s_add_u32", sT1, sT0, 4096 + 8192))
    A(S("s_sub_u32", sT2, sT0, 6144))
    A(S("s_cmp_ge_u32", sWV, 6))
    A(S("s_cselect_b32", sLD[1], sT2, sT1))
    A(S("s_add_u32", sLD[0], sT0, 4096))
    A(S("s_add_u32", sT1, sT0, 2048))
    A(S("s_cmp_ge_u32", sWV, 2))
    A(S("s_cselect_b32", sLD[2], 18432, sT1))
    for i in range(3):
        A(S("s_mov_b32", sSO[i], 0))
    A(S("s_mov_b32", sRD, 0))

    def dma_chunk():
        d = []
        for i, sr in enumerate((sW, sB2, sX)):
            d.append(S("s_mov_b32", M0, sLD[i]))
            d.append(dma(vG[i], sr, sSO[i]))
        d.append(S("s_add_u32", sSO[0], sSO[0], 32 * 3456))
        d.append(S("s_add_u32", sSO[1], sSO[1], sSt[1]))
        d.append(S("s_add_u32", sSO[2], sSO[2], 64))
        d += ring_advance(sLD, B1_SLOT, B1_NSLOT, sT0)
        return d

    A(S("s_and_b32", sHD, sWV, 3))
    A(S("s_lshl_b32", sT0, sG, 2))
    A(S("s_add_u32", sHD, sHD, sT0))
    WP = [v(96, 4), v(100, 4)]
    raw_ = [v(104 + i) for i in range(10)]
    vI, vH2 = v(18), v(19)
    A(V("v_bfe_u32", t0, vL, 3, 2))
    A(V("v_and_b32", t1, 3, vL))
    A(V("v_lshl_add_u32", vI, t0, 2, t1))
    A(V("v_bfe_u32", vH2, vL, 2, 1))
    A(V("v_mad_u32_u24", t0, vH2, 9, vI))
    A(V("v_lshrrev_b32", t1, 5, vL))
    A(V("v_mul_u32_u24", t2, 8 * 36, t1))
    A(V("v_lshl_add_u32", t2, t0, 1, t2))
    A(S("s_mul_i32", sT0, sHD, 648))
    A(V("v_add_u32", t2, sT0, t2))
    A(V("v_mov_b32", t4, 0x7fffff00))
    A(V("v_cmp_lt_u32", sM, vI, 9))
    A(V("v_cndmask_b32", t2, t4, t2, sM))
    A(V("v_cmp_eq_u32", sM, t1, 0))
    A(V("v_cndmask_b32", t3, t4, t2, sM))
    for j in range(8):
        A(I("buffer_load_ushort", [raw_[j], t2, sPH, 0], f"offen offset:{36 * j}" if j else "offen"))
    for j in range(2):
        A(I("buffer_load_ushort", [raw_[8 + j], t3, sPH, 0], f"offen offset:{36 * (16 + j)}"))
    for c in range(B1_NSLOT - 1):
        o += dma_chunk()
    A(V("v_and_b32", t0, 31, vL))
    A(V("v_lshlrev_b32", t1, 6, t0))
    A(V("v_lshrrev_b32", t2, 5, vL))
    A(V("v_bfe_u32", t3, vL, 2, 2))
    A(V("v_xor_b32", t2, t2, t3))
    A(V("v_lshl_add_u32", vXc[0], t2, 4, t1))
    A(V("v_xor_b32", vXc[1], 32, vXc[0]))
    A(V("v_lshrrev_b32", t0, 5, vL))
    A(V("v_bfe_u32", t1, vL, 2, 2))
    A(V("v_lshl_add_u32", t0, t0, 3, t1))
    A(V("v_mul_u32_u24", t0, 448, t0))
    A(V("v_bfe_u32", t2, vL, 4, 1))
    A(V("v_lshl_add_u32", t0, t2, 5, t0))
    A(V("v_and_b32", t2, 3, vL))
    A(V("v_lshl_add_u32", t0, t2, 3, t0))
    A(S("s_lshl_b32", sT0, sWV, 6))
    A(V("v_add_u32", vWc, sT0, t0))
    A(V("v_lshlrev_b32", vL16, 4, vL))

    acc = [v(32, 16), v(48, 16)]
    Xf = [[v(64 + (b * 2 + m) * 4, 4) for m in range(2)] for b in range(2)]
    Wf = [v(80, 4), v(84, 4)]

    def reads(ks, b):
        r = [dsr128(Xf[b][0], vXa[ks], 0)]
        for t in range(2):
            r.append(dsrtr(Wf[b][2 * t:2 * t + 2], vWa, 4096 + (16 * ks + 4 * t) * 448))
        r.append(dsr128(Xf[b][1], vXa[ks], 2048))
        return r

    def mfmas(b, first):
        return [mfma(acc[m], Xf[b][m], Wf[b], 0 if first else acc[m]) for m in range(2)]

    def addr_update():
        r = [V("v_add_u32", vXa[i], sRD, vXc[i]) for i in range(2)]
        r.append(V("v_add_u32", vWa, sRD, vWc))
        r.append(S("s_add_u32", sRD, sRD, B1_SLOT))
        r.append(S("s_cmp_ge_u32", sRD, B1_NSLOT * B1_SLOT))
        r.append(S("s_cselect_b32", sRD, 0, sRD))
        return r

    o += st(1)
    P.add(o)
    gemm_phase(P, "KB1G", 18, B1_NSLOT, 3, dma_chunk, reads, mfmas, addr_update, sE, prologue=False, rd_span=2)
    o = []
    A = o.append
    o += st(2)
    for p in range(4):
        A(V("v_lshl_or_b32", WP[0][p], raw_[2 * p + 1], 16, raw_[2 * p]))
    A(V("v_lshl_or_b32", WP[1][0], raw_[9], 16, raw_[8]))
    for p in range(1, 4):
        A(V("v_mov_b32", WP[1][p], 0))
    vIW = v(20)
    A(V("v_and_b32", t0, 31, vL))
    A(S("s_lshl_b32", sT0, sWV, 5))
    A(V("v_add_u32", t0, sT0, t0))
    A(V("v_mul_u32_u24", t0, IMG_RS, t0))
    A(V("v_lshrrev_b32", t1, 5, vL))
    A(V("v_lshl_add_u32", t0, t1, 3, t0))
    A(V("v_add_u32", vIW, B1_IMG, t0))
    pk = v(64, 16)
    for m in range(2):
        for r in range(8):
            A(V("v_cvt_pk_bf16_f32", pk[8 * m + r], acc[m][2 * r], acc[m][2 * r + 1]))
    A(S("s_cmp_lg_u32", sWV, 7))
    A(I("s_cbranch_scc1", ["KB1_NZ"]))
    for r in range(16):
        A(V("v_mov_b32", pk[r], 0))
    A(label("KB1_NZ"))
    for m in range(2):
        for g in range(4):
            A(I("ds_write_b64", [vIW, pk[8 * m + 2 * g:8 * m + 2 * g + 2]], f"offset:{(32 * m + 8 * g) * 2}"))
    A(waitcnt(lgkm=0))
    A(I("s_barrier"))
    vQr = v(21)
    A(V("v_lshrrev_b32", t0, 5, vL))
    A(V("v_bfe_u32", t1, vL, 2, 2))
    A(V("v_lshl_add_u32", t0, t0, 3, t1))
    A(S("s_mul_i32", sT0, sWV, 18))
    A(V("v_add_u32", t0, sT0, t0))
    A(V("v_mul_u32_u24", t0, IMG_RS, t0))
    A(V("v_bfe_u32", t2, vL, 4, 1))
    A(V("v_lshl_add_u32", t0, t2, 5, t0))
    A(V("v_and_b32", t2, 3, vL))
    A(V("v_lshl_add_u32", t0, t2, 3, t0))
    A(V("v_add_u32", vQr, B1_IMG, t0))
    Qf = [[v(64 + (sb * 2 + ks) * 4, 4) for ks in range(2)] for sb in range(2)]
    for sb in range(2):
        for ks in range(2):
            for t in range(2):
                A(dsrtr(Qf[sb][ks][2 * t:2 * t + 2], vQr, (16 * ks + 4 * t) * IMG_RS + 64 * sb))
    for sb in range(2):
        for ks in range(2):
            A(mfma(acc[sb], WP[ks], Qf[sb][ks], 0 if ks == 0 else acc[sb]))
    PHI = [v(64, 12), v(76, 12)]
    E = [v(96 + i) for i in range(18)]
    sL2 = sT2
    A(S("s_mov_b32", sL2, float(LOG2E)))
    for sb in range(2):
        x = acc[sb]
        mx, mn, u0, u1 = t0, t1, t2, t3
        A(V("v_max3_f32", mx, x[0], x[1], x[2]))
        A(V("v_min3_f32", mn, x[0], x[1], x[2]))
        for r in (3, 5, 7):
            A(V("v_max3_f32", mx, mx, x[r], x[r + 1]))
            A(V("v_min3_f32", mn, mn, x[r], x[r + 1]))
        A(V("v_mov_b32", u0, mx))
        A(V("v_mov_b32", u1, mn))
        A(V("v_permlane32_swap_b32", mx, u0))
        A(V("v_permlane32_swap_b32", mn, u1))
        A(V("v_max_f32", mx, mx, u0))
        A(V("v_min_f32", mn, mn, u1))
        A(V("v_mul_f32", mx, sL2, mx))
        A(V("v_mul_f32", mn, sL2, mn))
        for i in range(9):
            A(V("v_fma_f32", E[i], x[i], sL2, Neg(mx)))
            A(V("v_fma_f32", E[9 + i], Neg(x[i]), sL2, mn))
        for i in range(18):
            A(V("v_exp_f32", E[i], E[i]))
        sp, sn = mx, mn
        A(V("v_add_f32", sp, E[0], E[1]))
        A(V("v_add_f32", sn, E[9], E[10]))
        for i in range(2, 9):
            A(V("v_add_f32", sp, sp, E[i]))
            A(V("v_add_f32", sn, sn, E[9 + i]))
        A(V("v_mov_b32", u0, sp))
        A(V("v_mov_b32", u1, sn))
        A(V("v_permlane32_swap_b32", sp, u0))
        A(V("v_permlane32_swap_b32", sn, u1))
        A(V("v_add_f32", sp, sp, u0))
        A(V("v_add_f32", sn, sn, u1))
        A(V("v_rcp_f32", sp, sp))
        A(V("v_rcp_f32", sn, sn))
        for i in range(9):
            A(V("v_mul_f32", E[i], E[i], sp))
            A(V("v_mul_f32", E[9 + i], E[9 + i], sn))
        for p in range(9):
            A(V("v_cvt_pk_bf16_f32", PHI[sb][p], E[2 * p], E[2 * p + 1]))
        for p in range(9, 12):
            A(V("v_mov_b32", PHI[sb][p], 0))
    A(S("s_cmp_ge_u32", sWV, 4))
    A(I("s_cbranch_scc1", ["KB1_K"]))
    A(S("s_lshl_b32", sT0, sRB, 6))
    A(S("s_add_u32", sT0, sT0, sHD))
    A(S("s_mul_i32", sT0, sT0, 3072))
    A(S("s_add_u32", sT0, sT0, WS_PHIQ))
    A(S("s_add_u32", sT1, sT0, 32 * 3072))
    for sb in range(2):
        for F in range(3):
            A(bstore4(PHI[sb][4 * F:4 * F + 4], vL16, sWS, sT1 if sb else sT0, F * 1024))
    A(I("s_branch", ["KB1_DONE"]))
    A(label("KB1_K"))
    vPW, vPR, vVR = v(22), v(23), v(24)
    A(S("s_sub_u32", sT0, sWV, 4))
    A(S("s_mul_i32", sT0, sT0, 64 * PHI_RS))
    A(V("v_and_b32", t0, 31, vL))
    A(V("v_mul_u32_u24", t0, PHI_RS, t0))
    A(V("v_lshrrev_b32", t1, 5, vL))
    A(V("v_mul_u32_u24", t2, 48, t1))
    A(V("v_add3_u32", vPW, t0, t2, sT0))
    for sb in range(2):
        for F in range(3):
            A(I("ds_write_b128", [vPW, PHI[sb][4 * F:4 * F + 4]], f"offset:{sb * 32 * PHI_RS + 16 * F}"))
    A(V("v_bfe_u32", t2, vL, 2, 2))
    A(V("v_lshl_add_u32", t0, t1, 3, t2))
    A(V("v_mul_u32_u24", t0, PHI_RS, t0))
    A(V("v_and_b32", t2, 1, vL))
    A(V("v_mul_u32_u24", t2, 48, t2))
    A(V("v_add_u32", t0, t0, t2))
    A(V("v_bfe_u32", t2, vL, 1, 1))
    A(V("v_lshl_add_u32", t0, t2, 3, t0))
    A(V("v_add_u32", t0, sT0, t0))
    A(V("v_bfe_u32", t2, vL, 4, 1))
    A(V("v_lshl_add_u32", vPR, t2, 4, t0))
    vPR1 = v(25)
    A(V("v_add_u32", vPR1, 32, t0))
    A(V("v_min_u32", t0, 8, vI))
    A(V("v_mad_u32_u24", t0, vH2, 9, t0))
    A(S("s_mul_i32", sT0, sWV, 18))
    A(S("s_add_u32", sT0, sT0, 144 - 72))
    A(V("v_add_u32", t0, sT0, t0))
    A(V("v_mul_u32_u24", t0, IMG_RS, t0))
    A(V("v_lshl_add_u32", t0, t1, 4, t0))
    A(V("v_add_u32", vVR, B1_IMG, t0))
    Vf = [v(96 + 4 * ks, 4) for ks in range(4)]
    Af = [[a((T * 4 + ks) * 4, 4) for ks in range(4)] for T in range(2)]
    for ks in range(4):
        A(dsr128(Vf[ks], vVR, 32 * ks))
    A(waitcnt(lgkm=0))
    for T in range(2):
        for ks in range(4):
            for t in range(2):
                A(dsrtr(Af[T][ks][2 * t:2 * t + 2], vPR1 if T else vPR, (16 * ks + 4 * t) * PHI_RS))
    A(V("v_cmp_eq_u32", sM, vI, 9))
    A(V("v_mov_b32", t4, 0x3f803f80))
    for ks in range(4):
        for r in range(4):
            A(V("v_cndmask_b32", Vf[ks][r], Vf[ks][r], t4, sM))
    for T in range(2):
        for ks in range(4):
            A(mfma(acc[T], Af[T][ks], Vf[ks], 0 if ks == 0 else acc[T]))
    A(S("s_lshl_b32", sT0, sRB, 5))
    A(S("s_add_u32", sT0, sT0, sHD))
    A(S("s_mul_i32", sT0, sT0, 6144))
    A(S("s_add_u32", sT0, sT0, WS_KVP))
    A(S("s_add_u32", sT1, sT0, 4096))
    for g in range(6):
        A(bstore4(acc[g // 4][4 * (g % 4):4 * (g % 4) + 4], vL16, sWS, sT1 if g >= 4 else sT0, (g % 4) * 1024))
    A(label("KB1_DONE"))
    if stamps:
        o += st(3) + st(4) + [waitcnt(vm=0)] + st(5) + st(7, True)
        o += st.dump(sWS, sWV, 8, t0, t1, sT0)
    P.add(o)
    P.out.append(label("KB1_END"))
    P.out.append(I("s_endpgm"))
    return kernel_text(name, P, 256, 128, nsgpr=100)


def gen_kbr(name="kbr_kernel"):
    P = Prog()
    o = []
    A = o.append
    sWV, sT0, sT1, sHD, sGG = [s(24 + i) for i in range(5)]
    A(S("s_cmp_ge_u32", s(2), 192))
    A(I("s_cbranch_scc1", ["KBR_END"]))
    ld, srd = load_srds(["ws"], 8)
    o += ld[:1]
    sWS = srd["ws"]
    vL, vL16 = v(1), v(3)
    A(V("v_lshrrev_b32", v(2), 6, v(0)))
    A(V("v_and_b32", vL, 63, v(0)))
    A(V("v_readfirstlane_b32", sWV, v(2)))
    A(V("v_lshlrev_b32", vL16, 4, vL))
    o += ld[1:]
    A(S("s_mul_i32", sT0, sWV, 4 * 192))
    A(S("s_add_u32", sT0, sT0, s(2)))
    A(S("s_lshl_b32", sT0, sT0, 10))
    A(S("s_add_u32", sT0, sT0, WS_KVP))
    R = [v(8 + 4 * i, 4) for i in range(8)]
    for i in range(4):
        A(bload4(R[i], vL16, sWS, sT0))
        A(S("s_add_u32", sT0, sT0, 192 * 1024))
    for r in range(4):
        A(V("v_add_f32", R[0][r], R[0][r], R[1][r]))
        A(V("v_add_f32", R[2][r], R[2][r], R[3][r]))
    for r in range(4):
        A(V("v_add_f32", R[0][r], R[0][r], R[2][r]))
    A(V("v_lshlrev_b32", v(4), 4, v(0)))
    A(I("ds_write_b128", [v(4), R[0]]))
    A(waitcnt(lgkm=0))
    A(I("s_barrier"))
    A(S("s_cmp_lg_u32", sWV, 0))
    A(I("s_cbranch_scc1", ["KBR_END"]))
    for i in range(8):
        A(dsr128(R[i], vL16, 1024 * i))
    for step in (1, 2, 4):
        for w in range(0, 8, 2 * step):
            for r in range(4):
                A(V("v_add_f32", R[w][r], R[w][r], R[w + step][r]))
    A(V("v_cvt_pk_bf16_f32", R[1][0], R[0][0], R[0][1]))
    A(V("v_cvt_pk_bf16_f32", R[1][1], R[0][2], R[0][3]))
    A(S("s_lshr_b32", sT0, s(2), 1))
    A(S("s_lshl_b32", sT0, sT0, 10))
    A(S("s_and_b32", sT1, s(2), 1))
    A(S("s_lshl_b32", sT1, sT1, 3))
    A(S("s_add_u32", sT0, sT0, sT1))
    A(S("s_add_u32", sT0, sT0, WS_KVF))
    A(I("buffer_store_dwordx2", [R[1][0:2], vL16, sWS, sT0], "offen"))
    P.add(o)
    P.out.append(label("KBR_END"))
    P.out.append(I("s_endpgm"))
    return kernel_text(name, P, 64, 64, nsgpr=48)


def gen_kbo(name="kbo_kernel"):
    P = Prog()
    o = []
    A = o.append
    sWV, sT0, sT1, sHD, sSB, sG = [s(24 + i) for i in range(6)]
    A(S("s_cmp_ge_u32", s(2), 256))
    A(I("s_cbranch_scc1", ["KBO_END"]))
    ld, srd = load_srds(["ws"], 8)
    o += ld[:1]
    sWS = srd["ws"]
    vL, vL16 = v(1), v(3)
    A(V("v_lshrrev_b32", v(2), 6, v(0)))
    A(V("v_and_b32", vL, 63, v(0)))
    A(V("v_readfirstlane_b32", sWV, v(2)))
    A(V("v_lshlrev_b32", vL16, 4, vL))
    A(S("s_lshr_b32", sSB, s(2), 2))
    A(S("s_and_b32", sG, s(2), 3))
    A(S("s_lshl_b32", sHD, sG, 3))
    A(S("s_add_u32", sHD, sHD, sWV))
    o += ld[1:]
    o += kbo_body(sWS, sSB, sG, sHD, sWV, sT0, sT1, vL16, 8)
    P.add(o)
    P.out.append(label("KBO_END"))
    P.out.append(I("s_endpgm"))
    return kernel_text(name, P, 64, 64, nsgpr=48)


def kbo_body(sWS, sSB, sG, sHD, sWV, sT0, sT1, vL16, vb, ldmods="", stmods=""):
    o = []
    A = o.append
    Pf = [v(vb + 4 * F, 4) for F in range(3)]
    Kf = [v(vb + 12 + 4 * F, 4) for F in range(3)]
    C = v(vb + 24, 16)
    t0 = v(vb + 40)
    A(S("s_lshl_b32", sT0, sSB, 5))
    A(S("s_add_u32", sT0, sT0, sHD))
    A(S("s_mul_i32", sT0, sT0, 3072))
    A(S("s_add_u32", sT0, sT0, WS_PHIQ))
    A(S("s_mul_i32", sT1, sHD, 3072))
    A(S("s_add_u32", sT1, sT1, WS_KVF))
    for F in range(3):
        A(bload4(Pf[F], vL16, sWS, sT0, F * 1024, ldmods))
        A(bload4(Kf[F], vL16, sWS, sT1, F * 1024, ldmods))
    for F in range(3):
        A(mfma(C, Kf[F], Pf[F], 0 if F == 0 else C))
    A(V("v_add_f32", t0, 1e-6, C[9]))
    A(V("v_rcp_f32", t0, t0))
    for i in range(9):
        A(V("v_mul_f32", C[i], C[i], t0))
    for p in range(4):
        A(V("v_cvt_pk_bf16_f32", Pf[0][p], C[2 * p], C[2 * p + 1]))
    A(V("v_cvt_pk_bf16_f32", Pf[1][0], C[8], C[8]))
    A(S("s_mul_i32", sT0, sSB, 36))
    A(S("s_add_u32", sT1, sT0, sG))
    A(S("s_add_u32", sT0, sT0, sHD))
    A(S("s_lshl_b32", sT0, sT0, 10))
    A(S("s_add_u32", sT0, sT0, WS_OF))
    A(bstore4(Pf[0], vL16, sWS, sT0, 0, stmods))
    A(S("s_lshl_b32", sT1, sT1, 10))
    A(S("s_add_u32", sT1, sT1, WS_OF + 32 * 1024))
    A(S("s_lshl_b32", sT0, sWV, 1))
    A(S("s_add_u32", sT1, sT1, sT0))
    A(I("buffer_store_short", [Pf[1][0], vL16, sWS, sT1], "offen" + (" " + stmods if stmods else "")))
    return o
```

```python
import sys
from common import *
import k1, k2, k3, kb

HEADER = open("concat_heads__compressed_kv_cla__linear_kernel_hedgehog__prompt.s.ref").read().split("; Override launch")[0]

def build(path, kernels):
    t = HEADER
    for name, grid, block, lds, _ in kernels:
        t += f"; @launch kernel={name} grid=({grid},1,1) block=({block},1,1) lds={lds}\n"
    t += '.amdgcn_target "amdgcn-amd-amdhsa--gfx950"\n.text\n'
    seen = set()
    kds = ""
    for name, grid, block, lds, (txt, kd) in kernels:
        if name in seen: continue
        seen.add(name)
        t += txt
        kds += ".p2align 6\n" + kd
    t += '.section .rodata,"a"\n' + kds
    open(path, "w").write(t)

if __name__ == "__main__":
    out = sys.argv[1] if len(sys.argv) > 1 else "dev.s"
    ks = [("k1_kernel", 256, 512, 163840, k1.gen_k1(stamps=("stamps" in sys.argv), exp=" ".join(sys.argv)))]
    ks.append(("k2_kernel", 256, 512, 163840, k2.gen_k2(stamps=("stamps2" in sys.argv), exp=" ".join(sys.argv))))
    ks.append(("k3_kernel", 256, 512, 163840, k3.gen_k3(stamps=("stamps3" in sys.argv), exp=" ".join(sys.argv))))
    ks.append(("kb1_kernel", 256, 512, 163840, kb.gen_kb1(stamps=("stampsb" in sys.argv))))
    ks.append(("kbr_kernel", 192, 512, 8192, kb.gen_kbr()))
    ks.append(("kbo_kernel", 256, 512, 0, kb.gen_kbo()))
    ks.append(("k3b_kernel", 192, 512, 163840, k3.gen_k3b()))
    build(out, ks)
```

```python
import copy


class R:
    __slots__ = ("k", "i", "n")

    def __init__(self, k, i, n=1):
        self.k, self.i, self.n = k, i, n

    def __str__(self):
        if self.k in ("vcc", "m0", "exec", "scc"):
            return self.k
        if self.n == 1:
            return f"{self.k}{self.i}"
        return f"{self.k}[{self.i}:{self.i + self.n - 1}]"

    __repr__ = __str__

    def regs(self):
        if self.k in ("vcc", "m0", "exec", "scc"):
            return [(self.k, 0)]
        return [(self.k, self.i + j) for j in range(self.n)]

    def __getitem__(self, x):
        if isinstance(x, slice):
            a = x.start or 0
            b = self.n if x.stop is None else x.stop
            assert 0 <= a < b <= self.n, (self, x)
            return R(self.k, self.i + a, b - a)
        assert 0 <= x < self.n, (self, x)
        return R(self.k, self.i + x, 1)

    def sub(self, a, n):
        return self[a:a + n]


def v(i, n=1):
    return R("v", i, n)


def a(i, n=1):
    return R("a", i, n)


def s(i, n=1):
    return R("s", i, n)


VCC = R("vcc", 0, 2)
M0 = R("m0", 0)
EXEC = R("exec", 0, 2)


class Neg:
    def __init__(self, r):
        self.r = r

    def __str__(self):
        return f"-{self.r}"


TRANS = ("v_exp_f32", "v_log_f32", "v_rcp_f32", "v_rsq_f32", "v_sqrt_f32", "v_sin_f32", "v_cos_f32", "v_rcp_iflag_f32")


class I:
    def __init__(self, name, ops=(), mods="", cls=None, dst=None, src=None, comment=None):
        self.name, self.ops, self.mods = name, list(ops), mods
        self.comment = comment
        self.passes = 0
        self.A = self.B = self.C = self.D = None
        self.tag = None
        regs = lambda o: (o.r.regs() if isinstance(o, Neg) else o.regs()) if isinstance(o, (R, Neg)) else []
        ops = self.ops
        d, sr = [], []
        if cls is None:
            n = name
            if n.startswith("v_mfma"):
                cls = "mfma"
                self.D, self.A, self.B, self.C = ops[0], ops[1], ops[2], ops[3]
                self.passes = 8 if "32x32x16" in n else 4 if "16x16x32" in n else None
                assert self.passes
                d = regs(ops[0])
                sr = regs(ops[1]) + regs(ops[2]) + regs(ops[3])
            elif n.startswith("v_"):
                cls = "trans" if n in TRANS else "valu"
                if n.startswith("v_permlane") and "swap" in n:
                    d = regs(ops[0]) + regs(ops[1])
                    sr = list(d)
                elif n.startswith("v_add_co") or n.startswith("v_sub_co") or n.startswith("v_addc_co"):
                    d = regs(ops[0]) + regs(ops[1])
                    for o in ops[2:]:
                        sr += regs(o)
                else:
                    d = regs(ops[0])
                    for o in ops[1:]:
                        sr += regs(o)
                    if n.startswith("v_fmac") or n.startswith("v_dot2c") or n.startswith("v_pk_fmac"):
                        sr += d
            elif n.startswith("ds_read") or n.startswith("ds_bpermute") or n.startswith("ds_swizzle"):
                cls = "dsr"
                d = regs(ops[0])
                for o in ops[1:]:
                    sr += regs(o)
            elif n.startswith("ds_write"):
                cls = "dsw"
                for o in ops:
                    sr += regs(o)
            elif n.startswith("buffer_load") or n.startswith("global_load"):
                if " lds" in (" " + mods):
                    cls = "dma"
                    for o in ops:
                        sr += regs(o)
                    sr += [("m0", 0)]
                else:
                    cls = "vld"
                    d = regs(ops[0])
                    for o in ops[1:]:
                        sr += regs(o)
            elif n.startswith("buffer_store") or n.startswith("global_store"):
                cls = "vst"
                for o in ops:
                    sr += regs(o)
            elif n.startswith("buffer_atomic") or n.startswith("global_atomic"):
                cls = "vatom"
                for o in ops:
                    sr += regs(o)
                if "sc0" in mods:
                    d = regs(ops[0])
            elif n in ("buffer_wbl2", "buffer_inv"):
                cls = "vst"
            elif n.startswith("s_load"):
                cls = "smem"
                d = regs(ops[0])
                sr = regs(ops[1])
            elif n == "s_waitcnt":
                cls = "wait"
            elif n == "s_barrier":
                cls = "bar"
            elif n == "s_nop":
                cls = "nop"
            elif n.startswith("s_cbranch") or n in ("s_branch", "s_endpgm", "s_setpc_b64"):
                cls = "br"
            elif n.startswith("s_cmp") or n in ("s_setprio", "s_sleep"):
                cls = "salu"
                for o in ops:
                    sr += regs(o)
            elif n.startswith("s_"):
                cls = "salu"
                d = regs(ops[0])
                for o in ops[1:]:
                    sr += regs(o)
            else:
                raise ValueError(name)
        self.cls = cls
        self.dst = d if dst is None else dst
        self.src = sr if src is None else src

    def text(self):
        if self.cls == "label":
            return f"{self.name}:"
        if self.cls == "raw":
            return self.name
        t = self.name
        if self.ops:
            t += " " + ", ".join(fmt(o) for o in self.ops)
        if self.mods:
            t += " " + self.mods
        if self.comment:
            t += "  ; " + self.comment
        return t


def fmt(o):
    if isinstance(o, float):
        import struct
        if o in (0.5, 1.0, 2.0, 4.0, -0.5, -1.0, -2.0, -4.0):
            return repr(o)
        if o == 0.0:
            return "0"
        return hex(struct.unpack("<I", struct.pack("<f", o))[0])
    if isinstance(o, int):
        if -16 <= o <= 64:
            return str(o)
        return hex(o & 0xFFFFFFFF)
    return str(o)


def label(name):
    return I(name, cls="label")


def forget(regs):
    return I("forget", cls="forget", dst=[x for r in regs for x in r.regs()], src=[])


def raw(text):
    return I(text, cls="raw")


def waitcnt(vm=None, lgkm=None):
    m = []
    if vm is not None:
        assert 0 <= vm <= 63, vm
        m.append(f"vmcnt({vm})")
    if lgkm is not None:
        assert 0 <= lgkm <= 15, lgkm
        m.append(f"lgkmcnt({lgkm})")
    i = I("s_waitcnt", mods=" ".join(m))
    i.vm, i.lgkm = vm, lgkm
    return i


def nop(n):
    assert 1 <= n <= 16
    i = I("s_nop", [n - 1])
    i.states = n
    return i


HORIZON = 24


class State:
    def __init__(self):
        self.ev = {}
        self.lg = {}
        self.vm = {}
        self.smem = False

    def copy(self):
        return copy.deepcopy(self)

    def merge(self, o):
        r = State()
        for k in set(self.ev) | set(o.ev):
            x, y = self.ev.get(k), o.ev.get(k)
            if x is None:
                r.ev[k] = y
            elif y is None:
                r.ev[k] = x
            else:
                if x[1] != y[1]:
                    ex = (max(x[1][0], y[1][0]), None) if isinstance(x[1], tuple) else max(x[1], y[1])
                    r.ev[k] = (min(x[0], y[0]), ex)
                else:
                    r.ev[k] = (min(x[0], y[0]), x[1])
        for nm in ("lg", "vm"):
            A, B, C = getattr(self, nm), getattr(o, nm), getattr(r, nm)
            for k in set(A) | set(B):
                C[k] = min(A.get(k, 1 << 30), B.get(k, 1 << 30))
        r.smem = self.smem or o.smem
        return r

    def same(self, o):
        return self.ev == o.ev and self.lg == o.lg and self.vm == o.vm and self.smem == o.smem

    def tick(self, n):
        self.ev = {k: (x[0] + n, x[1]) for k, x in self.ev.items() if x[0] + n < HORIZON}


def _need(st, ins):
    need = 0
    ev = st.ev

    def req(kind, reg, n):
        nonlocal need
        e = ev.get((kind, reg))
        if e is not None and n - e[0] > need:
            need = n - e[0]

    def mf(reg, n8, n4):
        e = ev.get(("mw", reg))
        if e is not None:
            req("mw", reg, n8 if e[1][0] == 8 else n4)

    c = ins.cls
    isv = c in ("valu", "trans")
    ismem = c in ("dsr", "dsw", "vld", "vst", "dma", "vatom")
    if c == "mfma":
        cregs = set(ins.C.regs()) if isinstance(ins.C, R) else set()
        ab = set(ins.A.regs()) | set(ins.B.regs())
        for r in cregs | ab:
            req("vw", r, 2)
        for r in cregs:
            e = ev.get(("mw", r))
            if e is not None:
                same = e[1][1] == (ins.C.k, ins.C.i, ins.C.n) and e[1][0] == ins.passes
                if not same:
                    mf(r, 10, 6)
        for r in ab:
            mf(r, 12, 8)
        req("exw", ("exec", 0), 4)
    elif isv:
        n = ins.name
        for r in ins.src:
            if r[0] in "va":
                mf(r, 12, 8)
                if c != "trans":
                    req("tw", r, 1)
                if n.startswith("v_permlane") or "dpp" in n or "row_" in ins.mods or "quad_perm" in ins.mods:
                    req("vw", r, 2)
                if n.startswith("v_readfirstlane") or n.startswith("v_readlane"):
                    req("vw", r, 1)
            else:
                req("sw", r, 4 if "lane" in n else 2)
        for r in ins.dst:
            if r[0] in "va":
                mf(r, 12, 8)
                e = ev.get(("cr", r))
                if e is not None:
                    req("cr", r, 7 if e[1] == 8 else 3)
                req("sd", r, 2)
    elif ismem:
        for r in ins.src:
            if r[0] in "va":
                mf(r, 12, 8)
                req("tw", r, 1)
            elif r[0] == "m0":
                req("m0w", r, 1)
            else:
                req("sw", r, 5)
        for r in ins.dst:
            mf(r, 12, 8)
            e = ev.get(("cr", r))
            if e is not None:
                req("cr", r, 7 if e[1] == 8 else 3)
            req("sd", r, 1)
    elif c == "salu" or c == "br" or c == "smem":
        for r in ins.src:
            req("sw", r, 1)
    return need


def _record(st, ins):
    c = ins.cls
    ev = st.ev
    if c == "mfma":
        for r in ins.dst:
            ev[("mw", r)] = (0, (ins.passes, (ins.D.k, ins.D.i, ins.D.n)))
            ev.pop(("vw", r), None)
            ev.pop(("tw", r), None)
        if isinstance(ins.C, R):
            for r in ins.C.regs():
                ev[("cr", r)] = (0, ins.passes)
    elif c in ("valu", "trans"):
        for r in ins.dst:
            if r[0] in "va":
                ev[("vw", r)] = (0, 0)
                ev.pop(("mw", r), None)
                if c == "trans":
                    ev[("tw", r)] = (0, 0)
                else:
                    ev.pop(("tw", r), None)
            elif r[0] == "exec":
                ev[("exw", r)] = (0, 0)
            else:
                ev[("sw", r)] = (0, 0)
    elif c == "salu":
        for r in ins.dst:
            if r[0] == "m0":
                ev[("m0w", r)] = (0, 0)
            ev.pop(("sw", r), None)
    elif c == "vst":
        if "x4" in ins.name or "x3" in ins.name:
            data = ins.ops[0] if ins.name.startswith("buffer") else ins.ops[1]
            for r in data.regs():
                ev[("sd", r)] = (0, 0)


def resolve(instrs, st, saved=None):
    st = st.copy()
    out = []
    saved = {} if saved is None else saved
    uncond = False

    def emit(i):
        out.append(i)
        st.tick(getattr(i, "states", 1))

    def do_wait(vm=None, lgkm=None):
        w = waitcnt(vm, lgkm)
        apply_wait(w)
        emit(w)

    def apply_wait(w):
        if w.lgkm is not None:
            st.lg = {k: x for k, x in st.lg.items() if x < w.lgkm}
            if w.lgkm == 0:
                st.smem = False
        if w.vm is not None:
            st.vm = {k: x for k, x in st.vm.items() if x < w.vm}

    for ins in instrs:
        if ins.cls == "forget":
            for r in ins.dst:
                st.vm.pop(r, None)
            continue
        if ins.cls in ("label", "raw"):
            out.append(ins)
            if ins.cls == "label" and ins.name in saved:
                m = saved[ins.name].copy() if uncond else st.merge(saved[ins.name])
                st.ev, st.lg, st.vm, st.smem = m.ev, m.lg, m.vm, m.smem
            if ins.cls == "label":
                uncond = False
            continue
        uncond = ins.name in ("s_branch", "s_endpgm")
        if ins.cls == "wait":
            apply_wait(ins)
            emit(ins)
            continue
        touched = list(ins.src) + list(ins.dst)
        nl = [st.lg[r] for r in touched if r in st.lg]
        nv = [st.vm[r] for r in touched if r in st.vm]
        if nl or nv:
            lg = min(min(nl), 15) if nl else None
            if lg is not None and st.smem:
                lg = 0
            do_wait(min(min(nv), 63) if nv else None, lg)
        n = _need(st, ins)
        while n > 0:
            k = min(n, 16)
            emit(nop(k))
            n -= k
        emit(ins)
        _record(st, ins)
        c = ins.cls
        if c == "br" and ins.ops and isinstance(ins.ops[0], str):
            t = ins.ops[0]
            saved[t] = saved[t].merge(st) if t in saved else st.copy()
        if c in ("dsr", "dsw", "smem"):
            st.lg = {k: x + 1 for k, x in st.lg.items()}
            for r in ins.dst:
                st.lg[r] = 0
            if c == "smem":
                st.smem = True
        if c in ("vld", "vst", "dma", "vatom"):
            st.vm = {k: x + 1 for k, x in st.vm.items()}
            for r in ins.dst:
                st.vm[r] = 0
    return out, st


class Prog:
    def __init__(self):
        self.out = []
        self.st = State()
        self.saved = {}

    def add(self, instrs):
        o, self.st = resolve(instrs, self.st, self.saved)
        self.out += o

    def loop(self, head, body, extra_in=()):
        st = self.st
        for e in extra_in:
            st = st.merge(e)
        for _ in range(8):
            o, so = resolve(body, st, self.saved)
            m = st.merge(so)
            if m.same(st):
                break
            st = m
        else:
            raise RuntimeError("loop state did not converge")
        self.out.append(label(head))
        self.out += o
        self.st = so

    def save(self, name):
        if name in self.saved:
            self.saved[name] = self.saved[name].merge(self.st)
        else:
            self.saved[name] = self.st.copy()

    def join(self, name, fallthrough=True):
        self.out.append(label(name))
        sv = self.saved.get(name)
        if sv is not None:
            self.st = self.st.merge(sv) if fallthrough else sv.copy()

    def text(self):
        return "\n".join(("" if i.cls in ("label", "raw") else "  ") + i.text() for i in self.out) + "\n"


def interleave(main, fill, start=0, end=None):
    n = len(main)
    end = n if end is None else end
    gaps = [[] for _ in range(n)]
    cost = lambda i: 2.0 if i.cls == "trans" else 0.0 if i.cls in ("label", "forget") else 1.0
    tot = sum(cost(i) for i in fill)
    ng = end - start
    acc = 0.0
    g = start
    pending = set()
    labels = {f.name for f in fill if f.cls == "label"}
    seen = set()
    for f in fill:
        glue = bool(pending) or f.name.startswith("s_cselect") or f.name.startswith("s_cbranch_scc") or \
            f.name.startswith("s_addc") or f.name.startswith("s_cbranch_vcc") or f.cls == "label"
        if not glue:
            g = start + min(ng - 1, int((acc + cost(f) * 0.5) / tot * ng)) if tot else start
        gaps[g].append(f)
        acc += cost(f)
        if f.cls == "label":
            pending.discard(f.name)
            seen.add(f.name)
            if any(x.cls == "br" and x.ops and x.ops[0] == f.name for x in fill[fill.index(f):]):
                pending.add("back:" + f.name)
        if f.cls == "br" and f.ops and isinstance(f.ops[0], str):
            t = f.ops[0]
            if t in labels and t not in seen:
                pending.add(t)
            elif t in seen and not any(x.cls == "br" and x.ops and x.ops[0] == t for x in fill[fill.index(f) + 1:]):
                pending.discard("back:" + t)
    return gaps


def weave(main, *gaplists):
    out = []
    for j, m in enumerate(main):
        out.append(m)
        for g in gaplists:
            out += g[j]
    return out


def kernel_text(name, prog, nvgpr, accum, nsgpr=96):
    t = f".globl {name}\n.p2align 8\n.type {name},@function\n{name}:\n" + prog.text()
    kd = (f".amdhsa_kernel {name}\n  .amdhsa_next_free_vgpr {nvgpr}\n  .amdhsa_next_free_sgpr {nsgpr}\n"
          f"  .amdhsa_accum_offset {accum}\n  .amdhsa_group_segment_fixed_size 0\n  .amdhsa_kernarg_size 104\n"
          "  .amdhsa_user_sgpr_count 2\n  .amdhsa_user_sgpr_kernarg_segment_ptr 1\n"
          "  .amdhsa_system_sgpr_workgroup_id_x 1\n.end_amdhsa_kernel\n")
    return t, kd
```

```python
from common import *
from gemm import *
import math

LOG2E = math.log2(math.e)
CSCALE = (128 ** -0.5) * LOG2E
WS_PHIQ = WS_B
WS_KVP = WS_B + 8 * MB
WS_KVF = WS_B + 15 * MB
WS_OF = WS_B + 16 * MB
WS_WOF = WS_B + 20 * MB
WS_FLAG = WS_B + 28 * MB
WOF_CG = 292 * 2304
BIG = 0x7fffff00
F_B1, F_KV, F_KVR, F_O, F_CTX = 0, 1, 4, 8, 16

THR_LOG2 = 60.0
HEADROOM = 40.0
LA = 6
ORDER = ["A_x", "A_c_kv", "A_w_q", "A_w_uk", "A_w_uv", "A_w_o", "B_x", "B_wqkv", "B_w_phi", "B_wo", "out", "dbg", "ws"]


def gen_fused(name, stamps=False, exp="", LD="", ST="sc1"):
    P = Prog()
    PTR = {n: s(64 + 2 * i, 2) for i, n in enumerate(ORDER)}
    sW, sWV = s(2), s(3)
    sM = s(4, 2)
    sT0, sT1, sT2 = s(6), s(7), s(90)
    sWS, sA, sB, sC, sD, sDBG = s(8, 4), s(12, 4), s(16, 4), s(20, 4), s(24, 4), s(28, 4)
    sRB1, sG1, sHEAD, sPI, sE, sFB, sSPIN = s(32), s(33), s(34), s(35), s(36), s(37), s(38)
    L = [s(40 + i) for i in range(24)]
    vL, vL16, vFZ, vOne = v(1), v(2), v(3), v(4)
    vSTP = v(127)
    t0, t1, t2, t3, t4 = [v(5 + i) for i in range(5)]
    nlab = [0]

    def lab(p):
        nlab[0] += 1
        return f"{p}{nlab[0]}"

    def mk_srd(dst, nm):
        return [S("s_mov_b32", dst[0], PTR[nm][0]), S("s_mov_b32", dst[1], PTR[nm][1]),
                S("s_mov_b32", dst[2], NBYTES[nm]), S("s_mov_b32", dst[3], 0x20000)]

    def st(i, real=False):
        if not stamps:
            return []
        r = s(92, 2)
        return [I("s_memrealtime" if real else "s_memtime", [r], cls="smem", dst=r.regs(), src=[]), waitcnt(lgkm=0),
                I("v_writelane_b32", [vSTP, r[0], i])]

    ecnt = [16]

    def est(ph):
        if not (stamps and ("est" + ph) in exp):
            return None

        def fn():
            ecnt[0] += 1
            return st(ecnt[0] - 1)
        return fn

    def poll(vaddr, srd, expect, vt, soff=0):
        lp, dn = lab("PL"), lab("PD")
        return [S("s_mov_b32", sSPIN, 0), label(lp),
                I("buffer_load_dword", [vt, vaddr, srd, soff], "offen sc1"), waitcnt(vm=0),
                V("v_cmp_ne_u32", VCC, expect, vt), S("s_add_u32", sSPIN, sSPIN, 1),
                I("s_cbranch_vccz", [dn]), S("s_sleep", 1), S("s_cmp_lt_u32", sSPIN, 200000),
                I("s_cbranch_scc1", [lp]), label(dn)]

    def wg_flag(word):
        return [I("buffer_store_dword", [vOne, vFZ, sWS, sFB], f"offen offset:{4 * word} sc1")]

    def dmal(voff, srd, soff, off=0):
        return I("buffer_load_dwordx4", [voff, srd, soff],
                 ("offen" + (f" offset:{off}" if off else "") + (" " + LD if LD else "") + " lds"))

    o = []
    A = o.append
    A(S("s_cmp_ge_u32", sW, 256))
    A(I("s_cbranch_scc1", ["F_END"]))
    A(I("s_load_dwordx16", [s(64, 16), s(0, 2), 0]))
    A(I("s_load_dwordx8", [s(80, 8), s(0, 2), 64]))
    A(I("s_load_dwordx2", [s(88, 2), s(0, 2), 96]))
    if stamps:
        A(V("v_mov_b32", vSTP, 0))
    A(V("v_lshrrev_b32", t0, 6, v(0)))
    A(V("v_and_b32", vL, 63, v(0)))
    A(V("v_readfirstlane_b32", sWV, t0))
    A(V("v_lshlrev_b32", vL16, 4, vL))
    A(S("s_and_b32", sT0, sW, 7))
    A(S("s_lshr_b32", sT1, sW, 3))
    A(S("s_lshr_b32", sRB1, sT0, 1))
    A(S("s_lshl_b32", sRB1, sRB1, 3))
    A(S("s_and_b32", sT2, sT1, 7))
    A(S("s_add_u32", sRB1, sRB1, sT2))
    A(S("s_and_b32", sG1, sT0, 1))
    A(S("s_lshl_b32", sG1, sG1, 2))
    A(S("s_lshr_b32", sT2, sT1, 3))
    A(S("s_add_u32", sG1, sG1, sT2))
    A(S("s_lshl_b32", sHEAD, sT0, 2))
    A(S("s_and_b32", sT2, sT1, 3))
    A(S("s_add_u32", sHEAD, sHEAD, sT2))
    A(S("s_lshr_b32", sPI, sT1, 2))
    A(S("s_lshl_b32", sFB, sW, 8))
    A(S("s_add_u32", sFB, sFB, WS_FLAG))
    A(V("v_mov_b32", vOne, 1))
    A(V("v_mov_b32", t1, BIG))
    A(V("v_cmp_eq_u32", VCC, 0, v(0)))
    A(V("v_cndmask_b32", vFZ, t1, 0, VCC) if False else V("v_cndmask_b32", vFZ, t1, v(0), VCC))

    sSUB, sWQ, sN, sNB, sQ0, sLO4 = s(39), s(91), s(94), s(95), s(96), s(97)
    sM2 = s(98, 2)
    vTD = v(31)
    vFS = v(30)
    vS7 = v(29)
    A(V("v_mov_b32", t2, 0))
    A(V("v_cmp_eq_u32", VCC, 256, v(0)))
    A(V("v_cndmask_b32", vFS, t1, t2, VCC))
    A(V("v_lshlrev_b32", vS7, 7, v(0)))
    A(S("s_lshr_b32", sSUB, sWV, 2))
    A(S("s_and_b32", sWQ, sWV, 3))
    A(S("s_xor_b32", sLO4, sSUB, 1))

    def only(sreg, code, inv=False):
        sk = lab("ONLY")
        return [S("s_cmp_lg_u32" if inv else "s_cmp_eq_u32", sreg, 0), I("s_cbranch_scc1", [sk])] + code + [label(sk)]

    def onlyw(wv, code):
        sk = lab("ONLYW")
        return [S("s_cmp_lg_u32", sWV, wv), I("s_cbranch_scc1", [sk])] + code + [label(sk)]

    def role(sreg):
        return [S("s_cmp_lg_u32", sreg, 0), S("s_cselect_b64", VCC, -1, 0)]

    def w_off(dst, sidx):
        A(S("s_lshl_b32", sT0, sidx, 6))
        A(V("v_add_u32", t0, sT0, vL))
        A(V("v_mul_u32_u24", t1, 9363, t0))
        A(V("v_lshrrev_b32", t1, 18, t1))
        A(V("v_mul_u32_u24", t2, 28, t1))
        A(V("v_sub_u32", t2, t0, t2))
        A(V("v_mul_u32_u24", t3, 57, t2))
        A(V("v_lshrrev_b32", t3, 9, t3))
        A(V("v_min_u32", t3, 2, t3))
        A(V("v_mul_u32_u24", t4, 1152 - 144, t3))
        A(V("v_lshl_add_u32", t4, t2, 4, t4))
        A(V("v_mul_u32_u24", t1, 3456, t1))
        A(V("v_add_u32", t4, t4, t1))
        A(S("s_mul_i32", sT0, sG1, 144))
        A(V("v_add_u32", dst, sT0, t4))

    def x_off(dst, srow0, stride):
        A(V("v_lshrrev_b32", t0, 2, vL))
        A(V("v_add_u32", t0, srow0, t0))
        A(V("v_mul_u32_u24", t0, stride, t0))
        A(V("v_lshrrev_b32", t1, 4, vL))
        A(V("v_xor_b32", t1, t1, vL))
        A(V("v_and_b32", t1, 3, t1))
        A(V("v_lshl_add_u32", dst, t1, 4, t0))

    def x_read_consts(dst2, sbase):
        A(V("v_and_b32", t0, 31, vL))
        A(V("v_lshlrev_b32", t1, 6, t0))
        if sbase is not None:
            A(V("v_add_u32", t1, sbase, t1))
        A(V("v_lshrrev_b32", t2, 5, vL))
        A(V("v_bfe_u32", t3, vL, 2, 2))
        A(V("v_xor_b32", t2, t2, t3))
        A(V("v_lshl_add_u32", dst2[0], t2, 4, t1))
        A(V("v_xor_b32", dst2[1], 32, dst2[0]))

    def tr_lane(dst, hshift, rs):
        A(V("v_lshrrev_b32", t0, 5, vL))
        A(V("v_bfe_u32", t1, vL, 2, 2))
        A(V("v_lshl_add_u32", t0, t0, hshift, t1))
        A(V("v_mul_u32_u24", t0, rs, t0))
        A(V("v_bfe_u32", t2, vL, 4, 1))
        A(V("v_lshl_add_u32", t0, t2, 5, t0))
        A(V("v_and_b32", t2, 3, vL))
        A(V("v_lshl_add_u32", dst, t2, 3, t0))


    kslot = lambda c: ((c + 4) % 5) * 32768
    kXg, kWg = [v(10), v(11), v(12), v(13)], [v(14), v(15)]
    sPX, sPW = L[10], L[11]
    sCK, sWk, sWv = sA, sB, sC
    A(S("s_lshl_b32", sT0, sPI, 8))
    A(S("s_lshl_b32", sT1, sWQ, 6))
    A(S("s_add_u32", sT2, sT0, sT1))
    x_off(kXg[0], sT2, 1024)
    for i in range(1, 4):
        A(V("v_add_u32", kXg[i], i * (16384 - 1024), kXg[0]))
    A(S("s_lshl_b32", sT0, sWQ, 3))
    A(V("v_lshrrev_b32", t0, 4, vL))
    A(V("v_add_u32", t1, sT0, t0))
    A(V("v_lshlrev_b32", t1, 13, t1))
    A(V("v_lshrrev_b32", t2, 2, vL))
    A(V("v_xor_b32", t2, t2, t0))
    A(V("v_and_b32", t2, 3, t2))
    A(V("v_and_b32", t3, 3, vL))
    A(V("v_lshl_add_u32", t2, t2, 2, t3))
    A(V("v_lshl_add_u32", t1, t2, 4, t1))
    A(S("s_lshl_b32", sT0, sHEAD, 8))
    A(V("v_add_u32", kWg[0], sT0, t1))
    A(V("v_add_u32", kWg[1], 4 * 8192 - 1024, kWg[0]))
    A(S("s_lshl_b32", sPX, sWQ, 12))
    A(S("s_lshl_b32", sPW, sWQ, 11))
    A(S("s_add_u32", sPW, sPW, 16384))
    A(waitcnt(lgkm=0))
    o += st(0) + st(62, True)
    o += mk_srd(sCK, "A_c_kv") + mk_srd(sWk, "A_w_uk") + mk_srd(sWv, "A_w_uv")
    sO1, sO2 = L[12], L[13]

    def kv_issue(c):
        d = [S("s_add_u32", M0, sPX, kslot(c)), S("s_mov_b32", sO1, 64 * c)]
        d += [dma(kXg[i], sCK, sO1, i * 1024) for i in range(4)]
        d += [S("s_add_u32", M0, sPW, kslot(c)), S("s_mov_b32", sO2, c * 32 * 8192)]
        d += [dma(kWg[i], sWk, sO2, i * 1024) for i in range(2)]
        d.append(S("s_add_u32", M0, sPW, kslot(c) + 8192))
        d += [dma(kWg[i], sWv, sO2, i * 1024) for i in range(2)]
        return d

    o += only(sLO4, kv_issue(0) + kv_issue(1) + kv_issue(2) + kv_issue(3))
    if "kvtouch" in exp:
        A(V("v_and_b32", t0, 127, v(0)))
        A(V("v_lshlrev_b32", t0, 7, t0))
        A(S("s_lshl_b32", sT0, sW, 14))
        A(S("s_lshl_b32", sT1, sW, 13))
        for wv, (sr, so) in enumerate(((sWk, sT0), (sWk, sT0), (sWv, sT0), (sWv, sT0))):
            c = [I("buffer_load_dword", [vTD, t0, sr, so], "offen", dst=[])]
            if wv == 0:
                c.append(I("buffer_load_dword", [vTD, t0, sCK, sT1], "offen", dst=[]))
            o += onlyw(4 + wv, c)
    o += mk_srd(sWS, "ws") + mk_srd(sDBG, "dbg")
    A(V("v_subrev_u32", t0, 256, v(0)))
    A(V("v_cmp_gt_u32", VCC, 64, t0))
    A(V("v_lshlrev_b32", t0, 2, t0))
    A(V("v_mov_b32", t1, BIG))
    A(V("v_cndmask_b32", t0, t1, t0, VCC))
    A(V("v_mov_b32", t2, 0))
    svc = [I("buffer_store_dword", [t2, t0, sWS, sFB], "offen sc1")]
    if "nocodepf" not in exp:
        svc += only(sWQ, [I("s_getpc_b64", [sM2]), label("F_PC"), S("s_lshr_b32", sT0, sW, 3), S("s_lshl_b32", sT0, sT0, 12),
                          V("v_and_b32", t3, 31, vL), V("v_lshlrev_b32", t3, 7, t3), V("v_add_u32", t3, sT0, t3),
                          V("v_min_u32", t3, "F_CODE_END-F_PC-4", t3),
                          I("global_load_dword", [vTD, t3, sM2], "", dst=[])], inv=True)
    o += only(sSUB, svc)
    kWM, kWN = L[14], L[15]
    A(S("s_and_b32", kWM, sWV, 1))
    A(S("s_lshr_b32", kWN, sWV, 1))
    kXa = [LdsAddr([v(16), v(17), v(18)]), LdsAddr([v(19), v(20), v(21)])]
    kWa = LdsAddr([v(22), v(23), v(24)])
    A(S("s_lshl_b32", sT2, kWM, 13))
    x_read_consts([v(16), v(19)], sT2)
    tr_lane(t3, 3, 256)
    A(V("v_xor_b32", t1, kWN, t1))
    A(V("v_lshl_add_u32", v(22), t1, 6, t3))
    o += kXa[0].setup(v(16)) + kXa[1].setup(v(19)) + kWa.setup(v(22))
    kacc = [[a((m * 2 + j) * 16, 16) for j in range(2)] for m in range(4)]
    kXf = [[v(32 + (b * 4 + m) * 4, 4) for m in range(4)] for b in range(2)]
    kWf = [[v(64 + (b * 2 + j) * 4, 4) for j in range(2)] for b in range(2)]

    def kv_reads(c, ks, b):
        sl = kslot(c)
        r = [dsr128(kXf[b][0], *kXa[ks].at(sl))]
        for j in range(2):
            for t in range(2):
                r.append(dsrtr(kWf[b][j][2 * t:2 * t + 2], *kWa.at(sl + 16384 + j * 8192 + (16 * ks + 4 * t) * 256)))
        for m in range(1, 4):
            r.append(dsr128(kXf[b][m], *kXa[ks].at(sl + m * 2048)))
        return r

    def kv_mfmas(b, first):
        r = []
        for m in range(4):
            r.append(mfma(kacc[m][0], kWf[b][0], kXf[b][m], 0 if first else kacc[m][0]))
            r.append(mfma(kacc[m][1], kXf[b][m], kWf[b][1], 0 if first else kacc[m][1]))
        return r

    B1_SUB, B1_BASE, B1_IMG, PHI_BASE = 18432, 16384, 126976, 98304
    bslot = lambda e: B1_BASE + (e % 3) * 2 * B1_SUB
    IMG_RS, PHI_RS = 144, 112
    R_BASE = bslot(2)
    sHD, sSO0, sSO3, sSt3, sLD1, sLD3 = L[0:6]
    sXb, sWb, sPH, sB2 = sA, sB, sC, sD
    vG = [v(114 + i) for i in range(9)]
    vI, vH2 = v(25), v(26)
    A(S("s_and_b32", sT0, sWQ, 1))
    A(S("s_cmp_eq_u32", sT0, 1))
    A(S("s_cselect_b64", sM2, -1, 0))
    A(S("s_cselect_b32", sSt3, 64, 32 * 3456))
    A(S("s_mul_i32", L[6], sT0, 9))
    for i in range(9):
        A(S("s_add_u32", sT2, L[6], i))
        w_off(vG[i], sT2)
        comp = 1024 * (i if i < 4 else 0 if i == 4 else i - 5)
        if i >= 5:
            A(S("s_lshl_b32", sT0, sRB1, 6))
            A(S("s_add_u32", sT2, sT0, 16 * (i - 5)))
            x_off(t4, sT2, 1152)
            A(V("v_cndmask_b32", vG[i], vG[i], t4, sM2))
        if comp:
            A(V("v_subrev_u32", vG[i], comp, vG[i]))
    A(S("s_lshr_b32", sT1, sWQ, 1))
    A(S("s_mul_i32", sSO0, sT1, 32 * 3456))
    A(S("s_mul_i32", sSO3, sT1, sSt3))
    A(S("s_lshl_b32", sSt3, sSt3, 1))
    A(S("s_mul_i32", sT1, sT1, B1_SUB))
    A(S("s_lshl_b32", sT0, L[6], 10))
    A(S("s_add_u32", sLD1, sT1, sT0))
    A(S("s_add_u32", sLD1, sLD1, 4096))
    A(S("s_add_u32", sT0, sT1, 4096 + 5120))
    A(S("s_cmp_eq_u32", L[6], 0))
    A(S("s_cselect_b32", sLD3, sT0, sT1))
    A(S("s_lshl_b32", sT0, sG1, 2))
    A(S("s_add_u32", sHD, sWQ, sT0))
    A(V("v_bfe_u32", t0, vL, 3, 2))
    A(V("v_and_b32", t1, 3, vL))
    A(V("v_lshl_add_u32", vI, t0, 2, t1))
    A(V("v_bfe_u32", vH2, vL, 2, 1))
    A(S("s_sub_u32", sT0, 15, sPI))
    A(S("s_cmp_eq_u32", sSUB, 0))
    A(S("s_cselect_b32", sT2, sPI, sT0))
    A(S("s_add_u32", sN, sT2, 1))
    A(S("s_lshl_b32", sN, sN, 2))
    A(S("s_add_u32", sNB, sT0, 1))
    A(S("s_lshl_b32", sNB, sNB, 2))
    A(S("s_lshl_b32", sQ0, sT2, 7))
    A(S("s_lshl_b32", sT1, sWQ, 5))
    A(S("s_add_u32", sQ0, sQ0, sT1))

    def b1_issue(e):
        d = [S("s_add_u32", M0, sLD1, bslot(e))]
        d += [dma(vG[i], sWb, sSO0, i * 1024) for i in range(4)]
        d.append(S("s_add_u32", M0, sLD1, bslot(e) + 4096))
        d.append(dma(vG[4], sWb, sSO0))
        d.append(S("s_add_u32", M0, sLD3, bslot(e)))
        d += [dma(vG[5 + i], sB2, sSO3, i * 1024) for i in range(4)]
        d += [S("s_add_u32", sSO0, sSO0, 64 * 3456), S("s_add_u32", sSO3, sSO3, sSt3)]
        return d

    sIDX, sXCD, sXoff = L[21], L[22], L[9]
    A(S("s_lshr_b32", sIDX, sW, 3))
    A(S("s_and_b32", sXCD, sW, 7))
    A(S("s_lshr_b32", sXoff, sXCD, 1))
    A(S("s_mul_i32", sXoff, sXoff, 512 * 1152))

    def touch(srd, nm, sbase, mul, nlines, extra_off=None):
        r = mk_srd(srd, nm) + [S("s_mul_i32", L[23], sbase, mul * 128)]
        if extra_off is not None:
            r.append(S("s_add_u32", L[23], L[23], extra_off))
        for f in range(0, nlines, 512):
            n = min(512, nlines - f)
            if n < 512:
                r += [V("v_mov_b32", t1, BIG), V("v_mov_b32", t2, n), V("v_cmp_gt_u32", sM, t2, v(0)),
                      V("v_cndmask_b32", t0, t1, vS7, sM)]
            r.append(I("buffer_load_dword", [vTD, t0 if n < 512 else vS7, srd, L[23]], "offen", dst=[]))
            r.append(S("s_add_u32", L[23], L[23], 512 * 128))
        return r

    def touch_wq(srd):
        return mk_srd(srd, "A_w_q") + [S("s_mul_i32", L[23], sIDX, 18 * 8192), S("s_lshl_b32", L[7], sXCD, 10),
                                       S("s_add_u32", L[23], L[23], L[7]),
                                       V("v_lshrrev_b32", t0, 3, v(0)), V("v_lshlrev_b32", t0, 13, t0),
                                       V("v_and_b32", t1, 1023, vS7), V("v_add_u32", t0, t0, t1), V("v_mov_b32", t1, BIG),
                                       V("v_mov_b32", t2, 144), V("v_cmp_gt_u32", sM, t2, v(0)),
                                       V("v_cndmask_b32", t0, t1, t0, sM),
                                       I("buffer_load_dword", [vTD, t0, srd, L[23]], "offen", dst=[])]

    TW = 0
    extra = {}
    extra[9] = onlyw(4, [waitcnt(vm=0), I("buffer_atomic_add", [vOne, vFS, sDBG, 0], "offen sc1")])
    TEP = 0 if "tep0" in exp else 12 if "tep12" in exp else 11
    if "notouch" not in exp:
        jobs = []
        for nm, per in (("B_x", 72), ("B_wqkv", 61), ("A_x", 72), ("A_w_q", 144)):
            for f0 in range(0, per, 64):
                jobs.append((nm, per, f0, min(64, per - f0)))
        for e, (nm, per, f0, n) in enumerate(jobs):
            r = mk_srd(sD, nm) + [S("s_mul_i32", L[23], sW, per * 128), S("s_add_u32", L[23], L[23], f0 * 128),
                                  V("v_min_u32", t0, n - 1, vL), V("v_lshlrev_b32", t0, 7, t0),
                                  I("buffer_load_dword", [vTD, t0, sD, L[23]], "offen", dst=[])]
            ep = TEP + e // 4 if "tburst" not in exp else 3 + 3 * (e // 2)
            extra[ep] = extra.get(ep, []) + onlyw(4 + e % 4, r)
    h13 = mk_srd(sXb, "B_x") + mk_srd(sWb, "B_wqkv") + mk_srd(sC, "A_w_o")
    h13 += [S("s_cmp_eq_u32", L[6], 0), S("s_cselect_b32", sB2[0], sWb[0], sXb[0]), S("s_cselect_b32", sB2[1], sWb[1], sXb[1]),
            S("s_cselect_b32", sB2[2], sWb[2], sXb[2]), S("s_mov_b32", sB2[3], 0x20000)]
    extra[13] = h13 + only(sLO4, b1_issue(0))
    extra[14] = only(sLO4, b1_issue(1))
    rd = [S("s_mul_i32", sT2, sW, 16 * 1152), S("s_mul_i32", sT0, sWQ, 5120), S("s_add_u32", sT1, sT0, sT2),
          S("s_add_u32", M0, sT0, R_BASE)] + [dma(vL16, sC, sT1, i * 1024) for i in range(4)]
    rd += [S("s_add_u32", M0, sT0, R_BASE + 4096), S("s_add_u32", sT1, sT1, 4096), dma(vL16, sC, sT1)]
    hook = only(sLO4, rd)
    o += role(sLO4)
    P.add(o)
    gemm4(P, "KV", 16, 2, 5, 8, kv_issue, kv_reads, kv_mfmas, pre=4, tail_hook=hook, extra=extra, est=est("KV"),
          vm_bias={14: 9, 15: 18})
    o = []
    A = o.append
    o += st(1)
    kK, kV0, kV1 = L[18], L[19], L[20]
    A(S("s_lshl_b32", sT0, sHEAD, 19))
    A(S("s_lshl_b32", sT1, sPI, 16))
    A(S("s_add_u32", sT0, sT0, sT1))
    A(S("s_lshl_b32", sT1, kWM, 15))
    A(S("s_add_u32", sT0, sT0, sT1))
    vSTm = [v(10), v(11), v(12), v(13)]
    A(V("v_add_u32", vSTm[0], sT0, vL16))
    for m in range(1, 4):
        A(V("v_add_u32", vSTm[m], 8192 * m, vSTm[0]))
    A(S("s_lshl_b32", kK, kWN, 11))
    A(S("s_lshl_b32", kV0, kWN, 10))
    A(S("s_add_u32", kK, kK, WS_KF))
    A(S("s_add_u32", kV0, kV0, WS_VF))
    A(S("s_add_u32", kV1, kV0, 4096))
    TT = [v(96 + i) for i in range(16)]
    PK2 = [v(112, 4)]

    def kv_conv(tile):
        src = a(16 * tile, 16)
        r = [V("v_accvgpr_read_b32", TT[q], src[q]) for q in range(16)]
        r += [V("v_cvt_pk_bf16_f32", TT[q], TT[2 * q], TT[2 * q + 1]) for q in range(8)]
        r += [V("v_accvgpr_write_b32", a(8 * tile + q), TT[q]) for q in range(8)]
        return r

    def kv_st(n):
        tile, b = n // 2, n % 2
        m, j = tile // 2, tile % 2
        d = a(8 * tile + 4 * b, 4)
        if j == 0:
            return bstore4(d, vSTm[m], sWS, kK, b * 1024, ST)
        return bstore4(d, vSTm[m], sWS, kV1 if b else kV0, 0, ST)

    vRr, vRs, vRs2 = v(32), v(33), v(34)
    RF = [v(36 + 4 * j, 4) for j in range(3)]
    tr_lane(t3, 2, 1152)
    A(S("s_mul_i32", sT0, sWV, 144))
    A(S("s_add_u32", sT0, sT0, R_BASE))
    A(V("v_add_u32", vRr, sT0, t3))
    A(V("v_and_b32", t0, 31, vL))
    A(V("v_lshrrev_b32", t1, 5, vL))
    A(V("v_lshlrev_b32", t1, 7, t1))
    A(V("v_lshl_add_u32", t1, t0, 4, t1))
    A(V("v_mov_b32", t2, BIG))
    A(V("v_cmp_gt_u32", VCC, 8, t0))
    A(V("v_cndmask_b32", vRs2, t2, t1, VCC))
    o += kv_conv(0)
    o += only(sLO4, [waitcnt(vm=0)])
    A(I("s_barrier"))
    for j in range(3):
        for t in range(2):
            A(dsrtr(RF[j][2 * t:2 * t + 2], vRr, 8 * t * 1152 + 64 * j))
    A(S("s_mul_i32", sT0, sWV, WOF_CG))
    A(S("s_mul_i32", sT1, sW, 2304))
    A(S("s_add_u32", sT0, sT0, sT1))
    A(S("s_add_u32", sT0, sT0, WS_WOF))
    A(bstore4(RF[0], vL16, sWS, sT0, 0, ST))
    A(bstore4(RF[1], vL16, sWS, sT0, 1024, ST))
    A(bstore4(RF[2], vRs2, sWS, sT0, 2048, ST))
    A(S("s_sub_u32", sT2, sW, 192))
    A(S("s_cmp_ge_u32", sT2, 32))
    A(I("s_cbranch_scc1", ["R_DONE"]))
    o += mk_srd(sC, "B_wo")
    A(waitcnt(lgkm=0))
    A(I("s_barrier"))
    A(S("s_mul_i32", sT2, sT2, 18 * 1152))
    A(S("s_mul_i32", sT0, sWV, 3072))
    A(S("s_add_u32", sT1, sT0, sT2))
    A(S("s_add_u32", M0, sT0, R_BASE))
    for i in range(3):
        A(dma(vL16, sC, sT1, i * 1024))
    A(V("v_lshrrev_b32", t0, 5, vL))
    A(V("v_mul_u32_u24", t0, 5 * 1152, t0))
    A(V("v_add_u32", vRr, vRr, t0))
    A(V("v_lshrrev_b32", t0, 5, vL))
    A(V("v_mul_u32_u24", t0, 9 * 1152, t0))
    A(V("v_and_b32", t1, 31, vL))
    A(V("v_lshl_add_u32", t0, t1, 1, t0))
    A(S("s_mul_i32", sT0, sWV, 144))
    A(S("s_add_u32", sT0, sT0, R_BASE + 8 * 1152))
    A(V("v_add_u32", vRs, sT0, t0))
    A(waitcnt(vm=0))
    A(I("s_barrier"))
    for j in range(3):
        for t in range(2):
            A(dsrtr(RF[j][2 * t:2 * t + 2], vRr, 4 * t * 1152 + 64 * j))
    XE = [v(48 + j) for j in range(3)]
    for j in range(3):
        A(I("ds_read_u16", [XE[j], vRs], f"offset:{64 * j}"))
    A(S("s_sub_u32", sT2, sW, 192))
    A(S("s_mul_i32", sT0, sWV, WOF_CG))
    A(S("s_add_u32", sT0, sT0, WS_WOF + 256 * 2304))
    A(S("s_mul_i32", sT1, sT2, 2304))
    A(S("s_add_u32", sT1, sT0, sT1))
    A(bstore4(RF[0], vL16, sWS, sT1, 0, ST))
    A(bstore4(RF[1], vL16, sWS, sT1, 1024, ST))
    A(bstore4(RF[2], vRs2, sWS, sT1, 2048, ST))
    A(S("s_lshr_b32", sT1, sT2, 3))
    A(S("s_add_u32", sT1, sT1, 32))
    A(S("s_mul_i32", sT1, sT1, 2304))
    A(S("s_add_u32", sT0, sT0, sT1))
    A(S("s_and_b32", sT1, sT2, 7))
    A(S("s_lshl_b32", sT1, sT1, 1))
    A(S("s_add_u32", sT0, sT0, sT1))
    for j in range(3):
        A(I("buffer_store_short", [XE[j], vRs2 if j == 2 else vL16, sWS, sT0], f"offen offset:{1024 * j} " + ST))
    A(label("R_DONE"))
    raw_ = [v(88 + i) for i in range(8)] + [v(112), v(113)]
    WP = [v(96, 4), v(100, 4)]
    o += mk_srd(sPH, "B_w_phi")
    A(V("v_mad_u32_u24", t0, vH2, 9, vI))
    A(V("v_lshrrev_b32", t1, 5, vL))
    A(V("v_mul_u32_u24", t2, 8 * 36, t1))
    A(V("v_lshl_add_u32", t2, t0, 1, t2))
    A(S("s_mul_i32", sT0, sHD, 648))
    A(V("v_add_u32", t2, sT0, t2))
    A(V("v_mov_b32", t4, BIG))
    A(V("v_cmp_lt_u32", sM, vI, 9))
    A(V("v_cndmask_b32", t2, t4, t2, sM))
    A(V("v_cmp_eq_u32", sM, t1, 0))
    A(V("v_cndmask_b32", t3, t4, t2, sM))
    for j in range(8):
        A(I("buffer_load_ushort", [raw_[j], t2, sPH, 0], f"offen offset:{36 * j}" if j else "offen"))
    for j in range(2):
        A(I("buffer_load_ushort", [raw_[8 + j], t3, sPH, 0], f"offen offset:{36 * (16 + j)}"))
    o += st(2)

    bXa = [LdsAddr([v(16), v(17)]), LdsAddr([v(18), v(19)])]
    bWa = LdsAddr([v(20), v(21)])
    x_read_consts([v(16), v(18)], None)
    tr_lane(t3, 3, 448)
    A(S("s_lshl_b32", sT0, sWV, 6))
    A(V("v_add_u32", v(20), sT0, t3))
    o += bXa[0].setup(v(16)) + bXa[1].setup(v(18)) + bWa.setup(v(20))
    acc = [v(32, 16), v(48, 16)]
    Xf = [[v(64 + (b * 2 + m) * 4, 4) for m in range(2)] for b in range(2)]
    Wf = [v(80, 4), v(84, 4)]

    def b1_reads(e, k4, b):
        sl, ks = bslot(e) + (k4 >> 1) * B1_SUB, k4 & 1
        r = [dsr128(Xf[b][0], *bXa[ks].at(sl))]
        for t in range(2):
            r.append(dsrtr(Wf[b][2 * t:2 * t + 2], *bWa.at(sl + 4096 + (16 * ks + 4 * t) * 448)))
        r.append(dsr128(Xf[b][1], *bXa[ks].at(sl + 2048)))
        return r

    def b1_mfmas(b, first):
        return [mfma(acc[m], Xf[b][m], Wf[b], 0 if first else acc[m]) for m in range(2)]

    qslot = lambda c: 16384 + (c % 6) * 24576
    qXg = [v(123), v(124), v(125), v(126)]
    A(S("s_sub_u32", sT0, 15, sPI))
    A(S("s_cmp_lt_u32", sWQ, 2))
    A(S("s_cselect_b32", sT0, sPI, sT0))
    A(S("s_lshl_b32", sT0, sT0, 7))
    A(S("s_and_b32", sT1, sWQ, 1))
    A(S("s_lshl_b32", sT1, sT1, 6))
    A(S("s_add_u32", sT2, sT0, sT1))
    x_off(qXg[0], sT2, 1152)
    for i in range(1, 4):
        A(V("v_add_u32", qXg[i], i * (16 * 1152 - 1024), qXg[0]))
    sXq, sWqq = sA, sB

    def q_issue(c):
        d = [S("s_add_u32", M0, sPX, qslot(c)), S("s_mov_b32", sO1, 64 * c)]
        d += [dma(qXg[i], sXq, sO1, i * 1024) for i in range(4)]
        d += [S("s_add_u32", M0, sPW, qslot(c)), S("s_mov_b32", sO2, c * 32 * 8192)]
        d += [dma(kWg[i], sWqq, sO2, i * 1024) for i in range(2)]
        return d

    extra = {e: [] for e in range(9)}
    for t in range(1, 8):
        extra[(t - 1) // 2] += kv_conv(t)
    pk_ = only(sSUB, [waitcnt(vm=0)]) + [forget(raw_)]
    pk_ += [V("v_lshl_or_b32", WP[0][p], raw_[2 * p + 1], 16, raw_[2 * p]) for p in range(4)]
    pk_ += [V("v_lshl_or_b32", WP[1][0], raw_[9], 16, raw_[8])] + [V("v_mov_b32", WP[1][p], 0) for p in range(1, 4)]
    extra[4] = pk_ + extra[4]
    NEARLY = 4
    extra[7] += [kv_st(n) for n in range(NEARLY)]
    TW = 0
    hook = mk_srd(sXq, "A_x") + mk_srd(sWqq, "A_w_q") + only(sSUB, q_issue(0) + q_issue(1) + q_issue(2))
    o += role(sLO4)
    P.add(o)
    gemm4(P, "B1", 9, 4, 3, 9, b1_issue, b1_reads, b1_mfmas, pre=2, rd_span=2, tail_hook=hook, extra=extra,
          first_vm=9 + 13, est=est("B1"), vm_bias={8: NEARLY})
    o = []
    A = o.append
    o += st(3)
    vIW, vQr = v(22), v(23)
    A(V("v_and_b32", t0, 31, vL))
    A(S("s_lshl_b32", sT0, sWV, 5))
    A(V("v_add_u32", t0, sT0, t0))
    A(V("v_mul_u32_u24", t0, IMG_RS, t0))
    A(V("v_lshrrev_b32", t1, 5, vL))
    A(V("v_lshl_add_u32", t0, t1, 3, t0))
    A(V("v_add_u32", vIW, B1_IMG, t0))
    pk = v(64, 16)
    for m in range(2):
        for r in range(8):
            A(V("v_cvt_pk_bf16_f32", pk[8 * m + r], acc[m][2 * r], acc[m][2 * r + 1]))
    A(S("s_cmp_lg_u32", sWV, 7))
    A(I("s_cbranch_scc1", ["B1_NZ"]))
    for r in range(16):
        A(V("v_mov_b32", pk[r], 0))
    A(label("B1_NZ"))
    for m in range(2):
        for g in range(4):
            A(I("ds_write_b64", [vIW, pk[8 * m + 2 * g:8 * m + 2 * g + 2]], f"offset:{(32 * m + 8 * g) * 2}"))
    tr_lane(t3, 3, IMG_RS)
    A(S("s_mul_i32", sT0, sWV, 18 * IMG_RS))
    A(S("s_add_u32", sT0, sT0, B1_IMG))
    A(V("v_add_u32", vQr, sT0, t3))
    A(waitcnt(lgkm=0))
    A(I("s_barrier"))
    Qf = [[v(64 + (sb * 2 + ks) * 4, 4) for ks in range(2)] for sb in range(2)]
    for sb in range(2):
        for ks in range(2):
            for t in range(2):
                A(dsrtr(Qf[sb][ks][2 * t:2 * t + 2], vQr, (16 * ks + 4 * t) * IMG_RS + 64 * sb))
    for sb in range(2):
        for ks in range(2):
            A(mfma(acc[sb], WP[ks], Qf[sb][ks], 0 if ks == 0 else acc[sb]))
    PHI = [v(64, 12), v(76, 12)]
    E = [v(96 + i) for i in range(18)]
    sL2 = sT2
    A(S("s_mov_b32", sL2, float(LOG2E)))
    for sb in range(2):
        x = acc[sb]
        mx, mn, u0, u1 = t0, t1, t2, t3
        A(V("v_max3_f32", mx, x[0], x[1], x[2]))
        A(V("v_min3_f32", mn, x[0], x[1], x[2]))
        for r in (3, 5, 7):
            A(V("v_max3_f32", mx, mx, x[r], x[r + 1]))
            A(V("v_min3_f32", mn, mn, x[r], x[r + 1]))
        A(V("v_mov_b32", u0, mx))
        A(V("v_mov_b32", u1, mn))
        A(V("v_permlane32_swap_b32", mx, u0))
        A(V("v_permlane32_swap_b32", mn, u1))
        A(V("v_max_f32", mx, mx, u0))
        A(V("v_min_f32", mn, mn, u1))
        A(V("v_mul_f32", mx, sL2, mx))
        A(V("v_mul_f32", mn, sL2, mn))
        for i in range(9):
            A(V("v_fma_f32", E[i], x[i], sL2, Neg(mx)))
            A(V("v_fma_f32", E[9 + i], Neg(x[i]), sL2, mn))
        for i in range(18):
            A(V("v_exp_f32", E[i], E[i]))
        sp, sn = mx, mn
        A(V("v_add_f32", sp, E[0], E[1]))
        A(V("v_add_f32", sn, E[9], E[10]))
        for i in range(2, 9):
            A(V("v_add_f32", sp, sp, E[i]))
            A(V("v_add_f32", sn, sn, E[9 + i]))
        A(V("v_mov_b32", u0, sp))
        A(V("v_mov_b32", u1, sn))
        A(V("v_permlane32_swap_b32", sp, u0))
        A(V("v_permlane32_swap_b32", sn, u1))
        A(V("v_add_f32", sp, sp, u0))
        A(V("v_add_f32", sn, sn, u1))
        A(V("v_rcp_f32", sp, sp))
        A(V("v_rcp_f32", sn, sn))
        for i in range(9):
            A(V("v_mul_f32", E[i], E[i], sp))
            A(V("v_mul_f32", E[9 + i], E[9 + i], sn))
        for p in range(9):
            A(V("v_cvt_pk_bf16_f32", PHI[sb][p], E[2 * p], E[2 * p + 1]))
        for p in range(9, 12):
            A(V("v_mov_b32", PHI[sb][p], 0))
    body_ = o[:]
    del o[:]
    safe = [i for i, x in enumerate(body_) if x.cls in ("valu", "trans") and i > 60]
    pos = {safe[(k * len(safe)) // (16 - NEARLY)]: NEARLY + k for k in range(16 - NEARLY)}
    for i, x in enumerate(body_):
        o.append(x)
        if i in pos:
            o.append(kv_st(pos[i]))
    A(S("s_cmp_ge_u32", sWV, 4))
    A(I("s_cbranch_scc1", ["B1_K"]))
    A(S("s_lshl_b32", sT0, sRB1, 6))
    A(S("s_add_u32", sT0, sT0, sHD))
    A(S("s_mul_i32", sT0, sT0, 3072))
    A(S("s_add_u32", sT0, sT0, WS_PHIQ))
    A(S("s_add_u32", sT1, sT0, 32 * 3072))
    for sb in range(2):
        for F in range(3):
            A(bstore4(PHI[sb][4 * F:4 * F + 4], vL16, sWS, sT1 if sb else sT0, F * 1024, ST))
    A(I("s_branch", ["B1_DONE"]))
    A(label("B1_K"))
    vPW, vPR, vVR, vPR1 = v(24), v(27), v(28), v(114)
    A(S("s_sub_u32", sT0, sWV, 4))
    A(S("s_mul_i32", sT0, sT0, 64 * PHI_RS))
    A(S("s_add_u32", sT0, sT0, PHI_BASE))
    A(V("v_and_b32", t0, 31, vL))
    A(V("v_mul_u32_u24", t0, PHI_RS, t0))
    A(V("v_lshrrev_b32", t1, 5, vL))
    A(V("v_mul_u32_u24", t2, 48, t1))
    A(V("v_add3_u32", vPW, t0, t2, sT0))
    for sb in range(2):
        for F in range(3):
            A(I("ds_write_b128", [vPW, PHI[sb][4 * F:4 * F + 4]], f"offset:{sb * 32 * PHI_RS + 16 * F}"))
    A(V("v_bfe_u32", t2, vL, 2, 2))
    A(V("v_lshl_add_u32", t0, t1, 3, t2))
    A(V("v_mul_u32_u24", t0, PHI_RS, t0))
    A(V("v_and_b32", t2, 1, vL))
    A(V("v_mul_u32_u24", t2, 48, t2))
    A(V("v_add_u32", t0, t0, t2))
    A(V("v_bfe_u32", t2, vL, 1, 1))
    A(V("v_lshl_add_u32", t0, t2, 3, t0))
    A(V("v_add_u32", t0, sT0, t0))
    A(V("v_bfe_u32", t2, vL, 4, 1))
    A(V("v_lshl_add_u32", vPR, t2, 4, t0))
    A(V("v_add_u32", vPR1, 32, t0))
    A(V("v_min_u32", t0, 8, vI))
    A(V("v_mad_u32_u24", t0, vH2, 9, t0))
    A(S("s_mul_i32", sT0, sWV, 18))
    A(S("s_add_u32", sT0, sT0, 72))
    A(V("v_add_u32", t0, sT0, t0))
    A(V("v_mul_u32_u24", t0, IMG_RS, t0))
    A(V("v_lshl_add_u32", t0, t1, 4, t0))
    A(V("v_add_u32", vVR, B1_IMG, t0))
    Vf = [v(96 + 4 * ks, 4) for ks in range(4)]
    Af = [[a(64 + (T * 4 + ks) * 4, 4) for ks in range(4)] for T in range(2)]
    for ks in range(4):
        A(dsr128(Vf[ks], vVR, 32 * ks))
    for T in range(2):
        for ks in range(4):
            for t in range(2):
                A(dsrtr(Af[T][ks][2 * t:2 * t + 2], vPR1 if T else vPR, (16 * ks + 4 * t) * PHI_RS))
    A(V("v_cmp_eq_u32", sM, vI, 9))
    A(V("v_mov_b32", t4, 0x3f803f80))
    for ks in range(4):
        for r in range(4):
            A(V("v_cndmask_b32", Vf[ks][r], Vf[ks][r], t4, sM))
    for T in range(2):
        for ks in range(4):
            A(mfma(acc[T], Af[T][ks], Vf[ks], 0 if ks == 0 else acc[T]))
    A(S("s_lshl_b32", sT0, sRB1, 5))
    A(S("s_add_u32", sT0, sT0, sHD))
    A(S("s_mul_i32", sT0, sT0, 6144))
    A(S("s_add_u32", sT0, sT0, WS_KVP))
    A(S("s_add_u32", sT1, sT0, 4096))
    for g in range(6):
        A(bstore4(acc[g // 4][4 * (g % 4):4 * (g % 4) + 4], vL16, sWS, sT1 if g >= 4 else sT0, (g % 4) * 1024, ST))
    A(label("B1_DONE"))
    o += st(4)

    qXa = [LdsAddr([v(16), v(17), v(18)]), LdsAddr([v(19), v(20), v(21)])]
    qWa = [LdsAddr([v(22), v(23), v(24)]), LdsAddr([v(25), v(26), v(27)])]
    A(S("s_lshr_b32", sT2, sWV, 1))
    A(S("s_lshl_b32", sT2, sT2, 12))
    x_read_consts([v(16), v(19)], sT2)
    tr_lane(t3, 3, 256)
    A(S("s_and_b32", sT0, sWV, 1))
    A(S("s_lshl_b32", sT0, sT0, 1))
    A(V("v_xor_b32", t1, sT0, t1))
    A(V("v_lshl_add_u32", v(22), t1, 6, t3))
    A(V("v_xor_b32", v(25), 64, v(22)))
    o += qXa[0].setup(v(16)) + qXa[1].setup(v(19)) + qWa[0].setup(v(22)) + qWa[1].setup(v(25))
    Sb = [v(32, 16), v(48, 16)]
    NEGM = v(64, 16)
    Pb = [v(80, 8), v(88, 8)]
    T = TT
    O = [a(16 * i, 16) for i in range(4)]
    Q = [a(64 + 4 * i, 4) for i in range(8)]
    FR = [a(96 + 4 * i, 4) for i in range(8)]
    qacc = [[v(32 + 16 * (2 * m + j), 16) for j in range(2)] for m in range(2)]
    qXf = [[v(96 + (2 * b + m) * 4, 4) for m in range(2)] for b in range(2)]
    qWf = [[FR[2 * b + j] for j in range(2)] for b in range(2)]

    def q_reads(c, ks, b):
        sl = qslot(c)
        r = [dsr128(qXf[b][0], *qXa[ks].at(sl))]
        for j in range(2):
            for t in range(2):
                r.append(dsrtr(qWf[b][j][2 * t:2 * t + 2], *qWa[j].at(sl + 16384 + (16 * ks + 4 * t) * 256)))
        r.append(dsr128(qXf[b][1], *qXa[ks].at(sl + 2048)))
        return r

    def q_mfmas(b, first):
        return [mfma(qacc[m][j], qWf[b][j], qXf[b][m], 0 if first else qacc[m][j]) for m in range(2) for j in range(2)]

    ASLOT = 32768
    sK, sV = sC, sD
    sKO, sVO, sWRA, sRDA, sCNT, sREM = L[0:6]
    sMk = [s(56 + 2 * i, 2) for i in range(4)]
    vKVg, vAc, vAn = v(124), v(125), v(126)
    zo = [V("v_accvgpr_write_b32", O[dt][r], 0) for dt in range(4) for r in range(16)]
    extra = {4: only(sLO4, [waitcnt(vm=0)])}
    extra[5] = onlyw(0, wg_flag(F_KV) + wg_flag(F_B1) + [I("buffer_atomic_add", [vOne, vFZ, sDBG, 0], "offen offset:4 sc1")])
    extra[6], extra[7], extra[8], extra[9] = zo[:16], zo[16:32], zo[32:48], zo[48:]
    vP0, vP1 = v(28), v(112)
    vPZ, vPZr = v(113), v(114)
    A(V("v_mov_b32", vPZ, 0))
    extra[12] = onlyw(0, [I("buffer_load_dword", [vPZr, vPZ, sDBG, 0], "offen sc1", dst=[])])
    o += [S("s_and_b32", sT0, sW, 31), V("v_and_b32", vP0, 7, vL), V("v_lshlrev_b32", vP0, 5, vP0),
          V("v_add_u32", vP0, sT0, vP0), V("v_lshlrev_b32", vP0, 8, vP0), V("v_add_u32", vP0, WS_FLAG + 4 * F_KV, vP0)]
    extra[14] = onlyw(0, [waitcnt(vm=0), I("buffer_load_dword", [vP1, vP0, sWS, 0], "offen sc1", dst=[])])
    okl = lab("Q_OK")
    sll = lab("Q_SL")
    pre = onlyw(0, [waitcnt(vm=0), V("v_cmp_ne_u32", VCC, 256, vPZr), nop(2), I("s_cbranch_vccnz", [sll]),
                    V("v_cmp_ne_u32", VCC, 1, vP1), nop(2), I("s_cbranch_vccz", [okl]), label(sll)] +
                poll(vPZ, sDBG, 256, vPZr) + poll(vP0, sWS, 1, vP1) + [label(okl), S("s_mov_b64", VCC, 0)])
    hook = [S("s_lshl_b32", sT0, sHEAD, 19), S("s_add_u32", sK[0], sWS[0], sT0), S("s_addc_u32", sK[1], sWS[1], 0),
            S("s_lshl_b32", sK[2], sNB, 13), S("s_mov_b32", sK[3], 0x20000),
            S("s_add_u32", sV[0], sK[0], WS_VF - WS_KF), S("s_addc_u32", sV[1], sK[1], 0),
            S("s_mov_b32", sV[2], sK[2]), S("s_mov_b32", sV[3], 0x20000),
            V("v_add_u32", vKVg, sPX, vL16)]
    H = hook.append
    H(S("s_lshl_b32", sT0, sSUB, 15))
    H(S("s_add_u32", sT0, sT0, sPX))
    H(S("s_mov_b32", M0, sT0))
    H(S("s_lshl_b32", sT1, sSUB, 14))
    H(S("s_add_u32", sT1, sT1, 8192))
    for i in range(4):
        H(dmal(vKVg, sK, sT1, i * 1024))
    H(S("s_add_u32", M0, sT0, 16384))
    H(S("s_cmp_eq_u32", sSUB, 1))
    H(I("s_cbranch_scc1", ["A_PV1"]))
    H(S("s_cmp_ge_u32", sWQ, 2))
    H(I("s_cbranch_scc1", ["A_PV0"]))
    for i in range(4):
        H(dmal(vKVg, sK, 0, i * 1024))
    H(I("s_branch", ["A_PVD"]))
    H(label("A_PV0"))
    H(V("v_add_u32", t0, -8192, vKVg))
    for i in range(4):
        H(dmal(t0, sV, 0, i * 1024))
    H(I("s_branch", ["A_PVD"]))
    H(label("A_PV1"))
    H(S("s_mov_b32", sT1, 8192))
    for i in range(4):
        H(dmal(vKVg, sV, sT1, i * 1024))
    H(label("A_PVD"))

    def kvdma():
        d = [S("s_mov_b32", M0, sWRA)]
        for i in range(4):
            d.append(dmal(vKVg, sK, sKO, i * 1024))
        d.append(S("s_add_u32", M0, sWRA, 16384))
        for i in range(4):
            d.append(dmal(vKVg, sV, sVO, i * 1024))
        d.append(S("s_add_u32", sKO, sKO, 16384))
        d.append(S("s_add_u32", sVO, sVO, 16384))
        d.append(S("s_add_u32", sWRA, sWRA, ASLOT))
        d.append(S("s_and_b32", sWRA, sWRA, 4 * ASLOT - 1))
        return d

    def guarded_dma():
        lb = lab("A_ND")
        return [S("s_cmp_lg_u32", sSUB, 0), I("s_cbranch_scc1", [lb])] + kvdma() + [label(lb)]

    H(S("s_add_u32", sWRA, sPX, 2 * ASLOT))
    H(S("s_mov_b32", sKO, 5 * 8192))
    H(S("s_mov_b32", sVO, 3 * 8192))
    o += role(sSUB)
    P.add(o)
    gemm4(P, "Q", 18, 2, 6, 6, q_issue, q_reads, q_mfmas, pre=3, extra=extra, tail_hook=hook, pre_hook=pre, est=est("Q"))
    o = []
    A = o.append
    o += st(5)
    sCc = sT1
    A(S("s_mov_b32", sCc, float(CSCALE)))
    A(S("s_lshr_b32", sT0, sWV, 1))
    A(S("s_lshl_b32", sT0, sT0, 14))
    A(S("s_and_b32", sT2, sWV, 1))
    A(S("s_lshl_b32", sT2, sT2, 12))
    A(S("s_add_u32", sT0, sT0, sT2))
    A(S("s_add_u32", sT0, sT0, 65536))
    A(V("v_add_u32", t0, sT0, vL16))
    for m in range(2):
        for j in range(2):
            x = qacc[m][j]
            for r in range(16):
                A(V("v_mul_f32", x[r], sCc, x[r]))
            for r in range(8):
                A(V("v_cvt_pk_bf16_f32", x[r], x[2 * r], x[2 * r + 1]))
            for b in range(2):
                A(I("ds_write_b128", [t0, x[4 * b:4 * b + 4]], f"offset:{m * 8192 + (2 * j + b) * 1024}"))
    A(S("s_lshl_b32", sT0, sWV, 13))
    A(S("s_add_u32", sT0, sT0, 65536))
    A(V("v_add_u32", t1, sT0, vL16))
    A(waitcnt(lgkm=0))
    A(I("s_barrier"))
    for db in range(8):
        A(dsr128(Q[db], t1, db * 1024))
    A(waitcnt(lgkm=0))
    A(waitcnt(vm=0))
    o += st(6)

    vW2, vLx, vW2x, vWr, vSt, vPO, vPC, vP1, vP2, vFour = [v(20 + i) for i in range(10)]
    vRdw = [v(30), v(31), v(123)]
    RS = 304
    A(V("v_and_b32", t0, 7, vL))
    A(V("v_lshrrev_b32", t1, 5, vL))
    A(V("v_lshlrev_b32", t1, 7, t1))
    A(V("v_lshl_add_u32", vW2, t0, 4, t1))
    A(V("v_mov_b32", t2, BIG))
    A(S("s_cmp_lt_u32", sWV, 4))
    A(S("s_cselect_b64", sM, -1, 0))
    A(V("v_cndmask_b32", vLx, t2, vL16, sM))
    A(V("v_cndmask_b32", vW2x, t2, vW2, sM))
    A(V("v_and_b32", t0, 31, vL))
    A(V("v_mul_u32_u24", t0, RS, t0))
    A(V("v_lshrrev_b32", t1, 5, vL))
    A(V("v_lshl_add_u32", t0, t1, 4, t0))
    A(S("s_mul_i32", sT0, sWV, 64 * RS))
    A(V("v_add_u32", vWr, sT0, t0))
    A(V("v_mul_u32_u24", t1, 43691, v(0)))
    A(V("v_lshrrev_b32", t1, 18, t1))
    A(V("v_mul_u32_u24", t2, 6, t1))
    A(V("v_sub_u32", t2, v(0), t2))
    A(V("v_mul_u32_u24", t0, RS, t1))
    A(V("v_mul_u32_u24", t3, 48, t2))
    A(V("v_add_u32", vRdw[0], t0, t3))
    A(V("v_add_u32", vRdw[1], 3 * 64 * RS, vRdw[0]))
    A(V("v_add_u32", vRdw[2], 6 * 64 * RS, vRdw[0]))
    A(S("s_lshl_b32", sT0, sRB1, 6))
    A(V("v_add_u32", t1, sT0, t1))
    A(V("v_mul_u32_u24", t1, 2304, t1))
    A(V("v_mul_u32_u24", t3, 24, t2))
    A(S("s_mul_i32", sT0, sG1, 144))
    A(V("v_add3_u32", vSt, t1, t3, sT0))
    A(V("v_mov_b32", vFour, 4))
    A(V("v_bfe_u32", t0, vL, 2, 2))
    A(S("s_lshl_b32", sT0, sRB1, 2))
    A(V("v_add_u32", t0, sT0, t0))
    A(V("v_lshlrev_b32", t0, 8, t0))
    A(V("v_and_b32", t1, 3, vL))
    A(V("v_lshl_add_u32", t0, t1, 2, t0))
    A(V("v_add_u32", vPO, WS_FLAG + 96 * 256 + 4 * F_O, t0))
    A(S("s_lshr_b32", sT0, sRB1, 1))
    A(S("s_sub_u32", sT1, 15, sT0))
    A(S("s_cmp_lt_u32", sT0, 8))
    A(S("s_cselect_b32", sT0, sT0, sT1))
    A(S("s_cselect_b32", sT1, 0, 4))
    A(S("s_and_b32", sT2, sRB1, 1))
    A(S("s_lshl_b32", sT2, sT2, 1))
    A(S("s_add_u32", sT1, sT1, sT2))
    A(S("s_lshl_b32", sT1, sT1, 2))
    A(S("s_lshl_b32", sT0, sT0, 13))
    A(S("s_add_u32", sT0, sT0, sT1))
    A(S("s_add_u32", sT2, sT0, WS_FLAG + 4 * F_CTX))
    A(V("v_and_b32", t0, 31, vL))
    A(V("v_lshlrev_b32", t0, 8, t0))
    A(V("v_lshrrev_b32", t1, 5, vL))
    A(V("v_lshl_add_u32", t0, t1, 2, t0))
    A(V("v_add_u32", vPC, sT2, t0))
    sOUT = sA
    o += mk_srd(sOUT, "out")
    sXo0, sXo1, sWo_ = L[6], L[7], L[8]
    bfr = [a(64 + 4 * i, 4) for i in range(16)] + [v(64 + 4 * i, 4) for i in range(4)] + [v(96 + 4 * i, 4) for i in range(5)]
    bacc = [[a(0, 16), a(16, 16), a(32, 16)], [a(48, 16), v(32, 16), v(48, 16)]]

    def oloads(X, W, xstep, wstep, masked=False, x=True, w=True):
        va, vw = (vLx, vW2x) if masked else (vL16, vW2)
        r = []
        if x:
            r += [bload4(X[0], va, sWS, sXo0, 0, LD), bload4(X[1], va, sWS, sXo1, 0, LD),
                  S("s_add_u32", sXo0, sXo0, xstep), S("s_add_u32", sXo1, sXo1, xstep)]
        if w:
            r += [bload4(W[0], va, sWS, sWo_, 0, LD), bload4(W[1], va, sWS, sWo_, 1024, LD),
                  bload4(W[2], vw, sWS, sWo_, 2048, LD), S("s_add_u32", sWo_, sWo_, wstep)]
        return r

    def bout_loads():
        r = [S("s_mul_i32", sXo0, sRB1, 72), S("s_add_u32", sXo0, sXo0, sWV), S("s_lshl_b32", sXo0, sXo0, 10),
             S("s_add_u32", sXo0, sXo0, WS_OF), S("s_add_u32", sXo1, sXo0, 36 * 1024), S("s_mul_i32", sWo_, sG1, WOF_CG),
             S("s_mul_i32", sT0, sWV, 2304), S("s_add_u32", sWo_, sWo_, sT0), S("s_add_u32", sWo_, sWo_, WS_WOF + 256 * 2304)]
        for it in range(5):
            r += oloads(bfr[5 * it:5 * it + 2], bfr[5 * it + 2:5 * it + 5], 8192, 8 * 2304, masked=(it == 4))
        return r

    vLs, vThr, vLB, vD, vNINF = v(10), v(11), v(12), v(13), v(14)
    vB = [v(15), v(16)]
    vF, vDl, vFW = v(17), v(18), v(19)
    A(V("v_mov_b32", vLs, 0))
    A(V("v_mov_b32", vThr, float(2.0 ** THR_LOG2)))
    A(V("v_mov_b32", vNINF, 0xff800000))
    A(V("v_and_b32", t0, 31, vL))
    A(V("v_lshrrev_b32", t1, 5, vL))
    A(V("v_lshlrev_b32", t1, 2, t1))
    A(V("v_sub_u32", t0, t0, t1))
    A(V("v_add_u32", vD, sQ0, t0))
    A(S("s_lshl_b32", sT0, sWV, 2))
    A(V("v_mov_b32", t0, sT0))
    A(V("v_mov_b32", t1, BIG))
    A(V("v_cmp_eq_u32", VCC, 0, vL))
    A(V("v_cndmask_b32", vFW, t1, t0, VCC))

    def wave_flag(word):
        return [I("buffer_store_dword", [vOne, vFW, sWS, sFB], f"offen offset:{4 * word} sc1")]

    A(I("s_barrier"))
    o += guarded_dma()
    vA = vAc
    for db in range(8):
        A(dsr128(FR[db], vL16, 16384 + db * 1024))
    for db in range(8):
        A(mfma(Sb[0], FR[db], Q[db], 0 if db == 0 else Sb[0]))
    A(S("s_mov_b32", sRDA, 0))
    A(V("v_mov_b32", vA, vL16))

    def frag_read(n, half):
        off = 16384 + half * 8192 + n * 1024 if n < 8 else half * 8192 + (n - 8) * 1024
        return dsr128(FR[n % 8], vA, off)

    def tail_pair(p, q0, q1, P_):
        r = []
        if p == 0:
            r.append(V("v_mov_b32", vB[0], q0))
            r.append(V("v_mov_b32", vB[1], q1))
        else:
            r.append(V("v_add_f32", vB[0], vB[0], q0))
            r.append(V("v_add_f32", vB[1], vB[1], q1))
        r.append(V("v_cvt_pk_bf16_f32", P_[p], q0, q1))
        return r

    def mask_ops(S_):
        r = []
        for g in range(4):
            for k in range(4):
                r.append(V("v_cmp_lt_i32", sMk[k], vD, 8 * g + k))
            for k in range(4):
                r.append(V("v_cndmask_b32", S_[4 * g + k], S_[4 * g + k], vNINF, sMk[k]))
        r.append(V("v_subrev_u32", vD, 32, vD))
        return r

    def softmax(cb, masked):
        S_, P_ = Sb[cb], Pb[cb]
        r = mask_ops(S_) if masked else []
        for p in range(8):
            r.append(V("v_exp_f32", T[(2 * p) % 8], S_[2 * p]))
            r.append(V("v_exp_f32", T[(2 * p + 1) % 8], S_[2 * p + 1]))
            if p > 0:
                r += tail_pair(p - 1, T[(2 * p - 2) % 8], T[(2 * p - 1) % 8], P_)
        r += tail_pair(7, T[6], T[7], P_)
        r.append(V("v_add_f32", vB[0], vB[0], vB[1]))
        return r

    def rowmax(S_, dst, tmp):
        r = [V("v_max3_f32", dst, S_[0], S_[1], S_[2])]
        for q in range(3, 15, 2):
            r.append(V("v_max3_f32", dst, dst, S_[q], S_[q + 1]))
        r += [V("v_max_f32", dst, dst, S_[15]), V("v_mov_b32", tmp, dst), V("v_permlane32_swap_b32", dst, tmp),
              V("v_max_f32", dst, dst, tmp), V("v_add_f32", dst, HEADROOM, dst)]
        return r

    slow_sites = []

    def step(half, has_pv, has_qk, masked, ctl=()):
        cb, nb = half, 1 - half
        M, frs = [], []
        if has_pv:
            for vb in range(2):
                for dt in range(4):
                    M.append(mfma(O[dt], FR[(4 * vb + dt) % 8], Pb[nb][4 * vb:4 * vb + 4], O[dt]))
                    frs.append(4 * vb + dt)
        if has_qk:
            for db in range(8):
                M.append(mfma(Sb[nb], FR[db], Q[db], NEGM if db == 0 else Sb[nb]))
                frs.append(8 + db)
        n = len(M)
        seq = [(x, half) for x in frs] + [(x, 1 - half) for x in range(16)]
        gaps = [[] for _ in M]
        g3 = [[] for _ in M]
        for j in range(n):
            if half == 1 and j + LA == n:
                gaps[j].append(V("v_add_u32", vA, sRDA, vL16))
            gaps[j].append(frag_read(*seq[j + LA]))
            if j % 2 == 1 and j + 1 < n:
                g3[j].append(waitcnt(lgkm=LA - 2))
        if has_pv:
            gaps[0].append(V("v_add_f32", vLs, vLs, vB[0]))
        if half == 0:
            gaps[0] += [waitcnt(vm=8), I("s_barrier")]
            gaps[1] += guarded_dma()
        else:
            gaps[0] += [S("s_add_u32", sRDA, sRDA, ASLOT), S("s_and_b32", sRDA, sRDA, 4 * ASLOT - 1)]
            gaps[1] += list(ctl)
        smx = softmax(cb, masked) + [V("v_cmp_gt_f32", VCC, vB[0], vThr)]
        g2 = interleave(M, smx, 2 if has_pv else 1, n - 1)
        sl, rt = lab("A_SLOW"), lab("A_RET")
        g3[n - 1] += [I("s_cbranch_vccnz", [sl]), label(rt)]
        slow_sites.append((sl, rt, cb, has_qk))
        return weave(M, gaps, g2, g3)

    for n in range(LA):
        A(dsr128(FR[n], vL16, n * 1024))
    o += mask_ops(Sb[0]) + rowmax(Sb[0], vDl, t1)
    for r in range(16):
        A(V("v_sub_f32", NEGM[r], 0, vDl))
    for r in range(16):
        A(V("v_sub_f32", Sb[0][r], Sb[0][r], vDl))
    o += step(0, False, True, False) + step(1, True, True, True)
    A(S("s_cmp_eq_u32", sN, 4))
    A(I("s_cbranch_scc1", ["A_PF"]))
    A(S("s_sub_u32", sT0, sN, 6))
    A(S("s_lshl_b32", sT0, sT0, 5))
    A(V("v_subrev_u32", vD, sT0, vD))
    A(S("s_lshr_b32", sCNT, sN, 1))
    A(S("s_sub_u32", sCNT, sCNT, 3))
    P.add(o)
    lb = step(0, True, True, False) + step(1, True, True, False, ctl=[S("s_sub_u32", sCNT, sCNT, 1), S("s_cmp_lg_u32", sCNT, 0)])
    lb += [I("s_cbranch_scc1", ["A_LOOP"])]
    P.loop("A_LOOP", lb)
    P.add(step(0, True, True, True) + step(1, True, True, True))
    o = [label("A_PF")]
    A = o.append
    o += only(sSUB, [I("buffer_load_dword", [vP1, vPO, sWS, 0], "offen sc1", dst=[]),
                     I("buffer_load_dword", [vP2, vFour, sDBG, 0], "offen sc1", dst=[])])
    o += step(0, True, True, True) + step(1, True, False, True)
    o += st(7)
    A(V("v_add_f32", vLs, vLs, vB[0]))
    A(S("s_cmp_lg_u32", sSUB, 0))
    A(I("s_cbranch_scc1", ["A_FIN"]))
    A(waitcnt(vm=8))
    A(I("s_barrier"))
    o += kvdma()
    A(label("A_FIN"))
    M = [mfma(O[dt], FR[4 * vb + dt], Pb[1][4 * vb:4 * vb + 4], O[dt]) for vb in range(2) for dt in range(4)]
    gaps = [[] for _ in M]
    for j in range(8 - LA):
        gaps[j].append(frag_read(j + LA, 0))
    o += weave(M, gaps)
    o += only(sSUB, [waitcnt(vm=0)])
    A(V("v_mov_b32", t0, vLs))
    A(V("v_permlane32_swap_b32", t0, vLs))
    A(V("v_add_f32", t0, t0, vLs))
    A(V("v_rcp_f32", vF, t0))
    A(S("s_lshl_b32", sT0, sQ0, 13))
    A(S("s_lshl_b32", sT1, sHEAD, 13))
    A(S("s_add_u32", sT0, sT0, sT1))
    A(S("s_add_u32", sT0, sT0, WS_CTX))
    A(S("s_add_u32", sT1, sT0, 4096))
    for dt in range(4):
        Tm, Pk = Sb[dt % 2], Pb[dt % 2]
        for r in range(16):
            A(V("v_accvgpr_read_b32", Tm[r], O[dt][r]))
        for r in range(16):
            A(V("v_mul_f32", Tm[r], Tm[r], vF))
        for r in range(8):
            A(V("v_cvt_pk_bf16_f32", Pk[r], Tm[2 * r], Tm[2 * r + 1]))
        for b in range(2):
            db = 2 * dt + b
            A(bstore4(Pk[4 * b:4 * b + 4], vL16, sWS, sT0 if db < 4 else sT1, (db % 4) * 1024, ST))
    A(S("s_cmp_eq_u32", sSUB, 0))
    A(I("s_cbranch_scc1", ["A_SHORT"]))
    ok1, slow1 = lab("T_OK"), lab("T_SL")
    o += [V("v_cmp_ne_u32", VCC, 1, vP1), nop(2), I("s_cbranch_vccnz", [slow1]), V("v_cmp_ne_u32", VCC, 256, vP2), nop(2),
          I("s_cbranch_vccz", [ok1]), label(slow1)] + poll(vFour, sDBG, 256, vP2) + poll(vPO, sWS, 1, vP1) + [label(ok1)]
    o += bout_loads() + [waitcnt(vm=25)] + wave_flag(F_CTX)
    A(I("s_branch", ["A_DONE"]))
    A(label("A_SHORT"))
    A(S("s_sub_u32", sREM, sNB, sN))
    A(S("s_lshr_b32", sREM, sREM, 1))
    A(S("s_sub_u32", sREM, sREM, 1))
    A(S("s_cmp_ge_u32", sW, 48))
    A(I("s_cbranch_scc1", ["A_NKVR"]))
    sJ = L[16]
    A(waitcnt(vm=8))
    A(I("s_barrier"))
    o += kvdma()
    A(S("s_lshl_b32", sJ, sW, 2))
    A(S("s_add_u32", sJ, sJ, sWQ))
    A(S("s_mul_i32", sT0, sJ, 43691))
    A(S("s_lshr_b32", sT0, sT0, 20))
    A(S("s_lshr_b32", sT1, sT0, 2))
    A(S("s_and_b32", sT0, sT0, 3))
    A(S("s_lshl_b32", sT0, sT0, 6))
    A(S("s_add_u32", sT0, sT0, sT1))
    A(V("v_bfe_u32", t0, vL, 3, 2))
    A(V("v_lshlrev_b32", t0, 1, t0))
    A(V("v_and_b32", t1, 7, vL))
    A(V("v_lshl_add_u32", t0, t1, 3, t0))
    A(V("v_add_u32", t0, sT0, t0))
    A(V("v_lshlrev_b32", t0, 8, t0))
    A(S("s_mov_b32", sT2, WS_FLAG + 4 * F_B1))
    o += poll(t0, sWS, 1, t1, sT2)
    o += wave_flag(F_CTX)
    A(S("s_lshl_b32", sT0, sJ, 10))
    A(S("s_add_u32", sT0, sT0, WS_KVP))
    R = [v(32 + 4 * i, 4) for i in range(16)]
    KS_ = v(96, 4)
    for rnd in range(2):
        for i in range(16):
            A(bload4(R[i], vL16, sWS, sT0, 0, LD))
            A(S("s_add_u32", sT0, sT0, 192 * 1024))
        A(waitcnt(vm=16))
        A(I("s_barrier"))
        o += kvdma()
        for step_ in (1, 2, 4, 8):
            for w in range(0, 16, 2 * step_):
                for r in range(4):
                    A(V("v_add_f32", R[w][r], R[w][r], R[w + step_][r]))
        for r in range(4):
            A(V("v_add_f32", KS_[r], KS_[r], R[0][r]) if rnd else V("v_mov_b32", KS_[r], R[0][r]))
    A(V("v_cvt_pk_bf16_f32", KS_[0], KS_[0], KS_[1]))
    A(V("v_cvt_pk_bf16_f32", KS_[1], KS_[2], KS_[3]))
    A(S("s_lshr_b32", sT0, sJ, 1))
    A(S("s_lshl_b32", sT0, sT0, 10))
    A(S("s_and_b32", sT1, sJ, 1))
    A(S("s_lshl_b32", sT1, sT1, 3))
    A(S("s_add_u32", sT0, sT0, sT1))
    A(S("s_add_u32", sT0, sT0, WS_KVF))
    A(I("buffer_store_dwordx2", [KS_[0:2], vL16, sWS, sT0], "offen " + ST))
    A(waitcnt(vm=1))
    A(I("s_barrier"))
    o += kvdma()
    A(waitcnt(vm=8))
    o += wave_flag(F_KVR)
    A(S("s_sub_u32", sREM, sREM, 4))
    A(I("s_branch", ["A_DL0"]))
    A(label("A_NKVR"))
    A(S("s_sub_u32", L[18], sW, 96))
    A(S("s_cmp_ge_u32", L[18], 128))
    A(I("s_cbranch_scc1", ["A_DL0"]))
    sSB, sH0 = L[16], L[17]
    A(waitcnt(vm=8))
    A(I("s_barrier"))
    o += kvdma()
    A(S("s_lshr_b32", sSB, L[18], 1))
    A(S("s_and_b32", sH0, L[18], 1))
    A(S("s_lshl_b32", sH0, sH0, 4))
    A(S("s_lshl_b32", sT0, sWQ, 2))
    A(S("s_add_u32", sH0, sH0, sT0))
    A(S("s_mul_i32", sT0, sH0, 6))
    A(V("v_min_u32", t0, 23, vL))
    A(V("v_add_u32", t0, sT0, t0))
    A(V("v_and_b32", t1, 3, t0))
    A(V("v_lshrrev_b32", t0, 2, t0))
    A(V("v_lshlrev_b32", t0, 8, t0))
    A(V("v_lshl_add_u32", t0, t1, 2, t0))
    A(S("s_mov_b32", sT2, WS_FLAG + 4 * F_KVR))
    o += poll(t0, sWS, 1, t1, sT2)
    o += wave_flag(F_CTX)
    Pf = [[v(32 + 12 * k + 4 * F, 4) for F in range(3)] for k in range(4)]
    Kf = [[a(12 * k + 4 * F, 4) for F in range(3)] for k in range(4)]
    Cs = [v(80, 16), v(96, 16)]
    A(S("s_lshl_b32", sT0, sSB, 5))
    A(S("s_add_u32", sT0, sT0, sH0))
    A(S("s_mul_i32", sT0, sT0, 3072))
    A(S("s_add_u32", sT0, sT0, WS_PHIQ))
    A(S("s_mul_i32", sT1, sH0, 3072))
    A(S("s_add_u32", sT1, sT1, WS_KVF))
    for k in range(4):
        for F in range(3):
            A(bload4(Pf[k][F], vL16, sWS, sT0, F * 1024, LD))
            A(bload4(Kf[k][F], vL16, sWS, sT1, F * 1024, LD))
        A(S("s_add_u32", sT0, sT0, 3072))
        A(S("s_add_u32", sT1, sT1, 3072))
    A(I("s_barrier"))
    o += kvdma()
    A(S("s_mul_i32", sT2, sSB, 36))
    A(S("s_add_u32", sT0, sT2, sH0))
    A(S("s_lshl_b32", sT0, sT0, 10))
    A(S("s_add_u32", sT0, sT0, WS_OF))
    A(S("s_lshr_b32", sT1, sH0, 3))
    A(S("s_add_u32", sT1, sT1, sT2))
    A(S("s_lshl_b32", sT1, sT1, 10))
    A(S("s_add_u32", sT1, sT1, WS_OF + 32 * 1024))
    A(S("s_and_b32", sT2, sH0, 7))
    A(S("s_lshl_b32", sT2, sT2, 1))
    A(S("s_add_u32", sT1, sT1, sT2))
    XO = [v(112), v(113), v(114), v(115)]
    for k in range(4):
        C = Cs[k % 2]
        for F in range(3):
            A(mfma(C, Kf[k][F], Pf[k][F], 0 if F == 0 else C))
        A(V("v_add_f32", t0, 1e-6, C[9]))
        A(V("v_rcp_f32", t0, t0))
        for i in range(9):
            A(V("v_mul_f32", C[i], C[i], t0))
        for p in range(4):
            A(V("v_cvt_pk_bf16_f32", Pf[k][0][p], C[2 * p], C[2 * p + 1]))
        A(V("v_mov_b32", XO[k], C[8]))
        A(bstore4(Pf[k][0], vL16, sWS, sT0, k * 1024, ST))
    A(V("v_cvt_pk_bf16_f32", XO[0], XO[0], XO[1]))
    A(V("v_cvt_pk_bf16_f32", XO[1], XO[2], XO[3]))
    A(I("buffer_store_dwordx2", [v(112, 2), vL16, sWS, sT1], "offen " + ST))
    A(waitcnt(vm=5))
    A(I("s_barrier"))
    o += kvdma()
    A(waitcnt(vm=8))
    o += wave_flag(F_O)
    A(S("s_sub_u32", sREM, sREM, 3))
    A(label("A_DL0"))
    P.add(o)
    lb = [waitcnt(vm=8), I("s_barrier")] + kvdma()
    lb += [S("s_sub_u32", sREM, sREM, 1), S("s_cmp_lg_u32", sREM, 0), I("s_cbranch_scc1", ["A_DL"])]
    P.loop("A_DL", lb)
    o = poll(vFour, sDBG, 256, vP2) + wave_flag(F_CTX) + poll(vPO, sWS, 1, vP1) + bout_loads()
    A = o.append
    A(label("A_DONE"))
    o += st(8)
    for it in range(5):
        X, W = bfr[5 * it:5 * it + 2], bfr[5 * it + 2:5 * it + 5]
        if it == 0:
            A(waitcnt(vm=1))
            A(forget(bfr))
            o += only(sSUB, [waitcnt(vm=0)], inv=True)
        o += [mfma(bacc[qb][j], W[j], X[qb], 0 if it == 0 else bacc[qb][j]) for j in range(3) for qb in range(2)]
    o += st(9)
    DP = 5
    oacc = [[a((qb * 3 + j) * 16, 16) for j in range(3)] for qb in range(2)]
    ring = [v(64 + 4 * i, 4) for i in range(8)] + [a(96 + 4 * i, 4) for i in range(7)] + \
           [v(32 + 4 * i, 4) for i in range(8)] + [a(124, 4), v(112, 4)]
    OW = [ring[3 * d:3 * d + 3] for d in range(DP)]
    OX = [ring[15 + 2 * d:17 + 2 * d] for d in range(DP)]
    SUM = [v(96, 4), v(100, 4), v(104, 4)]
    TMP = [v(108, 4), v(116, 4), v(120, 2)]

    def red_write(acc_):
        r = [waitcnt(lgkm=0), I("s_barrier")]
        for qb in range(2):
            for j in range(3):
                for g in range(4 if j < 2 else 1):
                    r.append(I("ds_write_b128", [vWr, acc_[qb][j][4 * g:4 * g + 4]],
                               f"offset:{qb * 32 * RS + (32 * j + 8 * g) * 4}"))
        return r

    def red_src(ww, dst):
        return [dsr128(dst[q], vRdw[ww // 3], (ww % 3) * 64 * RS + 16 * q) for q in range(3)]

    def red_out(col0, S_, PKo):
        r = [V("v_cvt_pk_bf16_f32", PKo[x], S_[x // 2][(2 * x) % 4], S_[x // 2][(2 * x) % 4 + 1]) for x in range(6)]
        r += [S("s_mov_b32", sT0, col0), bstore4(PKo[0:4], vSt, sOUT, sT0),
              I("buffer_store_dwordx2", [PKo[4:6], vSt, sOUT, sT0], "offen offset:16")]
        return r

    A(S("s_mul_i32", sWo_, sG1, WOF_CG))
    A(S("s_mul_i32", sT0, sWV, 2304))
    A(S("s_add_u32", sWo_, sWo_, sT0))
    A(S("s_add_u32", sWo_, sWo_, WS_WOF))
    for d in range(DP):
        o += oloads(None, OW[d], 0, 8 * 2304, x=False)
    o += red_write(bacc)
    o += st(10)
    o += poll(vPC, sWS, 1, vP1)
    o += st(11)
    A(S("s_lshl_b32", sXo0, sRB1, 19))
    A(S("s_lshl_b32", sT0, sWV, 10))
    A(S("s_add_u32", sXo0, sXo0, sT0))
    A(S("s_add_u32", sXo0, sXo0, WS_CTX))
    A(S("s_add_u32", sXo1, sXo0, 32 * 8192))
    A(waitcnt(lgkm=0))
    for d in range(DP):
        o += oloads(OX[d], None, 8192, 0, w=False)
    A(I("s_barrier"))
    A(S("s_cmp_lt_u32", sWV, 6))
    A(S("s_cselect_b32", L[9], 1, 0))
    T3 = [v(108, 4), v(116, 4), v(10, 4)]
    for it in range(32):
        d = it % DP
        o += [mfma(oacc[qb][j], OW[d][j], OX[d][qb], 0 if it == 0 else oacc[qb][j]) for j in range(3) for qb in range(2)]
        if it + DP < 32:
            o += oloads(OX[d], OW[d], 8192, 8 * 2304)
        if it == 1:
            o += only(L[9], red_src(0, SUM))
        elif 2 <= it <= 8:
            ww = it - 1
            o += only(L[9], red_src(ww, T3) + [V("v_add_f32", SUM[q][r], SUM[q][r], T3[q][r]) for q in range(3) for r in range(4)])
        elif it == 9:
            o += only(L[9], red_out(1152, SUM, v(116, 6)))
    o += st(12)
    o += red_write(oacc)
    sk = lab("O_SK")
    o += [waitcnt(lgkm=0), I("s_barrier"), S("s_cmp_ge_u32", sWV, 6), I("s_cbranch_scc1", [sk])]
    RR = [[v(32 + 12 * w + 4 * q, 4) for q in range(3)] for w in range(7)] + [[v(116, 4), v(10, 4), v(14, 4)]]
    for ww in range(8):
        o += red_src(ww, RR[ww])
    for step_ in (1, 2, 4):
        for w in range(0, 8, 2 * step_):
            o += [V("v_add_f32", RR[w][q][r], RR[w][q][r], RR[w + step_][q][r]) for q in range(3) for r in range(4)]
    o += red_out(0, RR[0], v(44, 6))
    A(label(sk))
    if stamps:
        o += st(13) + [waitcnt(vm=0)] + st(14) + st(63, True)
        A(S("s_lshl_b32", sT0, sW, 3))
        A(S("s_add_u32", sT0, sT0, sWV))
        A(S("s_lshl_b32", sT0, sT0, 8))
        A(S("s_add_u32", sT0, sT0, 200 * MB))
        A(V("v_lshlrev_b32", t0, 2, vL))
        A(I("buffer_store_dword", [vSTP, t0, sWS, sT0], "offen"))
    P.add(o)
    P.out.append(label("F_END"))
    P.out.append(I("s_endpgm"))

    for sl, rt, cb, has_qk in slow_sites:
        P.st = State()
        nb = 1 - cb
        S_ = Sb[cb]
        b = [label(sl), nop(16), nop(4)]
        B = b.append
        b += rowmax(S_, t0, t1)
        B(V("v_max_f32", vDl, 0, t0))
        B(V("v_exp_f32", vF, Neg(vDl)))
        for r in range(16):
            B(V("v_sub_f32", NEGM[r], NEGM[r], vDl))
            B(V("v_sub_f32", S_[r], S_[r], vDl))
            if has_qk:
                B(V("v_sub_f32", Sb[nb][r], Sb[nb][r], vDl))
        B(V("v_mul_f32", vLs, vLs, vF))
        for dt in range(4):
            for r0 in range(0, 16, 8):
                for r in range(8):
                    B(V("v_accvgpr_read_b32", T[8 + r], O[dt][r0 + r]))
                for r in range(8):
                    B(V("v_mul_f32", T[8 + r], T[8 + r], vF))
                for r in range(8):
                    B(V("v_accvgpr_write_b32", O[dt][r0 + r], T[8 + r]))
        b += softmax(cb, False)
        B(nop(4))
        B(I("s_branch", [rt]))
        P.add(b)
    P.out.append(label("F_CODE_END"))
    P.out.append(I("s_endpgm"))
    return kernel_text(name, P, 256, 128, nsgpr=102)
```

```python
from common import *


def gemm_phase(P, name, NE, NSLOT, ndma, dma_chunk, reads, mfmas, addr_update, sE, extra=None, prologue=True,
               vm_extra=0, rd_span=None):
    o = []
    if prologue:
        for c in range(min(NSLOT - 1, NE)):
            o += dma_chunk()

    def body(e_first, with_dma, vm, fill=()):
        b = [waitcnt(vm=min(vm, 63), lgkm=0), I("s_barrier")]
        b += addr_update()
        d = dma_chunk() if with_dma else []
        fill = list(fill)
        h = len(fill) // 2
        if e_first:
            b += reads(0, 0)
            b += d
            m0 = mfmas(0, True)
            n = len(m0)
            b += weave(m0, interleave(m0, reads(1, 1), 0, rd_span or max(1, n * 3 // 4)), interleave(m0, fill, 0, n))
        else:
            m1 = mfmas(1, False)
            n = len(m1)
            sp = rd_span or max(1, n * 3 // 4)
            b += weave(m1, interleave(m1, reads(0, 0), 0, sp), interleave(m1, d, 0, n), interleave(m1, fill[:h], 0, n))
            m0 = mfmas(0, False)
            b += weave(m0, interleave(m0, reads(1, 1), 0, sp), interleave(m0, fill[h:], 0, n))
        return b

    last_dma = NE - NSLOT
    steady = ndma * (NSLOT - 2) + vm_extra
    ex = extra or {}
    o += body(True, 0 <= last_dma, min(steady, ndma * (NE - 1)), ex.get(0, ()))
    if extra is None and last_dma >= 2:
        o.append(S("s_mov_b32", sE, 1))
        P.add(o)
        lb = body(False, True, steady)
        lb.append(S("s_add_u32", sE, sE, 1))
        lb.append(S("s_cmp_le_u32", sE, last_dma))
        lb.append(I("s_cbranch_scc1", [name + "_LOOP"]))
        P.loop(name + "_LOOP", lb)
        o = []
        first_tail = last_dma + 1
    else:
        first_tail = 1
    for e in range(first_tail, NE):
        if e <= last_dma:
            o += body(False, True, steady, ex.get(e, ()))
        else:
            o += body(False, False, ndma * (NE - 1 - e), ex.get(e, ()))
    o += mfmas(1, False)
    P.add(o)


def ring_advance(regs, slot, nslot, tmp, base=0):
    d = []
    for r in regs:
        d.append(S("s_add_u32", r, r, slot))
    d.append(S("s_cmp_ge_u32", regs[0], base + nslot * slot))
    d.append(S("s_cselect_b32", tmp, nslot * slot, 0))
    for r in regs:
        d.append(S("s_sub_u32", r, r, tmp))
    return d


class Stamps:
    def __init__(self, on, base=80):
        self.on, self.base = on, base

    def __call__(self, i, real=False):
        if not self.on:
            return []
        r = s(self.base + 2 * i, 2)
        return [I("s_memrealtime" if real else "s_memtime", [r], cls="smem", dst=r.regs(), src=[]), waitcnt(lgkm=0)]

    def dump(self, sWS, sWV, nw, t0, t1, sT0, n=8, off=200 * MB):
        if not self.on:
            return []
        o = [S("s_mul_i32", sT0, s(2), nw), S("s_add_u32", sT0, sT0, sWV), S("s_lshl_b32", sT0, sT0, 6),
             S("s_add_u32", sT0, sT0, off), V("v_mov_b32", t0, 0)]
        for i in range(2 * n):
            o.append(V("v_mov_b32", t1, s(self.base + i)))
            o.append(I("buffer_store_dword", [t1, t0, sWS, sT0], f"offen offset:{4 * i}"))
        return o


def gemm_phase2(P, name, NE, NSLOT, ndma, dma_chunk, reads, mfmas, addr_update, sE, pre, extra=None,
                tail_hook=None, rd_span=None, first_vm=None, pre_hook=None, last_head=None):
    ex = extra or {}

    def body(e_first, nchunks, vm, fill=(), hook=(), head=None):
        b = list(head) if head else [waitcnt(vm=min(vm, 63), lgkm=0), I("s_barrier")]
        b += addr_update()
        d = []
        for _ in range(nchunks):
            d += dma_chunk()
        d += list(hook)
        fill = list(fill)
        h = len(fill) // 2
        if e_first:
            b += reads(0, 0)
            b += d
            m0 = mfmas(0, True)
            n = len(m0)
            b += weave(m0, interleave(m0, reads(1, 1), 0, rd_span or max(1, n * 3 // 4)), interleave(m0, fill, 0, n))
        else:
            m1 = mfmas(1, False)
            n = len(m1)
            sp = rd_span or max(1, n * 3 // 4)
            m0 = mfmas(0, False)
            gf = interleave(m1 + m0, fill, 0, 2 * n)
            b += weave(m1, interleave(m1, reads(0, 0), 0, sp), interleave(m1, d, 0, n), gf[:n])
            b += weave(m0, interleave(m0, reads(1, 1), 0, sp), gf[n:])
        return b

    last_dma = NE - NSLOT
    steady = ndma * (NSLOT - 2)
    o = body(True, NSLOT - pre, ndma * (pre - 1) if first_vm is None else first_vm, ex.get(0, ()))
    e = 1
    nun = max([k for k in ex if k <= last_dma], default=0)
    while e <= nun:
        o += body(False, 1, steady, ex.get(e, ()))
        e += 1
    if last_dma - e + 1 >= 2:
        o.append(S("s_mov_b32", sE, e))
        P.add(o)
        lb = body(False, 1, steady)
        lb.append(S("s_add_u32", sE, sE, 1))
        lb.append(S("s_cmp_le_u32", sE, last_dma))
        lb.append(I("s_cbranch_scc1", [name + "_LOOP"]))
        P.loop(name + "_LOOP", lb)
        o = []
        e = last_dma + 1
    while e < NE:
        if e == NE - 1 and pre_hook:
            o += pre_hook
        o += body(False, 1 if e <= last_dma else 0, steady if e <= last_dma else ndma * (NE - 1 - e), ex.get(e, ()),
                  tail_hook if (e == NE - 1 and tail_hook) else (), last_head if e == NE - 1 else None)
        e += 1
    o += mfmas(1, False)
    P.add(o)


_glab = [0]


def gemm_phase3(P, name, NE, NSLOT, ndma, dma_issue, dma_adv, reads, mfmas, addr_update, sE, sDW, pre, extra=None,
                tail_hook=None, rd_span=None, first_vm=None, pre_hook=None, est=None):
    ex = extra or {}

    def guard(code):
        _glab[0] += 1
        sk = f"{name}_G{_glab[0]}"
        return [S("s_cmp_eq_u32", sDW, 0), I("s_cbranch_scc1", [sk])] + code + [label(sk)]

    def body(e_first, nchunks, vm, fill=(), hook=()):
        b = guard([waitcnt(vm=min(vm, 63))]) + [waitcnt(lgkm=0)]
        if est:
            b += est()
        b += [I("s_barrier")]
        b += addr_update()
        d = []
        for _ in range(nchunks):
            d += guard(dma_issue()) + dma_adv()
        d += list(hook)
        fill = list(fill)
        if e_first:
            b += reads(0, 0)
            b += d
            m0 = mfmas(0, True)
            n = len(m0)
            b += weave(m0, interleave(m0, reads(1, 1), 0, rd_span or max(1, n * 3 // 4)), interleave(m0, fill, 0, n))
        else:
            m1 = mfmas(1, False)
            n = len(m1)
            sp = rd_span or max(1, n * 3 // 4)
            m0 = mfmas(0, False)
            gf = interleave(m1 + m0, fill, 0, 2 * n)
            b += weave(m1, interleave(m1, reads(0, 0), 0, sp), interleave(m1, d, 0, n), gf[:n])
            b += weave(m0, interleave(m0, reads(1, 1), 0, sp), gf[n:])
        return b

    last_dma = NE - NSLOT
    steady = ndma * (NSLOT - 2)
    o = body(True, NSLOT - pre, ndma * (pre - 1) if first_vm is None else first_vm, ex.get(0, ()))
    e = 1
    nun = max([k for k in ex if k <= last_dma], default=0)
    while e <= nun:
        o += body(False, 1, steady, ex.get(e, ()))
        e += 1
    if last_dma - e + 1 >= 2:
        o.append(S("s_mov_b32", sE, e))
        P.add(o)
        lb = body(False, 1, steady)
        lb.append(S("s_add_u32", sE, sE, 1))
        lb.append(S("s_cmp_le_u32", sE, last_dma))
        lb.append(I("s_cbranch_scc1", [name + "_LOOP"]))
        P.loop(name + "_LOOP", lb)
        o = []
        e = last_dma + 1
    while e < NE:
        if e == NE - 1 and pre_hook:
            o += pre_hook
        o += body(False, 1 if e <= last_dma else 0, steady if e <= last_dma else ndma * (NE - 1 - e), ex.get(e, ()),
                  tail_hook if (e == NE - 1 and tail_hook) else ())
        e += 1
    o += mfmas(1, False)
    P.add(o)


class LdsAddr:
    def __init__(self, regs):
        self.regs = regs

    def setup(self, src):
        o = []
        for i, r in enumerate(self.regs):
            if i == 0:
                if str(r) != str(src):
                    o.append(V("v_mov_b32", r, src))
            else:
                o.append(V("v_add_u32", r, 65536 * i, self.regs[0]))
        return o

    def at(self, off):
        return self.regs[off >> 16], off & 65535


def gemm4(P, name, NE, KS, NSLOT, ndma, issue, reads, mfmas, pre, extra=None, tail_hook=None, first_vm=None,
          pre_hook=None, est=None, rd_span=None, vm_bias=None):
    ex = extra or {}

    def guard(code):
        _glab[0] += 1
        sk = f"{name}_G{_glab[0]}"
        return [I("s_cbranch_vccz", [sk])] + code + [label(sk)]

    o = []
    nxt = pre
    g = 0
    for e in range(NE):
        if e == NE - 1 and pre_hook:
            o += pre_hook
        younger = nxt - 1 - e
        vm = ndma * younger if not (e == 0 and first_vm is not None) else first_vm
        vm += (vm_bias or {}).get(e, 0)
        o += guard([waitcnt(vm=min(vm, 63))]) + [waitcnt(lgkm=0)]
        if est:
            o += est()
        o.append(I("s_barrier"))
        d = []
        while nxt < NE and nxt <= e + NSLOT - 1:
            d += guard(issue(nxt))
            nxt += 1
        if e == NE - 1 and tail_hook:
            d += list(tail_hook)
        M, R = [], []
        if e == 0:
            o += reads(0, 0, 0)
            o += d
            d = []
            groups = [(mfmas(ks % 2, ks == 0), reads(0, ks + 1, (ks + 1) % 2)) for ks in range(KS - 1)]
            g = KS - 1
        else:
            groups = []
            for ks in range(KS):
                groups.append((mfmas(g % 2, False), reads(e, ks, (g + 1) % 2)))
                g += 1
        allm = [m for ms, _ in groups for m in ms]
        n = len(groups[0][0])
        gf = interleave(allm, list(ex.get(e, ())), 0, len(allm))
        gd = interleave(allm, d, 0, max(n, len(allm) // 2))
        k = 0
        for ms, rs in groups:
            sp = rd_span or max(1, n * 3 // 4)
            o += weave(ms, interleave(ms, rs, 0, sp), gd[k:k + n], gf[k:k + n])
            k += n
    o += mfmas(g % 2, False)
    P.add(o)
```

```python
from common import *
from gemm import *

D = 4
WSL = 3072
RSTR = 400


def gen_k3(name="k3_kernel", stamps=False, exp=""):
    P = Prog()
    o = []
    A = o.append
    st = Stamps(stamps)
    sWV, sRT, sCT, sT0, sT1, sCO, sWO, sLB, sE, sCO1 = [s(24 + i) for i in range(10)]
    A(S("s_cmp_ge_u32", s(2), 192))
    A(I("s_cbranch_scc1", ["K3_END"]))
    o += st(0) + st(6, True)
    ld, srd = load_srds(["A_w_o", "ws", "out"], 8)
    o += ld[:3]
    sW, sWS, sOUT = srd["A_w_o"], srd["ws"], srd["out"]
    vL = v(1)
    A(V("v_lshrrev_b32", v(2), 6, v(0)))
    A(V("v_and_b32", vL, 63, v(0)))
    A(V("v_readfirstlane_b32", sWV, v(2)))
    A(S("s_and_b32", sT0, s(2), 7))
    A(S("s_lshr_b32", sT1, s(2), 3))
    A(S("s_lshr_b32", sRT, sT0, 1))
    A(S("s_lshl_b32", sRT, sRT, 3))
    A(S("s_and_b32", sCT, sT1, 7))
    A(S("s_add_u32", sRT, sRT, sCT))
    A(S("s_and_b32", sT0, sT0, 1))
    A(S("s_mul_i32", sCT, sT0, 3))
    A(S("s_lshr_b32", sT1, sT1, 3))
    A(S("s_add_u32", sCT, sCT, sT1))
    vWg = [v(3), v(4), v(5)]
    vL16, vWa = v(6), v(7)
    t0, t1, t2, t3 = v(8), v(9), v(10), v(11)
    A(S("s_mul_i32", sT0, sWV, 16 * 1152))
    A(S("s_mul_i32", sT1, sCT, 192))
    A(S("s_add_u32", sT0, sT0, sT1))
    for i in range(3):
        A(V("v_add_u32", t0, 64 * i, vL))
        A(V("v_mul_u32_u24", t1, 43691, t0))
        A(V("v_lshrrev_b32", t1, 19, t1))
        A(V("v_mul_u32_u24", t2, 1152 - 192, t1))
        A(V("v_lshl_add_u32", t2, t0, 4, t2))
        A(V("v_add_u32", t2, sT0, t2))
        A(V("v_subrev_u32", vWg[i], 1024 * i, t2) if i else V("v_mov_b32", vWg[i], t2))
    A(V("v_lshlrev_b32", vL16, 4, vL))
    A(S("s_mul_i32", sLB, sWV, D * WSL))
    A(V("v_lshrrev_b32", t0, 5, vL))
    A(V("v_bfe_u32", t1, vL, 2, 2))
    A(V("v_lshl_add_u32", t0, t0, 2, t1))
    A(V("v_mul_u32_u24", t0, 192, t0))
    A(V("v_bfe_u32", t2, vL, 4, 1))
    A(V("v_lshl_add_u32", t0, t2, 5, t0))
    A(V("v_and_b32", t2, 3, vL))
    A(V("v_lshl_add_u32", t0, t2, 3, t0))
    A(V("v_add_u32", vWa, sLB, t0))
    A(S("s_lshl_b32", sCO, sRT, 19))
    A(S("s_lshl_b32", sT0, sWV, 10))
    A(S("s_add_u32", sCO, sCO, sT0))
    A(S("s_add_u32", sCO, sCO, WS_CTX))
    sHo, sCB = s(36), s(37)
    A(S("s_mov_b32", sCB, sCO))
    A(S("s_and_b32", sHo, sRT, 7))
    A(S("s_lshl_b32", sHo, sHo, 2))
    if "nostag" in exp:
        A(S("s_mov_b32", sHo, 0))
    o += ld[3:]
    acc = [[a((qb * 3 + j) * 16, 16) for j in range(3)] for qb in range(2)]
    Cf = [[v(16 + (d * 2 + qb) * 4, 4) for qb in range(2)] for d in range(D)]
    Wf = [[v(48 + (b * 3 + j) * 4, 4) for j in range(3)] for b in range(2)]

    def loads(slot):
        d = [S("s_lshl_b32", sCO, sHo, 13), S("s_add_u32", sCO, sCO, sCB), S("s_add_u32", sCO1, sCO, 32 * 8192),
             S("s_mul_i32", sWO, sHo, 128 * 1152)]
        d += [bload4(Cf[slot][0], vL16, sWS, sCO), bload4(Cf[slot][1], vL16, sWS, sCO1)]
        d.append(S("s_add_u32", M0, sLB, slot * WSL))
        for i in range(3):
            d.append(dma(vWg[i], sW, sWO, i * 1024))
        d.append(S("s_add_u32", sHo, sHo, 1))
        d.append(S("s_and_b32", sHo, sHo, 31))
        return d

    def reads(slot, b):
        return [dsrtr(Wf[b][j][2 * t:2 * t + 2], vWa, slot * WSL + 8 * t * 192 + 64 * j) for j in range(3) for t in range(2)]

    def mf(slot, b, first=False):
        return [mfma(acc[qb][j], Wf[b][j], Cf[slot][qb], 0 if first else acc[qb][j]) for j in range(3) for qb in range(2)]

    for d in range(D):
        o += loads(d)
    for qb in range(2):
        for j in range(3):
            for r in range(16):
                A(V("v_accvgpr_write_b32", acc[qb][j][r], 0))
    o += st(1)
    A(waitcnt(vm=5 * (D - 1)))
    o += reads(0, 0)
    A(S("s_mov_b32", sE, 0))
    P.add(o)

    def group(with_loads, last):
        b = []
        for d in range(D):
            fin = last and d == D - 1
            if not fin:
                rem = (D - 2) if with_loads else (D - 2 - d)
                b.append(waitcnt(vm=5 * rem))
                rd = reads((d + 1) % D, (d + 1) % 2)
            else:
                rd = []
            m = mf(d, d % 2)
            b += weave(m, interleave(m, rd, 0, 3))
            if with_loads:
                b += loads(d)
        return b

    lb = group(True, False)
    lb += [S("s_add_u32", sE, sE, 1), S("s_cmp_lt_u32", sE, 32 // D - 1), I("s_cbranch_scc1", ["K3_LOOP"])]
    P.loop("K3_LOOP", lb)
    o = group(False, True)
    A = o.append
    o += st(2)
    o += reduce_store("K3", acc, sWV, sRT, sCT, sT0, sOUT, vL, 0)
    if stamps:
        o += st(3) + st(4) + [waitcnt(vm=0)] + st(5) + st(7, True)
        o += st.dump(sWS, sWV, 8, t0, t1, sT0)
    P.add(o)
    P.out.append(label("K3_END"))
    P.out.append(I("s_endpgm"))
    return kernel_text(name, P, 256, 128, nsgpr=100)


def reduce_store(tag, acc, sWV, sRT, sCT, sT0, sOUT, vL, col0):
    o = []
    A = o.append
    t0, t1, t2, t3 = v(8), v(9), v(10), v(11)
    vWr, vRd, vSt = v(12), v(13), v(14)
    A(V("v_and_b32", t0, 31, vL))
    A(V("v_mul_u32_u24", t0, RSTR, t0))
    A(V("v_lshrrev_b32", t1, 5, vL))
    A(V("v_lshl_add_u32", t0, t1, 4, t0))
    A(S("s_mul_i32", sT0, sWV, 32 * RSTR))
    A(V("v_add_u32", vWr, sT0, t0))
    A(V("v_mul_u32_u24", t1, 43691, v(0)))
    A(V("v_lshrrev_b32", t1, 19, t1))
    A(V("v_mul_u32_u24", t2, 12, t1))
    A(V("v_sub_u32", t2, v(0), t2))
    A(V("v_mul_u32_u24", t0, RSTR, t1))
    A(V("v_lshl_add_u32", vRd, t2, 5, t0))
    A(S("s_lshl_b32", sT0, sRT, 6))
    A(V("v_add_u32", t1, sT0, t1))
    A(V("v_mul_u32_u24", t1, 2304, t1))
    A(V("v_lshl_add_u32", t1, t2, 4, t1))
    A(S("s_mul_i32", sT0, sCT, 192))
    A(V("v_add_u32", vSt, sT0, t1))
    vRd2 = v(15)
    A(V("v_add_u32", vRd2, 4 * 32 * RSTR, vRd))
    R = [v(16 + 8 * w, 8) for w in range(8)]
    for qb in range(2):
        A(waitcnt(lgkm=0))
        A(I("s_barrier"))
        for j in range(3):
            for g in range(4):
                A(I("ds_write_b128", [vWr, acc[qb][j][4 * g:4 * g + 4]], f"offset:{(32 * j + 8 * g) * 4}"))
        A(waitcnt(lgkm=0))
        A(I("s_barrier"))
        A(S("s_cmp_ge_u32", sWV, 6))
        A(I("s_cbranch_scc1", [f"{tag}_SK{qb}"]))
        for w in range(8):
            base = vRd if w < 4 else vRd2
            for hh in range(2):
                A(dsr128(R[w][4 * hh:4 * hh + 4], base, (w % 4) * 32 * RSTR + 16 * hh))
        for step in (1, 2, 4):
            for w in range(0, 8, 2 * step):
                for r in range(8):
                    A(V("v_add_f32", R[w][r], R[w][r], R[w + step][r]))
        for r in range(4):
            A(V("v_cvt_pk_bf16_f32", R[1][r], R[0][2 * r], R[0][2 * r + 1]))
        A(S("s_mov_b32", sT0, qb * 32 * 2304 + col0))
        A(bstore4(R[1][0:4], vSt, sOUT, sT0))
        A(label(f"{tag}_SK{qb}"))
    return o


def gen_k3b(name="k3b_kernel"):
    from kb import WS_OF
    P = Prog()
    o = []
    A = o.append
    sWV, sRT, sCT, sT0, sT1, sCO, sWO, sLB, sE, sCO1 = [s(24 + i) for i in range(10)]
    sM = s(40, 2)
    A(S("s_cmp_ge_u32", s(2), 192))
    A(I("s_cbranch_scc1", ["K3B_END"]))
    ld, srd = load_srds(["B_wo", "ws", "out"], 8)
    o += ld[:3]
    sW, sWS, sOUT = srd["B_wo"], srd["ws"], srd["out"]
    vL = v(1)
    A(V("v_lshrrev_b32", v(2), 6, v(0)))
    A(V("v_and_b32", vL, 63, v(0)))
    A(V("v_readfirstlane_b32", sWV, v(2)))
    A(S("s_and_b32", sT0, s(2), 7))
    A(S("s_lshr_b32", sT1, s(2), 3))
    A(S("s_lshr_b32", sRT, sT0, 1))
    A(S("s_lshl_b32", sRT, sRT, 3))
    A(S("s_and_b32", sCT, sT1, 7))
    A(S("s_add_u32", sRT, sRT, sCT))
    A(S("s_and_b32", sT0, sT0, 1))
    A(S("s_mul_i32", sCT, sT0, 3))
    A(S("s_lshr_b32", sT1, sT1, 3))
    A(S("s_add_u32", sCT, sCT, sT1))
    vWg = [v(3), v(4), v(5)]
    vWx = [v(12), v(13), v(14)]
    vL16, vWa, vLx = v(6), v(7), v(15)
    t0, t1, t2, t3 = v(8), v(9), v(10), v(11)
    vBig = v(2)
    A(V("v_mov_b32", vBig, 0x7fffff00))
    A(S("s_cmp_lt_u32", sWV, 4))
    A(S("s_cselect_b64", sM, -1, 0))
    A(S("s_mul_i32", sT1, sCT, 192))
    for i in range(3):
        A(V("v_add_u32", t0, 64 * i, vL))
        A(V("v_mul_u32_u24", t1, 43691, t0))
        A(V("v_lshrrev_b32", t1, 19, t1))
        A(V("v_mul_u32_u24", t2, 12, t1))
        A(V("v_sub_u32", t0, t0, t2))
        A(V("v_lshlrev_b32", t0, 4, t0))
        A(V("v_add_u32", t0, sT1, t0))
        A(V("v_subrev_u32", t0, 1024 * i, t0))
        A(V("v_lshrrev_b32", t2, 3, t1))
        A(V("v_and_b32", t3, 3, t1))
        A(V("v_lshl_add_u32", t2, t2, 2, t3))
        A(V("v_bfe_u32", t3, t1, 2, 1))
        A(V("v_mul_u32_u24", t3, 9, t3))
        A(S("s_mul_i32", sT0, sWV, 18))
        A(V("v_add3_u32", t1, t2, t3, sT0))
        A(V("v_mul_u32_u24", t1, 1152, t1))
        A(V("v_add_u32", vWg[i], t1, t0))
        A(S("s_lshl_b32", sT0, sWV, 3))
        A(V("v_add_u32", t2, sT0, t2))
        A(V("v_mul_u32_u24", t2, 18, t2))
        A(V("v_add3_u32", t2, t2, t3, 8))
        A(V("v_mul_u32_u24", t2, 1152, t2))
        A(V("v_add_u32", t2, t2, t0))
        A(V("v_cndmask_b32", vWx[i], vBig, t2, sM))
    A(V("v_lshlrev_b32", vL16, 4, vL))
    A(V("v_cndmask_b32", vLx, vBig, vL16, sM))
    NI = 5
    A(S("s_mul_i32", sLB, sWV, NI * WSL))
    A(V("v_lshrrev_b32", t0, 5, vL))
    A(V("v_bfe_u32", t1, vL, 2, 2))
    A(V("v_lshl_add_u32", t0, t0, 2, t1))
    A(V("v_mul_u32_u24", t0, 192, t0))
    A(V("v_bfe_u32", t2, vL, 4, 1))
    A(V("v_lshl_add_u32", t0, t2, 5, t0))
    A(V("v_and_b32", t2, 3, vL))
    A(V("v_lshl_add_u32", t0, t2, 3, t0))
    A(V("v_add_u32", vWa, sLB, t0))
    A(S("s_mul_i32", sCO, sRT, 72))
    A(S("s_add_u32", sCO, sCO, sWV))
    A(S("s_lshl_b32", sCO, sCO, 10))
    A(S("s_add_u32", sCO, sCO, WS_OF))
    A(S("s_add_u32", sCO1, sCO, 36 * 1024))
    A(S("s_mov_b32", sWO, 0))
    o += ld[3:]
    acc = [[a((qb * 3 + j) * 16, 16) for j in range(3)] for qb in range(2)]
    Cf = [[v(16 + (d * 2 + qb) * 4, 4) for qb in range(2)] for d in range(NI)]
    Wf = [[v(56 + (b * 3 + j) * 4, 4) for j in range(3)] for b in range(2)]
    for it in range(NI):
        x = it == NI - 1
        A(bload4(Cf[it][0], vLx if x else vL16, sWS, sCO))
        A(bload4(Cf[it][1], vLx if x else vL16, sWS, sCO1))
        A(S("s_add_u32", M0, sLB, it * WSL))
        for i in range(3):
            A(dma(vWx[i] if x else vWg[i], sW, 0 if x else sWO, i * 1024))
        A(S("s_add_u32", sCO, sCO, 8192))
        A(S("s_add_u32", sCO1, sCO1, 8192))
        A(S("s_add_u32", sWO, sWO, 144 * 1152))
    for it in range(NI):
        A(waitcnt(vm=5 * (NI - 1 - it)))
        b = it % 2
        for j in range(3):
            for t in range(2):
                A(dsrtr(Wf[b][j][2 * t:2 * t + 2], vWa, it * WSL + 8 * t * 192 + 64 * j))
        for j in range(3):
            for qb in range(2):
                A(mfma(acc[qb][j], Wf[b][j], Cf[it][qb], 0 if it == 0 else acc[qb][j]))
    o += reduce_store("K3B", acc, sWV, sRT, sCT, sT0, sOUT, vL, 1152)
    P.add(o)
    P.out.append(label("K3B_END"))
    P.out.append(I("s_endpgm"))
    return kernel_text(name, P, 256, 128, nsgpr=100)
```

```python
import sys
from common import *
import fused
from gen import build
NAME = "concat_heads__compressed_kv_cla__linear_kernel_hedgehog__prompt_kernel"
if __name__ == "__main__":
    out = sys.argv[1]
    kw = {}
    kw["LD"] = "" if "ldplain" in sys.argv else "sc1"
    ks = [(NAME, 256, 512, 163840, fused.gen_fused(NAME, stamps=("stamps" in sys.argv), exp=" ".join(sys.argv), **kw))]
    build(out, ks)
```

```python
from common import *
from gemm import *
import math

LOG2E = math.log2(math.e)
CSCALE = (128 ** -0.5) * LOG2E
WS_PHIQ = WS_B
WS_KVP = WS_B + 8 * MB
WS_KVF = WS_B + 15 * MB
WS_OF = WS_B + 16 * MB
WS_WOF = WS_B + 20 * MB
WS_FLAG = WS_B + 28 * MB
WOF_CG = 292 * 2304
WS_WA = WS_PART
WS_WH = WS_PART + 4 * MB
WS_PT = WS_PART + 8 * MB
F_PT = 24
BIG = 0x7fffff00
F_B1, F_KV, F_KVR, F_O, F_CTX = 0, 1, 4, 8, 16

THR_LOG2 = 60.0
HEADROOM = 40.0
LA = 6
ORDER = ["A_x", "A_c_kv", "A_w_q", "A_w_uk", "A_w_uv", "A_w_o", "B_x", "B_wqkv", "B_w_phi", "B_wo", "out", "dbg", "ws"]


def gen_fused(name, stamps=False, exp="", LD="", ST="sc1"):
    P = Prog()
    PTR = {n: s(64 + 2 * i, 2) for i, n in enumerate(ORDER)}
    sW, sWV = s(2), s(3)
    sM = s(4, 2)
    sT0, sT1, sT2 = s(6), s(7), s(90)
    sWS, sA, sB, sC, sD, sDBG = s(8, 4), s(12, 4), s(16, 4), s(20, 4), s(24, 4), s(28, 4)
    sRB1, sG1, sHEAD, sPI, sE, sFB, sSPIN = s(32), s(33), s(34), s(35), s(36), s(37), s(38)
    L = [s(40 + i) for i in range(24)]
    vL, vL16, vFZ, vOne = v(1), v(2), v(3), v(4)
    vSTP = v(127)
    t0, t1, t2, t3, t4 = [v(5 + i) for i in range(5)]
    nlab = [0]

    def lab(p):
        nlab[0] += 1
        return f"{p}{nlab[0]}"

    def mk_srd(dst, nm):
        return [S("s_mov_b32", dst[0], PTR[nm][0]), S("s_mov_b32", dst[1], PTR[nm][1]),
                S("s_mov_b32", dst[2], NBYTES[nm]), S("s_mov_b32", dst[3], 0x20000)]

    def st(i, real=False):
        if not stamps:
            return []
        r = s(92, 2)
        return [I("s_memrealtime" if real else "s_memtime", [r], cls="smem", dst=r.regs(), src=[]), waitcnt(lgkm=0),
                I("v_writelane_b32", [vSTP, r[0], i])]

    ecnt = [16]

    def est(ph):
        if not (stamps and ("est" + ph) in exp):
            return None

        def fn():
            ecnt[0] += 1
            return st(ecnt[0] - 1)
        return fn

    def poll(vaddr, srd, expect, vt, soff=0):
        lp, dn = lab("PL"), lab("PD")
        return [S("s_mov_b32", sSPIN, 0), label(lp),
                I("buffer_load_dword", [vt, vaddr, srd, soff], "offen sc1"), waitcnt(vm=0),
                V("v_cmp_ne_u32", VCC, expect, vt), S("s_add_u32", sSPIN, sSPIN, 1),
                I("s_cbranch_vccz", [dn]), S("s_sleep", 1), S("s_cmp_lt_u32", sSPIN, 200000),
                I("s_cbranch_scc1", [lp]), label(dn)]

    def wg_flag(word):
        return [I("buffer_store_dword", [vOne, vFZ, sWS, sFB], f"offen offset:{4 * word} sc1")]

    def dmal(voff, srd, soff, off=0):
        return I("buffer_load_dwordx4", [voff, srd, soff],
                 ("offen" + (f" offset:{off}" if off else "") + (" " + LD if LD else "") + " lds"))

    o = []
    A = o.append
    A(S("s_cmp_ge_u32", sW, 256))
    A(I("s_cbranch_scc1", ["F_END"]))
    A(I("s_load_dwordx16", [s(64, 16), s(0, 2), 0]))
    A(I("s_load_dwordx8", [s(80, 8), s(0, 2), 64]))
    A(I("s_load_dwordx2", [s(88, 2), s(0, 2), 96]))
    if stamps:
        A(V("v_mov_b32", vSTP, 0))
    A(V("v_lshrrev_b32", t0, 6, v(0)))
    A(V("v_and_b32", vL, 63, v(0)))
    A(V("v_readfirstlane_b32", sWV, t0))
    A(V("v_lshlrev_b32", vL16, 4, vL))
    A(S("s_and_b32", sT0, sW, 7))
    A(S("s_lshr_b32", sT1, sW, 3))
    A(S("s_lshr_b32", sRB1, sT0, 1))
    A(S("s_lshl_b32", sRB1, sRB1, 3))
    A(S("s_and_b32", sT2, sT1, 7))
    A(S("s_add_u32", sRB1, sRB1, sT2))
    A(S("s_and_b32", sG1, sT0, 1))
    A(S("s_lshl_b32", sG1, sG1, 2))
    A(S("s_lshr_b32", sT2, sT1, 3))
    A(S("s_add_u32", sG1, sG1, sT2))
    A(S("s_lshl_b32", sHEAD, sT0, 2))
    A(S("s_and_b32", sT2, sT1, 3))
    A(S("s_add_u32", sHEAD, sHEAD, sT2))
    A(S("s_lshr_b32", sPI, sT1, 2))
    A(S("s_lshl_b32", sFB, sW, 8))
    A(S("s_add_u32", sFB, sFB, WS_FLAG))
    A(V("v_mov_b32", vOne, 1))
    A(V("v_mov_b32", t1, BIG))
    A(V("v_cmp_eq_u32", VCC, 0, v(0)))
    A(V("v_cndmask_b32", vFZ, t1, 0, VCC) if False else V("v_cndmask_b32", vFZ, t1, v(0), VCC))

    sSUB, sWQ, sN, sNB, sQ0, sLO4 = s(39), s(91), s(94), s(95), s(96), s(97)
    sM2 = s(98, 2)
    vTD = v(31)
    vFS = v(30)
    vS7 = v(29)
    A(V("v_mov_b32", t2, 0))
    A(V("v_cmp_eq_u32", VCC, 256, v(0)))
    A(V("v_cndmask_b32", vFS, t1, t2, VCC))
    A(V("v_lshlrev_b32", vS7, 7, v(0)))
    A(S("s_lshr_b32", sSUB, sWV, 2))
    A(S("s_and_b32", sWQ, sWV, 3))
    A(S("s_xor_b32", sLO4, sSUB, 1))

    def only(sreg, code, inv=False):
        sk = lab("ONLY")
        return [S("s_cmp_lg_u32" if inv else "s_cmp_eq_u32", sreg, 0), I("s_cbranch_scc1", [sk])] + code + [label(sk)]

    def onlyw(wv, code):
        sk = lab("ONLYW")
        return [S("s_cmp_lg_u32", sWV, wv), I("s_cbranch_scc1", [sk])] + code + [label(sk)]

    def role(sreg):
        return [S("s_cmp_lg_u32", sreg, 0), S("s_cselect_b64", VCC, -1, 0)]

    def w_off(dst, sidx, A=None):
        A = A or o.append
        A(S("s_lshl_b32", sT0, sidx, 6))
        A(V("v_add_u32", t0, sT0, vL))
        A(V("v_mul_u32_u24", t1, 9363, t0))
        A(V("v_lshrrev_b32", t1, 18, t1))
        A(V("v_mul_u32_u24", t2, 28, t1))
        A(V("v_sub_u32", t2, t0, t2))
        A(V("v_mul_u32_u24", t3, 57, t2))
        A(V("v_lshrrev_b32", t3, 9, t3))
        A(V("v_min_u32", t3, 2, t3))
        A(V("v_mul_u32_u24", t4, 1152 - 144, t3))
        A(V("v_lshl_add_u32", t4, t2, 4, t4))
        A(V("v_mul_u32_u24", t1, 3456, t1))
        A(V("v_add_u32", t4, t4, t1))
        A(S("s_mul_i32", sT0, sG1, 144))
        A(V("v_add_u32", dst, sT0, t4))

    def x_off(dst, srow0, stride, A=None):
        A = A or o.append
        A(V("v_lshrrev_b32", t0, 2, vL))
        A(V("v_add_u32", t0, srow0, t0))
        A(V("v_mul_u32_u24", t0, stride, t0))
        A(V("v_lshrrev_b32", t1, 4, vL))
        A(V("v_xor_b32", t1, t1, vL))
        A(V("v_and_b32", t1, 3, t1))
        A(V("v_lshl_add_u32", dst, t1, 4, t0))

    def x_read_consts(dst2, sbase):
        A(V("v_and_b32", t0, 31, vL))
        A(V("v_lshlrev_b32", t1, 6, t0))
        if sbase is not None:
            A(V("v_add_u32", t1, sbase, t1))
        A(V("v_lshrrev_b32", t2, 5, vL))
        A(V("v_bfe_u32", t3, vL, 2, 2))
        A(V("v_xor_b32", t2, t2, t3))
        A(V("v_lshl_add_u32", dst2[0], t2, 4, t1))
        A(V("v_xor_b32", dst2[1], 32, dst2[0]))

    def tr_lane(dst, hshift, rs):
        A(V("v_lshrrev_b32", t0, 5, vL))
        A(V("v_bfe_u32", t1, vL, 2, 2))
        A(V("v_lshl_add_u32", t0, t0, hshift, t1))
        A(V("v_mul_u32_u24", t0, rs, t0))
        A(V("v_bfe_u32", t2, vL, 4, 1))
        A(V("v_lshl_add_u32", t0, t2, 5, t0))
        A(V("v_and_b32", t2, 3, vL))
        A(V("v_lshl_add_u32", dst, t2, 3, t0))


    B1_SUB, B1_BASE, B1_IMG, PHI_BASE = 18432, 16384, 126976, 98304
    bslot = lambda e: B1_BASE + (e % 3) * 2 * B1_SUB
    IMG_RS, PHI_RS = 144, 112
    R_BASE = B1_IMG
    sHD, sSO0, sSO3, sSt3, sLD1, sLD3 = L[0:6]
    sXb, sWb, sPH, sB2 = sA, sB, sC, sD
    vG = [v(114 + i) for i in range(9)]
    vI, vH2 = v(25), v(26)
    A(S("s_and_b32", sT0, sWQ, 1))
    A(S("s_cmp_eq_u32", sT0, 1))
    A(S("s_cselect_b64", sM2, -1, 0))
    A(S("s_cselect_b32", sSt3, 64, 32 * 3456))
    A(S("s_mul_i32", L[6], sT0, 9))
    gsetup = []
    o_save, o = o, gsetup
    A = o.append
    for i in range(9):
        A(S("s_add_u32", sT2, L[6], i))
        w_off(vG[i], sT2, A)
        comp = 1024 * (i if i < 4 else 0 if i == 4 else i - 5)
        if i >= 5:
            A(S("s_lshl_b32", sT0, sRB1, 6))
            A(S("s_add_u32", sT2, sT0, 16 * (i - 5)))
            x_off(t4, sT2, 1152, A)
            A(V("v_cndmask_b32", vG[i], vG[i], t4, sM2))
        if comp:
            A(V("v_subrev_u32", vG[i], comp, vG[i]))
    o = o_save
    A = o.append
    o += gsetup
    A(S("s_lshr_b32", sT1, sWQ, 1))
    A(S("s_mul_i32", sSO0, sT1, 32 * 3456))
    A(S("s_mul_i32", sSO3, sT1, sSt3))
    A(S("s_lshl_b32", sSt3, sSt3, 1))
    A(S("s_mul_i32", L[7], sSt3, 9))
    A(S("s_and_b32", sT0, sG1, 3))
    A(S("s_lshl_b32", sT0, sT0, 1))
    A(S("s_and_b32", sT2, sRB1, 7))
    A(S("s_add_u32", sT0, sT0, sT2))
    A(S("s_cmp_ge_u32", sT0, 9))
    A(S("s_cselect_b32", sT2, 9, 0))
    A(S("s_sub_u32", sT0, sT0, sT2))
    A(S("s_mul_i32", sT0, sT0, 1 if "rotB" in exp else 0))
    A(S("s_mul_i32", sT2, sT0, 64 * 3456))
    A(S("s_add_u32", sSO0, sSO0, sT2))
    A(S("s_mul_i32", sT2, sT0, sSt3))
    A(S("s_add_u32", sSO3, sSO3, sT2))
    A(S("s_mul_i32", sT1, sT1, B1_SUB))
    A(S("s_lshl_b32", sT0, L[6], 10))
    A(S("s_add_u32", sLD1, sT1, sT0))
    A(S("s_add_u32", sLD1, sLD1, 4096))
    A(S("s_add_u32", sT0, sT1, 4096 + 5120))
    A(S("s_cmp_eq_u32", L[6], 0))
    A(S("s_cselect_b32", sLD3, sT0, sT1))
    A(waitcnt(lgkm=0))
    o += st(0) + st(62, True)
    o += mk_srd(sXb, "B_x") + mk_srd(sWb, "B_wqkv") + mk_srd(sC, "A_w_o") + mk_srd(sWS, "ws") + mk_srd(sDBG, "dbg")
    o += [S("s_cmp_eq_u32", L[6], 0), S("s_cselect_b32", sB2[0], sWb[0], sXb[0]), S("s_cselect_b32", sB2[1], sWb[1], sXb[1]),
          S("s_cselect_b32", sB2[2], sWb[2], sXb[2]), S("s_mov_b32", sB2[3], 0x20000)]

    def b1_issue(e):
        d = [S("s_add_u32", M0, sLD1, bslot(e))]
        d += [dma(vG[i], sWb, sSO0, i * 1024) for i in range(4)]
        d.append(S("s_add_u32", M0, sLD1, bslot(e) + 4096))
        d.append(dma(vG[4], sWb, sSO0))
        d.append(S("s_add_u32", M0, sLD3, bslot(e)))
        d += [dma(vG[5 + i], sB2, sSO3, i * 1024) for i in range(4)]
        d += [S("s_add_u32", sSO0, sSO0, 64 * 3456), S("s_add_u32", sSO3, sSO3, sSt3),
              S("s_cmp_ge_u32", sSO0, 9 * 64 * 3456), S("s_cselect_b32", sT0, 9 * 64 * 3456, 0), S("s_cselect_b32", sT1, L[7], 0),
              S("s_sub_u32", sSO0, sSO0, sT0), S("s_sub_u32", sSO3, sSO3, sT1)]
        return d

    def stage_rows(srd, sbytes, n):
        r = [S("s_mul_i32", sT0, sWQ, n * 1024), S("s_add_u32", sT1, sT0, sbytes)]
        for g0 in range(0, n, 4):
            r.append(S("s_add_u32", M0, sT0, R_BASE + g0 * 1024))
            r += [I("buffer_load_dwordx4", [vL16, srd, sT1], f"offen offset:{i * 1024}" + (" nt" if "rnt" in exp else "") + " lds") for i in range(min(4, n - g0))]
            r.append(S("s_add_u32", sT1, sT1, 4096))
        return r

    o += only(sLO4, b1_issue(0) + b1_issue(1))
    A(V("v_subrev_u32", t0, 256, v(0)))
    A(V("v_cmp_gt_u32", VCC, 64, t0))
    A(V("v_lshlrev_b32", t0, 2, t0))
    A(V("v_mov_b32", t1, BIG))
    A(V("v_cndmask_b32", t0, t1, t0, VCC))
    A(V("v_mov_b32", t2, 0))
    svc = [I("buffer_store_dword", [t2, t0, sWS, sFB], "offen sc1"), S("s_mul_i32", sT2, sW, 16 * 1152)] + stage_rows(sC, sT2, 5)
    if "nocodepf" not in exp:
        svc += only(sWQ, [I("s_getpc_b64", [sM2]), label("F_PC"), S("s_lshr_b32", sT0, sW, 3), S("s_lshl_b32", sT0, sT0, 12),
                          V("v_and_b32", t3, 31, vL), V("v_lshlrev_b32", t3, 7, t3), V("v_add_u32", t3, sT0, t3),
                          V("v_min_u32", t3, "F_CODE_END-F_PC-4", t3),
                          I("global_load_dword", [vTD, t3, sM2], "", dst=[])], inv=True)
    o += only(sSUB, svc)
    sTD = s(56, 4)
    sR0, sALT, sR1 = L[8], L[9], L[20]
    A(S("s_add_u32", sT0, sW, 256))
    A(S("s_cmp_eq_u32", sWV, 7))
    A(S("s_cselect_b32", sT2, sW, sT0))
    A(S("s_cselect_b32", sALT, 1, 0))
    A(S("s_cmp_lt_u32", sW, 32))
    A(S("s_cselect_b32", sT0, 6, 99))
    A(S("s_cmp_eq_u32", sWV, sT0))
    A(S("s_cselect_b32", sALT, 1, sALT))
    A(S("s_and_b32", sT0, sT2, 7))
    A(S("s_mul_i32", sR0, sT0, WOF_CG))
    A(S("s_mul_i32", L[22], sT0, 144))
    A(S("s_lshr_b32", sT2, sT2, 3))
    A(S("s_add_u32", sT0, sT2, 256))
    A(S("s_mul_i32", sT0, sT0, 2304))
    A(S("s_add_u32", sR0, sR0, sT0))
    A(S("s_add_u32", sR0, sR0, WS_WOF))
    A(S("s_mul_i32", sT0, sT2, 18))
    A(S("s_mul_i32", sT1, sT2, 144))
    A(S("s_sub_u32", sT1, sT1, 32 * 144 - 8))
    A(S("s_cmp_lt_u32", sT2, 32))
    A(S("s_cselect_b32", sT0, sT0, sT1))
    A(S("s_cselect_b32", sT2, 1, 18))
    A(S("s_mul_i32", sT0, sT0, 1152))
    A(S("s_add_u32", L[22], L[22], sT0))
    BJ = R_BASE + 20480
    A(S("s_and_b32", sT1, sWV, 1))
    A(S("s_mul_i32", L[21], sT1, 3072))
    A(S("s_add_u32", L[21], L[21], BJ))
    alt = mk_srd(sTD, "B_wo") + [S("s_mov_b32", M0, L[21])]
    for i in range(3):
        alt += [V("v_add_u32", t0, 64 * i, vL), V("v_min_u32", t0, 143, t0), V("v_mul_u32_u24", t1, 57, t0), V("v_lshrrev_b32", t1, 9, t1),
                V("v_mul_u32_u24", t2, 9, t1), V("v_sub_u32", t0, t0, t2),
                V("v_lshrrev_b32", t2, 3, t1), V("v_and_b32", t3, 3, t1), V("v_lshl_add_u32", t2, t2, 2, t3),
                V("v_mul_u32_u24", t2, sT2, t2), V("v_bfe_u32", t3, t1, 2, 1), V("v_mad_u32_u24", t2, t3, 9, t2),
                V("v_mul_u32_u24", t2, 1152, t2), V("v_lshl_add_u32", t2, t0, 4, t2), V("v_add_u32", t2, 4096 - 1024 * i, t2),
                S("s_sub_u32", sT0, L[22], 4096) if False else S("s_mov_b32", sT0, L[22]),
                V("v_add_u32", t2, sT0, t2), V("v_subrev_u32", t2, 4096, t2),
                dma(t2, sTD, 0, i * 1024)]
    o += only(sALT, alt)

    def touch_jobs(lst):
        jobs = []
        for nm, per in lst:
            for f0 in range(0, per, 64):
                n = min(64, per - f0)
                jobs.append(mk_srd(sTD, nm) + [S("s_mul_i32", L[23], sW, per * 128), S("s_add_u32", L[23], L[23], f0 * 128),
                                               V("v_min_u32", t0, n - 1, vL), V("v_lshlrev_b32", t0, 7, t0),
                                               I("buffer_load_dword", [vTD, t0, sTD, L[23]], "offen", dst=[])])
        return jobs

    def xtouch_jobs(nm, rows):
        jobs = []
        per = rows // 32
        for r0 in range(0, per, 8):
            n = min(8, per - r0) * 8
            jobs.append(mk_srd(sTD, nm) + [S("s_lshr_b32", L[23], sW, 3), S("s_mul_i32", L[23], L[23], per * 8192),
                                           S("s_and_b32", L[22], sW, 7), S("s_lshl_b32", L[22], L[22], 10),
                                           S("s_add_u32", L[23], L[23], L[22]), S("s_add_u32", L[23], L[23], r0 * 8192),
                                           V("v_min_u32", t0, n - 1, vL), V("v_and_b32", t1, 7, t0), V("v_lshrrev_b32", t0, 3, t0),
                                           V("v_lshlrev_b32", t0, 13, t0), V("v_lshl_add_u32", t0, t1, 7, t0),
                                           I("buffer_load_dword", [vTD, t0, sTD, L[23]], "offen" + (" nt" if "xnt" in exp else ""), dst=[])])
        return jobs

    A(S("s_lshl_b32", sT0, sG1, 2))
    A(S("s_add_u32", sHD, sWQ, sT0))
    A(V("v_bfe_u32", t0, vL, 3, 2))
    A(V("v_and_b32", t1, 3, vL))
    A(V("v_lshl_add_u32", vI, t0, 2, t1))
    A(V("v_bfe_u32", vH2, vL, 2, 1))
    raw_ = [v(88 + i) for i in range(8)] + [v(112), v(113)]
    WP = [v(96, 4), v(100, 4)]
    o += mk_srd(sPH, "B_w_phi")
    A(V("v_mad_u32_u24", t0, vH2, 9, vI))
    A(V("v_lshrrev_b32", t1, 5, vL))
    A(V("v_mul_u32_u24", t2, 8 * 36, t1))
    A(V("v_lshl_add_u32", t2, t0, 1, t2))
    A(S("s_mul_i32", sT0, sHD, 648))
    A(V("v_add_u32", t2, sT0, t2))
    A(V("v_mov_b32", t4, BIG))
    A(V("v_cmp_lt_u32", sM, vI, 9))
    A(V("v_cndmask_b32", t2, t4, t2, sM))
    A(V("v_cmp_eq_u32", sM, t1, 0))
    A(V("v_cndmask_b32", t3, t4, t2, sM))
    for j in range(8):
        A(I("buffer_load_ushort", [raw_[j], t2, sPH, 0], f"offen offset:{36 * j}" if j else "offen"))
    for j in range(2):
        A(I("buffer_load_ushort", [raw_[8 + j], t3, sPH, 0], f"offen offset:{36 * (16 + j)}"))
    kjobs = touch_jobs([("A_c_kv", 64), ("A_w_uk", 128), ("A_w_uv", 128)]) if "notouch" not in exp else []
    if "xt" in exp:
        kjobs = touch_jobs([("A_c_kv", 64)]) + xtouch_jobs("A_w_uk", 512) + xtouch_jobs("A_w_uv", 512)
    if "nokt" in exp:
        kjobs = []
    if "kt0" in exp:
        for e, r in enumerate(kjobs):
            o += onlyw(4 + e % 4, r)
        kjobs = []
    bXa = [LdsAddr([v(16), v(17)]), LdsAddr([v(18), v(19)])]
    bWa = LdsAddr([v(20), v(21)])
    x_read_consts([v(16), v(18)], None)
    tr_lane(t3, 3, 448)
    A(S("s_lshl_b32", sT0, sWV, 6))
    A(V("v_add_u32", v(20), sT0, t3))
    o += bXa[0].setup(v(16)) + bXa[1].setup(v(18)) + bWa.setup(v(20))
    acc = [v(32, 16), v(48, 16)]
    Xf = [[v(64 + (b * 2 + m) * 4, 4) for m in range(2)] for b in range(2)]
    Wf = [v(80, 4), v(84, 4)]

    def b1_reads(e, k4, b):
        sl, ks = bslot(e) + (k4 >> 1) * B1_SUB, k4 & 1
        r = [dsr128(Xf[b][0], *bXa[ks].at(sl))]
        for t in range(2):
            r.append(dsrtr(Wf[b][2 * t:2 * t + 2], *bWa.at(sl + 4096 + (16 * ks + 4 * t) * 448)))
        r.append(dsr128(Xf[b][1], *bXa[ks].at(sl + 2048)))
        return r

    def b1_mfmas(b, first):
        return [mfma(acc[m], Xf[b][m], Wf[b], 0 if first else acc[m]) for m in range(2)]

    A(S("s_sub_u32", sT0, 15, sPI))
    A(S("s_cmp_eq_u32", sSUB, 0))
    A(S("s_cselect_b32", sT2, sPI, sT0))
    A(S("s_add_u32", sN, sT2, 1))
    A(S("s_lshl_b32", sN, sN, 2))
    A(S("s_add_u32", sNB, sT0, 1))
    A(S("s_lshl_b32", sNB, sNB, 2))
    A(S("s_lshl_b32", sQ0, sT2, 7))
    A(S("s_lshl_b32", sT1, sWQ, 5))
    A(S("s_add_u32", sQ0, sQ0, sT1))
    kslot = lambda c: (c % 5) * 32768
    kXg, kWg = [v(10), v(11), v(12), v(13)], [v(14), v(15)]
    sPX, sPW, sO1, sO2, kWM, kWN = L[10:16]
    sCK, sWk, sWv = sA, sB, sC
    A(S("s_lshl_b32", sT0, sPI, 8))
    A(S("s_lshl_b32", sT1, sWQ, 6))
    A(S("s_add_u32", sT2, sT0, sT1))
    x_off(kXg[0], sT2, 1024)
    for i in range(1, 4):
        A(V("v_add_u32", kXg[i], i * (16384 - 1024), kXg[0]))
    A(S("s_lshl_b32", sT0, sWQ, 3))
    A(V("v_lshrrev_b32", t0, 4, vL))
    A(V("v_add_u32", t1, sT0, t0))
    A(V("v_lshlrev_b32", t1, 13, t1))
    A(V("v_lshrrev_b32", t2, 2, vL))
    A(V("v_xor_b32", t2, t2, t0))
    A(V("v_and_b32", t2, 3, t2))
    A(V("v_and_b32", t3, 3, vL))
    A(V("v_lshl_add_u32", t2, t2, 2, t3))
    A(V("v_lshl_add_u32", t1, t2, 4, t1))
    A(S("s_lshl_b32", sT0, sHEAD, 8))
    A(V("v_add_u32", kWg[0], sT0, t1))
    A(V("v_add_u32", kWg[1], 4 * 8192 - 1024, kWg[0]))
    A(S("s_lshl_b32", sPX, sWQ, 12))
    A(S("s_lshl_b32", sPW, sWQ, 11))
    A(S("s_add_u32", sPW, sPW, 16384))
    A(S("s_and_b32", kWM, sWV, 1))
    A(S("s_lshr_b32", kWN, sWV, 1))

    sKC = L[21]
    A(S("s_and_b32", sT0, sHEAD, 3))
    A(S("s_lshl_b32", sT0, sT0, 1))
    A(S("s_add_u32", sKC, sT0, sPI))
    A(S("s_lshl_b32", sKC, sKC, 1))
    A(S("s_and_b32", sKC, sKC, 15))
    A(S("s_mul_i32", sKC, sKC, 1 if "rotK" in exp else 0))

    def kv_issue(c):
        d = [S("s_add_u32", M0, sPX, kslot(c)), S("s_lshl_b32", sO1, sKC, 6)]
        d += [dma(kXg[i], sCK, sO1, i * 1024) for i in range(4)]
        d += [S("s_add_u32", M0, sPW, kslot(c)), S("s_lshl_b32", sO2, sKC, 18)]
        d += [dma(kWg[i], sWk, sO2, i * 1024) for i in range(2)]
        d.append(S("s_add_u32", M0, sPW, kslot(c) + 8192))
        d += [dma(kWg[i], sWv, sO2, i * 1024) for i in range(2)]
        d += [S("s_add_u32", sKC, sKC, 1), S("s_and_b32", sKC, sKC, 15)]
        return d

    vRr, vRs, vRs2, vRrB, vRs3 = v(104), v(105), v(106), v(110), v(111)
    RF = [a(4 * j, 4) for j in range(3)]
    XE = [v(107 + j) for j in range(3)]
    tr_lane(t3, 2, 1152)
    A(S("s_lshr_b32", sT0, sWV, 1))
    A(S("s_mul_i32", sT0, sT0, 288))
    A(S("s_lshl_b32", sT1, kWM, 7))
    A(S("s_add_u32", sT0, sT0, sT1))
    A(S("s_add_u32", sT0, sT0, R_BASE))
    A(V("v_add_u32", vRr, sT0, t3))
    A(S("s_mul_i32", sT0, sWV, 144))
    A(S("s_add_u32", sT0, sT0, R_BASE))
    A(V("v_and_b32", t0, 31, vL))
    A(V("v_lshrrev_b32", t1, 5, vL))
    A(V("v_bfe_u32", t4, vL, 2, 2))
    A(V("v_lshl_add_u32", t4, t1, 2, t4))
    A(V("v_mul_u32_u24", t4, 1152 - 144, t4))
    A(V("v_sub_u32", t4, t3, t4))
    A(S("s_and_b32", sT1, sWV, 1))
    A(S("s_mul_i32", sT1, sT1, 3072))
    A(S("s_add_u32", sT1, sT1, BJ))
    A(V("v_add_u32", vRrB, sT1, t4))
    A(V("v_lshlrev_b32", t4, 7, t1))
    A(V("v_lshl_add_u32", t4, t0, 4, t4))
    A(V("v_mov_b32", t2, BIG))
    A(V("v_cmp_gt_u32", VCC, 8, t0))
    A(V("v_cndmask_b32", vRs2, t2, t4, VCC))
    A(V("v_lshlrev_b32", t4, 8, t1))
    A(V("v_lshl_add_u32", t4, t0, 4, t4))
    A(S("s_lshl_b32", sT1, kWM, 4))
    A(V("v_cmp_gt_u32", VCC, sT1, t0))
    A(V("v_cndmask_b32", vRs3, t2, t4, VCC))
    A(S("s_lshr_b32", sT0, sWV, 1))
    A(S("s_lshl_b32", sT0, sT0, 8))
    A(S("s_add_u32", sT0, sT0, sW))
    A(S("s_lshl_b32", sR1, sT0, 12))
    A(S("s_lshl_b32", sT1, kWM, 11))
    A(S("s_add_u32", sR1, sR1, sT1))
    A(S("s_add_u32", sR1, sR1, WS_WA))
    A(S("s_lshl_b32", sT0, sT0, 9))
    A(S("s_add_u32", sT0, sT0, WS_WH))
    A(V("v_add_u32", vRs3, sT0, vRs3))
    r1 = [dsrtr(RF[j][2 * t:2 * t + 2], vRr, 8 * t * 1152 + 64 * j) for j in range(3) for t in range(2)]
    r1 += [bstore4(RF[0], vL16, sWS, sR1, 0, ST), bstore4(RF[1], vL16, sWS, sR1, 1024, ST), bstore4(RF[2], vRs3, sWS, 0, 0, ST)]
    a2 = [dsrtr(RF[j][2 * t:2 * t + 2], vRrB, 8 * t * 144 + 64 * j) for j in range(3) for t in range(2)]
    a2 += [bstore4(RF[0], vL16, sWS, sR0, 0, ST), bstore4(RF[1], vL16, sWS, sR0, 1024, ST), bstore4(RF[2], vRs2, sWS, sR0, 2048, ST)]
    pk_ = [forget(raw_)] + [V("v_lshl_or_b32", WP[0][p], raw_[2 * p + 1], 16, raw_[2 * p]) for p in range(4)]
    pk_ += [V("v_lshl_or_b32", WP[1][0], raw_[9], 16, raw_[8])] + [V("v_mov_b32", WP[1][p], 0) for p in range(1, 4)]
    extra = {e: [] for e in range(9)}
    extra[1] = only(sSUB, [waitcnt(vm=0)]) + onlyw(4, [I("buffer_atomic_add", [vOne, vFS, sDBG, 0], "offen sc1")])
    extra[2] = r1
    extra[3] = pk_ + only(sALT, a2)
    for e, r in enumerate(kjobs):
        extra[4 if "kt4" in exp else 6] += onlyw(4 + e % 4, r)
    extra[7] = mk_srd(sCK, "A_c_kv") + mk_srd(sWk, "A_w_uk") + mk_srd(sWv, "A_w_uv") + only(sLO4, kv_issue(0))
    hook = only(sLO4, kv_issue(1))
    o += role(sLO4)
    P.add(o)
    gemm4(P, "B1", 9, 4, 3, 9, b1_issue, b1_reads, b1_mfmas, pre=2, rd_span=2, tail_hook=hook, extra=extra,
          first_vm=9 + 10, est=est("B1"), vm_bias={8: 8})
    o = []
    A = o.append
    o += st(1)
    vIW, vQr = v(22), v(23)
    A(V("v_and_b32", t0, 31, vL))
    A(S("s_lshl_b32", sT0, sWV, 5))
    A(V("v_add_u32", t0, sT0, t0))
    A(V("v_mul_u32_u24", t0, IMG_RS, t0))
    A(V("v_lshrrev_b32", t1, 5, vL))
    A(V("v_lshl_add_u32", t0, t1, 3, t0))
    A(V("v_add_u32", vIW, B1_IMG, t0))
    pk = v(64, 16)
    for m in range(2):
        for r in range(8):
            A(V("v_cvt_pk_bf16_f32", pk[8 * m + r], acc[m][2 * r], acc[m][2 * r + 1]))
    A(S("s_cmp_lg_u32", sWV, 7))
    A(I("s_cbranch_scc1", ["B1_NZ"]))
    for r in range(16):
        A(V("v_mov_b32", pk[r], 0))
    A(label("B1_NZ"))
    for m in range(2):
        for g in range(4):
            A(I("ds_write_b64", [vIW, pk[8 * m + 2 * g:8 * m + 2 * g + 2]], f"offset:{(32 * m + 8 * g) * 2}"))
    tr_lane(t3, 3, IMG_RS)
    A(S("s_mul_i32", sT0, sWV, 18 * IMG_RS))
    A(S("s_add_u32", sT0, sT0, B1_IMG))
    A(V("v_add_u32", vQr, sT0, t3))
    A(waitcnt(lgkm=0))
    A(I("s_barrier"))
    o += only(sLO4, kv_issue(2))
    Qf = [[v(64 + (sb * 2 + ks) * 4, 4) for ks in range(2)] for sb in range(2)]
    for sb in range(2):
        for ks in range(2):
            for t in range(2):
                A(dsrtr(Qf[sb][ks][2 * t:2 * t + 2], vQr, (16 * ks + 4 * t) * IMG_RS + 64 * sb))
    for sb in range(2):
        for ks in range(2):
            A(mfma(acc[sb], WP[ks], Qf[sb][ks], 0 if ks == 0 else acc[sb]))
    PHI = [v(64, 12), v(76, 12)]
    E = [v(96 + i) for i in range(18)]
    sL2 = sT2
    A(S("s_mov_b32", sL2, float(LOG2E)))
    for sb in range(2):
        x = acc[sb]
        mx, mn, u0, u1 = t0, t1, t2, t3
        A(V("v_max3_f32", mx, x[0], x[1], x[2]))
        A(V("v_min3_f32", mn, x[0], x[1], x[2]))
        for r in (3, 5, 7):
            A(V("v_max3_f32", mx, mx, x[r], x[r + 1]))
            A(V("v_min3_f32", mn, mn, x[r], x[r + 1]))
        A(V("v_mov_b32", u0, mx))
        A(V("v_mov_b32", u1, mn))
        A(V("v_permlane32_swap_b32", mx, u0))
        A(V("v_permlane32_swap_b32", mn, u1))
        A(V("v_max_f32", mx, mx, u0))
        A(V("v_min_f32", mn, mn, u1))
        A(V("v_mul_f32", mx, sL2, mx))
        A(V("v_mul_f32", mn, sL2, mn))
        for i in range(9):
            A(V("v_fma_f32", E[i], x[i], sL2, Neg(mx)))
            A(V("v_fma_f32", E[9 + i], Neg(x[i]), sL2, mn))
        for i in range(18):
            A(V("v_exp_f32", E[i], E[i]))
        sp, sn = mx, mn
        A(V("v_add_f32", sp, E[0], E[1]))
        A(V("v_add_f32", sn, E[9], E[10]))
        for i in range(2, 9):
            A(V("v_add_f32", sp, sp, E[i]))
            A(V("v_add_f32", sn, sn, E[9 + i]))
        A(V("v_mov_b32", u0, sp))
        A(V("v_mov_b32", u1, sn))
        A(V("v_permlane32_swap_b32", sp, u0))
        A(V("v_permlane32_swap_b32", sn, u1))
        A(V("v_add_f32", sp, sp, u0))
        A(V("v_add_f32", sn, sn, u1))
        A(V("v_rcp_f32", sp, sp))
        A(V("v_rcp_f32", sn, sn))
        for i in range(9):
            A(V("v_mul_f32", E[i], E[i], sp))
            A(V("v_mul_f32", E[9 + i], E[9 + i], sn))
        for p in range(9):
            A(V("v_cvt_pk_bf16_f32", PHI[sb][p], E[2 * p], E[2 * p + 1]))
        for p in range(9, 12):
            A(V("v_mov_b32", PHI[sb][p], 0))
    A(S("s_cmp_ge_u32", sWV, 4))
    A(I("s_cbranch_scc1", ["B1_K"]))
    A(S("s_lshl_b32", sT0, sRB1, 6))
    A(S("s_add_u32", sT0, sT0, sHD))
    A(S("s_mul_i32", sT0, sT0, 3072))
    A(S("s_add_u32", sT0, sT0, WS_PHIQ))
    A(S("s_add_u32", sT1, sT0, 32 * 3072))
    for sb in range(2):
        for F in range(3):
            A(bstore4(PHI[sb][4 * F:4 * F + 4], vL16, sWS, sT1 if sb else sT0, F * 1024, ST))
    A(I("s_branch", ["B1_DONE"]))
    A(label("B1_K"))
    vPW, vPR, vVR, vPR1 = v(24), v(27), v(28), v(114)
    A(S("s_sub_u32", sT0, sWV, 4))
    A(S("s_mul_i32", sT0, sT0, 64 * PHI_RS))
    A(S("s_add_u32", sT0, sT0, PHI_BASE))
    A(V("v_and_b32", t0, 31, vL))
    A(V("v_mul_u32_u24", t0, PHI_RS, t0))
    A(V("v_lshrrev_b32", t1, 5, vL))
    A(V("v_mul_u32_u24", t2, 48, t1))
    A(V("v_add3_u32", vPW, t0, t2, sT0))
    for sb in range(2):
        for F in range(3):
            A(I("ds_write_b128", [vPW, PHI[sb][4 * F:4 * F + 4]], f"offset:{sb * 32 * PHI_RS + 16 * F}"))
    A(V("v_bfe_u32", t2, vL, 2, 2))
    A(V("v_lshl_add_u32", t0, t1, 3, t2))
    A(V("v_mul_u32_u24", t0, PHI_RS, t0))
    A(V("v_and_b32", t2, 1, vL))
    A(V("v_mul_u32_u24", t2, 48, t2))
    A(V("v_add_u32", t0, t0, t2))
    A(V("v_bfe_u32", t2, vL, 1, 1))
    A(V("v_lshl_add_u32", t0, t2, 3, t0))
    A(V("v_add_u32", t0, sT0, t0))
    A(V("v_bfe_u32", t2, vL, 4, 1))
    A(V("v_lshl_add_u32", vPR, t2, 4, t0))
    A(V("v_add_u32", vPR1, 32, t0))
    A(V("v_min_u32", t0, 8, vI))
    A(V("v_mad_u32_u24", t0, vH2, 9, t0))
    A(S("s_mul_i32", sT0, sWV, 18))
    A(S("s_add_u32", sT0, sT0, 72))
    A(V("v_add_u32", t0, sT0, t0))
    A(V("v_mul_u32_u24", t0, IMG_RS, t0))
    A(V("v_lshl_add_u32", t0, t1, 4, t0))
    A(V("v_add_u32", vVR, B1_IMG, t0))
    Vf = [v(96 + 4 * ks, 4) for ks in range(4)]
    Af = [[a(64 + (T * 4 + ks) * 4, 4) for ks in range(4)] for T in range(2)]
    for ks in range(4):
        A(dsr128(Vf[ks], vVR, 32 * ks))
    for T in range(2):
        for ks in range(4):
            for t in range(2):
                A(dsrtr(Af[T][ks][2 * t:2 * t + 2], vPR1 if T else vPR, (16 * ks + 4 * t) * PHI_RS))
    A(V("v_cmp_eq_u32", sM, vI, 9))
    A(V("v_mov_b32", t4, 0x3f803f80))
    for ks in range(4):
        for r in range(4):
            A(V("v_cndmask_b32", Vf[ks][r], Vf[ks][r], t4, sM))
    for T in range(2):
        for ks in range(4):
            A(mfma(acc[T], Af[T][ks], Vf[ks], 0 if ks == 0 else acc[T]))
    A(S("s_lshl_b32", sT0, sRB1, 5))
    A(S("s_add_u32", sT0, sT0, sHD))
    A(S("s_mul_i32", sT0, sT0, 6144))
    A(S("s_add_u32", sT0, sT0, WS_KVP))
    A(S("s_add_u32", sT1, sT0, 4096))
    for g in range(6):
        A(bstore4(acc[g // 4][4 * (g % 4):4 * (g % 4) + 4], vL16, sWS, sT1 if g >= 4 else sT0, (g % 4) * 1024, ST))
    A(label("B1_DONE"))
    o += st(2)

    kXa = [LdsAddr([v(16), v(17), v(18)]), LdsAddr([v(19), v(20), v(21)])]
    kWa = LdsAddr([v(22), v(23), v(24)])
    A(S("s_lshl_b32", sT2, kWM, 13))
    x_read_consts([v(16), v(19)], sT2)
    tr_lane(t3, 3, 256)
    A(V("v_xor_b32", t1, kWN, t1))
    A(V("v_lshl_add_u32", v(22), t1, 6, t3))
    o += kXa[0].setup(v(16)) + kXa[1].setup(v(19)) + kWa.setup(v(22))
    kacc = [[a((m * 2 + j) * 16, 16) for j in range(2)] for m in range(4)]
    kXf = [[v(32 + (b * 4 + m) * 4, 4) for m in range(4)] for b in range(2)]
    kWf = [[v(64 + (b * 2 + j) * 4, 4) for j in range(2)] for b in range(2)]

    def kv_reads(c, ks, b):
        sl = kslot(c)
        r = [dsr128(kXf[b][0], *kXa[ks].at(sl))]
        for j in range(2):
            for t in range(2):
                r.append(dsrtr(kWf[b][j][2 * t:2 * t + 2], *kWa.at(sl + 16384 + j * 8192 + (16 * ks + 4 * t) * 256)))
        for m in range(1, 4):
            r.append(dsr128(kXf[b][m], *kXa[ks].at(sl + m * 2048)))
        return r

    def kv_mfmas(b, first):
        r = []
        for m in range(4):
            r.append(mfma(kacc[m][0], kWf[b][0], kXf[b][m], 0 if first else kacc[m][0]))
            r.append(mfma(kacc[m][1], kXf[b][m], kWf[b][1], 0 if first else kacc[m][1]))
        return r

    qslot = lambda c: 16384 + ((c + 1) % 6) * 24576
    qXg = [v(123), v(124), v(125), v(126)]
    qsetup = []
    o_save, o = o, qsetup
    A = o.append
    A(S("s_lshl_b32", L[0], sPI, 7))
    A(S("s_mul_i32", L[1], sPI, -128))
    A(V("v_mov_b32", t2, L[1]))
    A(V("v_add_u32", t2, 15 * 128, t2))
    A(V("v_mov_b32", t3, L[0]))
    A(V("v_cmp_gt_u32", sM, 2, sWQ))
    A(V("v_cndmask_b32", t3, t2, t3, sM))
    A(V("v_and_b32", t2, 1, sWQ) if False else V("v_mov_b32", t2, sWQ))
    A(V("v_and_b32", t2, 1, t2))
    A(V("v_lshl_add_u32", t3, t2, 6, t3))
    A(V("v_lshrrev_b32", t0, 2, vL))
    A(V("v_add_u32", t0, t3, t0))
    A(V("v_mul_u32_u24", t0, 1152, t0))
    A(V("v_lshrrev_b32", t1, 4, vL))
    A(V("v_xor_b32", t1, t1, vL))
    A(V("v_and_b32", t1, 3, t1))
    A(V("v_lshl_add_u32", qXg[0], t1, 4, t0))
    for i in range(1, 4):
        A(V("v_add_u32", qXg[i], i * (16 * 1152 - 1024), qXg[0]))
    o = o_save
    A = o.append
    sXq, sWqq = sA, sB

    def q_issue(c):
        d = [S("s_add_u32", M0, sPX, qslot(c)), S("s_mov_b32", sO1, 64 * c)]
        d += [dma(qXg[i], sXq, sO1, i * 1024) for i in range(4)]
        d += [S("s_add_u32", M0, sPW, qslot(c)), S("s_mov_b32", sO2, c * 32 * 8192)]
        d += [dma(kWg[i], sWqq, sO2, i * 1024) for i in range(2)]
        return d

    vPZ, vPZr = v(80), v(81)
    A(V("v_mov_b32", vPZ, 0))
    extra = {e: [] for e in range(16)}
    extra[1] = qsetup
    extra[3] = only(sSUB, [waitcnt(vm=0)])
    extra[4] = onlyw(4, [I("buffer_store_dword", [vOne, vFS, sWS, sFB], f"offen offset:{4 * F_B1} sc1"),
                         I("buffer_atomic_add", [vOne, vFS, sDBG, 0], "offen offset:4 sc1")])
    if "notouch" not in exp:
        qj = touch_jobs([("A_x", 72), ("A_w_q", 144)])
        if "xt" in exp:
            qj = touch_jobs([("A_x", 72)]) + xtouch_jobs("A_w_q", 576)
        for e, r in enumerate(qj):
            extra[5 + 3 * (e // 3)] += onlyw(5 + e % 3, r)
    okz = lab("Z_OK")
    extra[7] += onlyw(4, [I("buffer_load_dword", [vPZr, vPZ, sDBG, 0], "offen sc1", dst=[])])
    extra[11] += onlyw(4, [waitcnt(vm=0), V("v_cmp_ne_u32", VCC, 256, vPZr), nop(2), I("s_cbranch_vccz", [okz])] +
                       poll(vPZ, sDBG, 256, vPZr) + [label(okz), S("s_mov_b64", VCC, 0)])
    extra[12] += mk_srd(sXq, "A_x") + mk_srd(sWqq, "A_w_q") + only(sSUB, q_issue(0))
    extra[13] += only(sSUB, q_issue(1))
    extra[14] += only(sSUB, q_issue(2))
    hook = only(sSUB, q_issue(3) + q_issue(4))
    o += role(sLO4)
    P.add(o)
    gemm4(P, "KV", 16, 2, 5, 8, kv_issue, kv_reads, kv_mfmas, pre=3, tail_hook=hook, extra=extra, est=est("KV"))
    o = []
    A = o.append
    o += st(3)
    kK, kV0, kV1 = L[18], L[19], L[20]
    A(S("s_lshl_b32", sT0, sHEAD, 19))
    A(S("s_lshl_b32", sT1, sPI, 16))
    A(S("s_add_u32", sT0, sT0, sT1))
    A(S("s_lshl_b32", sT1, kWM, 15))
    A(S("s_add_u32", sT0, sT0, sT1))
    vSTm = [v(10), v(11), v(12), v(13)]
    A(V("v_add_u32", vSTm[0], sT0, vL16))
    for m in range(1, 4):
        A(V("v_add_u32", vSTm[m], 8192 * m, vSTm[0]))
    A(S("s_lshl_b32", kK, kWN, 11))
    A(S("s_lshl_b32", kV0, kWN, 10))
    A(S("s_add_u32", kK, kK, WS_KF))
    A(S("s_add_u32", kV0, kV0, WS_VF))
    A(S("s_add_u32", kV1, kV0, 4096))
    TT = [v(96 + i) for i in range(16)]
    CV = [v(112 + i) for i in range(8)]
    PKs = [v(28, 4), v(112, 4)]

    def kv_st(n):
        tile, b = n // 2, n % 2
        m, j = tile // 2, tile % 2
        src = a(16 * tile + 8 * b, 8)
        pk = PKs[0]
        r = [V("v_accvgpr_read_b32", CV[q], src[q]) for q in range(8)]
        r += [V("v_cvt_pk_bf16_f32", pk[q], CV[2 * q], CV[2 * q + 1]) for q in range(4)]
        if j == 0:
            r.append(bstore4(pk, vSTm[m], sWS, kK, b * 1024, ST))
        else:
            r.append(bstore4(pk, vSTm[m], sWS, kV1 if b else kV0, 0, ST))
        return r

    o += only(sSUB, [waitcnt(vm=30)])
    for n in (12, 13):
        o += kv_st(n)
    o += st(4)

    qXa = [LdsAddr([v(16), v(17), v(18)]), LdsAddr([v(19), v(20), v(21)])]
    qWa = [LdsAddr([v(22), v(23), v(24)]), LdsAddr([v(25), v(26), v(27)])]
    A(S("s_lshr_b32", sT2, sWV, 1))
    A(S("s_lshl_b32", sT2, sT2, 12))
    x_read_consts([v(16), v(19)], sT2)
    tr_lane(t3, 3, 256)
    A(S("s_and_b32", sT0, sWV, 1))
    A(S("s_lshl_b32", sT0, sT0, 1))
    A(V("v_xor_b32", t1, sT0, t1))
    A(V("v_lshl_add_u32", v(22), t1, 6, t3))
    A(V("v_xor_b32", v(25), 64, v(22)))
    o += qXa[0].setup(v(16)) + qXa[1].setup(v(19)) + qWa[0].setup(v(22)) + qWa[1].setup(v(25))
    Sb = [v(32, 16), v(48, 16)]
    NEGM = v(64, 16)
    Pb = [v(80, 8), v(88, 8)]
    T = TT
    O = [a(16 * i, 16) for i in range(4)]
    Q = [a(64 + 4 * i, 4) for i in range(8)]
    FR = [a(96 + 4 * i, 4) for i in range(8)]
    qacc = [[v(32 + 16 * (2 * m + j), 16) for j in range(2)] for m in range(2)]
    qXf = [[v(96 + (2 * b + m) * 4, 4) for m in range(2)] for b in range(2)]
    qWf = [[FR[2 * b + j] for j in range(2)] for b in range(2)]

    def q_reads(c, ks, b):
        sl = qslot(c)
        r = [dsr128(qXf[b][0], *qXa[ks].at(sl))]
        for j in range(2):
            for t in range(2):
                r.append(dsrtr(qWf[b][j][2 * t:2 * t + 2], *qWa[j].at(sl + 16384 + (16 * ks + 4 * t) * 256)))
        r.append(dsr128(qXf[b][1], *qXa[ks].at(sl + 2048)))
        return r

    def q_mfmas(b, first):
        return [mfma(qacc[m][j], qWf[b][j], qXf[b][m], 0 if first else qacc[m][j]) for m in range(2) for j in range(2)]

    ASLOT = 32768
    sK, sV = sC, sD
    sKO, sVO, sWRA, sRDA, sCNT, sREM = L[0:6]
    sMk = [s(56 + 2 * i, 2) for i in range(4)]
    vKVg, vAc, vAn = v(124), v(125), v(126)
    zo = [V("v_accvgpr_write_b32", O[dt][r], 0) for dt in range(4) for r in range(16)]
    todo = [n for n in range(16) if n not in (12, 13)]
    NSE = 7
    extra = {e: kv_st(todo[2 * e]) + kv_st(todo[2 * e + 1]) for e in range(NSE)}
    extra[NSE + 2] = only(sLO4, [waitcnt(vm=0)]) + only(sSUB, [waitcnt(vm=12)])
    extra[NSE + 3] = onlyw(0, wg_flag(F_KV)) + zo[:16]
    extra[NSE + 4], extra[NSE + 5], extra[NSE + 6] = zo[16:32], zo[32:48], zo[48:]
    vP0, vP1 = v(120), v(121)
    o += [S("s_and_b32", sT0, sW, 31), V("v_and_b32", vP0, 7, vL), V("v_lshlrev_b32", vP0, 5, vP0),
          V("v_add_u32", vP0, sT0, vP0), V("v_lshlrev_b32", vP0, 8, vP0), V("v_add_u32", vP0, WS_FLAG + 4 * F_KV, vP0)]
    vP4, vP4r = v(122), v(119)
    A(V("v_mov_b32", vP4, 4))
    extra[13] = extra[13] + onlyw(1, [I("buffer_load_dword", [vP4r, vP4, sDBG, 0], "offen sc1", dst=[])])
    extra[15] = onlyw(0, [I("buffer_load_dword", [vP1, vP0, sWS, 0], "offen sc1", dst=[])])
    okl, okr = lab("Q_OK"), lab("Q_OKR")
    pre = onlyw(0, [waitcnt(vm=0), V("v_cmp_ne_u32", VCC, 1, vP1), nop(2), I("s_cbranch_vccz", [okl])] +
                poll(vP0, sWS, 1, vP1) + [label(okl), S("s_mov_b64", VCC, 0)])
    pre += onlyw(1, [waitcnt(vm=0), V("v_cmp_ne_u32", VCC, 256, vP4r), nop(2), I("s_cbranch_vccz", [okr])] +
                 poll(vP4, sDBG, 256, vP4r) + [label(okr), S("s_mov_b64", VCC, 0)])
    sGR, sCQ = L[6], L[7]
    sUN, sU0, sWH_, sW1, sW2, sW3, sKB = s(20), s(21), s(22), s(23), s(24), s(25), s(26)

    def wblock(dst, i):
        return [S("s_add_u32", dst, sCQ, i), S("s_and_b32", dst, dst, 3), S("s_lshl_b32", sT1, sGR, 2), S("s_add_u32", dst, dst, sT1),
                S("s_lshl_b32", sT1, sCQ, 5), S("s_add_u32", dst, dst, sT1), S("s_lshl_b32", dst, dst, 15),
                S("s_add_u32", dst, dst, WS_WA)]

    A(S("s_lshr_b32", sGR, sHEAD, 2))
    A(S("s_and_b32", sCQ, sHEAD, 3))
    o += wblock(sW1, 1) + wblock(sW2, 2) + wblock(sW3, 3) + wblock(sWH_, sWQ)
    A(S("s_sub_u32", sWH_, sWH_, WS_WA))
    A(S("s_lshr_b32", sWH_, sWH_, 3))
    A(S("s_add_u32", sWH_, sWH_, WS_WH))
    A(S("s_sub_u32", sWH_, sWH_, sPX))
    A(S("s_lshr_b32", sU0, sNB, 1))
    A(S("s_lshl_b32", sKB, sHEAD, 19))
    hook = [V("v_add_u32", vKVg, sPX, vL16)]
    H = hook.append
    H(S("s_lshl_b32", sT0, sSUB, 15))
    H(S("s_add_u32", sT0, sT0, sPX))
    H(S("s_add_u32", sT0, sT0, 2 * ASLOT))
    H(S("s_mov_b32", M0, sT0))
    H(S("s_lshl_b32", sT1, sSUB, 14))
    H(S("s_add_u32", sT1, sT1, sKB))
    H(S("s_add_u32", sT1, sT1, WS_KF + 8192))
    for i in range(4):
        H(dmal(vKVg, sWS, sT1, i * 1024))
    H(S("s_add_u32", M0, sT0, 16384))
    H(S("s_cmp_ge_u32", sWQ, 2))
    H(S("s_cselect_b32", sT1, WS_VF - 8192, WS_KF))
    H(S("s_cmp_eq_u32", sSUB, 1))
    H(S("s_cselect_b32", sT1, WS_VF + 8192, sT1))
    H(S("s_add_u32", sT1, sT1, sKB))
    for i in range(4):
        H(dmal(vKVg, sWS, sT1, i * 1024))
    hook += wblock(sT0, 0)
    H(S("s_lshl_b32", sT1, sSUB, 14))
    H(S("s_add_u32", sT0, sT0, sT1))
    H(S("s_add_u32", sT1, sT1, sPX))
    H(S("s_add_u32", M0, sT1, 131072))
    for i in range(4):
        H(dmal(vKVg, sWS, sT0, i * 1024))

    def kvdma():
        d = [S("s_mov_b32", M0, sWRA)]
        for i in range(4):
            d.append(dmal(vKVg, sWS, sKO, i * 1024))
        d.append(S("s_add_u32", M0, sWRA, 16384))
        for i in range(4):
            d.append(dmal(vKVg, sWS, sVO, i * 1024))
        d += [S("s_add_u32", sKO, sKO, 16384), S("s_add_u32", sVO, sVO, 16384), S("s_add_u32", sWRA, sWRA, ASLOT),
              S("s_and_b32", sWRA, sWRA, 4 * ASLOT - 1), S("s_add_u32", sUN, sUN, 1),
              S("s_cmp_eq_u32", sUN, sU0), S("s_cselect_b32", sKO, sWH_, sKO),
              S("s_sub_u32", sT0, sUN, 1), S("s_cmp_eq_u32", sT0, sU0), S("s_cselect_b32", sKO, sW1, sKO),
              S("s_sub_u32", sT0, sUN, 2), S("s_cmp_eq_u32", sT0, sU0), S("s_cselect_b32", sKO, sW2, sKO),
              S("s_add_u32", sT0, sKO, 16384), S("s_cmp_gt_u32", sUN, sU0), S("s_cselect_b32", sVO, sT0, sVO)]
        return d

    def guarded_dma():
        lb = lab("A_ND")
        return [S("s_cmp_lg_u32", sSUB, 0), I("s_cbranch_scc1", [lb])] + kvdma() + [label(lb)]

    H(S("s_mov_b32", sWRA, sPX))
    H(S("s_add_u32", sKO, sKB, WS_KF + 5 * 8192))
    H(S("s_add_u32", sVO, sKB, WS_VF + 3 * 8192))
    H(S("s_mov_b32", sUN, 2))
    o += role(sSUB)
    P.add(o)
    gemm4(P, "Q", 18, 2, 6, 6, q_issue, q_reads, q_mfmas, pre=5, extra=extra, tail_hook=hook, pre_hook=pre, est=est("Q"),
          first_vm=24 + 2)
    o = []
    A = o.append
    o += st(5)
    sCc = sT1
    A(S("s_mov_b32", sCc, float(CSCALE)))
    A(S("s_lshr_b32", sT0, sWV, 1))
    A(S("s_lshl_b32", sT0, sT0, 14))
    A(S("s_and_b32", sT2, sWV, 1))
    A(S("s_lshl_b32", sT2, sT2, 12))
    A(S("s_add_u32", sT0, sT0, sT2))
    A(V("v_add_u32", t0, sT0, vL16))
    A(I("s_barrier"))
    for m in range(2):
        for j in range(2):
            x = qacc[m][j]
            for r in range(16):
                A(V("v_mul_f32", x[r], sCc, x[r]))
            for r in range(8):
                A(V("v_cvt_pk_bf16_f32", x[r], x[2 * r], x[2 * r + 1]))
            for b in range(2):
                A(I("ds_write_b128", [t0, x[4 * b:4 * b + 4]], f"offset:{m * 8192 + (2 * j + b) * 1024}"))
    A(S("s_lshl_b32", sT0, sWV, 13))
    A(V("v_add_u32", v(122), sT0, vL16))
    o += st(6)

    vPC, vP1 = v(20), v(21)
    sXD = s(27)
    A(S("s_mov_b32", sXD, 1))
    vWB = [v(22), v(23), v(24), v(25)]
    vWHf = v(26)
    A(S("s_lshl_b32", sT0, sPI, 5))
    A(S("s_add_u32", sT0, sT0, sGR))
    A(S("s_lshl_b32", sT0, sT0, 8))
    A(S("s_lshl_b32", sT1, sWV, 2))
    A(S("s_add_u32", sT0, sT0, sT1))
    A(S("s_add_u32", sT0, sT0, WS_FLAG + 4 * F_CTX))
    A(V("v_and_b32", t0, 3, vL))
    A(V("v_lshlrev_b32", t0, 11, t0))
    A(V("v_add_u32", vPC, sT0, t0))
    A(V("v_add_u32", vWB[0], 131072, vL16))
    sSL = L[8]
    for i in range(1, 5):
        A(S("s_add_u32", sT0, sU0, (i % 4) + 2))
        A(S("s_and_b32", sT0, sT0, 3))
        A(S("s_lshl_b32", sT0, sT0, 15))
        if i < 4:
            A(V("v_add_u32", vWB[i], sT0, vL16))
        if i == 3:
            A(S("s_mov_b32", sSL, sT0))
    A(V("v_and_b32", t0, 15, vL))
    A(V("v_lshrrev_b32", t1, 5, vL))
    A(V("v_lshlrev_b32", t1, 8, t1))
    A(V("v_lshl_add_u32", t0, t0, 4, t1))
    A(V("v_add_u32", vWHf, sT0, t0))
    XA = [a(64 + 4 * i, 4) for i in range(8)] + [a(4 * i, 4) for i in range(16)] + [a(96 + 4 * i, 4) for i in range(8)]

    vLs, vThr, vLB, vD, vNINF = v(10), v(11), v(12), v(13), v(14)
    vB = [v(15), v(16)]
    vF, vDl, vFW = v(17), v(18), v(19)
    A(V("v_mov_b32", vLs, 0))
    A(V("v_mov_b32", vThr, float(2.0 ** THR_LOG2)))
    A(V("v_mov_b32", vNINF, 0xff800000))
    A(V("v_and_b32", t0, 31, vL))
    A(V("v_lshrrev_b32", t1, 5, vL))
    A(V("v_lshlrev_b32", t1, 2, t1))
    A(V("v_sub_u32", t0, t0, t1))
    A(V("v_add_u32", vD, sQ0, t0))
    A(S("s_lshl_b32", sT0, sWV, 2))
    A(V("v_mov_b32", t0, sT0))
    A(V("v_mov_b32", t1, BIG))
    A(V("v_cmp_eq_u32", VCC, 0, vL))
    A(V("v_cndmask_b32", vFW, t1, t0, VCC))

    def wave_flag(word):
        return [I("buffer_store_dword", [vOne, vFW, sWS, sFB], f"offen offset:{4 * word} sc1")]

    if "prio" in exp:
        o += only(sSUB, [S("s_setprio", 1)])
    A(waitcnt(vm=0, lgkm=0))
    A(I("s_barrier"))
    vA = vAc
    A(V("v_add_u32", vA, 2 * ASLOT, vL16))
    for db in range(8):
        A(dsr128(Q[db], v(122), db * 1024))
    for db in range(8):
        A(dsr128(FR[db], vA, 16384 + db * 1024))
    A(waitcnt(lgkm=8))
    A(I("s_barrier"))
    o += guarded_dma()
    for db in range(8):
        A(mfma(Sb[0], FR[db], Q[db], 0 if db == 0 else Sb[0]))
    A(S("s_mov_b32", sRDA, 2 * ASLOT))

    def frag_read(n, half):
        off = 16384 + half * 8192 + n * 1024 if n < 8 else half * 8192 + (n - 8) * 1024
        return dsr128(FR[n % 8], vA, off)

    def tail_pair(p, q0, q1, P_):
        r = []
        if p == 0:
            r.append(V("v_mov_b32", vB[0], q0))
            r.append(V("v_mov_b32", vB[1], q1))
        else:
            r.append(V("v_add_f32", vB[0], vB[0], q0))
            r.append(V("v_add_f32", vB[1], vB[1], q1))
        r.append(V("v_cvt_pk_bf16_f32", P_[p], q0, q1))
        return r

    def mask_ops(S_):
        r = []
        for g in range(4):
            for k in range(4):
                r.append(V("v_cmp_lt_i32", sMk[k], vD, 8 * g + k))
            for k in range(4):
                r.append(V("v_cndmask_b32", S_[4 * g + k], S_[4 * g + k], vNINF, sMk[k]))
        r.append(V("v_subrev_u32", vD, 32, vD))
        return r

    def softmax(cb, masked):
        S_, P_ = Sb[cb], Pb[cb]
        r = mask_ops(S_) if masked else []
        for p in range(8):
            r.append(V("v_exp_f32", T[(2 * p) % 8], S_[2 * p]))
            r.append(V("v_exp_f32", T[(2 * p + 1) % 8], S_[2 * p + 1]))
            if p > 0:
                r += tail_pair(p - 1, T[(2 * p - 2) % 8], T[(2 * p - 1) % 8], P_)
        r += tail_pair(7, T[6], T[7], P_)
        r.append(V("v_add_f32", vB[0], vB[0], vB[1]))
        return r

    def rowmax(S_, dst, tmp):
        r = [V("v_max3_f32", dst, S_[0], S_[1], S_[2])]
        for q in range(3, 15, 2):
            r.append(V("v_max3_f32", dst, dst, S_[q], S_[q + 1]))
        r += [V("v_max_f32", dst, dst, S_[15]), V("v_mov_b32", tmp, dst), V("v_permlane32_swap_b32", dst, tmp),
              V("v_max_f32", dst, dst, tmp), V("v_add_f32", dst, HEADROOM, dst)]
        return r

    slow_sites = []

    def step(half, has_pv, has_qk, masked, ctl=()):
        cb, nb = half, 1 - half
        M, frs = [], []
        if has_pv:
            for vb in range(2):
                for dt in range(4):
                    M.append(mfma(O[dt], FR[(4 * vb + dt) % 8], Pb[nb][4 * vb:4 * vb + 4], O[dt]))
                    frs.append(4 * vb + dt)
        if has_qk:
            for db in range(8):
                M.append(mfma(Sb[nb], FR[db], Q[db], NEGM if db == 0 else Sb[nb]))
                frs.append(8 + db)
        n = len(M)
        seq = [(x, half) for x in frs] + [(x, 1 - half) for x in range(16)]
        gaps = [[] for _ in M]
        g3 = [[] for _ in M]
        for j in range(n):
            if half == 1 and j + LA == n:
                gaps[j].append(V("v_add_u32", vA, sRDA, vL16))
            gaps[j].append(frag_read(*seq[j + LA]))
            if j % 2 == 1 and j + 1 < n:
                g3[j].append(waitcnt(lgkm=LA - 2))
        if has_pv:
            gaps[0].append(V("v_add_f32", vLs, vLs, vB[0]))
        if half == 0:
            gaps[0] += [waitcnt(vm=8), I("s_barrier")]
            gaps[1] += guarded_dma()
        else:
            gaps[0] += [S("s_add_u32", sRDA, sRDA, ASLOT), S("s_and_b32", sRDA, sRDA, 4 * ASLOT - 1)]
            gaps[1] += list(ctl)
        smx = softmax(cb, masked) + [V("v_cmp_gt_f32", VCC, vB[0], vThr)]
        g2 = interleave(M, smx, 2 if has_pv else 1, n - 1)
        sl, rt = lab("A_SLOW"), lab("A_RET")
        g3[n - 1] += [I("s_cbranch_vccnz", [sl]), label(rt)]
        slow_sites.append((sl, rt, cb, has_qk))
        return weave(M, gaps, g2, g3)

    for n in range(LA):
        A(dsr128(FR[n], vA, n * 1024))
    o += mask_ops(Sb[0]) + rowmax(Sb[0], vDl, t1)
    for r in range(16):
        A(V("v_sub_f32", NEGM[r], 0, vDl))
    for r in range(16):
        A(V("v_sub_f32", Sb[0][r], Sb[0][r], vDl))
    o += step(0, False, True, False) + step(1, True, True, True)
    A(S("s_cmp_eq_u32", sN, 4))
    A(I("s_cbranch_scc1", ["A_PF"]))
    A(S("s_sub_u32", sT0, sN, 6))
    A(S("s_lshl_b32", sT0, sT0, 5))
    A(V("v_subrev_u32", vD, sT0, vD))
    A(S("s_lshr_b32", sCNT, sN, 1))
    A(S("s_sub_u32", sCNT, sCNT, 3))
    P.add(o)
    lb = step(0, True, True, False) + step(1, True, True, False, ctl=[S("s_sub_u32", sCNT, sCNT, 1), S("s_cmp_lg_u32", sCNT, 0)])
    lb += [I("s_cbranch_scc1", ["A_LOOP"])]
    P.loop("A_LOOP", lb)
    P.add(step(0, True, True, True) + step(1, True, True, True))
    o = [label("A_PF")]
    A = o.append
    o += step(0, True, True, True) + step(1, True, False, True)
    o += st(7)
    A(V("v_add_f32", vLs, vLs, vB[0]))
    A(S("s_cmp_lg_u32", sSUB, 0))
    A(I("s_cbranch_scc1", ["A_FIN"]))
    A(waitcnt(vm=8))
    A(I("s_barrier"))
    o += kvdma()
    A(label("A_FIN"))
    M = [mfma(O[dt], FR[4 * vb + dt], Pb[1][4 * vb:4 * vb + 4], O[dt]) for vb in range(2) for dt in range(4)]
    gaps = [[] for _ in M]
    for j in range(8 - LA):
        gaps[j].append(frag_read(j + LA, 0))
    o += weave(M, gaps)
    A(V("v_mov_b32", t0, vLs))
    A(V("v_permlane32_swap_b32", t0, vLs))
    A(V("v_add_f32", t0, t0, vLs))
    A(V("v_rcp_f32", vF, t0))
    A(S("s_lshl_b32", sT0, sQ0, 13))
    A(S("s_lshl_b32", sT1, sHEAD, 13))
    A(S("s_add_u32", sT0, sT0, sT1))
    A(S("s_add_u32", sT0, sT0, WS_CTX))
    A(S("s_add_u32", sT1, sT0, 4096))
    for dt in range(4):
        Tm, Pk = Sb[dt % 2], Pb[dt % 2]
        for r in range(16):
            A(V("v_accvgpr_read_b32", Tm[r], O[dt][r]))
        for r in range(16):
            A(V("v_mul_f32", Tm[r], Tm[r], vF))
        for r in range(8):
            A(V("v_cvt_pk_bf16_f32", Pk[r], Tm[2 * r], Tm[2 * r + 1]))
        for b in range(2):
            db = 2 * dt + b
            A(bstore4(Pk[4 * b:4 * b + 4], vL16, sWS, sT0 if db < 4 else sT1, (db % 4) * 1024, ST))
        for r in range(8):
            A(V("v_accvgpr_write_b32", XA[2 * dt + r // 4][r % 4], Pk[r]))
    A(S("s_cmp_eq_u32", sSUB, 0))
    A(I("s_cbranch_scc1", ["A_SHORT"]))
    A(I("s_branch", ["A_DONE"]))
    A(label("A_SHORT"))
    A(S("s_sub_u32", sREM, sNB, sN))
    A(S("s_lshr_b32", sREM, sREM, 1))
    A(S("s_sub_u32", sREM, sREM, 1))
    def interval(work):
        return [waitcnt(vm=8), I("s_barrier")] + work + kvdma()

    def checked(vaddr, vres):
        ok = lab("SJ_OK")
        return [V("v_cmp_ne_u32", VCC, 1, vres), nop(2), I("s_cbranch_vccz", [ok])] + poll(vaddr, sWS, 1, vres) + [label(ok)]

    vJ, vJr = v(116), v(117)
    A(S("s_cmp_ge_u32", sW, 48))
    A(I("s_cbranch_scc1", ["A_NKVR"]))
    sJ, sJo = L[16], L[17]
    A(S("s_lshl_b32", sJ, sW, 2))
    A(S("s_add_u32", sJ, sJ, sWQ))
    A(S("s_mul_i32", sT0, sJ, 43691))
    A(S("s_lshr_b32", sT0, sT0, 20))
    A(S("s_lshr_b32", sT1, sT0, 2))
    A(S("s_and_b32", sT0, sT0, 3))
    A(S("s_lshl_b32", sT0, sT0, 6))
    A(S("s_add_u32", sT0, sT0, sT1))
    A(V("v_bfe_u32", t0, vL, 3, 2))
    A(V("v_lshlrev_b32", t0, 1, t0))
    A(V("v_and_b32", t1, 7, vL))
    A(V("v_lshl_add_u32", t0, t1, 3, t0))
    A(V("v_add_u32", t0, sT0, t0))
    A(V("v_lshlrev_b32", t0, 8, t0))
    A(V("v_add_u32", vJ, WS_FLAG + 4 * F_B1, t0))
    A(S("s_lshl_b32", sJo, sJ, 10))
    A(S("s_add_u32", sJo, sJo, WS_KVP))
    R = [v(32 + 4 * i, 4) for i in range(16)]
    KS_ = v(96, 4)

    def kvr_loads():
        r = []
        for i in range(16):
            r += [bload4(R[i], vL16, sWS, sJo, 0, LD), S("s_add_u32", sJo, sJo, 192 * 1024)]
        return r

    def kvr_sum(first):
        r = [forget(R)]
        for step_ in (1, 2, 4, 8):
            for w in range(0, 16, 2 * step_):
                r += [V("v_add_f32", R[w][q], R[w][q], R[w + step_][q]) for q in range(4)]
        r += [V("v_mov_b32", KS_[q], R[0][q]) if first else V("v_add_f32", KS_[q], KS_[q], R[0][q]) for q in range(4)]
        return r

    o += interval([I("buffer_load_dword", [vJr, vJ, sWS, 0], "offen sc1", dst=[])])
    o += interval(wave_flag(F_CTX) + checked(vJ, vJr) + kvr_loads())
    o += interval(kvr_sum(True) + kvr_loads())
    o += interval(kvr_sum(False) + [
        V("v_cvt_pk_bf16_f32", KS_[0], KS_[0], KS_[1]), V("v_cvt_pk_bf16_f32", KS_[1], KS_[2], KS_[3]),
        S("s_lshr_b32", sT0, sJ, 1), S("s_lshl_b32", sT0, sT0, 10), S("s_and_b32", sT1, sJ, 1), S("s_lshl_b32", sT1, sT1, 3),
        S("s_add_u32", sT0, sT0, sT1), S("s_add_u32", sT0, sT0, WS_KVF),
        I("buffer_store_dwordx2", [KS_[0:2], vL16, sWS, sT0], "offen " + ST)])
    o += interval(wave_flag(F_KVR))
    A(S("s_sub_u32", sREM, sREM, 5))
    A(I("s_branch", ["A_DL0"]))
    A(label("A_NKVR"))
    A(S("s_sub_u32", L[18], sW, 96))
    A(S("s_cmp_ge_u32", L[18], 128))
    A(I("s_cbranch_scc1", ["A_DL0"]))
    sSB, sH0 = L[16], L[17]
    A(S("s_lshr_b32", sSB, L[18], 1))
    A(S("s_and_b32", sH0, L[18], 1))
    A(S("s_lshl_b32", sH0, sH0, 4))
    A(S("s_lshl_b32", sT0, sWQ, 2))
    A(S("s_add_u32", sH0, sH0, sT0))
    A(S("s_mul_i32", sT0, sH0, 6))
    A(V("v_min_u32", t0, 23, vL))
    A(V("v_add_u32", t0, sT0, t0))
    A(V("v_and_b32", t1, 3, t0))
    A(V("v_lshrrev_b32", t0, 2, t0))
    A(V("v_lshlrev_b32", t0, 8, t0))
    A(V("v_lshl_add_u32", t0, t1, 2, t0))
    A(V("v_add_u32", vJ, WS_FLAG + 4 * F_KVR, t0))
    Pf = [[v(32 + 12 * k + 4 * F, 4) for F in range(3)] for k in range(4)]
    Kf = [[a(12 * k + 4 * F, 4) for F in range(3)] for k in range(4)]
    Cs = [v(80, 16), v(96, 16)]
    ld = [S("s_lshl_b32", sT0, sSB, 5), S("s_add_u32", sT0, sT0, sH0), S("s_mul_i32", sT0, sT0, 3072),
          S("s_add_u32", sT0, sT0, WS_PHIQ), S("s_mul_i32", sT1, sH0, 3072), S("s_add_u32", sT1, sT1, WS_KVF)]
    for k in range(4):
        for F in range(3):
            ld += [bload4(Pf[k][F], vL16, sWS, sT0, F * 1024, LD), bload4(Kf[k][F], vL16, sWS, sT1, F * 1024, LD)]
        ld += [S("s_add_u32", sT0, sT0, 3072), S("s_add_u32", sT1, sT1, 3072)]
    cp = [forget([x for k in range(4) for x in Pf[k] + Kf[k]]),
          S("s_mul_i32", sT2, sSB, 36), S("s_add_u32", sT0, sT2, sH0), S("s_lshl_b32", sT0, sT0, 10), S("s_add_u32", sT0, sT0, WS_OF),
          S("s_lshr_b32", sT1, sH0, 3), S("s_add_u32", sT1, sT1, sT2), S("s_lshl_b32", sT1, sT1, 10),
          S("s_add_u32", sT1, sT1, WS_OF + 32 * 1024), S("s_and_b32", sT2, sH0, 7), S("s_lshl_b32", sT2, sT2, 1),
          S("s_add_u32", sT1, sT1, sT2)]
    XO = [v(112), v(113), v(114), v(115)]
    for k in range(4):
        C = Cs[k % 2]
        cp += [mfma(C, Kf[k][F], Pf[k][F], 0 if F == 0 else C) for F in range(3)]
        cp += [V("v_add_f32", t0, 1e-6, C[9]), V("v_rcp_f32", t0, t0)]
        cp += [V("v_mul_f32", C[i], C[i], t0) for i in range(9)]
        cp += [V("v_cvt_pk_bf16_f32", Pf[k][0][p], C[2 * p], C[2 * p + 1]) for p in range(4)]
        cp += [V("v_mov_b32", XO[k], C[8]), bstore4(Pf[k][0], vL16, sWS, sT0, k * 1024, ST)]
    cp += [V("v_cvt_pk_bf16_f32", XO[0], XO[0], XO[1]), V("v_cvt_pk_bf16_f32", XO[1], XO[2], XO[3]),
           I("buffer_store_dwordx2", [v(112, 2), vL16, sWS, sT1], "offen " + ST)]
    o += interval([I("buffer_load_dword", [vJr, vJ, sWS, 0], "offen sc1", dst=[])])
    o += interval(wave_flag(F_CTX) + checked(vJ, vJr) + ld)
    o += interval(cp)
    o += interval(wave_flag(F_O))
    A(S("s_sub_u32", sREM, sREM, 4))
    xl = []
    for i in range(1, 4):
        xl += [S("s_add_u32", sT0, sCQ, i), S("s_and_b32", sT0, sT0, 3), S("s_lshl_b32", sT1, sGR, 2), S("s_add_u32", sT0, sT0, sT1),
               S("s_add_u32", sT0, sT0, sQ0), S("s_lshl_b32", sT0, sT0, 13), S("s_add_u32", sT0, sT0, WS_CTX),
               S("s_add_u32", sT1, sT0, 4096)]
        xl += [I("buffer_load_dwordx4", [XA[8 * i + db], vL16, sWS, sT0 if db < 4 else sT1],
                 f"offen offset:{(db % 4) * 1024}" + (" " + LD if LD else ""), dst=[]) for db in range(8)]
    A(label("A_DL0"))
    A(S("s_cmp_lt_u32", sREM, 4 if "xjob" in exp else 1000))
    A(I("s_cbranch_scc1", ["A_DL1"]))
    o += interval([])
    o += interval(wave_flag(F_CTX) + [])
    o += interval(poll(vPC, sWS, 1, vP1) + xl)
    A(S("s_sub_u32", sREM, sREM, 3))
    A(S("s_mov_b32", sXD, 0))
    A(label("A_DL1"))
    P.add(o)
    lb = [waitcnt(vm=8), I("s_barrier")] + kvdma()
    lb += [S("s_sub_u32", sREM, sREM, 1), S("s_cmp_lg_u32", sREM, 0), I("s_cbranch_scc1", ["A_DL"])]
    P.loop("A_DL", lb)
    o = [waitcnt(vm=0)] + wave_flag(F_CTX)
    A = o.append
    A(label("A_DONE"))
    o += st(8)
    A(I("s_barrier"))
    o += st(16)
    A(S("s_lshl_b32", sT1, sSUB, 14))
    A(S("s_add_u32", sT0, sW3, sT1))
    A(S("s_add_u32", sT1, sT1, sPX))
    A(S("s_add_u32", M0, sT1, sSL))
    for q in range(4):
        A(dmal(vKVg, sWS, sT0, q * 1024))
    pacc = [v(32 + 16 * j, 16) for j in range(5)]
    WR = [v(112, 4), v(116, 4), v(120, 4), v(10, 4), v(14, 4)]
    seq = [(k, j) for k in range(8) for j in range(5)] + [(k, j) for j in range(5) for k in range(8, 32)]
    WLA = 4

    def wread(n):
        k, j = seq[n]
        if j < 4:
            return dsr128(WR[n % 5], vWB[k // 8], (k % 8) * 4096 + j * 1024)
        return dsr128(WR[n % 5], vWHf, k * 512)

    sPT0 = L[9]
    A(S("s_lshl_b32", sPT0, sPI, 2))
    A(S("s_add_u32", sPT0, sPT0, sCQ))
    A(S("s_lshl_b32", sPT0, sPT0, 3))
    A(S("s_add_u32", sT0, sPT0, sWV))
    A(S("s_lshl_b32", sT0, sT0, 3))
    A(S("s_add_u32", sT0, sT0, sGR))
    A(S("s_mul_i32", sT0, sT0, 9216))
    sPTs = [L[0], L[1], L[2]]
    A(S("s_add_u32", sPTs[0], sT0, WS_PT))
    A(S("s_add_u32", sPTs[1], sPTs[0], 4096))
    A(S("s_add_u32", sPTs[2], sPTs[0], 8192))

    def pstore(j):
        r = []
        for b in range(2 if j < 4 else 1):
            r += [V("v_cvt_pk_bf16_f32", pacc[j][4 * b + q], pacc[j][8 * b + 2 * q], pacc[j][8 * b + 2 * q + 1]) for q in range(4)]
            pi_ = 2 * j + b
            r.append(bstore4(pacc[j][4 * b:4 * b + 4], vL16, sWS, sPTs[pi_ // 4], (pi_ % 4) * 1024, ST))
        return r

    for n in range(WLA):
        A(wread(n))
    pend = []
    NF, NP = (3, 14)
    for n, (k, j) in enumerate(seq):
        A(mfma(pacc[j], WR[n % 5], XA[k], 0 if k == 0 else pacc[j]))
        if n == 48:
            A(I("s_barrier"))
        if n + WLA < len(seq):
            A(wread(n + WLA))
        if n == NF:
            o += only(sSUB, [waitcnt(vm=4)] + wave_flag(F_CTX))
        if n == NP:
            o += poll(vPC, sWS, 1, vP1) + xl + st(9)
        if n in (39, 47, 55):
            A(waitcnt(vm={39: 16, 47: 8, 55: 0}[n]))
        if k == 12 and j > 0:
            pend = pstore(j - 1)
        if pend:
            o += pend[:2]
            pend = pend[2:]
    o += pstore(4)
    o += st(10)
    vW2, vLx, vW2x, vWr, vSt, vPO = [v(22 + i) for i in range(6)]
    vRdw = [v(30), v(31), v(123)]
    RS = 304
    A(V("v_and_b32", t0, 7, vL))
    A(V("v_lshrrev_b32", t1, 5, vL))
    A(V("v_lshlrev_b32", t1, 7, t1))
    A(V("v_lshl_add_u32", vW2, t0, 4, t1))
    A(V("v_mov_b32", t2, BIG))
    A(S("s_cmp_lt_u32", sWV, 4))
    A(S("s_cselect_b64", sM, -1, 0))
    A(V("v_cndmask_b32", vLx, t2, vL16, sM))
    A(V("v_cndmask_b32", vW2x, t2, vW2, sM))
    A(V("v_and_b32", t0, 31, vL))
    A(V("v_mul_u32_u24", t0, RS, t0))
    A(V("v_lshrrev_b32", t1, 5, vL))
    A(V("v_lshl_add_u32", t0, t1, 4, t0))
    A(S("s_mul_i32", sT0, sWV, 64 * RS))
    A(V("v_add_u32", vWr, sT0, t0))
    A(V("v_mul_u32_u24", t1, 43691, v(0)))
    A(V("v_lshrrev_b32", t1, 18, t1))
    A(V("v_mul_u32_u24", t2, 6, t1))
    A(V("v_sub_u32", t2, v(0), t2))
    A(V("v_mul_u32_u24", t0, RS, t1))
    A(V("v_mul_u32_u24", t3, 48, t2))
    A(V("v_add_u32", vRdw[0], t0, t3))
    A(V("v_add_u32", vRdw[1], 3 * 64 * RS, vRdw[0]))
    A(V("v_add_u32", vRdw[2], 6 * 64 * RS, vRdw[0]))
    A(S("s_lshl_b32", sT0, sRB1, 6))
    A(V("v_add_u32", t1, sT0, t1))
    A(V("v_mul_u32_u24", t1, 2304, t1))
    A(V("v_mul_u32_u24", t3, 24, t2))
    A(S("s_mul_i32", sT0, sG1, 144))
    A(V("v_add3_u32", vSt, t1, t3, sT0))
    A(V("v_bfe_u32", t0, vL, 2, 2))
    A(S("s_lshl_b32", sT0, sRB1, 2))
    A(V("v_add_u32", t0, sT0, t0))
    A(V("v_lshlrev_b32", t0, 8, t0))
    A(V("v_and_b32", t1, 3, vL))
    A(V("v_lshl_add_u32", t0, t1, 2, t0))
    A(V("v_add_u32", vPO, WS_FLAG + 96 * 256 + 4 * F_O, t0))
    sOUT = sA
    o += mk_srd(sOUT, "out")
    sXo0, sXo1, sWo_ = L[13], L[14], L[15]
    bfr = [a(64 + 4 * i, 4) for i in range(16)] + [v(64 + 4 * i, 4) for i in range(4)] + [v(96 + 4 * i, 4) for i in range(5)]
    bacc = [[a(0, 16), a(16, 16), a(32, 16)], [a(48, 16), v(32, 16), v(48, 16)]]

    def oloads(X, W, xstep, wstep, masked=False, x=True, w=True):
        va, vw = (vLx, vW2x) if masked else (vL16, vW2)
        r = []
        if x:
            r += [bload4(X[0], va, sWS, sXo0, 0, LD), bload4(X[1], va, sWS, sXo1, 0, LD),
                  S("s_add_u32", sXo0, sXo0, xstep), S("s_add_u32", sXo1, sXo1, xstep)]
        if w:
            r += [bload4(W[0], va, sWS, sWo_, 0, LD), bload4(W[1], va, sWS, sWo_, 1024, LD),
                  bload4(W[2], vw, sWS, sWo_, 2048, LD), S("s_add_u32", sWo_, sWo_, wstep)]
        return r

    def bout_loads():
        r = [S("s_mul_i32", sXo0, sRB1, 72), S("s_add_u32", sXo0, sXo0, sWV), S("s_lshl_b32", sXo0, sXo0, 10),
             S("s_add_u32", sXo0, sXo0, WS_OF), S("s_add_u32", sXo1, sXo0, 36 * 1024), S("s_mul_i32", sWo_, sG1, WOF_CG),
             S("s_mul_i32", sT0, sWV, 2304), S("s_add_u32", sWo_, sWo_, sT0), S("s_add_u32", sWo_, sWo_, WS_WOF + 256 * 2304)]
        for it in range(5):
            r += oloads(bfr[5 * it:5 * it + 2], bfr[5 * it + 2:5 * it + 5], 8192, 8 * 2304, masked=(it == 4))
        return r

    o += poll(vPO, sWS, 1, vP1)
    o += wave_flag(F_PT)
    o += bout_loads()
    for it in range(5):
        X, W = bfr[5 * it:5 * it + 2], bfr[5 * it + 2:5 * it + 5]
        o += [mfma(bacc[qb][j], W[j], X[qb], 0 if it == 0 else bacc[qb][j]) for j in range(3) for qb in range(2)]
    o += st(11)

    def red_write(acc_):
        r = [waitcnt(lgkm=0), I("s_barrier")]
        for qb in range(2):
            for j in range(3):
                for g in range(4 if j < 2 else 1):
                    r.append(I("ds_write_b128", [vWr, acc_[qb][j][4 * g:4 * g + 4]],
                               f"offset:{qb * 32 * RS + (32 * j + 8 * g) * 4}"))
        return r

    def red_src(ww, dst):
        return [dsr128(dst[q], vRdw[ww // 3], (ww % 3) * 64 * RS + 16 * q) for q in range(3)]

    def red_out(col0, S_, PKo):
        r = [V("v_cvt_pk_bf16_f32", PKo[x], S_[x // 2][(2 * x) % 4], S_[x // 2][(2 * x) % 4 + 1]) for x in range(6)]
        r += [S("s_mov_b32", sT0, col0), bstore4(PKo[0:4], vSt, sOUT, sT0),
              I("buffer_store_dwordx2", [PKo[4:6], vSt, sOUT, sT0], "offen offset:16")]
        return r

    o += red_write(bacc)
    sk = lab("O_SK")
    o += [waitcnt(lgkm=0), I("s_barrier"), S("s_cmp_ge_u32", sWV, 6), I("s_cbranch_scc1", [sk])]
    RR = [[v(32 + 12 * w + 4 * q, 4) for q in range(3)] for w in range(7)] + [[v(116, 4), v(10, 4), v(14, 4)]]
    for ww in range(8):
        o += red_src(ww, RR[ww])
    for step_ in (1, 2, 4):
        for w in range(0, 8, 2 * step_):
            o += [V("v_add_f32", RR[w][q][r], RR[w][q][r], RR[w + step_][q][r]) for q in range(3) for r in range(4)]
    o += red_out(1152, RR[0], v(44, 6))
    A(label(sk))
    o += st(12)
    A(S("s_and_b32", sT0, sW, 0xf8))
    A(S("s_lshl_b32", sT0, sT0, 8))
    A(S("s_lshl_b32", sT1, sGR, 2))
    A(S("s_add_u32", sT0, sT0, sT1))
    A(S("s_add_u32", sT0, sT0, WS_FLAG + 4 * F_PT))
    A(V("v_and_b32", t0, 7, vL))
    A(V("v_lshlrev_b32", t0, 8, t0))
    A(V("v_add_u32", t0, sT0, t0))
    o += poll(t0, sWS, 1, vP1)
    o += st(25)
    A(S("s_sub_u32", sT0, 15, sPI))
    A(S("s_cmp_lt_u32", sGR, 4))
    A(S("s_cselect_b32", sT0, sPI, sT0))
    A(S("s_lshl_b32", sT0, sT0, 7))
    A(S("s_and_b32", sT1, sGR, 3))
    A(S("s_lshl_b32", sT1, sT1, 5))
    A(S("s_add_u32", sT0, sT0, sT1))
    A(V("v_and_b32", t0, 31, vL))
    A(V("v_add_u32", t0, sT0, t0))
    A(V("v_mul_u32_u24", t0, 2304, t0))
    A(V("v_lshrrev_b32", t1, 5, vL))
    A(V("v_lshl_add_u32", t0, t1, 4, t0))
    A(S("s_mul_i32", sT0, sCQ, 288))
    A(V("v_add_u32", t0, sT0, t0))
    A(S("s_add_u32", sT0, sPT0, sGR))
    A(S("s_mul_i32", sT0, sT0, 8 * 9216))
    A(S("s_add_u32", L[10], sT0, WS_PT))

    def gather(spiece):
        G_ = [v(32 + 4 * i, 4) for i in range(8)]
        Sm = [v(64 + i) for i in range(8)]
        r = [S("s_lshl_b32", sT0, spiece, 10), S("s_add_u32", sT0, sT0, L[10])]
        for i in range(8):
            r += [bload4(G_[i], vL16, sWS, sT0, 0, LD), S("s_add_u32", sT0, sT0, 9216)]
        for i in range(8):
            for q in range(4):
                if i == 0:
                    r += [V("v_lshlrev_b32", Sm[2 * q], 16, G_[0][q]), V("v_and_b32", Sm[2 * q + 1], 0xffff0000, G_[0][q])]
                else:
                    r += [V("v_lshlrev_b32", t2, 16, G_[i][q]), V("v_and_b32", t3, 0xffff0000, G_[i][q]),
                          V("v_add_f32", Sm[2 * q], Sm[2 * q], t2), V("v_add_f32", Sm[2 * q + 1], Sm[2 * q + 1], t3)]
        D = v(72, 4)
        r += [V("v_cvt_pk_bf16_f32", D[q], Sm[2 * q], Sm[2 * q + 1]) for q in range(4)]
        r += [V("v_permlane32_swap_b32", D[0], D[2]), V("v_permlane32_swap_b32", D[1], D[3]),
              S("s_lshl_b32", sT0, spiece, 5), bstore4(D, t0, sOUT, sT0)]
        return r

    o += gather(sWV)
    A(S("s_mov_b32", L[11], 8))
    o += onlyw(7, gather(L[11]))
    if stamps:
        o += st(13) + [waitcnt(vm=0)] + st(14) + st(63, True)
        A(S("s_lshl_b32", sT0, sW, 3))
        A(S("s_add_u32", sT0, sT0, sWV))
        A(S("s_lshl_b32", sT0, sT0, 8))
        A(S("s_add_u32", sT0, sT0, 200 * MB))
        A(V("v_lshlrev_b32", t0, 2, vL))
        A(I("buffer_store_dword", [vSTP, t0, sWS, sT0], "offen"))
    P.add(o)
    P.out.append(label("F_END"))
    P.out.append(I("s_endpgm"))

    for sl, rt, cb, has_qk in slow_sites:
        P.st = State()
        nb = 1 - cb
        S_ = Sb[cb]
        b = [label(sl), nop(16), nop(4)]
        B = b.append
        b += rowmax(S_, t0, t1)
        B(V("v_max_f32", vDl, 0, t0))
        B(V("v_exp_f32", vF, Neg(vDl)))
        for r in range(16):
            B(V("v_sub_f32", NEGM[r], NEGM[r], vDl))
            B(V("v_sub_f32", S_[r], S_[r], vDl))
            if has_qk:
                B(V("v_sub_f32", Sb[nb][r], Sb[nb][r], vDl))
        B(V("v_mul_f32", vLs, vLs, vF))
        for dt in range(4):
            for r0 in range(0, 16, 8):
                for r in range(8):
                    B(V("v_accvgpr_read_b32", T[8 + r], O[dt][r0 + r]))
                for r in range(8):
                    B(V("v_mul_f32", T[8 + r], T[8 + r], vF))
                for r in range(8):
                    B(V("v_accvgpr_write_b32", O[dt][r0 + r], T[8 + r]))
        b += softmax(cb, False)
        B(nop(4))
        B(I("s_branch", [rt]))
        P.add(b)
    P.out.append(label("F_CODE_END"))
    P.out.append(I("s_endpgm"))
    return kernel_text(name, P, 256, 128, nsgpr=102)
```

```python
from common import *
from gemm import *
import math

LOG2E = math.log2(math.e)
CSCALE = (128 ** -0.5) * LOG2E
WS_PHIQ = WS_B
WS_KVP = WS_B + 8 * MB
WS_KVF = WS_B + 15 * MB
WS_OF = WS_B + 16 * MB
WS_WOF = WS_B + 20 * MB
WS_FLAG = WS_B + 28 * MB
WOF_CG = 292 * 2304
WS_WA = WS_PART
WS_WH = WS_PART + 4 * MB
WS_PT = WS_PART + 8 * MB
F_PT = 24
BIG = 0x7fffff00
F_B1, F_KV, F_KVR, F_O, F_CTX = 0, 1, 4, 8, 16

THR_LOG2 = 60.0
HEADROOM = 40.0
LA = 6
ORDER = ["A_x", "A_c_kv", "A_w_q", "A_w_uk", "A_w_uv", "A_w_o", "B_x", "B_wqkv", "B_w_phi", "B_wo", "out", "dbg", "ws"]


def gen_fused(name, stamps=False, exp="", LD="", ST="sc1"):
    P = Prog()
    PTR = {n: s(64 + 2 * i, 2) for i, n in enumerate(ORDER)}
    sW, sWV = s(2), s(3)
    sM = s(4, 2)
    sT0, sT1, sT2 = s(6), s(7), s(90)
    sWS, sA, sB, sC, sD, sDBG = s(8, 4), s(12, 4), s(16, 4), s(20, 4), s(24, 4), s(28, 4)
    sRB1, sG1, sHEAD, sPI, sE, sFB, sSPIN = s(32), s(33), s(34), s(35), s(36), s(37), s(38)
    L = [s(40 + i) for i in range(24)]
    vL, vL16, vFZ, vOne = v(1), v(2), v(3), v(4)
    vSTP = v(127)
    t0, t1, t2, t3, t4 = [v(5 + i) for i in range(5)]
    nlab = [0]

    def lab(p):
        nlab[0] += 1
        return f"{p}{nlab[0]}"

    def mk_srd(dst, nm):
        return [S("s_mov_b32", dst[0], PTR[nm][0]), S("s_mov_b32", dst[1], PTR[nm][1]),
                S("s_mov_b32", dst[2], NBYTES[nm]), S("s_mov_b32", dst[3], 0x20000)]

    def st(i, real=False):
        if not stamps:
            return []
        r = s(92, 2)
        return [I("s_memrealtime" if real else "s_memtime", [r], cls="smem", dst=r.regs(), src=[]), waitcnt(lgkm=0),
                I("v_writelane_b32", [vSTP, r[0], i])]

    ecnt = [16]

    def est(ph):
        if not (stamps and ("est" + ph) in exp):
            return None

        def fn():
            ecnt[0] += 1
            return st(ecnt[0] - 1)
        return fn

    def poll(vaddr, srd, expect, vt, soff=0):
        lp, dn = lab("PL"), lab("PD")
        return [S("s_mov_b32", sSPIN, 0), label(lp),
                I("buffer_load_dword", [vt, vaddr, srd, soff], "offen sc1"), waitcnt(vm=0),
                V("v_cmp_ne_u32", VCC, expect, vt), S("s_add_u32", sSPIN, sSPIN, 1),
                I("s_cbranch_vccz", [dn]), S("s_sleep", 1), S("s_cmp_lt_u32", sSPIN, 200000),
                I("s_cbranch_scc1", [lp]), label(dn)]

    def wg_flag(word):
        return [I("buffer_store_dword", [vOne, vFZ, sWS, sFB], f"offen offset:{4 * word} sc1")]

    def dmal(voff, srd, soff, off=0):
        return I("buffer_load_dwordx4", [voff, srd, soff],
                 ("offen" + (f" offset:{off}" if off else "") + (" " + LD if LD else "") + " lds"))

    o = []
    A = o.append
    A(S("s_cmp_ge_u32", sW, 256))
    A(I("s_cbranch_scc1", ["F_END"]))
    if "latepf" not in exp and "nocodepf" not in exp:
        NPF = 32 if "pf32" in exp else 16
        A(S("s_cmp_ge_u32", sW, NPF))
        A(I("s_cbranch_scc1", ["F_NOPF"]))
        A(I("s_getpc_b64", [s(98, 2)]))
        A(label("F_PC"))
        A(S("s_lshr_b32", sT0, sW, 3))
        A(S("s_and_b32", sT0, sT0, 1))
        A(S("s_lshl_b32", sT0, sT0, 16))
        A(V("v_lshlrev_b32", v(31), 7, v(0)))
        A(V("v_add_u32", v(31), sT0, v(31)))
        A(V("v_min_u32", v(31), "F_CODE_END-F_PC-4", v(31)))
        A(I("global_load_dword", [v(31), v(31), s(98, 2)], "", dst=[]))
        A(label("F_NOPF"))
    A(I("s_load_dwordx16", [s(64, 16), s(0, 2), 0]))
    A(I("s_load_dwordx8", [s(80, 8), s(0, 2), 64]))
    A(I("s_load_dwordx2", [s(88, 2), s(0, 2), 96]))
    if stamps:
        A(V("v_mov_b32", vSTP, 0))
    A(V("v_lshrrev_b32", t0, 6, v(0)))
    A(V("v_and_b32", vL, 63, v(0)))
    A(V("v_readfirstlane_b32", sWV, t0))
    A(V("v_lshlrev_b32", vL16, 4, vL))
    A(S("s_and_b32", sT0, sW, 7))
    A(S("s_lshr_b32", sT1, sW, 3))
    A(S("s_lshr_b32", sRB1, sT0, 1))
    A(S("s_lshl_b32", sRB1, sRB1, 3))
    A(S("s_and_b32", sT2, sT1, 7))
    A(S("s_add_u32", sRB1, sRB1, sT2))
    A(S("s_and_b32", sG1, sT0, 1))
    A(S("s_lshl_b32", sG1, sG1, 2))
    A(S("s_lshr_b32", sT2, sT1, 3))
    A(S("s_add_u32", sG1, sG1, sT2))
    A(S("s_lshl_b32", sHEAD, sT0, 2))
    A(S("s_and_b32", sT2, sT1, 3))
    A(S("s_add_u32", sHEAD, sHEAD, sT2))
    A(S("s_lshr_b32", sPI, sT1, 2))
    A(S("s_lshl_b32", sFB, sW, 8))
    A(S("s_add_u32", sFB, sFB, WS_FLAG))
    A(V("v_mov_b32", vOne, 1))
    A(V("v_mov_b32", t1, BIG))
    A(V("v_cmp_eq_u32", VCC, 0, v(0)))
    A(V("v_cndmask_b32", vFZ, t1, 0, VCC) if False else V("v_cndmask_b32", vFZ, t1, v(0), VCC))

    sSUB, sWQ, sN, sNB, sQ0, sLO4 = s(39), s(91), s(94), s(95), s(96), s(97)
    sM2 = s(98, 2)
    vTD = v(31)
    vFS = v(30)
    vS7 = v(29)
    A(V("v_mov_b32", t2, 0))
    A(V("v_cmp_eq_u32", VCC, 256, v(0)))
    A(V("v_cndmask_b32", vFS, t1, t2, VCC))
    A(V("v_lshlrev_b32", vS7, 7, v(0)))
    A(S("s_lshr_b32", sSUB, sWV, 2))
    A(S("s_and_b32", sWQ, sWV, 3))
    A(S("s_xor_b32", sLO4, sSUB, 1))

    def only(sreg, code, inv=False):
        sk = lab("ONLY")
        return [S("s_cmp_lg_u32" if inv else "s_cmp_eq_u32", sreg, 0), I("s_cbranch_scc1", [sk])] + code + [label(sk)]

    def onlyw(wv, code):
        sk = lab("ONLYW")
        return [S("s_cmp_lg_u32", sWV, wv), I("s_cbranch_scc1", [sk])] + code + [label(sk)]

    def role(sreg):
        return [S("s_cmp_lg_u32", sreg, 0), S("s_cselect_b64", VCC, -1, 0)]

    def w_off(dst, sidx, A=None):
        A = A or o.append
        A(S("s_lshl_b32", sT0, sidx, 6))
        A(V("v_add_u32", t0, sT0, vL))
        A(V("v_mul_u32_u24", t1, 9363, t0))
        A(V("v_lshrrev_b32", t1, 18, t1))
        A(V("v_mul_u32_u24", t2, 28, t1))
        A(V("v_sub_u32", t2, t0, t2))
        A(V("v_mul_u32_u24", t3, 57, t2))
        A(V("v_lshrrev_b32", t3, 9, t3))
        A(V("v_min_u32", t3, 2, t3))
        A(V("v_mul_u32_u24", t4, 1152 - 144, t3))
        A(V("v_lshl_add_u32", t4, t2, 4, t4))
        A(V("v_mul_u32_u24", t1, 3456, t1))
        A(V("v_add_u32", t4, t4, t1))
        A(S("s_mul_i32", sT0, sG1, 144))
        A(V("v_add_u32", dst, sT0, t4))

    def x_off(dst, srow0, stride, A=None):
        A = A or o.append
        A(V("v_lshrrev_b32", t0, 2, vL))
        A(V("v_add_u32", t0, srow0, t0))
        A(V("v_mul_u32_u24", t0, stride, t0))
        A(V("v_lshrrev_b32", t1, 4, vL))
        A(V("v_xor_b32", t1, t1, vL))
        A(V("v_and_b32", t1, 3, t1))
        A(V("v_lshl_add_u32", dst, t1, 4, t0))

    def x_read_consts(dst2, sbase):
        A(V("v_and_b32", t0, 31, vL))
        A(V("v_lshlrev_b32", t1, 6, t0))
        if sbase is not None:
            A(V("v_add_u32", t1, sbase, t1))
        A(V("v_lshrrev_b32", t2, 5, vL))
        A(V("v_bfe_u32", t3, vL, 2, 2))
        A(V("v_xor_b32", t2, t2, t3))
        A(V("v_lshl_add_u32", dst2[0], t2, 4, t1))
        A(V("v_xor_b32", dst2[1], 32, dst2[0]))

    def tr_lane(dst, hshift, rs):
        A(V("v_lshrrev_b32", t0, 5, vL))
        A(V("v_bfe_u32", t1, vL, 2, 2))
        A(V("v_lshl_add_u32", t0, t0, hshift, t1))
        A(V("v_mul_u32_u24", t0, rs, t0))
        A(V("v_bfe_u32", t2, vL, 4, 1))
        A(V("v_lshl_add_u32", t0, t2, 5, t0))
        A(V("v_and_b32", t2, 3, vL))
        A(V("v_lshl_add_u32", dst, t2, 3, t0))


    B1_SUB, B1_BASE, B1_IMG, PHI_BASE = 18432, 16384, 126976, 98304
    bslot = lambda e: B1_BASE + (e % 3) * 2 * B1_SUB
    IMG_RS, PHI_RS = 144, 112
    R_BASE = B1_IMG
    sHD, sSO0, sSO3, sSt3, sLD1, sLD3 = L[0:6]
    sXb, sWb, sPH, sB2 = sA, sB, sC, sD
    vG = [v(114 + i) for i in range(9)]
    vI, vH2 = v(25), v(26)
    A(S("s_and_b32", sT0, sWQ, 1))
    A(S("s_cmp_eq_u32", sT0, 1))
    A(S("s_cselect_b64", sM2, -1, 0))
    A(S("s_cselect_b32", sSt3, 64, 32 * 3456))
    A(S("s_mul_i32", L[6], sT0, 9))
    gsetup = []
    o_save, o = o, gsetup
    A = o.append
    for i in range(9):
        A(S("s_add_u32", sT2, L[6], i))
        w_off(vG[i], sT2, A)
        comp = 1024 * (i if i < 4 else 0 if i == 4 else i - 5)
        if i >= 5:
            A(S("s_lshl_b32", sT0, sRB1, 6))
            A(S("s_add_u32", sT2, sT0, 16 * (i - 5)))
            x_off(t4, sT2, 1152, A)
            A(V("v_cndmask_b32", vG[i], vG[i], t4, sM2))
        if comp:
            A(V("v_subrev_u32", vG[i], comp, vG[i]))
    o = o_save
    A = o.append
    o += gsetup
    A(S("s_lshr_b32", sT1, sWQ, 1))
    A(S("s_mul_i32", sSO0, sT1, 32 * 3456))
    A(S("s_mul_i32", sSO3, sT1, sSt3))
    A(S("s_lshl_b32", sSt3, sSt3, 1))
    A(S("s_mul_i32", L[7], sSt3, 9))
    A(S("s_and_b32", sT0, sG1, 3))
    A(S("s_lshl_b32", sT0, sT0, 1))
    A(S("s_and_b32", sT2, sRB1, 7))
    A(S("s_add_u32", sT0, sT0, sT2))
    A(S("s_cmp_ge_u32", sT0, 9))
    A(S("s_cselect_b32", sT2, 9, 0))
    A(S("s_sub_u32", sT0, sT0, sT2))
    A(S("s_mul_i32", sT0, sT0, 1 if "rotB" in exp else 0))
    A(S("s_mul_i32", sT2, sT0, 64 * 3456))
    A(S("s_add_u32", sSO0, sSO0, sT2))
    A(S("s_mul_i32", sT2, sT0, sSt3))
    A(S("s_add_u32", sSO3, sSO3, sT2))
    A(S("s_mul_i32", sT1, sT1, B1_SUB))
    A(S("s_lshl_b32", sT0, L[6], 10))
    A(S("s_add_u32", sLD1, sT1, sT0))
    A(S("s_add_u32", sLD1, sLD1, 4096))
    A(S("s_add_u32", sT0, sT1, 4096 + 5120))
    A(S("s_cmp_eq_u32", L[6], 0))
    A(S("s_cselect_b32", sLD3, sT0, sT1))
    A(waitcnt(lgkm=0))
    o += st(0) + st(62, True)
    o += mk_srd(sXb, "B_x") + mk_srd(sWb, "B_wqkv") + mk_srd(sC, "A_w_o") + mk_srd(sWS, "ws") + mk_srd(sDBG, "dbg")
    o += [S("s_cmp_eq_u32", L[6], 0), S("s_cselect_b32", sB2[0], sWb[0], sXb[0]), S("s_cselect_b32", sB2[1], sWb[1], sXb[1]),
          S("s_cselect_b32", sB2[2], sWb[2], sXb[2]), S("s_mov_b32", sB2[3], 0x20000)]

    def b1_issue(e):
        d = [S("s_add_u32", M0, sLD1, bslot(e))]
        d += [dma(vG[i], sWb, sSO0, i * 1024) for i in range(4)]
        d.append(S("s_add_u32", M0, sLD1, bslot(e) + 4096))
        d.append(dma(vG[4], sWb, sSO0))
        d.append(S("s_add_u32", M0, sLD3, bslot(e)))
        d += [dma(vG[5 + i], sB2, sSO3, i * 1024) for i in range(4)]
        d += [S("s_add_u32", sSO0, sSO0, 64 * 3456), S("s_add_u32", sSO3, sSO3, sSt3),
              S("s_cmp_ge_u32", sSO0, 9 * 64 * 3456), S("s_cselect_b32", sT0, 9 * 64 * 3456, 0), S("s_cselect_b32", sT1, L[7], 0),
              S("s_sub_u32", sSO0, sSO0, sT0), S("s_sub_u32", sSO3, sSO3, sT1)]
        return d

    def stage_rows(srd, sbytes, n):
        r = [S("s_mul_i32", sT0, sWQ, n * 1024), S("s_add_u32", sT1, sT0, sbytes)]
        for g0 in range(0, n, 4):
            r.append(S("s_add_u32", M0, sT0, R_BASE + g0 * 1024))
            r += [I("buffer_load_dwordx4", [vL16, srd, sT1], f"offen offset:{i * 1024}" + (" nt" if "rnt" in exp else "") + " lds") for i in range(min(4, n - g0))]
            r.append(S("s_add_u32", sT1, sT1, 4096))
        return r

    o += only(sLO4, b1_issue(0) + b1_issue(1))
    A(V("v_subrev_u32", t0, 256, v(0)))
    A(V("v_cmp_gt_u32", VCC, 64, t0))
    A(V("v_lshlrev_b32", t0, 2, t0))
    A(V("v_mov_b32", t1, BIG))
    A(V("v_cndmask_b32", t0, t1, t0, VCC))
    A(V("v_mov_b32", t2, 0))
    svc = [I("buffer_store_dword", [t2, t0, sWS, sFB], "offen sc1"), S("s_mul_i32", sT2, sW, 16 * 1152)] + stage_rows(sC, sT2, 5)
    if "latepf" in exp:
        svc += only(sWQ, [I("s_getpc_b64", [sM2]), label("F_PC"), S("s_lshr_b32", sT0, sW, 3), S("s_lshl_b32", sT0, sT0, 12),
                          V("v_and_b32", t3, 31, vL), V("v_lshlrev_b32", t3, 7, t3), V("v_add_u32", t3, sT0, t3),
                          V("v_min_u32", t3, "F_CODE_END-F_PC-4", t3),
                          I("global_load_dword", [vTD, t3, sM2], "", dst=[])], inv=True)
    o += only(sSUB, svc)
    sTD = s(56, 4)
    sR0, sALT, sR1 = L[8], L[9], L[20]
    A(S("s_add_u32", sT0, sW, 256))
    A(S("s_cmp_eq_u32", sWV, 7))
    A(S("s_cselect_b32", sT2, sW, sT0))
    A(S("s_cselect_b32", sALT, 1, 0))
    A(S("s_cmp_lt_u32", sW, 32))
    A(S("s_cselect_b32", sT0, 6, 99))
    A(S("s_cmp_eq_u32", sWV, sT0))
    A(S("s_cselect_b32", sALT, 1, sALT))
    A(S("s_and_b32", sT0, sT2, 7))
    A(S("s_mul_i32", sR0, sT0, WOF_CG))
    A(S("s_mul_i32", L[22], sT0, 144))
    A(S("s_lshr_b32", sT2, sT2, 3))
    A(S("s_add_u32", sT0, sT2, 256))
    A(S("s_mul_i32", sT0, sT0, 2304))
    A(S("s_add_u32", sR0, sR0, sT0))
    A(S("s_add_u32", sR0, sR0, WS_WOF))
    A(S("s_mul_i32", sT0, sT2, 18))
    A(S("s_mul_i32", sT1, sT2, 144))
    A(S("s_sub_u32", sT1, sT1, 32 * 144 - 8))
    A(S("s_cmp_lt_u32", sT2, 32))
    A(S("s_cselect_b32", sT0, sT0, sT1))
    A(S("s_cselect_b32", sT2, 1, 18))
    A(S("s_mul_i32", sT0, sT0, 1152))
    A(S("s_add_u32", L[22], L[22], sT0))
    BJ = R_BASE + 20480
    A(S("s_and_b32", sT1, sWV, 1))
    A(S("s_mul_i32", L[21], sT1, 3072))
    A(S("s_add_u32", L[21], L[21], BJ))
    alt = mk_srd(sTD, "B_wo") + [S("s_mov_b32", M0, L[21])]
    for i in range(3):
        alt += [V("v_add_u32", t0, 64 * i, vL), V("v_min_u32", t0, 143, t0), V("v_mul_u32_u24", t1, 57, t0), V("v_lshrrev_b32", t1, 9, t1),
                V("v_mul_u32_u24", t2, 9, t1), V("v_sub_u32", t0, t0, t2),
                V("v_lshrrev_b32", t2, 3, t1), V("v_and_b32", t3, 3, t1), V("v_lshl_add_u32", t2, t2, 2, t3),
                V("v_mul_u32_u24", t2, sT2, t2), V("v_bfe_u32", t3, t1, 2, 1), V("v_mad_u32_u24", t2, t3, 9, t2),
                V("v_mul_u32_u24", t2, 1152, t2), V("v_lshl_add_u32", t2, t0, 4, t2), V("v_add_u32", t2, 4096 - 1024 * i, t2),
                S("s_sub_u32", sT0, L[22], 4096) if False else S("s_mov_b32", sT0, L[22]),
                V("v_add_u32", t2, sT0, t2), V("v_subrev_u32", t2, 4096, t2),
                dma(t2, sTD, 0, i * 1024)]
    o += only(sALT, alt)

    def touch_jobs(lst):
        jobs = []
        for nm, per in lst:
            for f0 in range(0, per, 64):
                n = min(64, per - f0)
                jobs.append(mk_srd(sTD, nm) + [S("s_mul_i32", L[23], sW, per * 128), S("s_add_u32", L[23], L[23], f0 * 128),
                                               V("v_min_u32", t0, n - 1, vL), V("v_lshlrev_b32", t0, 7, t0),
                                               I("buffer_load_dword", [vTD, t0, sTD, L[23]], "offen", dst=[])])
        return jobs

    def xtouch_jobs(nm, rows):
        jobs = []
        per = rows // 32
        for r0 in range(0, per, 8):
            n = min(8, per - r0) * 8
            jobs.append(mk_srd(sTD, nm) + [S("s_lshr_b32", L[23], sW, 3), S("s_mul_i32", L[23], L[23], per * 8192),
                                           S("s_and_b32", L[22], sW, 7), S("s_lshl_b32", L[22], L[22], 10),
                                           S("s_add_u32", L[23], L[23], L[22]), S("s_add_u32", L[23], L[23], r0 * 8192),
                                           V("v_min_u32", t0, n - 1, vL), V("v_and_b32", t1, 7, t0), V("v_lshrrev_b32", t0, 3, t0),
                                           V("v_lshlrev_b32", t0, 13, t0), V("v_lshl_add_u32", t0, t1, 7, t0),
                                           I("buffer_load_dword", [vTD, t0, sTD, L[23]], "offen" + (" nt" if "xnt" in exp else ""), dst=[])])
        return jobs

    A(S("s_lshl_b32", sT0, sG1, 2))
    A(S("s_add_u32", sHD, sWQ, sT0))
    A(V("v_bfe_u32", t0, vL, 3, 2))
    A(V("v_and_b32", t1, 3, vL))
    A(V("v_lshl_add_u32", vI, t0, 2, t1))
    A(V("v_bfe_u32", vH2, vL, 2, 1))
    raw_ = [v(88 + i) for i in range(8)] + [v(112), v(113)]
    WP = [v(96, 4), v(100, 4)]
    o += mk_srd(sPH, "B_w_phi")
    A(V("v_mad_u32_u24", t0, vH2, 9, vI))
    A(V("v_lshrrev_b32", t1, 5, vL))
    A(V("v_mul_u32_u24", t2, 8 * 36, t1))
    A(V("v_lshl_add_u32", t2, t0, 1, t2))
    A(S("s_mul_i32", sT0, sHD, 648))
    A(V("v_add_u32", t2, sT0, t2))
    A(V("v_mov_b32", t4, BIG))
    A(V("v_cmp_lt_u32", sM, vI, 9))
    A(V("v_cndmask_b32", t2, t4, t2, sM))
    A(V("v_cmp_eq_u32", sM, t1, 0))
    A(V("v_cndmask_b32", t3, t4, t2, sM))
    for j in range(8):
        A(I("buffer_load_ushort", [raw_[j], t2, sPH, 0], f"offen offset:{36 * j}" if j else "offen"))
    for j in range(2):
        A(I("buffer_load_ushort", [raw_[8 + j], t3, sPH, 0], f"offen offset:{36 * (16 + j)}"))
    kjobs = touch_jobs([("A_c_kv", 64), ("A_w_uk", 128), ("A_w_uv", 128)]) if "notouch" not in exp else []
    if "xt" in exp:
        kjobs = touch_jobs([("A_c_kv", 64)]) + xtouch_jobs("A_w_uk", 512) + xtouch_jobs("A_w_uv", 512)
    if "nokt" in exp:
        kjobs = []
    if "kt0" in exp:
        for e, r in enumerate(kjobs):
            o += onlyw(4 + e % 4, r)
        kjobs = []
    bXa = [LdsAddr([v(16), v(17)]), LdsAddr([v(18), v(19)])]
    bWa = LdsAddr([v(20), v(21)])
    x_read_consts([v(16), v(18)], None)
    tr_lane(t3, 3, 448)
    A(S("s_lshl_b32", sT0, sWV, 6))
    A(V("v_add_u32", v(20), sT0, t3))
    o += bXa[0].setup(v(16)) + bXa[1].setup(v(18)) + bWa.setup(v(20))
    acc = [v(32, 16), v(48, 16)]
    Xf = [[v(64 + (b * 2 + m) * 4, 4) for m in range(2)] for b in range(2)]
    Wf = [v(80, 4), v(84, 4)]

    def b1_reads(e, k4, b):
        sl, ks = bslot(e) + (k4 >> 1) * B1_SUB, k4 & 1
        r = [dsr128(Xf[b][0], *bXa[ks].at(sl))]
        for t in range(2):
            r.append(dsrtr(Wf[b][2 * t:2 * t + 2], *bWa.at(sl + 4096 + (16 * ks + 4 * t) * 448)))
        r.append(dsr128(Xf[b][1], *bXa[ks].at(sl + 2048)))
        return r

    def b1_mfmas(b, first):
        return [mfma(acc[m], Xf[b][m], Wf[b], 0 if first else acc[m]) for m in range(2)]

    A(S("s_sub_u32", sT0, 15, sPI))
    A(S("s_cmp_eq_u32", sSUB, 0))
    A(S("s_cselect_b32", sT2, sPI, sT0))
    A(S("s_add_u32", sN, sT2, 1))
    A(S("s_lshl_b32", sN, sN, 2))
    A(S("s_add_u32", sNB, sT0, 1))
    A(S("s_lshl_b32", sNB, sNB, 2))
    A(S("s_lshl_b32", sQ0, sT2, 7))
    A(S("s_lshl_b32", sT1, sWQ, 5))
    A(S("s_add_u32", sQ0, sQ0, sT1))
    kslot = lambda c: (c % 5) * 32768
    kXg, kWg = [v(10), v(11), v(12), v(13)], [v(14), v(15)]
    sPX, sPW, sO1, sO2, kWM, kWN = L[10:16]
    sCK, sWk, sWv = sA, sB, sC
    A(S("s_lshl_b32", sT0, sPI, 8))
    A(S("s_lshl_b32", sT1, sWQ, 6))
    A(S("s_add_u32", sT2, sT0, sT1))
    x_off(kXg[0], sT2, 1024)
    for i in range(1, 4):
        A(V("v_add_u32", kXg[i], i * (16384 - 1024), kXg[0]))
    A(S("s_lshl_b32", sT0, sWQ, 3))
    A(V("v_lshrrev_b32", t0, 4, vL))
    A(V("v_add_u32", t1, sT0, t0))
    A(V("v_lshlrev_b32", t1, 13, t1))
    A(V("v_lshrrev_b32", t2, 2, vL))
    A(V("v_xor_b32", t2, t2, t0))
    A(V("v_and_b32", t2, 3, t2))
    A(V("v_and_b32", t3, 3, vL))
    A(V("v_lshl_add_u32", t2, t2, 2, t3))
    A(V("v_lshl_add_u32", t1, t2, 4, t1))
    A(S("s_lshl_b32", sT0, sHEAD, 8))
    A(V("v_add_u32", kWg[0], sT0, t1))
    A(V("v_add_u32", kWg[1], 4 * 8192 - 1024, kWg[0]))
    A(S("s_lshl_b32", sPX, sWQ, 12))
    A(S("s_lshl_b32", sPW, sWQ, 11))
    A(S("s_add_u32", sPW, sPW, 16384))
    A(S("s_and_b32", kWM, sWV, 1))
    A(S("s_lshr_b32", kWN, sWV, 1))

    sKC = L[21]
    A(S("s_and_b32", sT0, sHEAD, 3))
    A(S("s_lshl_b32", sT0, sT0, 1))
    A(S("s_add_u32", sKC, sT0, sPI))
    A(S("s_lshl_b32", sKC, sKC, 1))
    A(S("s_and_b32", sKC, sKC, 15))
    A(S("s_mul_i32", sKC, sKC, 1 if "rotK" in exp else 0))

    def kv_issue(c):
        d = [S("s_add_u32", M0, sPX, kslot(c)), S("s_lshl_b32", sO1, sKC, 6)]
        d += [dma(kXg[i], sCK, sO1, i * 1024) for i in range(4)]
        d += [S("s_add_u32", M0, sPW, kslot(c)), S("s_lshl_b32", sO2, sKC, 18)]
        d += [dma(kWg[i], sWk, sO2, i * 1024) for i in range(2)]
        d.append(S("s_add_u32", M0, sPW, kslot(c) + 8192))
        d += [dma(kWg[i], sWv, sO2, i * 1024) for i in range(2)]
        d += [S("s_add_u32", sKC, sKC, 1), S("s_and_b32", sKC, sKC, 15)]
        return d

    vRr, vRs, vRs2, vRrB, vRs3 = v(104), v(105), v(106), v(110), v(111)
    RF = [a(4 * j, 4) for j in range(3)]
    XE = [v(107 + j) for j in range(3)]
    tr_lane(t3, 2, 1152)
    A(S("s_lshr_b32", sT0, sWV, 1))
    A(S("s_mul_i32", sT0, sT0, 288))
    A(S("s_lshl_b32", sT1, kWM, 7))
    A(S("s_add_u32", sT0, sT0, sT1))
    A(S("s_add_u32", sT0, sT0, R_BASE))
    A(V("v_add_u32", vRr, sT0, t3))
    A(S("s_mul_i32", sT0, sWV, 144))
    A(S("s_add_u32", sT0, sT0, R_BASE))
    A(V("v_and_b32", t0, 31, vL))
    A(V("v_lshrrev_b32", t1, 5, vL))
    A(V("v_bfe_u32", t4, vL, 2, 2))
    A(V("v_lshl_add_u32", t4, t1, 2, t4))
    A(V("v_mul_u32_u24", t4, 1152 - 144, t4))
    A(V("v_sub_u32", t4, t3, t4))
    A(S("s_and_b32", sT1, sWV, 1))
    A(S("s_mul_i32", sT1, sT1, 3072))
    A(S("s_add_u32", sT1, sT1, BJ))
    A(V("v_add_u32", vRrB, sT1, t4))
    A(V("v_lshlrev_b32", t4, 7, t1))
    A(V("v_lshl_add_u32", t4, t0, 4, t4))
    A(V("v_mov_b32", t2, BIG))
    A(V("v_cmp_gt_u32", VCC, 8, t0))
    A(V("v_cndmask_b32", vRs2, t2, t4, VCC))
    A(V("v_lshlrev_b32", t4, 8, t1))
    A(V("v_lshl_add_u32", t4, t0, 4, t4))
    A(S("s_lshl_b32", sT1, kWM, 4))
    A(V("v_cmp_gt_u32", VCC, sT1, t0))
    A(V("v_cndmask_b32", vRs3, t2, t4, VCC))
    A(S("s_lshr_b32", sT0, sWV, 1))
    A(S("s_lshl_b32", sT0, sT0, 8))
    A(S("s_add_u32", sT0, sT0, sW))
    A(S("s_lshl_b32", sR1, sT0, 12))
    A(S("s_lshl_b32", sT1, kWM, 11))
    A(S("s_add_u32", sR1, sR1, sT1))
    A(S("s_add_u32", sR1, sR1, WS_WA))
    A(S("s_lshl_b32", sT0, sT0, 9))
    A(S("s_add_u32", sT0, sT0, WS_WH))
    A(V("v_add_u32", vRs3, sT0, vRs3))
    r1 = [dsrtr(RF[j][2 * t:2 * t + 2], vRr, 8 * t * 1152 + 64 * j) for j in range(3) for t in range(2)]
    r1 += [bstore4(RF[0], vL16, sWS, sR1, 0, ST), bstore4(RF[1], vL16, sWS, sR1, 1024, ST), bstore4(RF[2], vRs3, sWS, 0, 0, ST)]
    a2 = [dsrtr(RF[j][2 * t:2 * t + 2], vRrB, 8 * t * 144 + 64 * j) for j in range(3) for t in range(2)]
    a2 += [bstore4(RF[0], vL16, sWS, sR0, 0, ST), bstore4(RF[1], vL16, sWS, sR0, 1024, ST), bstore4(RF[2], vRs2, sWS, sR0, 2048, ST)]
    pk_ = [forget(raw_)] + [V("v_lshl_or_b32", WP[0][p], raw_[2 * p + 1], 16, raw_[2 * p]) for p in range(4)]
    pk_ += [V("v_lshl_or_b32", WP[1][0], raw_[9], 16, raw_[8])] + [V("v_mov_b32", WP[1][p], 0) for p in range(1, 4)]
    extra = {e: [] for e in range(9)}
    extra[1] = only(sSUB, [waitcnt(vm=0)]) + onlyw(4, [I("buffer_atomic_add", [vOne, vFS, sDBG, 0], "offen sc1")])
    extra[2] = r1
    extra[3] = pk_ + only(sALT, a2)
    for e, r in enumerate(kjobs):
        extra[4 if "kt4" in exp else 6] += onlyw(4 + e % 4, r)
    extra[7] = mk_srd(sCK, "A_c_kv") + mk_srd(sWk, "A_w_uk") + mk_srd(sWv, "A_w_uv") + only(sLO4, kv_issue(0))
    hook = only(sLO4, kv_issue(1))
    o += role(sLO4)
    P.add(o)
    gemm4(P, "B1", 9, 4, 3, 9, b1_issue, b1_reads, b1_mfmas, pre=2, rd_span=2, tail_hook=hook, extra=extra,
          first_vm=9 + 10, est=est("B1"), vm_bias={8: 8})
    o = []
    A = o.append
    o += st(1)
    vIW, vQr = v(22), v(23)
    A(V("v_and_b32", t0, 31, vL))
    A(S("s_lshl_b32", sT0, sWV, 5))
    A(V("v_add_u32", t0, sT0, t0))
    A(V("v_mul_u32_u24", t0, IMG_RS, t0))
    A(V("v_lshrrev_b32", t1, 5, vL))
    A(V("v_lshl_add_u32", t0, t1, 3, t0))
    A(V("v_add_u32", vIW, B1_IMG, t0))
    pk = v(64, 16)
    for m in range(2):
        for r in range(8):
            A(V("v_cvt_pk_bf16_f32", pk[8 * m + r], acc[m][2 * r], acc[m][2 * r + 1]))
    A(S("s_cmp_lg_u32", sWV, 7))
    A(I("s_cbranch_scc1", ["B1_NZ"]))
    for r in range(16):
        A(V("v_mov_b32", pk[r], 0))
    A(label("B1_NZ"))
    for m in range(2):
        for g in range(4):
            A(I("ds_write_b64", [vIW, pk[8 * m + 2 * g:8 * m + 2 * g + 2]], f"offset:{(32 * m + 8 * g) * 2}"))
    tr_lane(t3, 3, IMG_RS)
    A(S("s_mul_i32", sT0, sWV, 18 * IMG_RS))
    A(S("s_add_u32", sT0, sT0, B1_IMG))
    A(V("v_add_u32", vQr, sT0, t3))
    A(waitcnt(lgkm=0))
    A(I("s_barrier"))
    o += only(sLO4, kv_issue(2))
    Qf = [[v(64 + (sb * 2 + ks) * 4, 4) for ks in range(2)] for sb in range(2)]
    for sb in range(2):
        for ks in range(2):
            for t in range(2):
                A(dsrtr(Qf[sb][ks][2 * t:2 * t + 2], vQr, (16 * ks + 4 * t) * IMG_RS + 64 * sb))
    for sb in range(2):
        for ks in range(2):
            A(mfma(acc[sb], WP[ks], Qf[sb][ks], 0 if ks == 0 else acc[sb]))
    PHI = [v(64, 12), v(76, 12)]
    E = [v(96 + i) for i in range(18)]
    sL2 = sT2
    A(S("s_mov_b32", sL2, float(LOG2E)))
    for sb in range(2):
        x = acc[sb]
        mx, mn, u0, u1 = t0, t1, t2, t3
        A(V("v_max3_f32", mx, x[0], x[1], x[2]))
        A(V("v_min3_f32", mn, x[0], x[1], x[2]))
        for r in (3, 5, 7):
            A(V("v_max3_f32", mx, mx, x[r], x[r + 1]))
            A(V("v_min3_f32", mn, mn, x[r], x[r + 1]))
        A(V("v_mov_b32", u0, mx))
        A(V("v_mov_b32", u1, mn))
        A(V("v_permlane32_swap_b32", mx, u0))
        A(V("v_permlane32_swap_b32", mn, u1))
        A(V("v_max_f32", mx, mx, u0))
        A(V("v_min_f32", mn, mn, u1))
        A(V("v_mul_f32", mx, sL2, mx))
        A(V("v_mul_f32", mn, sL2, mn))
        for i in range(9):
            A(V("v_fma_f32", E[i], x[i], sL2, Neg(mx)))
            A(V("v_fma_f32", E[9 + i], Neg(x[i]), sL2, mn))
        for i in range(18):
            A(V("v_exp_f32", E[i], E[i]))
        sp, sn = mx, mn
        A(V("v_add_f32", sp, E[0], E[1]))
        A(V("v_add_f32", sn, E[9], E[10]))
        for i in range(2, 9):
            A(V("v_add_f32", sp, sp, E[i]))
            A(V("v_add_f32", sn, sn, E[9 + i]))
        A(V("v_mov_b32", u0, sp))
        A(V("v_mov_b32", u1, sn))
        A(V("v_permlane32_swap_b32", sp, u0))
        A(V("v_permlane32_swap_b32", sn, u1))
        A(V("v_add_f32", sp, sp, u0))
        A(V("v_add_f32", sn, sn, u1))
        A(V("v_rcp_f32", sp, sp))
        A(V("v_rcp_f32", sn, sn))
        for i in range(9):
            A(V("v_mul_f32", E[i], E[i], sp))
            A(V("v_mul_f32", E[9 + i], E[9 + i], sn))
        for p in range(9):
            A(V("v_cvt_pk_bf16_f32", PHI[sb][p], E[2 * p], E[2 * p + 1]))
        for p in range(9, 12):
            A(V("v_mov_b32", PHI[sb][p], 0))
    A(S("s_cmp_ge_u32", sWV, 4))
    A(I("s_cbranch_scc1", ["B1_K"]))
    A(S("s_lshl_b32", sT0, sRB1, 6))
    A(S("s_add_u32", sT0, sT0, sHD))
    A(S("s_mul_i32", sT0, sT0, 3072))
    A(S("s_add_u32", sT0, sT0, WS_PHIQ))
    A(S("s_add_u32", sT1, sT0, 32 * 3072))
    for sb in range(2):
        for F in range(3):
            A(bstore4(PHI[sb][4 * F:4 * F + 4], vL16, sWS, sT1 if sb else sT0, F * 1024, ST))
    A(I("s_branch", ["B1_DONE"]))
    A(label("B1_K"))
    vPW, vPR, vVR, vPR1 = v(24), v(27), v(28), v(114)
    A(S("s_sub_u32", sT0, sWV, 4))
    A(S("s_mul_i32", sT0, sT0, 64 * PHI_RS))
    A(S("s_add_u32", sT0, sT0, PHI_BASE))
    A(V("v_and_b32", t0, 31, vL))
    A(V("v_mul_u32_u24", t0, PHI_RS, t0))
    A(V("v_lshrrev_b32", t1, 5, vL))
    A(V("v_mul_u32_u24", t2, 48, t1))
    A(V("v_add3_u32", vPW, t0, t2, sT0))
    for sb in range(2):
        for F in range(3):
            A(I("ds_write_b128", [vPW, PHI[sb][4 * F:4 * F + 4]], f"offset:{sb * 32 * PHI_RS + 16 * F}"))
    A(V("v_bfe_u32", t2, vL, 2, 2))
    A(V("v_lshl_add_u32", t0, t1, 3, t2))
    A(V("v_mul_u32_u24", t0, PHI_RS, t0))
    A(V("v_and_b32", t2, 1, vL))
    A(V("v_mul_u32_u24", t2, 48, t2))
    A(V("v_add_u32", t0, t0, t2))
    A(V("v_bfe_u32", t2, vL, 1, 1))
    A(V("v_lshl_add_u32", t0, t2, 3, t0))
    A(V("v_add_u32", t0, sT0, t0))
    A(V("v_bfe_u32", t2, vL, 4, 1))
    A(V("v_lshl_add_u32", vPR, t2, 4, t0))
    A(V("v_add_u32", vPR1, 32, t0))
    A(V("v_min_u32", t0, 8, vI))
    A(V("v_mad_u32_u24", t0, vH2, 9, t0))
    A(S("s_mul_i32", sT0, sWV, 18))
    A(S("s_add_u32", sT0, sT0, 72))
    A(V("v_add_u32", t0, sT0, t0))
    A(V("v_mul_u32_u24", t0, IMG_RS, t0))
    A(V("v_lshl_add_u32", t0, t1, 4, t0))
    A(V("v_add_u32", vVR, B1_IMG, t0))
    Vf = [v(96 + 4 * ks, 4) for ks in range(4)]
    Af = [[a(64 + (T * 4 + ks) * 4, 4) for ks in range(4)] for T in range(2)]
    for ks in range(4):
        A(dsr128(Vf[ks], vVR, 32 * ks))
    for T in range(2):
        for ks in range(4):
            for t in range(2):
                A(dsrtr(Af[T][ks][2 * t:2 * t + 2], vPR1 if T else vPR, (16 * ks + 4 * t) * PHI_RS))
    A(V("v_cmp_eq_u32", sM, vI, 9))
    A(V("v_mov_b32", t4, 0x3f803f80))
    for ks in range(4):
        for r in range(4):
            A(V("v_cndmask_b32", Vf[ks][r], Vf[ks][r], t4, sM))
    for T in range(2):
        for ks in range(4):
            A(mfma(acc[T], Af[T][ks], Vf[ks], 0 if ks == 0 else acc[T]))
    A(S("s_lshl_b32", sT0, sRB1, 5))
    A(S("s_add_u32", sT0, sT0, sHD))
    A(S("s_mul_i32", sT0, sT0, 6144))
    A(S("s_add_u32", sT0, sT0, WS_KVP))
    A(S("s_add_u32", sT1, sT0, 4096))
    for g in range(6):
        A(bstore4(acc[g // 4][4 * (g % 4):4 * (g % 4) + 4], vL16, sWS, sT1 if g >= 4 else sT0, (g % 4) * 1024, ST))
    A(label("B1_DONE"))
    o += st(2)

    kXa = [LdsAddr([v(16), v(17), v(18)]), LdsAddr([v(19), v(20), v(21)])]
    kWa = LdsAddr([v(22), v(23), v(24)])
    A(S("s_lshl_b32", sT2, kWM, 13))
    x_read_consts([v(16), v(19)], sT2)
    tr_lane(t3, 3, 256)
    A(V("v_xor_b32", t1, kWN, t1))
    A(V("v_lshl_add_u32", v(22), t1, 6, t3))
    o += kXa[0].setup(v(16)) + kXa[1].setup(v(19)) + kWa.setup(v(22))
    kacc = [[a((m * 2 + j) * 16, 16) for j in range(2)] for m in range(4)]
    kXf = [[v(32 + (b * 4 + m) * 4, 4) for m in range(4)] for b in range(2)]
    kWf = [[v(64 + (b * 2 + j) * 4, 4) for j in range(2)] for b in range(2)]

    def kv_reads(c, ks, b):
        sl = kslot(c)
        r = [dsr128(kXf[b][0], *kXa[ks].at(sl))]
        for j in range(2):
            for t in range(2):
                r.append(dsrtr(kWf[b][j][2 * t:2 * t + 2], *kWa.at(sl + 16384 + j * 8192 + (16 * ks + 4 * t) * 256)))
        for m in range(1, 4):
            r.append(dsr128(kXf[b][m], *kXa[ks].at(sl + m * 2048)))
        return r

    def kv_mfmas(b, first):
        r = []
        for m in range(4):
            r.append(mfma(kacc[m][0], kWf[b][0], kXf[b][m], 0 if first else kacc[m][0]))
            r.append(mfma(kacc[m][1], kXf[b][m], kWf[b][1], 0 if first else kacc[m][1]))
        return r

    qslot = lambda c: 16384 + ((c + 1) % 6) * 24576
    qXg = [v(123), v(124), v(125), v(126)]
    qsetup = []
    o_save, o = o, qsetup
    A = o.append
    A(S("s_lshl_b32", L[0], sPI, 7))
    A(S("s_mul_i32", L[1], sPI, -128))
    A(V("v_mov_b32", t2, L[1]))
    A(V("v_add_u32", t2, 15 * 128, t2))
    A(V("v_mov_b32", t3, L[0]))
    A(V("v_cmp_gt_u32", sM, 2, sWQ))
    A(V("v_cndmask_b32", t3, t2, t3, sM))
    A(V("v_and_b32", t2, 1, sWQ) if False else V("v_mov_b32", t2, sWQ))
    A(V("v_and_b32", t2, 1, t2))
    A(V("v_lshl_add_u32", t3, t2, 6, t3))
    A(V("v_lshrrev_b32", t0, 2, vL))
    A(V("v_add_u32", t0, t3, t0))
    A(V("v_mul_u32_u24", t0, 1152, t0))
    A(V("v_lshrrev_b32", t1, 4, vL))
    A(V("v_xor_b32", t1, t1, vL))
    A(V("v_and_b32", t1, 3, t1))
    A(V("v_lshl_add_u32", qXg[0], t1, 4, t0))
    for i in range(1, 4):
        A(V("v_add_u32", qXg[i], i * (16 * 1152 - 1024), qXg[0]))
    o = o_save
    A = o.append
    sXq, sWqq = sA, sB

    def q_issue(c):
        d = [S("s_add_u32", M0, sPX, qslot(c)), S("s_mov_b32", sO1, 64 * c)]
        d += [dma(qXg[i], sXq, sO1, i * 1024) for i in range(4)]
        d += [S("s_add_u32", M0, sPW, qslot(c)), S("s_mov_b32", sO2, c * 32 * 8192)]
        d += [dma(kWg[i], sWqq, sO2, i * 1024) for i in range(2)]
        return d

    vPZ, vPZr = v(80), v(81)
    A(V("v_mov_b32", vPZ, 0))
    extra = {e: [] for e in range(16)}
    extra[1] = qsetup
    extra[3] = only(sSUB, [waitcnt(vm=0)])
    extra[4] = onlyw(4, [I("buffer_store_dword", [vOne, vFS, sWS, sFB], f"offen offset:{4 * F_B1} sc1"),
                         I("buffer_atomic_add", [vOne, vFS, sDBG, 0], "offen offset:4 sc1")])
    if "notouch" not in exp:
        qj = touch_jobs([("A_x", 72), ("A_w_q", 144)])
        if "xt" in exp:
            qj = touch_jobs([("A_x", 72)]) + xtouch_jobs("A_w_q", 576)
        for e, r in enumerate(qj):
            extra[5 + 3 * (e // 3)] += onlyw(5 + e % 3, r)
    okz = lab("Z_OK")
    extra[7] += onlyw(4, [I("buffer_load_dword", [vPZr, vPZ, sDBG, 0], "offen sc1", dst=[])])
    extra[11] += onlyw(4, [waitcnt(vm=0), V("v_cmp_ne_u32", VCC, 256, vPZr), nop(2), I("s_cbranch_vccz", [okz])] +
                       poll(vPZ, sDBG, 256, vPZr) + [label(okz), S("s_mov_b64", VCC, 0)])
    extra[12] += mk_srd(sXq, "A_x") + mk_srd(sWqq, "A_w_q") + only(sSUB, q_issue(0))
    extra[13] += only(sSUB, q_issue(1))
    extra[14] += only(sSUB, q_issue(2))
    hook = only(sSUB, q_issue(3) + q_issue(4))
    o += role(sLO4)
    P.add(o)
    gemm4(P, "KV", 16, 2, 5, 8, kv_issue, kv_reads, kv_mfmas, pre=3, tail_hook=hook, extra=extra, est=est("KV"))
    o = []
    A = o.append
    o += st(3)
    kK, kV0, kV1 = L[18], L[19], L[20]
    A(S("s_lshl_b32", sT0, sHEAD, 19))
    A(S("s_lshl_b32", sT1, sPI, 16))
    A(S("s_add_u32", sT0, sT0, sT1))
    A(S("s_lshl_b32", sT1, kWM, 15))
    A(S("s_add_u32", sT0, sT0, sT1))
    vSTm = [v(10), v(11), v(12), v(13)]
    A(V("v_add_u32", vSTm[0], sT0, vL16))
    for m in range(1, 4):
        A(V("v_add_u32", vSTm[m], 8192 * m, vSTm[0]))
    A(S("s_lshl_b32", kK, kWN, 11))
    A(S("s_lshl_b32", kV0, kWN, 10))
    A(S("s_add_u32", kK, kK, WS_KF))
    A(S("s_add_u32", kV0, kV0, WS_VF))
    A(S("s_add_u32", kV1, kV0, 4096))
    TT = [v(96 + i) for i in range(16)]
    CV = [v(112 + i) for i in range(8)]
    PKs = [v(28, 4), v(112, 4)]

    def kv_st(n):
        tile, b = n // 2, n % 2
        m, j = tile // 2, tile % 2
        src = a(16 * tile + 8 * b, 8)
        pk = PKs[0]
        r = [V("v_accvgpr_read_b32", CV[q], src[q]) for q in range(8)]
        r += [V("v_cvt_pk_bf16_f32", pk[q], CV[2 * q], CV[2 * q + 1]) for q in range(4)]
        if j == 0:
            r.append(bstore4(pk, vSTm[m], sWS, kK, b * 1024, ST))
        else:
            r.append(bstore4(pk, vSTm[m], sWS, kV1 if b else kV0, 0, ST))
        return r

    o += only(sSUB, [waitcnt(vm=30)])
    for n in (12, 13):
        o += kv_st(n)
    o += st(4)

    qXa = [LdsAddr([v(16), v(17), v(18)]), LdsAddr([v(19), v(20), v(21)])]
    qWa = [LdsAddr([v(22), v(23), v(24)]), LdsAddr([v(25), v(26), v(27)])]
    A(S("s_lshr_b32", sT2, sWV, 1))
    A(S("s_lshl_b32", sT2, sT2, 12))
    x_read_consts([v(16), v(19)], sT2)
    tr_lane(t3, 3, 256)
    A(S("s_and_b32", sT0, sWV, 1))
    A(S("s_lshl_b32", sT0, sT0, 1))
    A(V("v_xor_b32", t1, sT0, t1))
    A(V("v_lshl_add_u32", v(22), t1, 6, t3))
    A(V("v_xor_b32", v(25), 64, v(22)))
    o += qXa[0].setup(v(16)) + qXa[1].setup(v(19)) + qWa[0].setup(v(22)) + qWa[1].setup(v(25))
    Sb = [v(32, 16), v(48, 16)]
    NEGM = v(64, 16)
    Pb = [v(80, 8), v(88, 8)]
    T = TT
    O = [a(16 * i, 16) for i in range(4)]
    Q = [a(64 + 4 * i, 4) for i in range(8)]
    FR = [a(96 + 4 * i, 4) for i in range(8)]
    qacc = [[v(32 + 16 * (2 * m + j), 16) for j in range(2)] for m in range(2)]
    qXf = [[v(96 + (2 * b + m) * 4, 4) for m in range(2)] for b in range(2)]
    qWf = [[FR[2 * b + j] for j in range(2)] for b in range(2)]

    def q_reads(c, ks, b):
        sl = qslot(c)
        r = [dsr128(qXf[b][0], *qXa[ks].at(sl))]
        for j in range(2):
            for t in range(2):
                r.append(dsrtr(qWf[b][j][2 * t:2 * t + 2], *qWa[j].at(sl + 16384 + (16 * ks + 4 * t) * 256)))
        r.append(dsr128(qXf[b][1], *qXa[ks].at(sl + 2048)))
        return r

    def q_mfmas(b, first):
        return [mfma(qacc[m][j], qWf[b][j], qXf[b][m], 0 if first else qacc[m][j]) for m in range(2) for j in range(2)]

    ASLOT = 32768
    sK, sV = sC, sD
    sKO, sVO, sWRA, sRDA, sCNT, sREM = L[0:6]
    sMk = [s(56 + 2 * i, 2) for i in range(4)]
    vKVg, vAc, vAn = v(124), v(125), v(126)
    zo = [V("v_accvgpr_write_b32", O[dt][r], 0) for dt in range(4) for r in range(16)]
    todo = [n for n in range(16) if n not in (12, 13)]
    NSE = 7
    extra = {e: kv_st(todo[2 * e]) + kv_st(todo[2 * e + 1]) for e in range(NSE)}
    extra[NSE + 2] = only(sLO4, [waitcnt(vm=0)]) + only(sSUB, [waitcnt(vm=12)])
    extra[NSE + 3] = onlyw(0, wg_flag(F_KV)) + zo[:16]
    extra[NSE + 4], extra[NSE + 5], extra[NSE + 6] = zo[16:32], zo[32:48], zo[48:]
    vP0, vP1 = v(120), v(121)
    o += [S("s_and_b32", sT0, sW, 31), V("v_and_b32", vP0, 7, vL), V("v_lshlrev_b32", vP0, 5, vP0),
          V("v_add_u32", vP0, sT0, vP0), V("v_lshlrev_b32", vP0, 8, vP0), V("v_add_u32", vP0, WS_FLAG + 4 * F_KV, vP0)]
    vP4, vP4r = v(122), v(119)
    A(V("v_mov_b32", vP4, 4))
    extra[13] = extra[13] + onlyw(1, [I("buffer_load_dword", [vP4r, vP4, sDBG, 0], "offen sc1", dst=[])])
    extra[15] = onlyw(0, [I("buffer_load_dword", [vP1, vP0, sWS, 0], "offen sc1", dst=[])])
    okl, okr = lab("Q_OK"), lab("Q_OKR")
    pre = onlyw(0, [waitcnt(vm=0), V("v_cmp_ne_u32", VCC, 1, vP1), nop(2), I("s_cbranch_vccz", [okl])] +
                poll(vP0, sWS, 1, vP1) + [label(okl), S("s_mov_b64", VCC, 0)])
    pre += onlyw(1, [waitcnt(vm=0), V("v_cmp_ne_u32", VCC, 256, vP4r), nop(2), I("s_cbranch_vccz", [okr])] +
                 poll(vP4, sDBG, 256, vP4r) + [label(okr), S("s_mov_b64", VCC, 0)])
    sGR, sCQ = L[6], L[7]
    sUN, sU0, sWH_, sW1, sW2, sW3, sKB = s(20), s(21), s(22), s(23), s(24), s(25), s(26)

    def wblock(dst, i):
        return [S("s_add_u32", dst, sCQ, i), S("s_and_b32", dst, dst, 3), S("s_lshl_b32", sT1, sGR, 2), S("s_add_u32", dst, dst, sT1),
                S("s_lshl_b32", sT1, sCQ, 5), S("s_add_u32", dst, dst, sT1), S("s_lshl_b32", dst, dst, 15),
                S("s_add_u32", dst, dst, WS_WA)]

    A(S("s_lshr_b32", sGR, sHEAD, 2))
    A(S("s_and_b32", sCQ, sHEAD, 3))
    o += wblock(sW1, 1) + wblock(sW2, 2) + wblock(sW3, 3) + wblock(sWH_, sWQ)
    A(S("s_sub_u32", sWH_, sWH_, WS_WA))
    A(S("s_lshr_b32", sWH_, sWH_, 3))
    A(S("s_add_u32", sWH_, sWH_, WS_WH))
    A(S("s_sub_u32", sWH_, sWH_, sPX))
    A(S("s_lshr_b32", sU0, sNB, 1))
    A(S("s_lshl_b32", sKB, sHEAD, 19))
    hook = [V("v_add_u32", vKVg, sPX, vL16)]
    H = hook.append
    H(S("s_lshl_b32", sT0, sSUB, 15))
    H(S("s_add_u32", sT0, sT0, sPX))
    H(S("s_add_u32", sT0, sT0, 2 * ASLOT))
    H(S("s_mov_b32", M0, sT0))
    H(S("s_lshl_b32", sT1, sSUB, 14))
    H(S("s_add_u32", sT1, sT1, sKB))
    H(S("s_add_u32", sT1, sT1, WS_KF + 8192))
    for i in range(4):
        H(dmal(vKVg, sWS, sT1, i * 1024))
    H(S("s_add_u32", M0, sT0, 16384))
    H(S("s_cmp_ge_u32", sWQ, 2))
    H(S("s_cselect_b32", sT1, WS_VF - 8192, WS_KF))
    H(S("s_cmp_eq_u32", sSUB, 1))
    H(S("s_cselect_b32", sT1, WS_VF + 8192, sT1))
    H(S("s_add_u32", sT1, sT1, sKB))
    for i in range(4):
        H(dmal(vKVg, sWS, sT1, i * 1024))
    hook += wblock(sT0, 0)
    H(S("s_lshl_b32", sT1, sSUB, 14))
    H(S("s_add_u32", sT0, sT0, sT1))
    H(S("s_add_u32", sT1, sT1, sPX))
    H(S("s_add_u32", M0, sT1, 131072))
    for i in range(4):
        H(dmal(vKVg, sWS, sT0, i * 1024))

    def kvdma():
        d = [S("s_mov_b32", M0, sWRA)]
        for i in range(4):
            d.append(dmal(vKVg, sWS, sKO, i * 1024))
        d.append(S("s_add_u32", M0, sWRA, 16384))
        for i in range(4):
            d.append(dmal(vKVg, sWS, sVO, i * 1024))
        d += [S("s_add_u32", sKO, sKO, 16384), S("s_add_u32", sVO, sVO, 16384), S("s_add_u32", sWRA, sWRA, ASLOT),
              S("s_and_b32", sWRA, sWRA, 4 * ASLOT - 1), S("s_add_u32", sUN, sUN, 1),
              S("s_cmp_eq_u32", sUN, sU0), S("s_cselect_b32", sKO, sWH_, sKO),
              S("s_sub_u32", sT0, sUN, 1), S("s_cmp_eq_u32", sT0, sU0), S("s_cselect_b32", sKO, sW1, sKO),
              S("s_sub_u32", sT0, sUN, 2), S("s_cmp_eq_u32", sT0, sU0), S("s_cselect_b32", sKO, sW2, sKO),
              S("s_add_u32", sT0, sKO, 16384), S("s_cmp_gt_u32", sUN, sU0), S("s_cselect_b32", sVO, sT0, sVO)]
        return d

    def guarded_dma():
        lb = lab("A_ND")
        return [S("s_cmp_lg_u32", sSUB, 0), I("s_cbranch_scc1", [lb])] + kvdma() + [label(lb)]

    H(S("s_mov_b32", sWRA, sPX))
    H(S("s_add_u32", sKO, sKB, WS_KF + 5 * 8192))
    H(S("s_add_u32", sVO, sKB, WS_VF + 3 * 8192))
    H(S("s_mov_b32", sUN, 2))
    o += role(sSUB)
    P.add(o)
    gemm4(P, "Q", 18, 2, 6, 6, q_issue, q_reads, q_mfmas, pre=5, extra=extra, tail_hook=hook, pre_hook=pre, est=est("Q"),
          first_vm=24 + 2)
    o = []
    A = o.append
    o += st(5)
    sCc = sT1
    A(S("s_mov_b32", sCc, float(CSCALE)))
    A(S("s_lshr_b32", sT0, sWV, 1))
    A(S("s_lshl_b32", sT0, sT0, 14))
    A(S("s_and_b32", sT2, sWV, 1))
    A(S("s_lshl_b32", sT2, sT2, 12))
    A(S("s_add_u32", sT0, sT0, sT2))
    A(V("v_add_u32", t0, sT0, vL16))
    A(I("s_barrier"))
    for m in range(2):
        for j in range(2):
            x = qacc[m][j]
            for r in range(16):
                A(V("v_mul_f32", x[r], sCc, x[r]))
            for r in range(8):
                A(V("v_cvt_pk_bf16_f32", x[r], x[2 * r], x[2 * r + 1]))
            for b in range(2):
                A(I("ds_write_b128", [t0, x[4 * b:4 * b + 4]], f"offset:{m * 8192 + (2 * j + b) * 1024}"))
    A(S("s_lshl_b32", sT0, sWV, 13))
    A(V("v_add_u32", v(122), sT0, vL16))
    o += st(6)

    vPC, vP1 = v(20), v(21)
    sXD = s(27)
    A(S("s_mov_b32", sXD, 1))
    vWB = [v(22), v(23), v(24), v(25)]
    vWHf = v(26)
    A(S("s_lshl_b32", sT0, sPI, 5))
    A(S("s_add_u32", sT0, sT0, sGR))
    A(S("s_lshl_b32", sT0, sT0, 8))
    A(S("s_lshl_b32", sT1, sWV, 2))
    A(S("s_add_u32", sT0, sT0, sT1))
    A(S("s_add_u32", sT0, sT0, WS_FLAG + 4 * F_CTX))
    A(V("v_and_b32", t0, 3, vL))
    A(V("v_lshlrev_b32", t0, 11, t0))
    A(V("v_add_u32", vPC, sT0, t0))
    A(V("v_add_u32", vWB[0], 131072, vL16))
    sSL = L[8]
    for i in range(1, 5):
        A(S("s_add_u32", sT0, sU0, (i % 4) + 2))
        A(S("s_and_b32", sT0, sT0, 3))
        A(S("s_lshl_b32", sT0, sT0, 15))
        if i < 4:
            A(V("v_add_u32", vWB[i], sT0, vL16))
        if i == 3:
            A(S("s_mov_b32", sSL, sT0))
    A(V("v_and_b32", t0, 15, vL))
    A(V("v_lshrrev_b32", t1, 5, vL))
    A(V("v_lshlrev_b32", t1, 8, t1))
    A(V("v_lshl_add_u32", t0, t0, 4, t1))
    A(V("v_add_u32", vWHf, sT0, t0))
    XA = [a(64 + 4 * i, 4) for i in range(8)] + [a(4 * i, 4) for i in range(16)] + [a(96 + 4 * i, 4) for i in range(8)]

    vLs, vThr, vLB, vD, vNINF = v(10), v(11), v(12), v(13), v(14)
    vB = [v(15), v(16)]
    vF, vDl, vFW = v(17), v(18), v(19)
    A(V("v_mov_b32", vLs, 0))
    A(V("v_mov_b32", vThr, float(2.0 ** THR_LOG2)))
    A(V("v_mov_b32", vNINF, 0xff800000))
    A(V("v_and_b32", t0, 31, vL))
    A(V("v_lshrrev_b32", t1, 5, vL))
    A(V("v_lshlrev_b32", t1, 2, t1))
    A(V("v_sub_u32", t0, t0, t1))
    A(V("v_add_u32", vD, sQ0, t0))
    A(S("s_lshl_b32", sT0, sWV, 2))
    A(V("v_mov_b32", t0, sT0))
    A(V("v_mov_b32", t1, BIG))
    A(V("v_cmp_eq_u32", VCC, 0, vL))
    A(V("v_cndmask_b32", vFW, t1, t0, VCC))

    def wave_flag(word):
        return [I("buffer_store_dword", [vOne, vFW, sWS, sFB], f"offen offset:{4 * word} sc1")]

    if "prio" in exp:
        o += only(sSUB, [S("s_setprio", 1)])
    A(waitcnt(vm=0, lgkm=0))
    A(I("s_barrier"))
    vA = vAc
    A(V("v_add_u32", vA, 2 * ASLOT, vL16))
    for db in range(8):
        A(dsr128(Q[db], v(122), db * 1024))
    for db in range(8):
        A(dsr128(FR[db], vA, 16384 + db * 1024))
    A(waitcnt(lgkm=8))
    A(I("s_barrier"))
    o += guarded_dma()
    for db in range(8):
        A(mfma(Sb[0], FR[db], Q[db], 0 if db == 0 else Sb[0]))
    A(S("s_mov_b32", sRDA, 2 * ASLOT))

    def frag_read(n, half):
        off = 16384 + half * 8192 + n * 1024 if n < 8 else half * 8192 + (n - 8) * 1024
        return dsr128(FR[n % 8], vA, off)

    def tail_pair(p, q0, q1, P_):
        r = []
        if p == 0:
            r.append(V("v_mov_b32", vB[0], q0))
            r.append(V("v_mov_b32", vB[1], q1))
        else:
            r.append(V("v_add_f32", vB[0], vB[0], q0))
            r.append(V("v_add_f32", vB[1], vB[1], q1))
        r.append(V("v_cvt_pk_bf16_f32", P_[p], q0, q1))
        return r

    def mask_ops(S_):
        r = []
        for g in range(4):
            for k in range(4):
                r.append(V("v_cmp_lt_i32", sMk[k], vD, 8 * g + k))
            for k in range(4):
                r.append(V("v_cndmask_b32", S_[4 * g + k], S_[4 * g + k], vNINF, sMk[k]))
        r.append(V("v_subrev_u32", vD, 32, vD))
        return r

    def softmax(cb, masked):
        S_, P_ = Sb[cb], Pb[cb]
        r = mask_ops(S_) if masked else []
        for p in range(8):
            r.append(V("v_exp_f32", T[(2 * p) % 8], S_[2 * p]))
            r.append(V("v_exp_f32", T[(2 * p + 1) % 8], S_[2 * p + 1]))
            if p > 0:
                r += tail_pair(p - 1, T[(2 * p - 2) % 8], T[(2 * p - 1) % 8], P_)
        r += tail_pair(7, T[6], T[7], P_)
        r.append(V("v_add_f32", vB[0], vB[0], vB[1]))
        return r

    def rowmax(S_, dst, tmp):
        r = [V("v_max3_f32", dst, S_[0], S_[1], S_[2])]
        for q in range(3, 15, 2):
            r.append(V("v_max3_f32", dst, dst, S_[q], S_[q + 1]))
        r += [V("v_max_f32", dst, dst, S_[15]), V("v_mov_b32", tmp, dst), V("v_permlane32_swap_b32", dst, tmp),
              V("v_max_f32", dst, dst, tmp), V("v_add_f32", dst, HEADROOM, dst)]
        return r

    slow_sites = []

    def step(half, has_pv, has_qk, masked, ctl=()):
        cb, nb = half, 1 - half
        M, frs = [], []
        if has_pv:
            for vb in range(2):
                for dt in range(4):
                    M.append(mfma(O[dt], FR[(4 * vb + dt) % 8], Pb[nb][4 * vb:4 * vb + 4], O[dt]))
                    frs.append(4 * vb + dt)
        if has_qk:
            for db in range(8):
                M.append(mfma(Sb[nb], FR[db], Q[db], NEGM if db == 0 else Sb[nb]))
                frs.append(8 + db)
        n = len(M)
        seq = [(x, half) for x in frs] + [(x, 1 - half) for x in range(16)]
        gaps = [[] for _ in M]
        g3 = [[] for _ in M]
        for j in range(n):
            if half == 1 and j + LA == n:
                gaps[j].append(V("v_add_u32", vA, sRDA, vL16))
            gaps[j].append(frag_read(*seq[j + LA]))
            if j % 2 == 1 and j + 1 < n:
                g3[j].append(waitcnt(lgkm=LA - 2))
        if has_pv:
            gaps[0].append(V("v_add_f32", vLs, vLs, vB[0]))
        if half == 0:
            gaps[0] += [waitcnt(vm=8), I("s_barrier")]
            gaps[1] += guarded_dma()
        else:
            gaps[0] += [S("s_add_u32", sRDA, sRDA, ASLOT), S("s_and_b32", sRDA, sRDA, 4 * ASLOT - 1)]
            gaps[1] += list(ctl)
        smx = softmax(cb, masked) + [V("v_cmp_gt_f32", VCC, vB[0], vThr)]
        g2 = interleave(M, smx, 2 if has_pv else 1, n - 1)
        sl, rt = lab("A_SLOW"), lab("A_RET")
        g3[n - 1] += [I("s_cbranch_vccnz", [sl]), label(rt)]
        slow_sites.append((sl, rt, cb, has_qk))
        return weave(M, gaps, g2, g3)

    for n in range(LA):
        A(dsr128(FR[n], vA, n * 1024))
    o += mask_ops(Sb[0]) + rowmax(Sb[0], vDl, t1)
    for r in range(16):
        A(V("v_sub_f32", NEGM[r], 0, vDl))
    for r in range(16):
        A(V("v_sub_f32", Sb[0][r], Sb[0][r], vDl))
    o += step(0, False, True, False) + step(1, True, True, True)
    A(S("s_cmp_eq_u32", sN, 4))
    A(I("s_cbranch_scc1", ["A_PF"]))
    A(S("s_sub_u32", sT0, sN, 6))
    A(S("s_lshl_b32", sT0, sT0, 5))
    A(V("v_subrev_u32", vD, sT0, vD))
    A(S("s_lshr_b32", sCNT, sN, 1))
    A(S("s_sub_u32", sCNT, sCNT, 3))
    P.add(o)
    lb = step(0, True, True, False) + step(1, True, True, False, ctl=[S("s_sub_u32", sCNT, sCNT, 1), S("s_cmp_lg_u32", sCNT, 0)])
    lb += [I("s_cbranch_scc1", ["A_LOOP"])]
    P.loop("A_LOOP", lb)
    P.add(step(0, True, True, True) + step(1, True, True, True))
    o = [label("A_PF")]
    A = o.append
    o += step(0, True, True, True) + step(1, True, False, True)
    o += st(7)
    A(V("v_add_f32", vLs, vLs, vB[0]))
    A(S("s_cmp_lg_u32", sSUB, 0))
    A(I("s_cbranch_scc1", ["A_FIN"]))
    A(waitcnt(vm=8))
    A(I("s_barrier"))
    o += kvdma()
    A(label("A_FIN"))
    M = [mfma(O[dt], FR[4 * vb + dt], Pb[1][4 * vb:4 * vb + 4], O[dt]) for vb in range(2) for dt in range(4)]
    gaps = [[] for _ in M]
    for j in range(8 - LA):
        gaps[j].append(frag_read(j + LA, 0))
    o += weave(M, gaps)
    A(V("v_mov_b32", t0, vLs))
    A(V("v_permlane32_swap_b32", t0, vLs))
    A(V("v_add_f32", t0, t0, vLs))
    A(V("v_rcp_f32", vF, t0))
    A(S("s_lshl_b32", sT0, sQ0, 13))
    A(S("s_lshl_b32", sT1, sHEAD, 13))
    A(S("s_add_u32", sT0, sT0, sT1))
    A(S("s_add_u32", sT0, sT0, WS_CTX))
    A(S("s_add_u32", sT1, sT0, 4096))
    for dt in range(4):
        Tm, Pk = Sb[dt % 2], Pb[dt % 2]
        for r in range(16):
            A(V("v_accvgpr_read_b32", Tm[r], O[dt][r]))
        for r in range(16):
            A(V("v_mul_f32", Tm[r], Tm[r], vF))
        for r in range(8):
            A(V("v_cvt_pk_bf16_f32", Pk[r], Tm[2 * r], Tm[2 * r + 1]))
        for b in range(2):
            db = 2 * dt + b
            A(bstore4(Pk[4 * b:4 * b + 4], vL16, sWS, sT0 if db < 4 else sT1, (db % 4) * 1024, ST))
        for r in range(8):
            A(V("v_accvgpr_write_b32", XA[2 * dt + r // 4][r % 4], Pk[r]))
    A(S("s_cmp_eq_u32", sSUB, 0))
    A(I("s_cbranch_scc1", ["A_SHORT"]))
    A(I("s_branch", ["A_DONE"]))
    A(label("A_SHORT"))
    A(S("s_sub_u32", sREM, sNB, sN))
    A(S("s_lshr_b32", sREM, sREM, 1))
    A(S("s_sub_u32", sREM, sREM, 1))
    def interval(work):
        return [waitcnt(vm=8), I("s_barrier")] + work + kvdma()

    def checked(vaddr, vres):
        ok = lab("SJ_OK")
        return [V("v_cmp_ne_u32", VCC, 1, vres), nop(2), I("s_cbranch_vccz", [ok])] + poll(vaddr, sWS, 1, vres) + [label(ok)]

    vJ, vJr = v(116), v(117)
    A(S("s_cmp_ge_u32", sW, 48))
    A(I("s_cbranch_scc1", ["A_NKVR"]))
    sJ, sJo = L[16], L[17]
    A(S("s_lshl_b32", sJ, sW, 2))
    A(S("s_add_u32", sJ, sJ, sWQ))
    A(S("s_mul_i32", sT0, sJ, 43691))
    A(S("s_lshr_b32", sT0, sT0, 20))
    A(S("s_lshr_b32", sT1, sT0, 2))
    A(S("s_and_b32", sT0, sT0, 3))
    A(S("s_lshl_b32", sT0, sT0, 6))
    A(S("s_add_u32", sT0, sT0, sT1))
    A(V("v_bfe_u32", t0, vL, 3, 2))
    A(V("v_lshlrev_b32", t0, 1, t0))
    A(V("v_and_b32", t1, 7, vL))
    A(V("v_lshl_add_u32", t0, t1, 3, t0))
    A(V("v_add_u32", t0, sT0, t0))
    A(V("v_lshlrev_b32", t0, 8, t0))
    A(V("v_add_u32", vJ, WS_FLAG + 4 * F_B1, t0))
    A(S("s_lshl_b32", sJo, sJ, 10))
    A(S("s_add_u32", sJo, sJo, WS_KVP))
    R = [v(32 + 4 * i, 4) for i in range(16)]
    KS_ = v(96, 4)

    def kvr_loads():
        r = []
        for i in range(16):
            r += [bload4(R[i], vL16, sWS, sJo, 0, LD), S("s_add_u32", sJo, sJo, 192 * 1024)]
        return r

    def kvr_sum(first):
        r = [forget(R)]
        for step_ in (1, 2, 4, 8):
            for w in range(0, 16, 2 * step_):
                r += [V("v_add_f32", R[w][q], R[w][q], R[w + step_][q]) for q in range(4)]
        r += [V("v_mov_b32", KS_[q], R[0][q]) if first else V("v_add_f32", KS_[q], KS_[q], R[0][q]) for q in range(4)]
        return r

    o += interval([I("buffer_load_dword", [vJr, vJ, sWS, 0], "offen sc1", dst=[])])
    o += interval(wave_flag(F_CTX) + checked(vJ, vJr) + kvr_loads())
    o += interval(kvr_sum(True) + kvr_loads())
    o += interval(kvr_sum(False) + [
        V("v_cvt_pk_bf16_f32", KS_[0], KS_[0], KS_[1]), V("v_cvt_pk_bf16_f32", KS_[1], KS_[2], KS_[3]),
        S("s_lshr_b32", sT0, sJ, 1), S("s_lshl_b32", sT0, sT0, 10), S("s_and_b32", sT1, sJ, 1), S("s_lshl_b32", sT1, sT1, 3),
        S("s_add_u32", sT0, sT0, sT1), S("s_add_u32", sT0, sT0, WS_KVF),
        I("buffer_store_dwordx2", [KS_[0:2], vL16, sWS, sT0], "offen " + ST)])
    o += interval(wave_flag(F_KVR))
    A(S("s_sub_u32", sREM, sREM, 5))
    A(I("s_branch", ["A_DL0"]))
    A(label("A_NKVR"))
    A(S("s_sub_u32", L[18], sW, 96))
    A(S("s_cmp_ge_u32", L[18], 128))
    A(I("s_cbranch_scc1", ["A_DL0"]))
    sSB, sH0 = L[16], L[17]
    A(S("s_lshr_b32", sSB, L[18], 1))
    A(S("s_and_b32", sH0, L[18], 1))
    A(S("s_lshl_b32", sH0, sH0, 4))
    A(S("s_lshl_b32", sT0, sWQ, 2))
    A(S("s_add_u32", sH0, sH0, sT0))
    A(S("s_mul_i32", sT0, sH0, 6))
    A(V("v_min_u32", t0, 23, vL))
    A(V("v_add_u32", t0, sT0, t0))
    A(V("v_and_b32", t1, 3, t0))
    A(V("v_lshrrev_b32", t0, 2, t0))
    A(V("v_lshlrev_b32", t0, 8, t0))
    A(V("v_lshl_add_u32", t0, t1, 2, t0))
    A(V("v_add_u32", vJ, WS_FLAG + 4 * F_KVR, t0))
    Pf = [[v(32 + 12 * k + 4 * F, 4) for F in range(3)] for k in range(4)]
    Kf = [[a(12 * k + 4 * F, 4) for F in range(3)] for k in range(4)]
    Cs = [v(80, 16), v(96, 16)]
    ld = [S("s_lshl_b32", sT0, sSB, 5), S("s_add_u32", sT0, sT0, sH0), S("s_mul_i32", sT0, sT0, 3072),
          S("s_add_u32", sT0, sT0, WS_PHIQ), S("s_mul_i32", sT1, sH0, 3072), S("s_add_u32", sT1, sT1, WS_KVF)]
    for k in range(4):
        for F in range(3):
            ld += [bload4(Pf[k][F], vL16, sWS, sT0, F * 1024, LD), bload4(Kf[k][F], vL16, sWS, sT1, F * 1024, LD)]
        ld += [S("s_add_u32", sT0, sT0, 3072), S("s_add_u32", sT1, sT1, 3072)]
    cp = [forget([x for k in range(4) for x in Pf[k] + Kf[k]]),
          S("s_mul_i32", sT2, sSB, 36), S("s_add_u32", sT0, sT2, sH0), S("s_lshl_b32", sT0, sT0, 10), S("s_add_u32", sT0, sT0, WS_OF),
          S("s_lshr_b32", sT1, sH0, 3), S("s_add_u32", sT1, sT1, sT2), S("s_lshl_b32", sT1, sT1, 10),
          S("s_add_u32", sT1, sT1, WS_OF + 32 * 1024), S("s_and_b32", sT2, sH0, 7), S("s_lshl_b32", sT2, sT2, 1),
          S("s_add_u32", sT1, sT1, sT2)]
    XO = [v(112), v(113), v(114), v(115)]
    for k in range(4):
        C = Cs[k % 2]
        cp += [mfma(C, Kf[k][F], Pf[k][F], 0 if F == 0 else C) for F in range(3)]
        cp += [V("v_add_f32", t0, 1e-6, C[9]), V("v_rcp_f32", t0, t0)]
        cp += [V("v_mul_f32", C[i], C[i], t0) for i in range(9)]
        cp += [V("v_cvt_pk_bf16_f32", Pf[k][0][p], C[2 * p], C[2 * p + 1]) for p in range(4)]
        cp += [V("v_mov_b32", XO[k], C[8]), bstore4(Pf[k][0], vL16, sWS, sT0, k * 1024, ST)]
    cp += [V("v_cvt_pk_bf16_f32", XO[0], XO[0], XO[1]), V("v_cvt_pk_bf16_f32", XO[1], XO[2], XO[3]),
           I("buffer_store_dwordx2", [v(112, 2), vL16, sWS, sT1], "offen " + ST)]
    o += interval([I("buffer_load_dword", [vJr, vJ, sWS, 0], "offen sc1", dst=[])])
    o += interval(wave_flag(F_CTX) + checked(vJ, vJr) + ld)
    o += interval(cp)
    o += interval(wave_flag(F_O))
    A(S("s_sub_u32", sREM, sREM, 4))
    xl = []
    for i in range(1, 4):
        xl += [S("s_add_u32", sT0, sCQ, i), S("s_and_b32", sT0, sT0, 3), S("s_lshl_b32", sT1, sGR, 2), S("s_add_u32", sT0, sT0, sT1),
               S("s_add_u32", sT0, sT0, sQ0), S("s_lshl_b32", sT0, sT0, 13), S("s_add_u32", sT0, sT0, WS_CTX),
               S("s_add_u32", sT1, sT0, 4096)]
        xl += [I("buffer_load_dwordx4", [XA[8 * i + db], vL16, sWS, sT0 if db < 4 else sT1],
                 f"offen offset:{(db % 4) * 1024}" + (" " + LD if LD else ""), dst=[]) for db in range(8)]
    A(label("A_DL0"))
    A(S("s_cmp_lt_u32", sREM, 4 if "xjob" in exp else 1000))
    A(I("s_cbranch_scc1", ["A_DL1"]))
    o += interval([])
    o += interval(wave_flag(F_CTX) + [])
    o += interval(poll(vPC, sWS, 1, vP1) + xl)
    A(S("s_sub_u32", sREM, sREM, 3))
    A(S("s_mov_b32", sXD, 0))
    A(label("A_DL1"))
    P.add(o)
    lb = [waitcnt(vm=8), I("s_barrier")] + kvdma()
    lb += [S("s_sub_u32", sREM, sREM, 1), S("s_cmp_lg_u32", sREM, 0), I("s_cbranch_scc1", ["A_DL"])]
    P.loop("A_DL", lb)
    o = [waitcnt(vm=0)] + wave_flag(F_CTX)
    A = o.append
    A(label("A_DONE"))
    o += st(8)
    A(I("s_barrier"))
    o += st(16)
    A(S("s_lshl_b32", sT1, sSUB, 14))
    A(S("s_add_u32", sT0, sW3, sT1))
    A(S("s_add_u32", sT1, sT1, sPX))
    A(S("s_add_u32", M0, sT1, sSL))
    for q in range(4):
        A(dmal(vKVg, sWS, sT0, q * 1024))
    pacc = [v(32 + 16 * j, 16) for j in range(5)]
    WR = [v(112, 4), v(116, 4), v(120, 4), v(10, 4), v(14, 4)]
    seq = [(k, j) for k in range(8) for j in range(5)] + [(k, j) for j in range(5) for k in range(8, 32)]
    WLA = 4

    def wread(n):
        k, j = seq[n]
        if j < 4:
            return dsr128(WR[n % 5], vWB[k // 8], (k % 8) * 4096 + j * 1024)
        return dsr128(WR[n % 5], vWHf, k * 512)

    sPT0 = L[9]
    A(S("s_lshl_b32", sPT0, sPI, 2))
    A(S("s_add_u32", sPT0, sPT0, sCQ))
    A(S("s_lshl_b32", sPT0, sPT0, 3))
    A(S("s_add_u32", sT0, sPT0, sWV))
    A(S("s_lshl_b32", sT0, sT0, 3))
    A(S("s_add_u32", sT0, sT0, sGR))
    A(S("s_mul_i32", sT0, sT0, 9216))
    sPTs = [L[0], L[1], L[2]]
    A(S("s_add_u32", sPTs[0], sT0, WS_PT))
    A(S("s_add_u32", sPTs[1], sPTs[0], 4096))
    A(S("s_add_u32", sPTs[2], sPTs[0], 8192))

    def pstore(j):
        r = []
        for b in range(2 if j < 4 else 1):
            r += [V("v_cvt_pk_bf16_f32", pacc[j][4 * b + q], pacc[j][8 * b + 2 * q], pacc[j][8 * b + 2 * q + 1]) for q in range(4)]
            pi_ = 2 * j + b
            r.append(bstore4(pacc[j][4 * b:4 * b + 4], vL16, sWS, sPTs[pi_ // 4], (pi_ % 4) * 1024, ST))
        return r

    for n in range(WLA):
        A(wread(n))
    pend = []
    NF, NP = (3, 14)
    for n, (k, j) in enumerate(seq):
        A(mfma(pacc[j], WR[n % 5], XA[k], 0 if k == 0 else pacc[j]))
        if n == 48:
            A(I("s_barrier"))
        if n + WLA < len(seq):
            A(wread(n + WLA))
        if n == NF:
            o += only(sSUB, [waitcnt(vm=4)] + wave_flag(F_CTX))
        if n == NP:
            o += poll(vPC, sWS, 1, vP1) + xl + st(9)
        if n in (39, 47, 55):
            A(waitcnt(vm={39: 16, 47: 8, 55: 0}[n]))
        if k == 12 and j > 0:
            pend = pstore(j - 1)
        if pend:
            o += pend[:2]
            pend = pend[2:]
    o += pstore(4)
    o += st(10)
    vW2, vLx, vW2x, vWr, vSt, vPO = [v(22 + i) for i in range(6)]
    vRdw = [v(30), v(31), v(123)]
    RS = 304
    A(V("v_and_b32", t0, 7, vL))
    A(V("v_lshrrev_b32", t1, 5, vL))
    A(V("v_lshlrev_b32", t1, 7, t1))
    A(V("v_lshl_add_u32", vW2, t0, 4, t1))
    A(V("v_mov_b32", t2, BIG))
    A(S("s_cmp_lt_u32", sWV, 4))
    A(S("s_cselect_b64", sM, -1, 0))
    A(V("v_cndmask_b32", vLx, t2, vL16, sM))
    A(V("v_cndmask_b32", vW2x, t2, vW2, sM))
    A(V("v_and_b32", t0, 31, vL))
    A(V("v_mul_u32_u24", t0, RS, t0))
    A(V("v_lshrrev_b32", t1, 5, vL))
    A(V("v_lshl_add_u32", t0, t1, 4, t0))
    A(S("s_mul_i32", sT0, sWV, 64 * RS))
    A(V("v_add_u32", vWr, sT0, t0))
    A(V("v_mul_u32_u24", t1, 43691, v(0)))
    A(V("v_lshrrev_b32", t1, 18, t1))
    A(V("v_mul_u32_u24", t2, 6, t1))
    A(V("v_sub_u32", t2, v(0), t2))
    A(V("v_mul_u32_u24", t0, RS, t1))
    A(V("v_mul_u32_u24", t3, 48, t2))
    A(V("v_add_u32", vRdw[0], t0, t3))
    A(V("v_add_u32", vRdw[1], 3 * 64 * RS, vRdw[0]))
    A(V("v_add_u32", vRdw[2], 6 * 64 * RS, vRdw[0]))
    A(S("s_lshl_b32", sT0, sRB1, 6))
    A(V("v_add_u32", t1, sT0, t1))
    A(V("v_mul_u32_u24", t1, 2304, t1))
    A(V("v_mul_u32_u24", t3, 24, t2))
    A(S("s_mul_i32", sT0, sG1, 144))
    A(V("v_add3_u32", vSt, t1, t3, sT0))
    A(V("v_bfe_u32", t0, vL, 2, 2))
    A(S("s_lshl_b32", sT0, sRB1, 2))
    A(V("v_add_u32", t0, sT0, t0))
    A(V("v_lshlrev_b32", t0, 8, t0))
    A(V("v_and_b32", t1, 3, vL))
    A(V("v_lshl_add_u32", t0, t1, 2, t0))
    A(V("v_add_u32", vPO, WS_FLAG + 96 * 256 + 4 * F_O, t0))
    sOUT = sA
    o += mk_srd(sOUT, "out")
    sXo0, sXo1, sWo_ = L[13], L[14], L[15]
    bfr = [a(64 + 4 * i, 4) for i in range(16)] + [v(64 + 4 * i, 4) for i in range(4)] + [v(96 + 4 * i, 4) for i in range(5)]
    bacc = [[a(0, 16), a(16, 16), a(32, 16)], [a(48, 16), v(32, 16), v(48, 16)]]

    def oloads(X, W, xstep, wstep, masked=False, x=True, w=True):
        va, vw = (vLx, vW2x) if masked else (vL16, vW2)
        r = []
        if x:
            r += [bload4(X[0], va, sWS, sXo0, 0, LD), bload4(X[1], va, sWS, sXo1, 0, LD),
                  S("s_add_u32", sXo0, sXo0, xstep), S("s_add_u32", sXo1, sXo1, xstep)]
        if w:
            r += [bload4(W[0], va, sWS, sWo_, 0, LD), bload4(W[1], va, sWS, sWo_, 1024, LD),
                  bload4(W[2], vw, sWS, sWo_, 2048, LD), S("s_add_u32", sWo_, sWo_, wstep)]
        return r

    def bout_loads():
        r = [S("s_mul_i32", sXo0, sRB1, 72), S("s_add_u32", sXo0, sXo0, sWV), S("s_lshl_b32", sXo0, sXo0, 10),
             S("s_add_u32", sXo0, sXo0, WS_OF), S("s_add_u32", sXo1, sXo0, 36 * 1024), S("s_mul_i32", sWo_, sG1, WOF_CG),
             S("s_mul_i32", sT0, sWV, 2304), S("s_add_u32", sWo_, sWo_, sT0), S("s_add_u32", sWo_, sWo_, WS_WOF + 256 * 2304)]
        for it in range(5):
            r += oloads(bfr[5 * it:5 * it + 2], bfr[5 * it + 2:5 * it + 5], 8192, 8 * 2304, masked=(it == 4))
        return r

    o += poll(vPO, sWS, 1, vP1)
    o += wave_flag(F_PT)
    o += bout_loads()
    for it in range(5):
        X, W = bfr[5 * it:5 * it + 2], bfr[5 * it + 2:5 * it + 5]
        o += [mfma(bacc[qb][j], W[j], X[qb], 0 if it == 0 else bacc[qb][j]) for j in range(3) for qb in range(2)]
    o += st(11)

    def red_write(acc_):
        r = [waitcnt(lgkm=0), I("s_barrier")]
        for qb in range(2):
            for j in range(3):
                for g in range(4 if j < 2 else 1):
                    r.append(I("ds_write_b128", [vWr, acc_[qb][j][4 * g:4 * g + 4]],
                               f"offset:{qb * 32 * RS + (32 * j + 8 * g) * 4}"))
        return r

    def red_src(ww, dst):
        return [dsr128(dst[q], vRdw[ww // 3], (ww % 3) * 64 * RS + 16 * q) for q in range(3)]

    def red_out(col0, S_, PKo):
        r = [V("v_cvt_pk_bf16_f32", PKo[x], S_[x // 2][(2 * x) % 4], S_[x // 2][(2 * x) % 4 + 1]) for x in range(6)]
        r += [S("s_mov_b32", sT0, col0), bstore4(PKo[0:4], vSt, sOUT, sT0),
              I("buffer_store_dwordx2", [PKo[4:6], vSt, sOUT, sT0], "offen offset:16")]
        return r

    o += red_write(bacc)
    sk = lab("O_SK")
    o += [waitcnt(lgkm=0), I("s_barrier"), S("s_cmp_ge_u32", sWV, 6), I("s_cbranch_scc1", [sk])]
    RR = [[v(32 + 12 * w + 4 * q, 4) for q in range(3)] for w in range(7)] + [[v(116, 4), v(10, 4), v(14, 4)]]
    for ww in range(8):
        o += red_src(ww, RR[ww])
    for step_ in (1, 2, 4):
        for w in range(0, 8, 2 * step_):
            o += [V("v_add_f32", RR[w][q][r], RR[w][q][r], RR[w + step_][q][r]) for q in range(3) for r in range(4)]
    o += red_out(1152, RR[0], v(44, 6))
    A(label(sk))
    o += st(12)
    A(S("s_and_b32", sT0, sW, 0xf8))
    A(S("s_lshl_b32", sT0, sT0, 8))
    A(S("s_lshl_b32", sT1, sGR, 2))
    A(S("s_add_u32", sT0, sT0, sT1))
    A(S("s_add_u32", sT0, sT0, WS_FLAG + 4 * F_PT))
    A(V("v_and_b32", t0, 7, vL))
    A(V("v_lshlrev_b32", t0, 8, t0))
    A(V("v_add_u32", t0, sT0, t0))
    o += poll(t0, sWS, 1, vP1)
    o += st(25)
    A(S("s_sub_u32", sT0, 15, sPI))
    A(S("s_cmp_lt_u32", sGR, 4))
    A(S("s_cselect_b32", sT0, sPI, sT0))
    A(S("s_lshl_b32", sT0, sT0, 7))
    A(S("s_and_b32", sT1, sGR, 3))
    A(S("s_lshl_b32", sT1, sT1, 5))
    A(S("s_add_u32", sT0, sT0, sT1))
    A(V("v_and_b32", t0, 31, vL))
    A(V("v_add_u32", t0, sT0, t0))
    A(V("v_mul_u32_u24", t0, 2304, t0))
    A(V("v_lshrrev_b32", t1, 5, vL))
    A(V("v_lshl_add_u32", t0, t1, 4, t0))
    A(S("s_mul_i32", sT0, sCQ, 288))
    A(V("v_add_u32", t0, sT0, t0))
    A(S("s_add_u32", sT0, sPT0, sGR))
    A(S("s_mul_i32", sT0, sT0, 8 * 9216))
    A(S("s_add_u32", L[10], sT0, WS_PT))

    def gather(spiece):
        G_ = [v(32 + 4 * i, 4) for i in range(8)]
        Sm = [v(64 + i) for i in range(8)]
        r = [S("s_lshl_b32", sT0, spiece, 10), S("s_add_u32", sT0, sT0, L[10])]
        for i in range(8):
            r += [bload4(G_[i], vL16, sWS, sT0, 0, LD), S("s_add_u32", sT0, sT0, 9216)]
        for i in range(8):
            for q in range(4):
                if i == 0:
                    r += [V("v_lshlrev_b32", Sm[2 * q], 16, G_[0][q]), V("v_and_b32", Sm[2 * q + 1], 0xffff0000, G_[0][q])]
                else:
                    r += [V("v_lshlrev_b32", t2, 16, G_[i][q]), V("v_and_b32", t3, 0xffff0000, G_[i][q]),
                          V("v_add_f32", Sm[2 * q], Sm[2 * q], t2), V("v_add_f32", Sm[2 * q + 1], Sm[2 * q + 1], t3)]
        D = v(72, 4)
        r += [V("v_cvt_pk_bf16_f32", D[q], Sm[2 * q], Sm[2 * q + 1]) for q in range(4)]
        r += [V("v_permlane32_swap_b32", D[0], D[2]), V("v_permlane32_swap_b32", D[1], D[3]),
              S("s_lshl_b32", sT0, spiece, 5), bstore4(D, t0, sOUT, sT0)]
        return r

    o += gather(sWV)
    A(S("s_mov_b32", L[11], 8))
    o += onlyw(7, gather(L[11]))
    if stamps:
        o += st(13) + [waitcnt(vm=0)] + st(14) + st(63, True)
        A(S("s_lshl_b32", sT0, sW, 3))
        A(S("s_add_u32", sT0, sT0, sWV))
        A(S("s_lshl_b32", sT0, sT0, 8))
        A(S("s_add_u32", sT0, sT0, 200 * MB))
        A(V("v_lshlrev_b32", t0, 2, vL))
        A(I("buffer_store_dword", [vSTP, t0, sWS, sT0], "offen"))
    P.add(o)
    P.out.append(label("F_END"))
    P.out.append(I("s_endpgm"))

    for sl, rt, cb, has_qk in slow_sites:
        P.st = State()
        nb = 1 - cb
        S_ = Sb[cb]
        b = [label(sl), nop(16), nop(4)]
        B = b.append
        b += rowmax(S_, t0, t1)
        B(V("v_max_f32", vDl, 0, t0))
        B(V("v_exp_f32", vF, Neg(vDl)))
        for r in range(16):
            B(V("v_sub_f32", NEGM[r], NEGM[r], vDl))
            B(V("v_sub_f32", S_[r], S_[r], vDl))
            if has_qk:
                B(V("v_sub_f32", Sb[nb][r], Sb[nb][r], vDl))
        B(V("v_mul_f32", vLs, vLs, vF))
        for dt in range(4):
            for r0 in range(0, 16, 8):
                for r in range(8):
                    B(V("v_accvgpr_read_b32", T[8 + r], O[dt][r0 + r]))
                for r in range(8):
                    B(V("v_mul_f32", T[8 + r], T[8 + r], vF))
                for r in range(8):
                    B(V("v_accvgpr_write_b32", O[dt][r0 + r], T[8 + r]))
        b += softmax(cb, False)
        B(nop(4))
        B(I("s_branch", [rt]))
        P.add(b)
    P.out.append(label("F_CODE_END"))
    P.out.append(I("s_endpgm"))
    return kernel_text(name, P, 256, 128, nsgpr=102)
```

```python
from common import *
from gemm import *
import math

LOG2E = math.log2(math.e)
CSCALE = (128 ** -0.5) * LOG2E
WS_PHIQ = WS_B
WS_KVP = WS_B + 8 * MB
WS_KVF = WS_B + 15 * MB
WS_OF = WS_B + 16 * MB
WS_WOF = WS_B + 20 * MB
WS_FLAG = WS_B + 28 * MB
WOF_CG = 292 * 2304
WS_WA = WS_PART
WS_WH = WS_PART + 4 * MB
WS_PT = WS_PART + 8 * MB
F_PT = 24
BIG = 0x7fffff00
F_B1, F_KV, F_KVR, F_O, F_CTX = 0, 1, 4, 8, 16

THR_LOG2 = 60.0
HEADROOM = 40.0
LA = 6
ORDER = ["A_x", "A_c_kv", "A_w_q", "A_w_uk", "A_w_uv", "A_w_o", "B_x", "B_wqkv", "B_w_phi", "B_wo", "out", "dbg", "ws"]


def gen_fused(name, stamps=False, exp="", LD="", ST="sc1"):
    P = Prog()
    PTR = {n: s(64 + 2 * i, 2) for i, n in enumerate(ORDER)}
    sW, sWV = s(2), s(3)
    sM = s(4, 2)
    sT0, sT1, sT2 = s(6), s(7), s(90)
    sWS, sA, sB, sC, sD, sDBG = s(8, 4), s(12, 4), s(16, 4), s(20, 4), s(24, 4), s(28, 4)
    sRB1, sG1, sHEAD, sPI, sE, sFB, sSPIN = s(32), s(33), s(34), s(35), s(36), s(37), s(38)
    L = [s(40 + i) for i in range(24)]
    vL, vL16, vFZ, vOne = v(1), v(2), v(3), v(4)
    vSTP = v(127)
    t0, t1, t2, t3, t4 = [v(5 + i) for i in range(5)]
    nlab = [0]

    def lab(p):
        nlab[0] += 1
        return f"{p}{nlab[0]}"

    def mk_srd(dst, nm):
        return [S("s_mov_b32", dst[0], PTR[nm][0]), S("s_mov_b32", dst[1], PTR[nm][1]),
                S("s_mov_b32", dst[2], NBYTES[nm]), S("s_mov_b32", dst[3], 0x20000)]

    def st(i, real=False):
        if not stamps:
            return []
        r = s(92, 2)
        x = [I("s_memrealtime" if real else "s_memtime", [r], cls="smem", dst=r.regs(), src=[]), waitcnt(lgkm=0),
             I("v_writelane_b32", [vSTP, r[0], i])]
        if not real and i < 15:
            x += [I("s_memrealtime", [r], cls="smem", dst=r.regs(), src=[]), waitcnt(lgkm=0), I("v_writelane_b32", [vSTP, r[0], 40 + i])]
        return x

    ecnt = [16]

    def est(ph):
        if not (stamps and ("est" + ph) in exp):
            return None

        def fn():
            ecnt[0] += 1
            return st(ecnt[0] - 1)
        return fn

    def poll(vaddr, srd, expect, vt, soff=0):
        lp, dn = lab("PL"), lab("PD")
        return [S("s_mov_b32", sSPIN, 0), label(lp),
                I("buffer_load_dword", [vt, vaddr, srd, soff], "offen sc1"), waitcnt(vm=0),
                V("v_cmp_ne_u32", VCC, expect, vt), S("s_add_u32", sSPIN, sSPIN, 1),
                I("s_cbranch_vccz", [dn]), S("s_sleep", 1), S("s_cmp_lt_u32", sSPIN, 200000),
                I("s_cbranch_scc1", [lp]), label(dn)]

    def wg_flag(word):
        return [I("buffer_store_dword", [vOne, vFZ, sWS, sFB], f"offen offset:{4 * word} sc1")]

    def dmal(voff, srd, soff, off=0):
        return I("buffer_load_dwordx4", [voff, srd, soff],
                 ("offen" + (f" offset:{off}" if off else "") + (" " + LD if LD else "") + " lds"))

    o = []
    A = o.append
    A(S("s_cmp_ge_u32", sW, 256))
    A(I("s_cbranch_scc1", ["F_END"]))
    if "latepf" not in exp and "nocodepf" not in exp:
        NPF = 32 if "pf32" in exp else 16
        A(S("s_cmp_ge_u32", sW, NPF))
        A(I("s_cbranch_scc1", ["F_NOPF"]))
        A(I("s_getpc_b64", [s(98, 2)]))
        A(label("F_PC"))
        A(S("s_lshr_b32", sT0, sW, 3))
        A(S("s_and_b32", sT0, sT0, 1))
        A(S("s_lshl_b32", sT0, sT0, 16))
        A(V("v_lshlrev_b32", v(31), 7, v(0)))
        A(V("v_add_u32", v(31), sT0, v(31)))
        A(V("v_min_u32", v(31), "F_CODE_END-F_PC-4", v(31)))
        A(I("global_load_dword", [v(31), v(31), s(98, 2)], "", dst=[]))
        A(label("F_NOPF"))
    A(I("s_load_dwordx16", [s(64, 16), s(0, 2), 0]))
    A(I("s_load_dwordx8", [s(80, 8), s(0, 2), 64]))
    A(I("s_load_dwordx2", [s(88, 2), s(0, 2), 96]))
    if stamps:
        A(V("v_mov_b32", vSTP, 0))
    A(V("v_lshrrev_b32", t0, 6, v(0)))
    A(V("v_and_b32", vL, 63, v(0)))
    A(V("v_readfirstlane_b32", sWV, t0))
    A(V("v_lshlrev_b32", vL16, 4, vL))
    A(S("s_and_b32", sT0, sW, 7))
    A(S("s_lshr_b32", sT1, sW, 3))
    A(S("s_lshr_b32", sRB1, sT0, 1))
    A(S("s_lshl_b32", sRB1, sRB1, 3))
    A(S("s_and_b32", sT2, sT1, 7))
    A(S("s_add_u32", sRB1, sRB1, sT2))
    A(S("s_and_b32", sG1, sT0, 1))
    A(S("s_lshl_b32", sG1, sG1, 2))
    A(S("s_lshr_b32", sT2, sT1, 3))
    A(S("s_add_u32", sG1, sG1, sT2))
    A(S("s_lshl_b32", sHEAD, sT0, 2))
    A(S("s_and_b32", sT2, sT1, 3))
    A(S("s_add_u32", sHEAD, sHEAD, sT2))
    A(S("s_lshr_b32", sPI, sT1, 2))
    A(S("s_lshl_b32", sFB, sW, 8))
    A(S("s_add_u32", sFB, sFB, WS_FLAG))
    A(V("v_mov_b32", vOne, 1))
    A(V("v_mov_b32", t1, BIG))
    A(V("v_cmp_eq_u32", VCC, 0, v(0)))
    A(V("v_cndmask_b32", vFZ, t1, 0, VCC) if False else V("v_cndmask_b32", vFZ, t1, v(0), VCC))

    sSUB, sWQ, sN, sNB, sQ0, sLO4 = s(39), s(91), s(94), s(95), s(96), s(97)
    sM2 = s(98, 2)
    vTD = v(31)
    vFS = v(30)
    vS7 = v(29)
    A(V("v_mov_b32", t2, 0))
    A(V("v_cmp_eq_u32", VCC, 256, v(0)))
    A(V("v_cndmask_b32", vFS, t1, t2, VCC))
    A(V("v_lshlrev_b32", vS7, 7, v(0)))
    A(S("s_lshr_b32", sSUB, sWV, 2))
    A(S("s_and_b32", sWQ, sWV, 3))
    A(S("s_xor_b32", sLO4, sSUB, 1))

    def only(sreg, code, inv=False):
        sk = lab("ONLY")
        return [S("s_cmp_lg_u32" if inv else "s_cmp_eq_u32", sreg, 0), I("s_cbranch_scc1", [sk])] + code + [label(sk)]

    def onlyw(wv, code):
        sk = lab("ONLYW")
        return [S("s_cmp_lg_u32", sWV, wv), I("s_cbranch_scc1", [sk])] + code + [label(sk)]

    def role(sreg):
        return [S("s_cmp_lg_u32", sreg, 0), S("s_cselect_b64", VCC, -1, 0)]

    def w_off(dst, sidx, A=None):
        A = A or o.append
        A(S("s_lshl_b32", sT0, sidx, 6))
        A(V("v_add_u32", t0, sT0, vL))
        A(V("v_mul_u32_u24", t1, 9363, t0))
        A(V("v_lshrrev_b32", t1, 18, t1))
        A(V("v_mul_u32_u24", t2, 28, t1))
        A(V("v_sub_u32", t2, t0, t2))
        A(V("v_mul_u32_u24", t3, 57, t2))
        A(V("v_lshrrev_b32", t3, 9, t3))
        A(V("v_min_u32", t3, 2, t3))
        A(V("v_mul_u32_u24", t4, 1152 - 144, t3))
        A(V("v_lshl_add_u32", t4, t2, 4, t4))
        A(V("v_mul_u32_u24", t1, 3456, t1))
        A(V("v_add_u32", t4, t4, t1))
        A(S("s_mul_i32", sT0, sG1, 144))
        A(V("v_add_u32", dst, sT0, t4))

    def x_off(dst, srow0, stride, A=None):
        A = A or o.append
        A(V("v_lshrrev_b32", t0, 2, vL))
        A(V("v_add_u32", t0, srow0, t0))
        A(V("v_mul_u32_u24", t0, stride, t0))
        A(V("v_lshrrev_b32", t1, 4, vL))
        A(V("v_xor_b32", t1, t1, vL))
        A(V("v_and_b32", t1, 3, t1))
        A(V("v_lshl_add_u32", dst, t1, 4, t0))

    def x_read_consts(dst2, sbase):
        A(V("v_and_b32", t0, 31, vL))
        A(V("v_lshlrev_b32", t1, 6, t0))
        if sbase is not None:
            A(V("v_add_u32", t1, sbase, t1))
        A(V("v_lshrrev_b32", t2, 5, vL))
        A(V("v_bfe_u32", t3, vL, 2, 2))
        A(V("v_xor_b32", t2, t2, t3))
        A(V("v_lshl_add_u32", dst2[0], t2, 4, t1))
        A(V("v_xor_b32", dst2[1], 32, dst2[0]))

    def tr_lane(dst, hshift, rs):
        A(V("v_lshrrev_b32", t0, 5, vL))
        A(V("v_bfe_u32", t1, vL, 2, 2))
        A(V("v_lshl_add_u32", t0, t0, hshift, t1))
        A(V("v_mul_u32_u24", t0, rs, t0))
        A(V("v_bfe_u32", t2, vL, 4, 1))
        A(V("v_lshl_add_u32", t0, t2, 5, t0))
        A(V("v_and_b32", t2, 3, vL))
        A(V("v_lshl_add_u32", dst, t2, 3, t0))


    B1_SUB, B1_BASE, B1_IMG, PHI_BASE = 18432, 16384, 126976, 98304
    bslot = lambda e: B1_BASE + (e % 3) * 2 * B1_SUB
    IMG_RS, PHI_RS = 144, 112
    R_BASE = B1_IMG
    sHD, sSO0, sSO3, sSt3, sLD1, sLD3 = L[0:6]
    sXb, sWb, sPH, sB2 = sA, sB, sC, sD
    vG = [v(114 + i) for i in range(9)]
    vI, vH2 = v(25), v(26)
    A(S("s_and_b32", sT0, sWQ, 1))
    A(S("s_cmp_eq_u32", sT0, 1))
    A(S("s_cselect_b64", sM2, -1, 0))
    A(S("s_cselect_b32", sSt3, 64, 32 * 3456))
    A(S("s_mul_i32", L[6], sT0, 9))
    gsetup = []
    o_save, o = o, gsetup
    A = o.append
    for i in range(9):
        A(S("s_add_u32", sT2, L[6], i))
        w_off(vG[i], sT2, A)
        comp = 1024 * (i if i < 4 else 0 if i == 4 else i - 5)
        if i >= 5:
            A(S("s_lshl_b32", sT0, sRB1, 6))
            A(S("s_add_u32", sT2, sT0, 16 * (i - 5)))
            x_off(t4, sT2, 1152, A)
            A(V("v_cndmask_b32", vG[i], vG[i], t4, sM2))
        if comp:
            A(V("v_subrev_u32", vG[i], comp, vG[i]))
    o = o_save
    A = o.append
    o += gsetup
    A(S("s_lshr_b32", sT1, sWQ, 1))
    A(S("s_mul_i32", sSO0, sT1, 32 * 3456))
    A(S("s_mul_i32", sSO3, sT1, sSt3))
    A(S("s_lshl_b32", sSt3, sSt3, 1))
    A(S("s_mul_i32", L[7], sSt3, 9))
    A(S("s_and_b32", sT0, sG1, 3))
    A(S("s_lshl_b32", sT0, sT0, 1))
    A(S("s_and_b32", sT2, sRB1, 7))
    A(S("s_add_u32", sT0, sT0, sT2))
    A(S("s_cmp_ge_u32", sT0, 9))
    A(S("s_cselect_b32", sT2, 9, 0))
    A(S("s_sub_u32", sT0, sT0, sT2))
    A(S("s_mul_i32", sT0, sT0, 1 if "rotB" in exp else 0))
    A(S("s_mul_i32", sT2, sT0, 64 * 3456))
    A(S("s_add_u32", sSO0, sSO0, sT2))
    A(S("s_mul_i32", sT2, sT0, sSt3))
    A(S("s_add_u32", sSO3, sSO3, sT2))
    A(S("s_mul_i32", sT1, sT1, B1_SUB))
    A(S("s_lshl_b32", sT0, L[6], 10))
    A(S("s_add_u32", sLD1, sT1, sT0))
    A(S("s_add_u32", sLD1, sLD1, 4096))
    A(S("s_add_u32", sT0, sT1, 4096 + 5120))
    A(S("s_cmp_eq_u32", L[6], 0))
    A(S("s_cselect_b32", sLD3, sT0, sT1))
    A(waitcnt(lgkm=0))
    o += st(0) + st(62, True)
    o += mk_srd(sXb, "B_x") + mk_srd(sWb, "B_wqkv") + mk_srd(sC, "A_w_o") + mk_srd(sWS, "ws") + mk_srd(sDBG, "dbg")
    o += [S("s_cmp_eq_u32", L[6], 0), S("s_cselect_b32", sB2[0], sWb[0], sXb[0]), S("s_cselect_b32", sB2[1], sWb[1], sXb[1]),
          S("s_cselect_b32", sB2[2], sWb[2], sXb[2]), S("s_mov_b32", sB2[3], 0x20000)]

    def b1_issue(e):
        d = [S("s_add_u32", M0, sLD1, bslot(e))]
        d += [dma(vG[i], sWb, sSO0, i * 1024) for i in range(4)]
        d.append(S("s_add_u32", M0, sLD1, bslot(e) + 4096))
        d.append(dma(vG[4], sWb, sSO0))
        d.append(S("s_add_u32", M0, sLD3, bslot(e)))
        d += [dma(vG[5 + i], sB2, sSO3, i * 1024) for i in range(4)]
        d += [S("s_add_u32", sSO0, sSO0, 64 * 3456), S("s_add_u32", sSO3, sSO3, sSt3),
              S("s_cmp_ge_u32", sSO0, 9 * 64 * 3456), S("s_cselect_b32", sT0, 9 * 64 * 3456, 0), S("s_cselect_b32", sT1, L[7], 0),
              S("s_sub_u32", sSO0, sSO0, sT0), S("s_sub_u32", sSO3, sSO3, sT1)]
        return d

    def stage_rows(srd, sbytes, n):
        r = [S("s_mul_i32", sT0, sWQ, n * 1024), S("s_add_u32", sT1, sT0, sbytes)]
        for g0 in range(0, n, 4):
            r.append(S("s_add_u32", M0, sT0, R_BASE + g0 * 1024))
            r += [I("buffer_load_dwordx4", [vL16, srd, sT1], f"offen offset:{i * 1024}" + (" nt" if "rnt" in exp else "") + " lds") for i in range(min(4, n - g0))]
            r.append(S("s_add_u32", sT1, sT1, 4096))
        return r

    o += only(sLO4, b1_issue(0) + b1_issue(1))
    A(V("v_subrev_u32", t0, 256, v(0)))
    A(V("v_cmp_gt_u32", VCC, 64, t0))
    A(V("v_lshlrev_b32", t0, 2, t0))
    A(V("v_mov_b32", t1, BIG))
    A(V("v_cndmask_b32", t0, t1, t0, VCC))
    A(V("v_mov_b32", t2, 0))
    svc = [I("buffer_store_dword", [t2, t0, sWS, sFB], "offen sc1"), S("s_mul_i32", sT2, sW, 16 * 1152)] + stage_rows(sC, sT2, 5)
    if "latepf" in exp:
        svc += only(sWQ, [I("s_getpc_b64", [sM2]), label("F_PC"), S("s_lshr_b32", sT0, sW, 3), S("s_lshl_b32", sT0, sT0, 12),
                          V("v_and_b32", t3, 31, vL), V("v_lshlrev_b32", t3, 7, t3), V("v_add_u32", t3, sT0, t3),
                          V("v_min_u32", t3, "F_CODE_END-F_PC-4", t3),
                          I("global_load_dword", [vTD, t3, sM2], "", dst=[])], inv=True)
    o += only(sSUB, svc)
    sTD = s(56, 4)
    sR0, sALT, sR1 = L[8], L[9], L[20]
    A(S("s_add_u32", sT0, sW, 256))
    A(S("s_cmp_eq_u32", sWV, 7))
    A(S("s_cselect_b32", sT2, sW, sT0))
    A(S("s_cselect_b32", sALT, 1, 0))
    A(S("s_cmp_lt_u32", sW, 32))
    A(S("s_cselect_b32", sT0, 6, 99))
    A(S("s_cmp_eq_u32", sWV, sT0))
    A(S("s_cselect_b32", sALT, 1, sALT))
    A(S("s_and_b32", sT0, sT2, 7))
    A(S("s_mul_i32", sR0, sT0, WOF_CG))
    A(S("s_mul_i32", L[22], sT0, 144))
    A(S("s_lshr_b32", sT2, sT2, 3))
    A(S("s_add_u32", sT0, sT2, 256))
    A(S("s_mul_i32", sT0, sT0, 2304))
    A(S("s_add_u32", sR0, sR0, sT0))
    A(S("s_add_u32", sR0, sR0, WS_WOF))
    A(S("s_mul_i32", sT0, sT2, 18))
    A(S("s_mul_i32", sT1, sT2, 144))
    A(S("s_sub_u32", sT1, sT1, 32 * 144 - 8))
    A(S("s_cmp_lt_u32", sT2, 32))
    A(S("s_cselect_b32", sT0, sT0, sT1))
    A(S("s_cselect_b32", sT2, 1, 18))
    A(S("s_mul_i32", sT0, sT0, 1152))
    A(S("s_add_u32", L[22], L[22], sT0))
    BJ = R_BASE + 20480
    A(S("s_and_b32", sT1, sWV, 1))
    A(S("s_mul_i32", L[21], sT1, 3072))
    A(S("s_add_u32", L[21], L[21], BJ))
    alt = mk_srd(sTD, "B_wo") + [S("s_mov_b32", M0, L[21])]
    for i in range(3):
        alt += [V("v_add_u32", t0, 64 * i, vL), V("v_min_u32", t0, 143, t0), V("v_mul_u32_u24", t1, 57, t0), V("v_lshrrev_b32", t1, 9, t1),
                V("v_mul_u32_u24", t2, 9, t1), V("v_sub_u32", t0, t0, t2),
                V("v_lshrrev_b32", t2, 3, t1), V("v_and_b32", t3, 3, t1), V("v_lshl_add_u32", t2, t2, 2, t3),
                V("v_mul_u32_u24", t2, sT2, t2), V("v_bfe_u32", t3, t1, 2, 1), V("v_mad_u32_u24", t2, t3, 9, t2),
                V("v_mul_u32_u24", t2, 1152, t2), V("v_lshl_add_u32", t2, t0, 4, t2), V("v_add_u32", t2, 4096 - 1024 * i, t2),
                S("s_sub_u32", sT0, L[22], 4096) if False else S("s_mov_b32", sT0, L[22]),
                V("v_add_u32", t2, sT0, t2), V("v_subrev_u32", t2, 4096, t2),
                dma(t2, sTD, 0, i * 1024)]
    o += only(sALT, alt)

    def touch_jobs(lst):
        jobs = []
        for nm, per in lst:
            for f0 in range(0, per, 64):
                n = min(64, per - f0)
                jobs.append(mk_srd(sTD, nm) + [S("s_mul_i32", L[23], sW, per * 128), S("s_add_u32", L[23], L[23], f0 * 128),
                                               V("v_min_u32", t0, n - 1, vL), V("v_lshlrev_b32", t0, 7, t0),
                                               I("buffer_load_dword", [vTD, t0, sTD, L[23]], "offen", dst=[])])
        return jobs

    def xtouch_jobs(nm, rows):
        jobs = []
        per = rows // 32
        for r0 in range(0, per, 8):
            n = min(8, per - r0) * 8
            jobs.append(mk_srd(sTD, nm) + [S("s_lshr_b32", L[23], sW, 3), S("s_mul_i32", L[23], L[23], per * 8192),
                                           S("s_and_b32", L[22], sW, 7), S("s_lshl_b32", L[22], L[22], 10),
                                           S("s_add_u32", L[23], L[23], L[22]), S("s_add_u32", L[23], L[23], r0 * 8192),
                                           V("v_min_u32", t0, n - 1, vL), V("v_and_b32", t1, 7, t0), V("v_lshrrev_b32", t0, 3, t0),
                                           V("v_lshlrev_b32", t0, 13, t0), V("v_lshl_add_u32", t0, t1, 7, t0),
                                           I("buffer_load_dword", [vTD, t0, sTD, L[23]], "offen" + (" nt" if "xnt" in exp else ""), dst=[])])
        return jobs

    A(S("s_lshl_b32", sT0, sG1, 2))
    A(S("s_add_u32", sHD, sWQ, sT0))
    A(V("v_bfe_u32", t0, vL, 3, 2))
    A(V("v_and_b32", t1, 3, vL))
    A(V("v_lshl_add_u32", vI, t0, 2, t1))
    A(V("v_bfe_u32", vH2, vL, 2, 1))
    raw_ = [v(88 + i) for i in range(8)] + [v(112), v(113)]
    WP = [v(96, 4), v(100, 4)]
    o += mk_srd(sPH, "B_w_phi")
    A(V("v_mad_u32_u24", t0, vH2, 9, vI))
    A(V("v_lshrrev_b32", t1, 5, vL))
    A(V("v_mul_u32_u24", t2, 8 * 36, t1))
    A(V("v_lshl_add_u32", t2, t0, 1, t2))
    A(S("s_mul_i32", sT0, sHD, 648))
    A(V("v_add_u32", t2, sT0, t2))
    A(V("v_mov_b32", t4, BIG))
    A(V("v_cmp_lt_u32", sM, vI, 9))
    A(V("v_cndmask_b32", t2, t4, t2, sM))
    A(V("v_cmp_eq_u32", sM, t1, 0))
    A(V("v_cndmask_b32", t3, t4, t2, sM))
    for j in range(8):
        A(I("buffer_load_ushort", [raw_[j], t2, sPH, 0], f"offen offset:{36 * j}" if j else "offen"))
    for j in range(2):
        A(I("buffer_load_ushort", [raw_[8 + j], t3, sPH, 0], f"offen offset:{36 * (16 + j)}"))
    kjobs = touch_jobs([("A_c_kv", 64), ("A_w_uk", 128), ("A_w_uv", 128)]) if "notouch" not in exp else []
    if "xt" in exp:
        kjobs = touch_jobs([("A_c_kv", 64)]) + xtouch_jobs("A_w_uk", 512) + xtouch_jobs("A_w_uv", 512)
    if "nokt" in exp:
        kjobs = []
    if "kt0" in exp:
        for e, r in enumerate(kjobs):
            o += onlyw(4 + e % 4, r)
        kjobs = []
    bXa = [LdsAddr([v(16), v(17)]), LdsAddr([v(18), v(19)])]
    bWa = LdsAddr([v(20), v(21)])
    x_read_consts([v(16), v(18)], None)
    tr_lane(t3, 3, 448)
    A(S("s_lshl_b32", sT0, sWV, 6))
    A(V("v_add_u32", v(20), sT0, t3))
    o += bXa[0].setup(v(16)) + bXa[1].setup(v(18)) + bWa.setup(v(20))
    acc = [v(32, 16), v(48, 16)]
    Xf = [[v(64 + (b * 2 + m) * 4, 4) for m in range(2)] for b in range(2)]
    Wf = [v(80, 4), v(84, 4)]

    def b1_reads(e, k4, b):
        sl, ks = bslot(e) + (k4 >> 1) * B1_SUB, k4 & 1
        r = [dsr128(Xf[b][0], *bXa[ks].at(sl))]
        for t in range(2):
            r.append(dsrtr(Wf[b][2 * t:2 * t + 2], *bWa.at(sl + 4096 + (16 * ks + 4 * t) * 448)))
        r.append(dsr128(Xf[b][1], *bXa[ks].at(sl + 2048)))
        return r

    def b1_mfmas(b, first):
        return [mfma(acc[m], Xf[b][m], Wf[b], 0 if first else acc[m]) for m in range(2)]

    A(S("s_sub_u32", sT0, 15, sPI))
    A(S("s_cmp_eq_u32", sSUB, 0))
    A(S("s_cselect_b32", sT2, sPI, sT0))
    A(S("s_add_u32", sN, sT2, 1))
    A(S("s_lshl_b32", sN, sN, 2))
    A(S("s_add_u32", sNB, sT0, 1))
    A(S("s_lshl_b32", sNB, sNB, 2))
    A(S("s_lshl_b32", sQ0, sT2, 7))
    A(S("s_lshl_b32", sT1, sWQ, 5))
    A(S("s_add_u32", sQ0, sQ0, sT1))
    kslot = lambda c: (c % 5) * 32768
    kXg, kWg = [v(10), v(11), v(12), v(13)], [v(14), v(15)]
    sPX, sPW, sO1, sO2, kWM, kWN = L[10:16]
    sCK, sWk, sWv = sA, sB, sC
    A(S("s_lshl_b32", sT0, sPI, 8))
    A(S("s_lshl_b32", sT1, sWQ, 6))
    A(S("s_add_u32", sT2, sT0, sT1))
    x_off(kXg[0], sT2, 1024)
    for i in range(1, 4):
        A(V("v_add_u32", kXg[i], i * (16384 - 1024), kXg[0]))
    A(S("s_lshl_b32", sT0, sWQ, 3))
    A(V("v_lshrrev_b32", t0, 4, vL))
    A(V("v_add_u32", t1, sT0, t0))
    A(V("v_lshlrev_b32", t1, 13, t1))
    A(V("v_lshrrev_b32", t2, 2, vL))
    A(V("v_xor_b32", t2, t2, t0))
    A(V("v_and_b32", t2, 3, t2))
    A(V("v_and_b32", t3, 3, vL))
    A(V("v_lshl_add_u32", t2, t2, 2, t3))
    A(V("v_lshl_add_u32", t1, t2, 4, t1))
    A(S("s_lshl_b32", sT0, sHEAD, 8))
    A(V("v_add_u32", kWg[0], sT0, t1))
    A(V("v_add_u32", kWg[1], 4 * 8192 - 1024, kWg[0]))
    A(S("s_lshl_b32", sPX, sWQ, 12))
    A(S("s_lshl_b32", sPW, sWQ, 11))
    A(S("s_add_u32", sPW, sPW, 16384))
    A(S("s_and_b32", kWM, sWV, 1))
    A(S("s_lshr_b32", kWN, sWV, 1))

    sKC = L[21]
    A(S("s_and_b32", sT0, sHEAD, 3))
    A(S("s_lshl_b32", sT0, sT0, 1))
    A(S("s_add_u32", sKC, sT0, sPI))
    A(S("s_lshl_b32", sKC, sKC, 1))
    A(S("s_and_b32", sKC, sKC, 15))
    A(S("s_mul_i32", sKC, sKC, 1 if "rotK" in exp else 0))

    def kv_issue(c):
        d = [S("s_add_u32", M0, sPX, kslot(c)), S("s_lshl_b32", sO1, sKC, 6)]
        d += [dma(kXg[i], sCK, sO1, i * 1024) for i in range(4)]
        d += [S("s_add_u32", M0, sPW, kslot(c)), S("s_lshl_b32", sO2, sKC, 18)]
        d += [dma(kWg[i], sWk, sO2, i * 1024) for i in range(2)]
        d.append(S("s_add_u32", M0, sPW, kslot(c) + 8192))
        d += [dma(kWg[i], sWv, sO2, i * 1024) for i in range(2)]
        d += [S("s_add_u32", sKC, sKC, 1), S("s_and_b32", sKC, sKC, 15)]
        return d

    vRr, vRs, vRs2, vRrB, vRs3 = v(104), v(105), v(106), v(110), v(111)
    RF = [a(4 * j, 4) for j in range(3)]
    XE = [v(107 + j) for j in range(3)]
    tr_lane(t3, 2, 1152)
    A(S("s_lshr_b32", sT0, sWV, 1))
    A(S("s_mul_i32", sT0, sT0, 288))
    A(S("s_lshl_b32", sT1, kWM, 7))
    A(S("s_add_u32", sT0, sT0, sT1))
    A(S("s_add_u32", sT0, sT0, R_BASE))
    A(V("v_add_u32", vRr, sT0, t3))
    A(S("s_mul_i32", sT0, sWV, 144))
    A(S("s_add_u32", sT0, sT0, R_BASE))
    A(V("v_and_b32", t0, 31, vL))
    A(V("v_lshrrev_b32", t1, 5, vL))
    A(V("v_bfe_u32", t4, vL, 2, 2))
    A(V("v_lshl_add_u32", t4, t1, 2, t4))
    A(V("v_mul_u32_u24", t4, 1152 - 144, t4))
    A(V("v_sub_u32", t4, t3, t4))
    A(S("s_and_b32", sT1, sWV, 1))
    A(S("s_mul_i32", sT1, sT1, 3072))
    A(S("s_add_u32", sT1, sT1, BJ))
    A(V("v_add_u32", vRrB, sT1, t4))
    A(V("v_lshlrev_b32", t4, 7, t1))
    A(V("v_lshl_add_u32", t4, t0, 4, t4))
    A(V("v_mov_b32", t2, BIG))
    A(V("v_cmp_gt_u32", VCC, 8, t0))
    A(V("v_cndmask_b32", vRs2, t2, t4, VCC))
    A(V("v_lshlrev_b32", t4, 8, t1))
    A(V("v_lshl_add_u32", t4, t0, 4, t4))
    A(S("s_lshl_b32", sT1, kWM, 4))
    A(V("v_cmp_gt_u32", VCC, sT1, t0))
    A(V("v_cndmask_b32", vRs3, t2, t4, VCC))
    A(S("s_lshr_b32", sT0, sWV, 1))
    A(S("s_lshl_b32", sT0, sT0, 8))
    A(S("s_add_u32", sT0, sT0, sW))
    A(S("s_lshl_b32", sR1, sT0, 12))
    A(S("s_lshl_b32", sT1, kWM, 11))
    A(S("s_add_u32", sR1, sR1, sT1))
    A(S("s_add_u32", sR1, sR1, WS_WA))
    A(S("s_lshl_b32", sT0, sT0, 9))
    A(S("s_add_u32", sT0, sT0, WS_WH))
    A(V("v_add_u32", vRs3, sT0, vRs3))
    r1 = [dsrtr(RF[j][2 * t:2 * t + 2], vRr, 8 * t * 1152 + 64 * j) for j in range(3) for t in range(2)]
    r1 += [bstore4(RF[0], vL16, sWS, sR1, 0, ST), bstore4(RF[1], vL16, sWS, sR1, 1024, ST), bstore4(RF[2], vRs3, sWS, 0, 0, ST)]
    a2 = [dsrtr(RF[j][2 * t:2 * t + 2], vRrB, 8 * t * 144 + 64 * j) for j in range(3) for t in range(2)]
    a2 += [bstore4(RF[0], vL16, sWS, sR0, 0, ST), bstore4(RF[1], vL16, sWS, sR0, 1024, ST), bstore4(RF[2], vRs2, sWS, sR0, 2048, ST)]
    pk_ = [forget(raw_)] + [V("v_lshl_or_b32", WP[0][p], raw_[2 * p + 1], 16, raw_[2 * p]) for p in range(4)]
    pk_ += [V("v_lshl_or_b32", WP[1][0], raw_[9], 16, raw_[8])] + [V("v_mov_b32", WP[1][p], 0) for p in range(1, 4)]
    extra = {e: [] for e in range(9)}
    extra[1] = only(sSUB, [waitcnt(vm=0)]) + onlyw(4, [I("buffer_atomic_add", [vOne, vFS, sDBG, 0], "offen sc1")])
    extra[2] = r1
    extra[3] = pk_ + only(sALT, a2)
    for e, r in enumerate(kjobs):
        extra[4 if "kt4" in exp else 6] += onlyw(4 + e % 4, r)
    extra[7] = mk_srd(sCK, "A_c_kv") + mk_srd(sWk, "A_w_uk") + mk_srd(sWv, "A_w_uv") + only(sLO4, kv_issue(0))
    hook = only(sLO4, kv_issue(1))
    o += role(sLO4)
    P.add(o)
    gemm4(P, "B1", 9, 4, 3, 9, b1_issue, b1_reads, b1_mfmas, pre=2, rd_span=2, tail_hook=hook, extra=extra,
          first_vm=9 + 10, est=est("B1"), vm_bias={8: 8})
    o = []
    A = o.append
    o += st(1)
    vIW, vQr = v(22), v(23)
    A(V("v_and_b32", t0, 31, vL))
    A(S("s_lshl_b32", sT0, sWV, 5))
    A(V("v_add_u32", t0, sT0, t0))
    A(V("v_mul_u32_u24", t0, IMG_RS, t0))
    A(V("v_lshrrev_b32", t1, 5, vL))
    A(V("v_lshl_add_u32", t0, t1, 3, t0))
    A(V("v_add_u32", vIW, B1_IMG, t0))
    pk = v(64, 16)
    for m in range(2):
        for r in range(8):
            A(V("v_cvt_pk_bf16_f32", pk[8 * m + r], acc[m][2 * r], acc[m][2 * r + 1]))
    A(S("s_cmp_lg_u32", sWV, 7))
    A(I("s_cbranch_scc1", ["B1_NZ"]))
    for r in range(16):
        A(V("v_mov_b32", pk[r], 0))
    A(label("B1_NZ"))
    for m in range(2):
        for g in range(4):
            A(I("ds_write_b64", [vIW, pk[8 * m + 2 * g:8 * m + 2 * g + 2]], f"offset:{(32 * m + 8 * g) * 2}"))
    tr_lane(t3, 3, IMG_RS)
    A(S("s_mul_i32", sT0, sWV, 18 * IMG_RS))
    A(S("s_add_u32", sT0, sT0, B1_IMG))
    A(V("v_add_u32", vQr, sT0, t3))
    A(waitcnt(lgkm=0))
    A(I("s_barrier"))
    o += only(sLO4, kv_issue(2))
    Qf = [[v(64 + (sb * 2 + ks) * 4, 4) for ks in range(2)] for sb in range(2)]
    for sb in range(2):
        for ks in range(2):
            for t in range(2):
                A(dsrtr(Qf[sb][ks][2 * t:2 * t + 2], vQr, (16 * ks + 4 * t) * IMG_RS + 64 * sb))
    for sb in range(2):
        for ks in range(2):
            A(mfma(acc[sb], WP[ks], Qf[sb][ks], 0 if ks == 0 else acc[sb]))
    PHI = [v(64, 12), v(76, 12)]
    E = [v(96 + i) for i in range(18)]
    sL2 = sT2
    A(S("s_mov_b32", sL2, float(LOG2E)))
    for sb in range(2):
        x = acc[sb]
        mx, mn, u0, u1 = t0, t1, t2, t3
        A(V("v_max3_f32", mx, x[0], x[1], x[2]))
        A(V("v_min3_f32", mn, x[0], x[1], x[2]))
        for r in (3, 5, 7):
            A(V("v_max3_f32", mx, mx, x[r], x[r + 1]))
            A(V("v_min3_f32", mn, mn, x[r], x[r + 1]))
        A(V("v_mov_b32", u0, mx))
        A(V("v_mov_b32", u1, mn))
        A(V("v_permlane32_swap_b32", mx, u0))
        A(V("v_permlane32_swap_b32", mn, u1))
        A(V("v_max_f32", mx, mx, u0))
        A(V("v_min_f32", mn, mn, u1))
        A(V("v_mul_f32", mx, sL2, mx))
        A(V("v_mul_f32", mn, sL2, mn))
        for i in range(9):
            A(V("v_fma_f32", E[i], x[i], sL2, Neg(mx)))
            A(V("v_fma_f32", E[9 + i], Neg(x[i]), sL2, mn))
        for i in range(18):
            A(V("v_exp_f32", E[i], E[i]))
        sp, sn = mx, mn
        A(V("v_add_f32", sp, E[0], E[1]))
        A(V("v_add_f32", sn, E[9], E[10]))
        for i in range(2, 9):
            A(V("v_add_f32", sp, sp, E[i]))
            A(V("v_add_f32", sn, sn, E[9 + i]))
        A(V("v_mov_b32", u0, sp))
        A(V("v_mov_b32", u1, sn))
        A(V("v_permlane32_swap_b32", sp, u0))
        A(V("v_permlane32_swap_b32", sn, u1))
        A(V("v_add_f32", sp, sp, u0))
        A(V("v_add_f32", sn, sn, u1))
        A(V("v_rcp_f32", sp, sp))
        A(V("v_rcp_f32", sn, sn))
        for i in range(9):
            A(V("v_mul_f32", E[i], E[i], sp))
            A(V("v_mul_f32", E[9 + i], E[9 + i], sn))
        for p in range(9):
            A(V("v_cvt_pk_bf16_f32", PHI[sb][p], E[2 * p], E[2 * p + 1]))
        for p in range(9, 12):
            A(V("v_mov_b32", PHI[sb][p], 0))
    A(S("s_cmp_ge_u32", sWV, 4))
    A(I("s_cbranch_scc1", ["B1_K"]))
    A(S("s_lshl_b32", sT0, sRB1, 6))
    A(S("s_add_u32", sT0, sT0, sHD))
    A(S("s_mul_i32", sT0, sT0, 3072))
    A(S("s_add_u32", sT0, sT0, WS_PHIQ))
    A(S("s_add_u32", sT1, sT0, 32 * 3072))
    for sb in range(2):
        for F in range(3):
            A(bstore4(PHI[sb][4 * F:4 * F + 4], vL16, sWS, sT1 if sb else sT0, F * 1024, ST))
    A(I("s_branch", ["B1_DONE"]))
    A(label("B1_K"))
    vPW, vPR, vVR, vPR1 = v(24), v(27), v(28), v(114)
    A(S("s_sub_u32", sT0, sWV, 4))
    A(S("s_mul_i32", sT0, sT0, 64 * PHI_RS))
    A(S("s_add_u32", sT0, sT0, PHI_BASE))
    A(V("v_and_b32", t0, 31, vL))
    A(V("v_mul_u32_u24", t0, PHI_RS, t0))
    A(V("v_lshrrev_b32", t1, 5, vL))
    A(V("v_mul_u32_u24", t2, 48, t1))
    A(V("v_add3_u32", vPW, t0, t2, sT0))
    for sb in range(2):
        for F in range(3):
            A(I("ds_write_b128", [vPW, PHI[sb][4 * F:4 * F + 4]], f"offset:{sb * 32 * PHI_RS + 16 * F}"))
    A(V("v_bfe_u32", t2, vL, 2, 2))
    A(V("v_lshl_add_u32", t0, t1, 3, t2))
    A(V("v_mul_u32_u24", t0, PHI_RS, t0))
    A(V("v_and_b32", t2, 1, vL))
    A(V("v_mul_u32_u24", t2, 48, t2))
    A(V("v_add_u32", t0, t0, t2))
    A(V("v_bfe_u32", t2, vL, 1, 1))
    A(V("v_lshl_add_u32", t0, t2, 3, t0))
    A(V("v_add_u32", t0, sT0, t0))
    A(V("v_bfe_u32", t2, vL, 4, 1))
    A(V("v_lshl_add_u32", vPR, t2, 4, t0))
    A(V("v_add_u32", vPR1, 32, t0))
    A(V("v_min_u32", t0, 8, vI))
    A(V("v_mad_u32_u24", t0, vH2, 9, t0))
    A(S("s_mul_i32", sT0, sWV, 18))
    A(S("s_add_u32", sT0, sT0, 72))
    A(V("v_add_u32", t0, sT0, t0))
    A(V("v_mul_u32_u24", t0, IMG_RS, t0))
    A(V("v_lshl_add_u32", t0, t1, 4, t0))
    A(V("v_add_u32", vVR, B1_IMG, t0))
    Vf = [v(96 + 4 * ks, 4) for ks in range(4)]
    Af = [[a(64 + (T * 4 + ks) * 4, 4) for ks in range(4)] for T in range(2)]
    for ks in range(4):
        A(dsr128(Vf[ks], vVR, 32 * ks))
    for T in range(2):
        for ks in range(4):
            for t in range(2):
                A(dsrtr(Af[T][ks][2 * t:2 * t + 2], vPR1 if T else vPR, (16 * ks + 4 * t) * PHI_RS))
    A(V("v_cmp_eq_u32", sM, vI, 9))
    A(V("v_mov_b32", t4, 0x3f803f80))
    for ks in range(4):
        for r in range(4):
            A(V("v_cndmask_b32", Vf[ks][r], Vf[ks][r], t4, sM))
    for T in range(2):
        for ks in range(4):
            A(mfma(acc[T], Af[T][ks], Vf[ks], 0 if ks == 0 else acc[T]))
    A(S("s_lshl_b32", sT0, sRB1, 5))
    A(S("s_add_u32", sT0, sT0, sHD))
    A(S("s_mul_i32", sT0, sT0, 6144))
    A(S("s_add_u32", sT0, sT0, WS_KVP))
    A(S("s_add_u32", sT1, sT0, 4096))
    for g in range(6):
        A(bstore4(acc[g // 4][4 * (g % 4):4 * (g % 4) + 4], vL16, sWS, sT1 if g >= 4 else sT0, (g % 4) * 1024, ST))
    A(label("B1_DONE"))
    o += st(2)

    kXa = [LdsAddr([v(16), v(17), v(18)]), LdsAddr([v(19), v(20), v(21)])]
    kWa = LdsAddr([v(22), v(23), v(24)])
    A(S("s_lshl_b32", sT2, kWM, 13))
    x_read_consts([v(16), v(19)], sT2)
    tr_lane(t3, 3, 256)
    A(V("v_xor_b32", t1, kWN, t1))
    A(V("v_lshl_add_u32", v(22), t1, 6, t3))
    o += kXa[0].setup(v(16)) + kXa[1].setup(v(19)) + kWa.setup(v(22))
    kacc = [[a((m * 2 + j) * 16, 16) for j in range(2)] for m in range(4)]
    kXf = [[v(32 + (b * 4 + m) * 4, 4) for m in range(4)] for b in range(2)]
    kWf = [[v(64 + (b * 2 + j) * 4, 4) for j in range(2)] for b in range(2)]

    def kv_reads(c, ks, b):
        sl = kslot(c)
        r = [dsr128(kXf[b][0], *kXa[ks].at(sl))]
        for j in range(2):
            for t in range(2):
                r.append(dsrtr(kWf[b][j][2 * t:2 * t + 2], *kWa.at(sl + 16384 + j * 8192 + (16 * ks + 4 * t) * 256)))
        for m in range(1, 4):
            r.append(dsr128(kXf[b][m], *kXa[ks].at(sl + m * 2048)))
        return r

    def kv_mfmas(b, first):
        r = []
        for m in range(4):
            r.append(mfma(kacc[m][0], kWf[b][0], kXf[b][m], 0 if first else kacc[m][0]))
            r.append(mfma(kacc[m][1], kXf[b][m], kWf[b][1], 0 if first else kacc[m][1]))
        return r

    QS = 49152
    qslot = lambda c: 16384 + ((c + 1) % 3) * QS
    qXg = [v(123), v(124), v(125), v(126)]
    sQX, sQW, sQWo = L[2], L[3], L[4]
    qsetup = []
    o_save, o = o, qsetup
    A = o.append
    A(S("s_mul_i32", L[0], sPI, 128))
    A(S("s_mul_i32", L[1], sPI, -128))
    A(V("v_mov_b32", t2, L[1]))
    A(V("v_add_u32", t2, 15 * 128, t2))
    A(V("v_mov_b32", t3, L[0]))
    A(V("v_cmp_gt_u32", sM, 2, sWQ))
    A(V("v_cndmask_b32", t3, t2, t3, sM))
    A(V("v_mov_b32", t2, sWQ))
    A(V("v_and_b32", t2, 1, t2))
    A(V("v_lshl_add_u32", t3, t2, 6, t3))
    A(V("v_lshrrev_b32", t0, 3, vL))
    A(V("v_add_u32", t0, t3, t0))
    A(V("v_mul_u32_u24", t0, 1152, t0))
    A(V("v_lshrrev_b32", t1, 4, vL))
    A(V("v_xor_b32", t1, t1, vL))
    A(V("v_and_b32", t1, 7, t1))
    A(V("v_lshl_add_u32", qXg[0], t1, 4, t0))
    A(V("v_xor_b32", t1, 4, t1))
    A(V("v_lshl_add_u32", qXg[1], t1, 4, t0))
    A(V("v_add_u32", qXg[1], 8 * 1152 - 1024, qXg[1]))
    A(V("v_add_u32", qXg[2], 16 * 1152 - 2048, qXg[0]))
    A(V("v_add_u32", qXg[3], 16 * 1152 - 2048, qXg[1]))
    A(S("s_mul_i32", sQX, sWQ, 8192))
    A(S("s_mul_i32", sQW, sWQ, 4096))
    A(S("s_mul_i32", sQWo, sWQ, 8 * 8192))
    o = o_save
    A = o.append
    sXq, sWqq = sA, sB

    def q_issue(c):
        d = []
        for hf in range(2):
            d += [S("s_add_u32", M0, sQX, qslot(c) + 4096 * hf), S("s_mov_b32", sO1, 128 * c + hf * 32 * 1152)]
            d += [dma(qXg[i], sXq, sO1, i * 1024) for i in range(4)]
        for hf in range(2):
            d += [S("s_add_u32", M0, sQW, qslot(c) + 32768 + 2048 * hf), S("s_add_u32", sO2, sQWo, (64 * c + 8 * hf) * 8192)]
            d += [dma(kWg[i], sWqq, sO2, i * 1024) for i in range(2)]
        return d

    vPZ, vPZr = v(80), v(81)
    A(V("v_mov_b32", vPZ, 0))
    extra = {e: [] for e in range(16)}
    extra[1] = qsetup
    extra[3] = only(sSUB, [waitcnt(vm=0)])
    extra[4] = onlyw(4, [I("buffer_store_dword", [vOne, vFS, sWS, sFB], f"offen offset:{4 * F_B1} sc1"),
                         I("buffer_atomic_add", [vOne, vFS, sDBG, 0], "offen offset:4 sc1")])
    if "l2q" in exp:
        for e, r in enumerate(touch_jobs([("A_x", 72)]) + xtouch_jobs("A_w_q", 576)):
            extra[2] += onlyw(5 + e % 3, r)
        for e in range(9):
            r = mk_srd(sTD, "A_x") + [S("s_lshr_b32", L[23], sW, 3), S("s_mul_i32", L[23], L[23], 576 * 128),
                                      S("s_add_u32", L[23], L[23], e * 8192), V("v_lshlrev_b32", t0, 7, vL),
                                      I("buffer_load_dword", [vTD, t0, sTD, L[23]], "offen", dst=[])]
            ep = (6 + e // 2) if "l2thin" in exp else (8 + 2 * (e // 5))
            extra[ep] += onlyw(5 + e % 3, r)
    elif "notouch" not in exp:
        qj = touch_jobs([("A_x", 72), ("A_w_q", 144)])
        for e, r in enumerate(qj):
            extra[5 + 3 * (e // 3)] += onlyw(5 + e % 3, r)
    okz = lab("Z_OK")
    extra[7] += onlyw(4, [I("buffer_load_dword", [vPZr, vPZ, sDBG, 0], "offen sc1", dst=[])])
    extra[11] += onlyw(4, [waitcnt(vm=0), V("v_cmp_ne_u32", VCC, 256, vPZr), nop(2), I("s_cbranch_vccz", [okz])] +
                       poll(vPZ, sDBG, 256, vPZr) + [label(okz), S("s_mov_b64", VCC, 0)])
    extra[14] += mk_srd(sXq, "A_x") + mk_srd(sWqq, "A_w_q") + only(sSUB, q_issue(0))
    hook = only(sSUB, q_issue(1))
    o += role(sLO4)
    P.add(o)
    gemm4(P, "KV", 16, 2, 5, 8, kv_issue, kv_reads, kv_mfmas, pre=3, tail_hook=hook, extra=extra, est=est("KV"))
    o = []
    A = o.append
    o += st(3)
    kK, kV0, kV1 = L[18], L[19], L[20]
    A(S("s_lshl_b32", sT0, sHEAD, 19))
    A(S("s_lshl_b32", sT1, sPI, 16))
    A(S("s_add_u32", sT0, sT0, sT1))
    A(S("s_lshl_b32", sT1, kWM, 15))
    A(S("s_add_u32", sT0, sT0, sT1))
    vSTm = [v(10), v(11), v(12), v(13)]
    A(V("v_add_u32", vSTm[0], sT0, vL16))
    for m in range(1, 4):
        A(V("v_add_u32", vSTm[m], 8192 * m, vSTm[0]))
    A(S("s_lshl_b32", kK, kWN, 11))
    A(S("s_lshl_b32", kV0, kWN, 10))
    A(S("s_add_u32", kK, kK, WS_KF))
    A(S("s_add_u32", kV0, kV0, WS_VF))
    A(S("s_add_u32", kV1, kV0, 4096))
    TT = [v(96 + i) for i in range(16)]
    CV = [v(112 + i) for i in range(8)]
    PKs = [v(28, 4), v(112, 4)]

    def kv_st(n):
        tile, b = n // 2, n % 2
        m, j = tile // 2, tile % 2
        src = a(16 * tile + 8 * b, 8)
        pk = PKs[0]
        r = [V("v_accvgpr_read_b32", CV[q], src[q]) for q in range(8)]
        r += [V("v_cvt_pk_bf16_f32", pk[q], CV[2 * q], CV[2 * q + 1]) for q in range(4)]
        KST = "" if "kvplain" in exp else ST
        if j == 0:
            r.append(bstore4(pk, vSTm[m], sWS, kK, b * 1024, KST))
        else:
            r.append(bstore4(pk, vSTm[m], sWS, kV1 if b else kV0, 0, KST))
        return r

    o += only(sSUB, [waitcnt(vm=24)])
    for n in (12, 13):
        o += kv_st(n)
    o += st(4)

    qXa = [v(16), v(17), v(18), v(19)]
    qWa = [v(20), v(21)]
    A(S("s_lshr_b32", sT2, sWV, 1))
    A(S("s_lshl_b32", sT2, sT2, 13))
    A(S("s_add_u32", sT2, sT2, qslot(0)))
    A(V("v_and_b32", t0, 31, vL))
    A(V("v_lshlrev_b32", t1, 7, t0))
    A(V("v_add_u32", t1, sT2, t1))
    A(V("v_lshrrev_b32", t2, 5, vL))
    A(V("v_bfe_u32", t3, vL, 1, 3))
    A(V("v_xor_b32", t2, t2, t3))
    A(V("v_lshl_add_u32", qXa[0], t2, 4, t1))
    for ks in range(1, 4):
        A(V("v_xor_b32", qXa[ks], ks << 5, qXa[0]))
    tr_lane(t3, 3, 256)
    A(S("s_and_b32", sT0, sWV, 1))
    A(S("s_lshl_b32", sT0, sT0, 1))
    A(V("v_xor_b32", t1, sT0, t1))
    A(V("v_lshl_add_u32", qWa[0], t1, 6, t3))
    A(V("v_add_u32", qWa[0], qslot(0) + 32768, qWa[0]))
    A(V("v_xor_b32", qWa[1], 64, qWa[0]))
    Sb = [v(32, 16), v(48, 16)]
    NEGM = v(64, 16)
    Pb = [v(80, 8), v(88, 8)]
    T = TT
    O = [a(16 * i, 16) for i in range(4)]
    Q = [a(64 + 4 * i, 4) for i in range(8)]
    FR = [a(96 + 4 * i, 4) for i in range(8)]
    qacc = [[v(32 + 16 * (2 * m + j), 16) for j in range(2)] for m in range(2)]
    qXf = [[v(96 + (2 * b + m) * 4, 4) for m in range(2)] for b in range(2)]
    qWf = [[FR[2 * b + j] for j in range(2)] for b in range(2)]

    def q_reads(c, ks, b):
        r = []
        if ks == 0 and c > 0:
            r += [V("v_add_u32", x, qslot(c) - qslot(c - 1), x) for x in qXa + qWa]
        r.append(dsr128(qXf[b][0], qXa[ks]))
        for j in range(2):
            for t in range(2):
                r.append(dsrtr(qWf[b][j][2 * t:2 * t + 2], qWa[j], (16 * ks + 4 * t) * 256))
        r.append(dsr128(qXf[b][1], qXa[ks], 4096))
        return r

    def q_mfmas(b, first):
        return [mfma(qacc[m][j], qWf[b][j], qXf[b][m], 0 if first else qacc[m][j]) for m in range(2) for j in range(2)]

    ASLOT = 32768
    sK, sV = sC, sD
    sKO, sVO, sWRA, sRDA, sCNT, sREM = L[0:6]
    sMk = [s(56 + 2 * i, 2) for i in range(4)]
    vKVg, vAc, vAn = v(124), v(125), v(126)
    zo = [V("v_accvgpr_write_b32", O[dt][r], 0) for dt in range(4) for r in range(16)]
    todo = [n for n in range(16) if n not in (12, 13)]
    extra = {e: [] for e in range(9)}
    for i, n in enumerate(todo):
        extra[i // 4] += kv_st(n)
    extra[4] = zo[:32] + only(sLO4, [waitcnt(vm=0)]) + only(sSUB, [waitcnt(vm=12)])
    extra[5] = onlyw(0, wg_flag(F_KV)) + zo[32:]
    vP0, vP1 = v(120), v(121)
    o += [S("s_and_b32", sT0, sW, 31), V("v_and_b32", vP0, 3 if "stag" in exp else 7, vL), V("v_lshlrev_b32", vP0, 5, vP0),
          V("v_add_u32", vP0, sT0, vP0), V("v_lshlrev_b32", vP0, 8, vP0), V("v_add_u32", vP0, WS_FLAG + 4 * F_KV, vP0)]
    vP4, vP4r = v(122), t4
    A(V("v_mov_b32", vP4, 4))
    extra[7] = onlyw(1, [I("buffer_load_dword", [vP4r, vP4, sDBG, 0], "offen sc1", dst=[])]) + \
        onlyw(0, [I("buffer_load_dword", [vP1, vP0, sWS, 0], "offen sc1", dst=[])])
    okl, okr = lab("Q_OK"), lab("Q_OKR")
    pre = onlyw(0, [waitcnt(vm=0), V("v_cmp_ne_u32", VCC, 1, vP1), nop(2), I("s_cbranch_vccz", [okl])] +
                poll(vP0, sWS, 1, vP1) + [label(okl), S("s_mov_b64", VCC, 0)])
    pre += onlyw(1, [waitcnt(vm=0), V("v_cmp_ne_u32", VCC, 256, vP4r), nop(2), I("s_cbranch_vccz", [okr])] +
                 poll(vP4, sDBG, 256, vP4r) + [label(okr), S("s_mov_b64", VCC, 0)])
    sGR, sCQ = L[6], L[7]
    sUN, sU0, sWH_, sW1, sW2, sW3, sKB = s(20), s(21), s(22), s(23), s(24), s(25), s(26)

    def wblock(dst, i):
        return [S("s_add_u32", dst, sCQ, i), S("s_and_b32", dst, dst, 3), S("s_lshl_b32", sT1, sGR, 2), S("s_add_u32", dst, dst, sT1),
                S("s_lshl_b32", sT1, sCQ, 5), S("s_add_u32", dst, dst, sT1), S("s_lshl_b32", dst, dst, 15),
                S("s_add_u32", dst, dst, WS_WA)]

    A(S("s_lshr_b32", sGR, sHEAD, 2))
    A(S("s_and_b32", sCQ, sHEAD, 3))
    o += wblock(sW1, 1) + wblock(sW2, 2) + wblock(sW3, 3) + wblock(sWH_, sWQ)
    A(S("s_sub_u32", sWH_, sWH_, WS_WA))
    A(S("s_lshr_b32", sWH_, sWH_, 3))
    A(S("s_add_u32", sWH_, sWH_, WS_WH))
    A(S("s_sub_u32", sWH_, sWH_, sPX))
    A(S("s_lshr_b32", sU0, sNB, 1))
    A(S("s_lshl_b32", sKB, sHEAD, 19))
    hook = [V("v_add_u32", vKVg, sPX, vL16)]
    H = hook.append
    H(S("s_lshl_b32", sT0, sSUB, 15))
    H(S("s_add_u32", sT0, sT0, sPX))
    H(S("s_add_u32", sT0, sT0, 2 * ASLOT))
    H(S("s_mov_b32", M0, sT0))
    H(S("s_lshl_b32", sT1, sSUB, 14))
    H(S("s_add_u32", sT1, sT1, sKB))
    H(S("s_add_u32", sT1, sT1, WS_KF + 8192))
    for i in range(4):
        H(dmal(vKVg, sWS, sT1, i * 1024))
    H(S("s_add_u32", M0, sT0, 16384))
    H(S("s_cmp_ge_u32", sWQ, 2))
    H(S("s_cselect_b32", sT1, WS_VF - 8192, WS_KF))
    H(S("s_cmp_eq_u32", sSUB, 1))
    H(S("s_cselect_b32", sT1, WS_VF + 8192, sT1))
    H(S("s_add_u32", sT1, sT1, sKB))
    for i in range(4):
        H(dmal(vKVg, sWS, sT1, i * 1024))
    hook += wblock(sT0, 0)
    H(S("s_lshl_b32", sT1, sSUB, 14))
    H(S("s_add_u32", sT0, sT0, sT1))
    H(S("s_add_u32", sT1, sT1, sPX))
    H(S("s_add_u32", M0, sT1, 131072))
    for i in range(4):
        H(dmal(vKVg, sWS, sT0, i * 1024))

    def kvdma():
        d = [S("s_mov_b32", M0, sWRA)]
        for i in range(4):
            d.append(dmal(vKVg, sWS, sKO, i * 1024))
        d.append(S("s_add_u32", M0, sWRA, 16384))
        for i in range(4):
            d.append(dmal(vKVg, sWS, sVO, i * 1024))
        d += [S("s_add_u32", sKO, sKO, 16384), S("s_add_u32", sVO, sVO, 16384), S("s_add_u32", sWRA, sWRA, ASLOT),
              S("s_and_b32", sWRA, sWRA, 4 * ASLOT - 1), S("s_add_u32", sUN, sUN, 1),
              S("s_cmp_eq_u32", sUN, sU0), S("s_cselect_b32", sKO, sWH_, sKO),
              S("s_sub_u32", sT0, sUN, 1), S("s_cmp_eq_u32", sT0, sU0), S("s_cselect_b32", sKO, sW1, sKO),
              S("s_sub_u32", sT0, sUN, 2), S("s_cmp_eq_u32", sT0, sU0), S("s_cselect_b32", sKO, sW2, sKO),
              S("s_add_u32", sT0, sKO, 16384), S("s_cmp_gt_u32", sUN, sU0), S("s_cselect_b32", sVO, sT0, sVO)]
        return d

    def guarded_dma():
        lb = lab("A_ND")
        return [S("s_cmp_lg_u32", sSUB, 0), I("s_cbranch_scc1", [lb])] + kvdma() + [label(lb)]

    H(S("s_mov_b32", sWRA, sPX))
    H(S("s_add_u32", sKO, sKB, WS_KF + 5 * 8192))
    H(S("s_add_u32", sVO, sKB, WS_VF + 3 * 8192))
    H(S("s_mov_b32", sUN, 2))
    o += role(sSUB)
    P.add(o)
    gemm4(P, "Q", 9, 4, 3, 12, q_issue, q_reads, q_mfmas, pre=2, extra=extra, tail_hook=hook, pre_hook=pre, est=est("Q"),
          first_vm=12 + 2)
    o = []
    A = o.append
    o += st(5)
    sCc = sT1
    A(S("s_mov_b32", sCc, float(CSCALE)))
    A(S("s_lshr_b32", sT0, sWV, 1))
    A(S("s_lshl_b32", sT0, sT0, 14))
    A(S("s_and_b32", sT2, sWV, 1))
    A(S("s_lshl_b32", sT2, sT2, 12))
    A(S("s_add_u32", sT0, sT0, sT2))
    A(V("v_add_u32", t0, sT0, vL16))
    A(I("s_barrier"))
    for m in range(2):
        for j in range(2):
            x = qacc[m][j]
            for r in range(16):
                A(V("v_mul_f32", x[r], sCc, x[r]))
            for r in range(8):
                A(V("v_cvt_pk_bf16_f32", x[r], x[2 * r], x[2 * r + 1]))
            for b in range(2):
                A(I("ds_write_b128", [t0, x[4 * b:4 * b + 4]], f"offset:{m * 8192 + (2 * j + b) * 1024}"))
    A(S("s_lshl_b32", sT0, sWV, 13))
    A(V("v_add_u32", v(122), sT0, vL16))
    o += st(6)

    vPC, vP1 = v(20), v(21)
    sXD = s(27)
    A(S("s_mov_b32", sXD, 1))
    vWB = [v(22), v(23), v(24), v(25)]
    vWHf = v(26)
    A(S("s_lshl_b32", sT0, sPI, 5))
    A(S("s_add_u32", sT0, sT0, sGR))
    A(S("s_lshl_b32", sT0, sT0, 8))
    A(S("s_lshl_b32", sT1, sWV, 2))
    A(S("s_add_u32", sT0, sT0, sT1))
    A(S("s_add_u32", sT0, sT0, WS_FLAG + 4 * F_CTX))
    A(V("v_and_b32", t0, 3, vL))
    A(V("v_lshlrev_b32", t0, 11, t0))
    A(V("v_add_u32", vPC, sT0, t0))
    A(V("v_add_u32", vWB[0], 131072, vL16))
    sSL = L[8]
    for i in range(1, 5):
        A(S("s_add_u32", sT0, sU0, (i % 4) + 2))
        A(S("s_and_b32", sT0, sT0, 3))
        A(S("s_lshl_b32", sT0, sT0, 15))
        if i < 4:
            A(V("v_add_u32", vWB[i], sT0, vL16))
        if i == 3:
            A(S("s_mov_b32", sSL, sT0))
    A(V("v_and_b32", t0, 15, vL))
    A(V("v_lshrrev_b32", t1, 5, vL))
    A(V("v_lshlrev_b32", t1, 8, t1))
    A(V("v_lshl_add_u32", t0, t0, 4, t1))
    A(V("v_add_u32", vWHf, sT0, t0))
    XA = [a(64 + 4 * i, 4) for i in range(8)] + [a(4 * i, 4) for i in range(16)] + [a(96 + 4 * i, 4) for i in range(8)]

    vLs, vThr, vLB, vD, vNINF = v(10), v(11), v(12), v(13), v(14)
    vB = [v(15), v(16)]
    vF, vDl, vFW = v(17), v(18), v(19)
    A(V("v_mov_b32", vLs, 0))
    A(V("v_mov_b32", vThr, float(2.0 ** THR_LOG2)))
    A(V("v_mov_b32", vNINF, 0xff800000))
    A(V("v_and_b32", t0, 31, vL))
    A(V("v_lshrrev_b32", t1, 5, vL))
    A(V("v_lshlrev_b32", t1, 2, t1))
    A(V("v_sub_u32", t0, t0, t1))
    A(V("v_add_u32", vD, sQ0, t0))
    A(S("s_lshl_b32", sT0, sWV, 2))
    A(V("v_mov_b32", t0, sT0))
    A(V("v_mov_b32", t1, BIG))
    A(V("v_cmp_eq_u32", VCC, 0, vL))
    A(V("v_cndmask_b32", vFW, t1, t0, VCC))

    def wave_flag(word):
        return [I("buffer_store_dword", [vOne, vFW, sWS, sFB], f"offen offset:{4 * word} sc1")]

    if "prio" in exp:
        o += only(sSUB, [S("s_setprio", 1)])
    A(waitcnt(vm=0, lgkm=0))
    A(I("s_barrier"))
    vA = vAc
    A(V("v_add_u32", vA, 2 * ASLOT, vL16))
    for db in range(8):
        A(dsr128(Q[db], v(122), db * 1024))
    for db in range(8):
        A(dsr128(FR[db], vA, 16384 + db * 1024))
    A(waitcnt(lgkm=8))
    A(I("s_barrier"))
    o += guarded_dma()
    for db in range(8):
        A(mfma(Sb[0], FR[db], Q[db], 0 if db == 0 else Sb[0]))
    A(S("s_mov_b32", sRDA, 2 * ASLOT))

    def frag_read(n, half):
        off = 16384 + half * 8192 + n * 1024 if n < 8 else half * 8192 + (n - 8) * 1024
        return dsr128(FR[n % 8], vA, off)

    def tail_pair(p, q0, q1, P_):
        r = []
        if p == 0:
            r.append(V("v_mov_b32", vB[0], q0))
            r.append(V("v_mov_b32", vB[1], q1))
        else:
            r.append(V("v_add_f32", vB[0], vB[0], q0))
            r.append(V("v_add_f32", vB[1], vB[1], q1))
        r.append(V("v_cvt_pk_bf16_f32", P_[p], q0, q1))
        return r

    def mask_ops(S_):
        r = []
        for g in range(4):
            for k in range(4):
                r.append(V("v_cmp_lt_i32", sMk[k], vD, 8 * g + k))
            for k in range(4):
                r.append(V("v_cndmask_b32", S_[4 * g + k], S_[4 * g + k], vNINF, sMk[k]))
        r.append(V("v_subrev_u32", vD, 32, vD))
        return r

    def softmax(cb, masked):
        S_, P_ = Sb[cb], Pb[cb]
        r = mask_ops(S_) if masked else []
        for p in range(8):
            r.append(V("v_exp_f32", T[(2 * p) % 8], S_[2 * p]))
            r.append(V("v_exp_f32", T[(2 * p + 1) % 8], S_[2 * p + 1]))
            if p > 0:
                r += tail_pair(p - 1, T[(2 * p - 2) % 8], T[(2 * p - 1) % 8], P_)
        r += tail_pair(7, T[6], T[7], P_)
        r.append(V("v_add_f32", vB[0], vB[0], vB[1]))
        return r

    def rowmax(S_, dst, tmp):
        r = [V("v_max3_f32", dst, S_[0], S_[1], S_[2])]
        for q in range(3, 15, 2):
            r.append(V("v_max3_f32", dst, dst, S_[q], S_[q + 1]))
        r += [V("v_max_f32", dst, dst, S_[15]), V("v_mov_b32", tmp, dst), V("v_permlane32_swap_b32", dst, tmp),
              V("v_max_f32", dst, dst, tmp), V("v_add_f32", dst, HEADROOM, dst)]
        return r

    slow_sites = []

    def step(half, has_pv, has_qk, masked, ctl=()):
        cb, nb = half, 1 - half
        M, frs = [], []
        if has_pv:
            for vb in range(2):
                for dt in range(4):
                    M.append(mfma(O[dt], FR[(4 * vb + dt) % 8], Pb[nb][4 * vb:4 * vb + 4], O[dt]))
                    frs.append(4 * vb + dt)
        if has_qk:
            for db in range(8):
                M.append(mfma(Sb[nb], FR[db], Q[db], NEGM if db == 0 else Sb[nb]))
                frs.append(8 + db)
        n = len(M)
        seq = [(x, half) for x in frs] + [(x, 1 - half) for x in range(16)]
        gaps = [[] for _ in M]
        g3 = [[] for _ in M]
        for j in range(n):
            if half == 1 and j + LA == n:
                gaps[j].append(V("v_add_u32", vA, sRDA, vL16))
            gaps[j].append(frag_read(*seq[j + LA]))
            if j % 2 == 1 and j + 1 < n:
                g3[j].append(waitcnt(lgkm=LA - 2))
        if has_pv:
            gaps[0].append(V("v_add_f32", vLs, vLs, vB[0]))
        if half == 0:
            gaps[0] += [waitcnt(vm=8), I("s_barrier")]
            gaps[1] += guarded_dma()
        else:
            gaps[0] += [S("s_add_u32", sRDA, sRDA, ASLOT), S("s_and_b32", sRDA, sRDA, 4 * ASLOT - 1)]
            gaps[1] += list(ctl)
        smx = softmax(cb, masked) + [V("v_cmp_gt_f32", VCC, vB[0], vThr)]
        g2 = interleave(M, smx, 2 if has_pv else 1, n - 1)
        sl, rt = lab("A_SLOW"), lab("A_RET")
        g3[n - 1] += [I("s_cbranch_vccnz", [sl]), label(rt)]
        slow_sites.append((sl, rt, cb, has_qk))
        return weave(M, gaps, g2, g3)

    for n in range(LA):
        A(dsr128(FR[n], vA, n * 1024))
    o += mask_ops(Sb[0]) + rowmax(Sb[0], vDl, t1)
    for r in range(16):
        A(V("v_sub_f32", NEGM[r], 0, vDl))
    for r in range(16):
        A(V("v_sub_f32", Sb[0][r], Sb[0][r], vDl))
    o += step(0, False, True, False) + step(1, True, True, True)
    if "stag" in exp:
        o += onlyw(4, [V("v_add_u32", v(120), 128 * 256, v(120))] + poll(v(120), sWS, 1, v(121)))
    A(S("s_sub_u32", sREM, sNB, sN))
    A(S("s_lshr_b32", sREM, sREM, 1))
    A(S("s_add_u32", sREM, sREM, 1))
    A(S("s_cmp_eq_u32", sN, 4))
    A(I("s_cbranch_scc1", ["A_PF"]))
    A(S("s_sub_u32", sT0, sN, 6))
    A(S("s_lshl_b32", sT0, sT0, 5))
    A(V("v_subrev_u32", vD, sT0, vD))
    A(S("s_lshr_b32", sCNT, sN, 1))
    A(S("s_sub_u32", sCNT, sCNT, 3))
    P.add(o)
    lb = step(0, True, True, False) + step(1, True, True, False, ctl=[S("s_sub_u32", sCNT, sCNT, 1), S("s_cmp_lg_u32", sCNT, 0)])
    lb += [I("s_cbranch_scc1", ["A_LOOP"])]
    P.loop("A_LOOP", lb)
    SK = "noskip" not in exp
    o = []
    A = o.append
    if SK:
        o += [S("s_cmp_eq_u32", sWQ, 0), I("s_cbranch_scc1", ["A_E0"])]
    o += step(0, True, True, True)
    if SK:
        o += [S("s_cmp_eq_u32", sWQ, 1), I("s_cbranch_scc1", ["A_E1"])]
    o += step(1, True, True, True)
    A(label("A_PF"))
    A(S("s_sub_u32", sREM, sREM, 1))
    if SK:
        o += [S("s_cmp_le_u32", sWQ, 2), I("s_cbranch_scc1", ["A_E0"])]
    o += step(0, True, True, True)
    A(label("A_E1"))
    o += step(1, True, False, True)
    A(V("v_add_f32", vLs, vLs, vB[0]))
    A(S("s_cmp_eq_u32", sREM, 0))
    A(I("s_cbranch_scc1", ["A_FIN"]))
    A(waitcnt(vm=8))
    A(I("s_barrier"))
    o += guarded_dma()
    A(S("s_sub_u32", sREM, sREM, 1))
    A(label("A_FIN"))

    def fin(half):
        M = [mfma(O[dt], FR[4 * vb + dt], Pb[1 - half][4 * vb:4 * vb + 4], O[dt]) for vb in range(2) for dt in range(4)]
        gaps = [[] for _ in M]
        for j in range(8 - LA):
            gaps[j].append(frag_read(j + LA, half))
        return weave(M, gaps)

    o += fin(0)
    if SK:
        A(I("s_branch", ["A_EPI"]))
        A(label("A_E0"))
        o += step(0, True, False, True)
        A(V("v_add_f32", vLs, vLs, vB[0]))
        o += fin(1)
        A(label("A_EPI"))
    o += st(7)
    A(V("v_mov_b32", t0, vLs))
    A(V("v_permlane32_swap_b32", t0, vLs))
    A(V("v_add_f32", t0, t0, vLs))
    A(V("v_rcp_f32", vF, t0))
    A(S("s_lshl_b32", sT0, sQ0, 13))
    A(S("s_lshl_b32", sT1, sHEAD, 13))
    A(S("s_add_u32", sT0, sT0, sT1))
    A(S("s_add_u32", sT0, sT0, WS_CTX))
    A(S("s_add_u32", sT1, sT0, 4096))
    for dt in range(4):
        Tm, Pk = Sb[dt % 2], Pb[dt % 2]
        for r in range(16):
            A(V("v_accvgpr_read_b32", Tm[r], O[dt][r]))
        for r in range(16):
            A(V("v_mul_f32", Tm[r], Tm[r], vF))
        for r in range(8):
            A(V("v_cvt_pk_bf16_f32", Pk[r], Tm[2 * r], Tm[2 * r + 1]))
        for b in range(2):
            db = 2 * dt + b
            A(bstore4(Pk[4 * b:4 * b + 4], vL16, sWS, sT0 if db < 4 else sT1, (db % 4) * 1024, "" if "ctxplain" in exp else ST))
        for r in range(8):
            A(V("v_accvgpr_write_b32", XA[2 * dt + r // 4][r % 4], Pk[r]))
    A(S("s_cmp_eq_u32", sSUB, 0))
    A(I("s_cbranch_scc1", ["A_SHORT"]))
    A(S("s_cmp_eq_u32", sREM, 0))
    A(I("s_cbranch_scc1", ["A_DONE"]))
    A(I("s_barrier"))
    A(I("s_branch", ["A_DONE"]))
    A(label("A_SHORT"))
    def interval(work):
        return [waitcnt(vm=8), I("s_barrier")] + work + kvdma()

    def checked(vaddr, vres):
        ok = lab("SJ_OK")
        return [V("v_cmp_ne_u32", VCC, 1, vres), nop(2), I("s_cbranch_vccz", [ok])] + poll(vaddr, sWS, 1, vres) + [label(ok)]

    vJ, vJr = v(116), v(117)
    A(S("s_cmp_ge_u32", sW, 48))
    A(I("s_cbranch_scc1", ["A_NKVR"]))
    sJ, sJo = L[16], L[17]
    A(S("s_lshl_b32", sJ, sW, 2))
    A(S("s_add_u32", sJ, sJ, sWQ))
    A(S("s_mul_i32", sT0, sJ, 43691))
    A(S("s_lshr_b32", sT0, sT0, 20))
    A(S("s_lshr_b32", sT1, sT0, 2))
    A(S("s_and_b32", sT0, sT0, 3))
    A(S("s_lshl_b32", sT0, sT0, 6))
    A(S("s_add_u32", sT0, sT0, sT1))
    A(V("v_bfe_u32", t0, vL, 3, 2))
    A(V("v_lshlrev_b32", t0, 1, t0))
    A(V("v_and_b32", t1, 7, vL))
    A(V("v_lshl_add_u32", t0, t1, 3, t0))
    A(V("v_add_u32", t0, sT0, t0))
    A(V("v_lshlrev_b32", t0, 8, t0))
    A(V("v_add_u32", vJ, WS_FLAG + 4 * F_B1, t0))
    A(S("s_lshl_b32", sJo, sJ, 10))
    A(S("s_add_u32", sJo, sJo, WS_KVP))
    R = [v(32 + 4 * i, 4) for i in range(16)]
    KS_ = v(96, 4)

    def kvr_loads():
        r = []
        for i in range(16):
            r += [bload4(R[i], vL16, sWS, sJo, 0, LD), S("s_add_u32", sJo, sJo, 192 * 1024)]
        return r

    def kvr_sum(first):
        r = [forget(R)]
        for step_ in (1, 2, 4, 8):
            for w in range(0, 16, 2 * step_):
                r += [V("v_add_f32", R[w][q], R[w][q], R[w + step_][q]) for q in range(4)]
        r += [V("v_mov_b32", KS_[q], R[0][q]) if first else V("v_add_f32", KS_[q], KS_[q], R[0][q]) for q in range(4)]
        return r

    o += interval([I("buffer_load_dword", [vJr, vJ, sWS, 0], "offen sc1", dst=[])])
    o += interval(wave_flag(F_CTX) + checked(vJ, vJr) + kvr_loads())
    o += interval(kvr_sum(True) + kvr_loads())
    o += interval(kvr_sum(False) + [
        V("v_cvt_pk_bf16_f32", KS_[0], KS_[0], KS_[1]), V("v_cvt_pk_bf16_f32", KS_[1], KS_[2], KS_[3]),
        S("s_lshr_b32", sT0, sJ, 1), S("s_lshl_b32", sT0, sT0, 10), S("s_and_b32", sT1, sJ, 1), S("s_lshl_b32", sT1, sT1, 3),
        S("s_add_u32", sT0, sT0, sT1), S("s_add_u32", sT0, sT0, WS_KVF),
        I("buffer_store_dwordx2", [KS_[0:2], vL16, sWS, sT0], "offen " + ST)])
    o += interval(wave_flag(F_KVR))
    A(S("s_sub_u32", sREM, sREM, 5))
    A(I("s_branch", ["A_DL0"]))
    A(label("A_NKVR"))
    A(S("s_sub_u32", L[18], sW, 96))
    A(S("s_cmp_ge_u32", L[18], 128))
    A(I("s_cbranch_scc1", ["A_DL0"]))
    sSB, sH0 = L[16], L[17]
    A(S("s_lshr_b32", sSB, L[18], 1))
    A(S("s_and_b32", sH0, L[18], 1))
    A(S("s_lshl_b32", sH0, sH0, 4))
    A(S("s_lshl_b32", sT0, sWQ, 2))
    A(S("s_add_u32", sH0, sH0, sT0))
    A(S("s_mul_i32", sT0, sH0, 6))
    A(V("v_min_u32", t0, 23, vL))
    A(V("v_add_u32", t0, sT0, t0))
    A(V("v_and_b32", t1, 3, t0))
    A(V("v_lshrrev_b32", t0, 2, t0))
    A(V("v_lshlrev_b32", t0, 8, t0))
    A(V("v_lshl_add_u32", t0, t1, 2, t0))
    A(V("v_add_u32", vJ, WS_FLAG + 4 * F_KVR, t0))
    Pf = [[v(32 + 12 * k + 4 * F, 4) for F in range(3)] for k in range(4)]
    Kf = [[a(12 * k + 4 * F, 4) for F in range(3)] for k in range(4)]
    Cs = [v(80, 16), v(96, 16)]
    ld = [S("s_lshl_b32", sT0, sSB, 5), S("s_add_u32", sT0, sT0, sH0), S("s_mul_i32", sT0, sT0, 3072),
          S("s_add_u32", sT0, sT0, WS_PHIQ), S("s_mul_i32", sT1, sH0, 3072), S("s_add_u32", sT1, sT1, WS_KVF)]
    for k in range(4):
        for F in range(3):
            ld += [bload4(Pf[k][F], vL16, sWS, sT0, F * 1024, LD), bload4(Kf[k][F], vL16, sWS, sT1, F * 1024, LD)]
        ld += [S("s_add_u32", sT0, sT0, 3072), S("s_add_u32", sT1, sT1, 3072)]
    cp = [forget([x for k in range(4) for x in Pf[k] + Kf[k]]),
          S("s_mul_i32", sT2, sSB, 36), S("s_add_u32", sT0, sT2, sH0), S("s_lshl_b32", sT0, sT0, 10), S("s_add_u32", sT0, sT0, WS_OF),
          S("s_lshr_b32", sT1, sH0, 3), S("s_add_u32", sT1, sT1, sT2), S("s_lshl_b32", sT1, sT1, 10),
          S("s_add_u32", sT1, sT1, WS_OF + 32 * 1024), S("s_and_b32", sT2, sH0, 7), S("s_lshl_b32", sT2, sT2, 1),
          S("s_add_u32", sT1, sT1, sT2)]
    XO = [v(112), v(113), v(114), v(115)]
    for k in range(4):
        C = Cs[k % 2]
        cp += [mfma(C, Kf[k][F], Pf[k][F], 0 if F == 0 else C) for F in range(3)]
        cp += [V("v_add_f32", t0, 1e-6, C[9]), V("v_rcp_f32", t0, t0)]
        cp += [V("v_mul_f32", C[i], C[i], t0) for i in range(9)]
        cp += [V("v_cvt_pk_bf16_f32", Pf[k][0][p], C[2 * p], C[2 * p + 1]) for p in range(4)]
        cp += [V("v_mov_b32", XO[k], C[8]), bstore4(Pf[k][0], vL16, sWS, sT0, k * 1024, ST)]
    cp += [V("v_cvt_pk_bf16_f32", XO[0], XO[0], XO[1]), V("v_cvt_pk_bf16_f32", XO[1], XO[2], XO[3]),
           I("buffer_store_dwordx2", [v(112, 2), vL16, sWS, sT1], "offen " + ST)]
    o += interval([I("buffer_load_dword", [vJr, vJ, sWS, 0], "offen sc1", dst=[])])
    o += interval(wave_flag(F_CTX) + checked(vJ, vJr) + ld)
    o += interval(cp)
    o += interval(wave_flag(F_O))
    A(S("s_sub_u32", sREM, sREM, 4))
    xl = []
    for i in range(1, 4):
        xl += [S("s_add_u32", sT0, sCQ, i), S("s_and_b32", sT0, sT0, 3), S("s_lshl_b32", sT1, sGR, 2), S("s_add_u32", sT0, sT0, sT1),
               S("s_add_u32", sT0, sT0, sQ0), S("s_lshl_b32", sT0, sT0, 13), S("s_add_u32", sT0, sT0, WS_CTX),
               S("s_add_u32", sT1, sT0, 4096)]
        xl += [I("buffer_load_dwordx4", [XA[8 * i + db], vL16, sWS, sT0 if db < 4 else sT1],
                 f"offen offset:{(db % 4) * 1024}" + (" " + LD if LD else ""), dst=[]) for db in range(8)]
    A(label("A_DL0"))
    A(S("s_cmp_lt_u32", sREM, 4 if "xjob" in exp else 1000))
    A(I("s_cbranch_scc1", ["A_DL1"]))
    o += interval([])
    o += interval(wave_flag(F_CTX) + [])
    o += interval(poll(vPC, sWS, 1, vP1) + xl)
    A(S("s_sub_u32", sREM, sREM, 3))
    A(S("s_mov_b32", sXD, 0))
    A(label("A_DL1"))
    P.add(o)
    lb = [waitcnt(vm=8), I("s_barrier")] + kvdma()
    lb += [S("s_sub_u32", sREM, sREM, 1), S("s_cmp_lg_u32", sREM, 0), I("s_cbranch_scc1", ["A_DL"])]
    P.loop("A_DL", lb)
    o = [waitcnt(vm=0)] + wave_flag(F_CTX)
    A = o.append
    A(label("A_DONE"))
    o += st(8)
    A(I("s_barrier"))
    o += st(16)
    A(S("s_lshl_b32", sT1, sSUB, 14))
    A(S("s_add_u32", sT0, sW3, sT1))
    A(S("s_add_u32", sT1, sT1, sPX))
    A(S("s_add_u32", M0, sT1, sSL))
    for q in range(4):
        A(dmal(vKVg, sWS, sT0, q * 1024))
    pacc = [v(32 + 16 * j, 16) for j in range(5)]
    WR = [v(112, 4), v(116, 4), v(120, 4), v(10, 4), v(14, 4)]
    seq = [(k, j) for k in range(8) for j in range(5)] + [(k, j) for j in range(5) for k in range(8, 32)]
    WLA = 4

    def wread(n):
        k, j = seq[n]
        if j < 4:
            return dsr128(WR[n % 5], vWB[k // 8], (k % 8) * 4096 + j * 1024)
        return dsr128(WR[n % 5], vWHf, k * 512)

    sPT0 = L[9]
    A(S("s_lshl_b32", sPT0, sPI, 2))
    A(S("s_add_u32", sPT0, sPT0, sCQ))
    A(S("s_lshl_b32", sPT0, sPT0, 3))
    A(S("s_add_u32", sT0, sPT0, sWV))
    A(S("s_lshl_b32", sT0, sT0, 3))
    A(S("s_add_u32", sT0, sT0, sGR))
    A(S("s_mul_i32", sT0, sT0, 9216))
    sPTs = [L[0], L[1], L[2]]
    A(S("s_add_u32", sPTs[0], sT0, WS_PT))
    A(S("s_add_u32", sPTs[1], sPTs[0], 4096))
    A(S("s_add_u32", sPTs[2], sPTs[0], 8192))

    def pstore(j):
        r = []
        for b in range(2 if j < 4 else 1):
            r += [V("v_cvt_pk_bf16_f32", pacc[j][4 * b + q], pacc[j][8 * b + 2 * q], pacc[j][8 * b + 2 * q + 1]) for q in range(4)]
            pi_ = 2 * j + b
            r.append(bstore4(pacc[j][4 * b:4 * b + 4], vL16, sWS, sPTs[pi_ // 4], (pi_ % 4) * 1024, ST))
        return r

    for n in range(WLA):
        A(wread(n))
    pend = []
    NF, NP = (3, 14)
    for n, (k, j) in enumerate(seq):
        A(mfma(pacc[j], WR[n % 5], XA[k], 0 if k == 0 else pacc[j]))
        if n == 48:
            A(I("s_barrier"))
        if n + WLA < len(seq):
            A(wread(n + WLA))
        if n == NF:
            o += only(sSUB, [waitcnt(vm=4)] + wave_flag(F_CTX))
        if n == NP:
            o += poll(vPC, sWS, 1, vP1) + xl + st(9)
        if n in (39, 47, 55):
            A(waitcnt(vm={39: 16, 47: 8, 55: 0}[n]))
        if k == 12 and j > 0:
            pend = pstore(j - 1)
        if pend:
            o += pend[:2]
            pend = pend[2:]
    o += pstore(4)
    o += st(10)
    vW2, vLx, vW2x, vWr, vSt, vPO = [v(22 + i) for i in range(6)]
    vRdw = [v(30), v(31), v(123)]
    RS = 304
    A(V("v_and_b32", t0, 7, vL))
    A(V("v_lshrrev_b32", t1, 5, vL))
    A(V("v_lshlrev_b32", t1, 7, t1))
    A(V("v_lshl_add_u32", vW2, t0, 4, t1))
    A(V("v_mov_b32", t2, BIG))
    A(S("s_cmp_lt_u32", sWV, 4))
    A(S("s_cselect_b64", sM, -1, 0))
    A(V("v_cndmask_b32", vLx, t2, vL16, sM))
    A(V("v_cndmask_b32", vW2x, t2, vW2, sM))
    A(V("v_and_b32", t0, 31, vL))
    A(V("v_mul_u32_u24", t0, RS, t0))
    A(V("v_lshrrev_b32", t1, 5, vL))
    A(V("v_lshl_add_u32", t0, t1, 4, t0))
    A(S("s_mul_i32", sT0, sWV, 64 * RS))
    A(V("v_add_u32", vWr, sT0, t0))
    A(V("v_mul_u32_u24", t1, 43691, v(0)))
    A(V("v_lshrrev_b32", t1, 18, t1))
    A(V("v_mul_u32_u24", t2, 6, t1))
    A(V("v_sub_u32", t2, v(0), t2))
    A(V("v_mul_u32_u24", t0, RS, t1))
    A(V("v_mul_u32_u24", t3, 48, t2))
    A(V("v_add_u32", vRdw[0], t0, t3))
    A(V("v_add_u32", vRdw[1], 3 * 64 * RS, vRdw[0]))
    A(V("v_add_u32", vRdw[2], 6 * 64 * RS, vRdw[0]))
    A(S("s_lshl_b32", sT0, sRB1, 6))
    A(V("v_add_u32", t1, sT0, t1))
    A(V("v_mul_u32_u24", t1, 2304, t1))
    A(V("v_mul_u32_u24", t3, 24, t2))
    A(S("s_mul_i32", sT0, sG1, 144))
    A(V("v_add3_u32", vSt, t1, t3, sT0))
    A(V("v_bfe_u32", t0, vL, 2, 2))
    A(S("s_lshl_b32", sT0, sRB1, 2))
    A(V("v_add_u32", t0, sT0, t0))
    A(V("v_lshlrev_b32", t0, 8, t0))
    A(V("v_and_b32", t1, 3, vL))
    A(V("v_lshl_add_u32", t0, t1, 2, t0))
    A(V("v_add_u32", vPO, WS_FLAG + 96 * 256 + 4 * F_O, t0))
    sOUT = sA
    o += mk_srd(sOUT, "out")
    sXo0, sXo1, sWo_ = L[13], L[14], L[15]
    bfr = [a(64 + 4 * i, 4) for i in range(16)] + [v(64 + 4 * i, 4) for i in range(4)] + [v(96 + 4 * i, 4) for i in range(5)]
    bacc = [[a(0, 16), a(16, 16), a(32, 16)], [a(48, 16), v(32, 16), v(48, 16)]]

    def oloads(X, W, xstep, wstep, masked=False, x=True, w=True):
        va, vw = (vLx, vW2x) if masked else (vL16, vW2)
        r = []
        if x:
            r += [bload4(X[0], va, sWS, sXo0, 0, LD), bload4(X[1], va, sWS, sXo1, 0, LD),
                  S("s_add_u32", sXo0, sXo0, xstep), S("s_add_u32", sXo1, sXo1, xstep)]
        if w:
            r += [bload4(W[0], va, sWS, sWo_, 0, LD), bload4(W[1], va, sWS, sWo_, 1024, LD),
                  bload4(W[2], vw, sWS, sWo_, 2048, LD), S("s_add_u32", sWo_, sWo_, wstep)]
        return r

    def bout_loads():
        r = [S("s_mul_i32", sXo0, sRB1, 72), S("s_add_u32", sXo0, sXo0, sWV), S("s_lshl_b32", sXo0, sXo0, 10),
             S("s_add_u32", sXo0, sXo0, WS_OF), S("s_add_u32", sXo1, sXo0, 36 * 1024), S("s_mul_i32", sWo_, sG1, WOF_CG),
             S("s_mul_i32", sT0, sWV, 2304), S("s_add_u32", sWo_, sWo_, sT0), S("s_add_u32", sWo_, sWo_, WS_WOF + 256 * 2304)]
        for it in range(5):
            r += oloads(bfr[5 * it:5 * it + 2], bfr[5 * it + 2:5 * it + 5], 8192, 8 * 2304, masked=(it == 4))
        return r

    o += poll(vPO, sWS, 1, vP1)
    o += wave_flag(F_PT)
    o += bout_loads()
    for it in range(5):
        X, W = bfr[5 * it:5 * it + 2], bfr[5 * it + 2:5 * it + 5]
        o += [mfma(bacc[qb][j], W[j], X[qb], 0 if it == 0 else bacc[qb][j]) for j in range(3) for qb in range(2)]
    o += st(11)

    def red_write(acc_):
        r = [waitcnt(lgkm=0), I("s_barrier")]
        for qb in range(2):
            for j in range(3):
                for g in range(4 if j < 2 else 1):
                    r.append(I("ds_write_b128", [vWr, acc_[qb][j][4 * g:4 * g + 4]],
                               f"offset:{qb * 32 * RS + (32 * j + 8 * g) * 4}"))
        return r

    def red_src(ww, dst):
        return [dsr128(dst[q], vRdw[ww // 3], (ww % 3) * 64 * RS + 16 * q) for q in range(3)]

    def red_out(col0, S_, PKo):
        r = [V("v_cvt_pk_bf16_f32", PKo[x], S_[x // 2][(2 * x) % 4], S_[x // 2][(2 * x) % 4 + 1]) for x in range(6)]
        r += [S("s_mov_b32", sT0, col0), bstore4(PKo[0:4], vSt, sOUT, sT0),
              I("buffer_store_dwordx2", [PKo[4:6], vSt, sOUT, sT0], "offen offset:16")]
        return r

    o += red_write(bacc)
    sk = lab("O_SK")
    o += [waitcnt(lgkm=0), I("s_barrier"), S("s_cmp_ge_u32", sWV, 6), I("s_cbranch_scc1", [sk])]
    RR = [[v(32 + 12 * w + 4 * q, 4) for q in range(3)] for w in range(7)] + [[v(116, 4), v(10, 4), v(14, 4)]]
    for ww in range(8):
        o += red_src(ww, RR[ww])
    for step_ in (1, 2, 4):
        for w in range(0, 8, 2 * step_):
            o += [V("v_add_f32", RR[w][q][r], RR[w][q][r], RR[w + step_][q][r]) for q in range(3) for r in range(4)]
    o += red_out(1152, RR[0], v(44, 6))
    A(label(sk))
    o += st(12)
    A(S("s_and_b32", sT0, sW, 0xf8))
    A(S("s_lshl_b32", sT0, sT0, 8))
    A(S("s_lshl_b32", sT1, sGR, 2))
    A(S("s_add_u32", sT0, sT0, sT1))
    A(S("s_add_u32", sT0, sT0, WS_FLAG + 4 * F_PT))
    A(V("v_and_b32", t0, 7, vL))
    A(V("v_lshlrev_b32", t0, 8, t0))
    A(V("v_add_u32", t0, sT0, t0))
    o += poll(t0, sWS, 1, vP1)
    o += st(25)
    A(S("s_sub_u32", sT0, 15, sPI))
    A(S("s_cmp_lt_u32", sGR, 4))
    A(S("s_cselect_b32", sT0, sPI, sT0))
    A(S("s_lshl_b32", sT0, sT0, 7))
    A(S("s_and_b32", sT1, sGR, 3))
    A(S("s_lshl_b32", sT1, sT1, 5))
    A(S("s_add_u32", sT0, sT0, sT1))
    A(V("v_and_b32", t0, 31, vL))
    A(V("v_add_u32", t0, sT0, t0))
    A(V("v_mul_u32_u24", t0, 2304, t0))
    A(V("v_lshrrev_b32", t1, 5, vL))
    A(V("v_lshl_add_u32", t0, t1, 4, t0))
    A(S("s_mul_i32", sT0, sCQ, 288))
    A(V("v_add_u32", t0, sT0, t0))
    A(S("s_add_u32", sT0, sPT0, sGR))
    A(S("s_mul_i32", sT0, sT0, 8 * 9216))
    A(S("s_add_u32", L[10], sT0, WS_PT))

    def gather(spiece):
        G_ = [v(32 + 4 * i, 4) for i in range(8)]
        Sm = [v(64 + i) for i in range(8)]
        r = [S("s_lshl_b32", sT0, spiece, 10), S("s_add_u32", sT0, sT0, L[10])]
        for i in range(8):
            r += [bload4(G_[i], vL16, sWS, sT0, 0, LD), S("s_add_u32", sT0, sT0, 9216)]
        for i in range(8):
            for q in range(4):
                if i == 0:
                    r += [V("v_lshlrev_b32", Sm[2 * q], 16, G_[0][q]), V("v_and_b32", Sm[2 * q + 1], 0xffff0000, G_[0][q])]
                else:
                    r += [V("v_lshlrev_b32", t2, 16, G_[i][q]), V("v_and_b32", t3, 0xffff0000, G_[i][q]),
                          V("v_add_f32", Sm[2 * q], Sm[2 * q], t2), V("v_add_f32", Sm[2 * q + 1], Sm[2 * q + 1], t3)]
        D = v(72, 4)
        r += [V("v_cvt_pk_bf16_f32", D[q], Sm[2 * q], Sm[2 * q + 1]) for q in range(4)]
        r += [V("v_permlane32_swap_b32", D[0], D[2]), V("v_permlane32_swap_b32", D[1], D[3]),
              S("s_lshl_b32", sT0, spiece, 5), bstore4(D, t0, sOUT, sT0)]
        return r

    o += gather(sWV)
    A(S("s_mov_b32", L[11], 8))
    o += onlyw(7, gather(L[11]))
    if stamps:
        o += st(13) + [waitcnt(vm=0)] + st(14) + st(63, True)
        A(S("s_lshl_b32", sT0, sW, 3))
        A(S("s_add_u32", sT0, sT0, sWV))
        A(S("s_lshl_b32", sT0, sT0, 8))
        A(S("s_add_u32", sT0, sT0, 200 * MB))
        A(V("v_lshlrev_b32", t0, 2, vL))
        A(I("buffer_store_dword", [vSTP, t0, sWS, sT0], "offen"))
    P.add(o)
    P.out.append(label("F_END"))
    P.out.append(I("s_endpgm"))

    for sl, rt, cb, has_qk in slow_sites:
        P.st = State()
        nb = 1 - cb
        S_ = Sb[cb]
        b = [label(sl), nop(16), nop(4)]
        B = b.append
        b += rowmax(S_, t0, t1)
        B(V("v_max_f32", vDl, 0, t0))
        B(V("v_exp_f32", vF, Neg(vDl)))
        for r in range(16):
            B(V("v_sub_f32", NEGM[r], NEGM[r], vDl))
            B(V("v_sub_f32", S_[r], S_[r], vDl))
            if has_qk:
                B(V("v_sub_f32", Sb[nb][r], Sb[nb][r], vDl))
        B(V("v_mul_f32", vLs, vLs, vF))
        for dt in range(4):
            for r0 in range(0, 16, 8):
                for r in range(8):
                    B(V("v_accvgpr_read_b32", T[8 + r], O[dt][r0 + r]))
                for r in range(8):
                    B(V("v_mul_f32", T[8 + r], T[8 + r], vF))
                for r in range(8):
                    B(V("v_accvgpr_write_b32", O[dt][r0 + r], T[8 + r]))
        b += softmax(cb, False)
        B(nop(4))
        B(I("s_branch", [rt]))
        P.add(b)
    P.out.append(label("F_CODE_END"))
    P.out.append(I("s_endpgm"))
    return kernel_text(name, P, 256, 128, nsgpr=102)
```

```python
from common import *


def gemm_phase(P, name, NE, NSLOT, ndma, dma_chunk, reads, mfmas, addr_update, sE, extra=None, prologue=True,
               vm_extra=0, rd_span=None):
    o = []
    if prologue:
        for c in range(min(NSLOT - 1, NE)):
            o += dma_chunk()

    def body(e_first, with_dma, vm, fill=()):
        b = [waitcnt(vm=min(vm, 63), lgkm=0), I("s_barrier")]
        b += addr_update()
        d = dma_chunk() if with_dma else []
        fill = list(fill)
        h = len(fill) // 2
        if e_first:
            b += reads(0, 0)
            b += d
            m0 = mfmas(0, True)
            n = len(m0)
            b += weave(m0, interleave(m0, reads(1, 1), 0, rd_span or max(1, n * 3 // 4)), interleave(m0, fill, 0, n))
        else:
            m1 = mfmas(1, False)
            n = len(m1)
            sp = rd_span or max(1, n * 3 // 4)
            b += weave(m1, interleave(m1, reads(0, 0), 0, sp), interleave(m1, d, 0, n), interleave(m1, fill[:h], 0, n))
            m0 = mfmas(0, False)
            b += weave(m0, interleave(m0, reads(1, 1), 0, sp), interleave(m0, fill[h:], 0, n))
        return b

    last_dma = NE - NSLOT
    steady = ndma * (NSLOT - 2) + vm_extra
    ex = extra or {}
    o += body(True, 0 <= last_dma, min(steady, ndma * (NE - 1)), ex.get(0, ()))
    if extra is None and last_dma >= 2:
        o.append(S("s_mov_b32", sE, 1))
        P.add(o)
        lb = body(False, True, steady)
        lb.append(S("s_add_u32", sE, sE, 1))
        lb.append(S("s_cmp_le_u32", sE, last_dma))
        lb.append(I("s_cbranch_scc1", [name + "_LOOP"]))
        P.loop(name + "_LOOP", lb)
        o = []
        first_tail = last_dma + 1
    else:
        first_tail = 1
    for e in range(first_tail, NE):
        if e <= last_dma:
            o += body(False, True, steady, ex.get(e, ()))
        else:
            o += body(False, False, ndma * (NE - 1 - e), ex.get(e, ()))
    o += mfmas(1, False)
    P.add(o)


def ring_advance(regs, slot, nslot, tmp, base=0):
    d = []
    for r in regs:
        d.append(S("s_add_u32", r, r, slot))
    d.append(S("s_cmp_ge_u32", regs[0], base + nslot * slot))
    d.append(S("s_cselect_b32", tmp, nslot * slot, 0))
    for r in regs:
        d.append(S("s_sub_u32", r, r, tmp))
    return d


class Stamps:
    def __init__(self, on, base=80):
        self.on, self.base = on, base

    def __call__(self, i, real=False):
        if not self.on:
            return []
        r = s(self.base + 2 * i, 2)
        return [I("s_memrealtime" if real else "s_memtime", [r], cls="smem", dst=r.regs(), src=[]), waitcnt(lgkm=0)]

    def dump(self, sWS, sWV, nw, t0, t1, sT0, n=8, off=200 * MB):
        if not self.on:
            return []
        o = [S("s_mul_i32", sT0, s(2), nw), S("s_add_u32", sT0, sT0, sWV), S("s_lshl_b32", sT0, sT0, 6),
             S("s_add_u32", sT0, sT0, off), V("v_mov_b32", t0, 0)]
        for i in range(2 * n):
            o.append(V("v_mov_b32", t1, s(self.base + i)))
            o.append(I("buffer_store_dword", [t1, t0, sWS, sT0], f"offen offset:{4 * i}"))
        return o


def gemm_phase2(P, name, NE, NSLOT, ndma, dma_chunk, reads, mfmas, addr_update, sE, pre, extra=None,
                tail_hook=None, rd_span=None, first_vm=None, pre_hook=None, last_head=None):
    ex = extra or {}

    def body(e_first, nchunks, vm, fill=(), hook=(), head=None):
        b = list(head) if head else [waitcnt(vm=min(vm, 63), lgkm=0), I("s_barrier")]
        b += addr_update()
        d = []
        for _ in range(nchunks):
            d += dma_chunk()
        d += list(hook)
        fill = list(fill)
        h = len(fill) // 2
        if e_first:
            b += reads(0, 0)
            b += d
            m0 = mfmas(0, True)
            n = len(m0)
            b += weave(m0, interleave(m0, reads(1, 1), 0, rd_span or max(1, n * 3 // 4)), interleave(m0, fill, 0, n))
        else:
            m1 = mfmas(1, False)
            n = len(m1)
            sp = rd_span or max(1, n * 3 // 4)
            m0 = mfmas(0, False)
            gf = interleave(m1 + m0, fill, 0, 2 * n)
            b += weave(m1, interleave(m1, reads(0, 0), 0, sp), interleave(m1, d, 0, n), gf[:n])
            b += weave(m0, interleave(m0, reads(1, 1), 0, sp), gf[n:])
        return b

    last_dma = NE - NSLOT
    steady = ndma * (NSLOT - 2)
    o = body(True, NSLOT - pre, ndma * (pre - 1) if first_vm is None else first_vm, ex.get(0, ()))
    e = 1
    nun = max([k for k in ex if k <= last_dma], default=0)
    while e <= nun:
        o += body(False, 1, steady, ex.get(e, ()))
        e += 1
    if last_dma - e + 1 >= 2:
        o.append(S("s_mov_b32", sE, e))
        P.add(o)
        lb = body(False, 1, steady)
        lb.append(S("s_add_u32", sE, sE, 1))
        lb.append(S("s_cmp_le_u32", sE, last_dma))
        lb.append(I("s_cbranch_scc1", [name + "_LOOP"]))
        P.loop(name + "_LOOP", lb)
        o = []
        e = last_dma + 1
    while e < NE:
        if e == NE - 1 and pre_hook:
            o += pre_hook
        o += body(False, 1 if e <= last_dma else 0, steady if e <= last_dma else ndma * (NE - 1 - e), ex.get(e, ()),
                  tail_hook if (e == NE - 1 and tail_hook) else (), last_head if e == NE - 1 else None)
        e += 1
    o += mfmas(1, False)
    P.add(o)


_glab = [0]


def gemm_phase3(P, name, NE, NSLOT, ndma, dma_issue, dma_adv, reads, mfmas, addr_update, sE, sDW, pre, extra=None,
                tail_hook=None, rd_span=None, first_vm=None, pre_hook=None, est=None):
    ex = extra or {}

    def guard(code):
        _glab[0] += 1
        sk = f"{name}_G{_glab[0]}"
        return [S("s_cmp_eq_u32", sDW, 0), I("s_cbranch_scc1", [sk])] + code + [label(sk)]

    def body(e_first, nchunks, vm, fill=(), hook=()):
        b = guard([waitcnt(vm=min(vm, 63))]) + [waitcnt(lgkm=0)]
        if est:
            b += est()
        b += [I("s_barrier")]
        b += addr_update()
        d = []
        for _ in range(nchunks):
            d += guard(dma_issue()) + dma_adv()
        d += list(hook)
        fill = list(fill)
        if e_first:
            b += reads(0, 0)
            b += d
            m0 = mfmas(0, True)
            n = len(m0)
            b += weave(m0, interleave(m0, reads(1, 1), 0, rd_span or max(1, n * 3 // 4)), interleave(m0, fill, 0, n))
        else:
            m1 = mfmas(1, False)
            n = len(m1)
            sp = rd_span or max(1, n * 3 // 4)
            m0 = mfmas(0, False)
            gf = interleave(m1 + m0, fill, 0, 2 * n)
            b += weave(m1, interleave(m1, reads(0, 0), 0, sp), interleave(m1, d, 0, n), gf[:n])
            b += weave(m0, interleave(m0, reads(1, 1), 0, sp), gf[n:])
        return b

    last_dma = NE - NSLOT
    steady = ndma * (NSLOT - 2)
    o = body(True, NSLOT - pre, ndma * (pre - 1) if first_vm is None else first_vm, ex.get(0, ()))
    e = 1
    nun = max([k for k in ex if k <= last_dma], default=0)
    while e <= nun:
        o += body(False, 1, steady, ex.get(e, ()))
        e += 1
    if last_dma - e + 1 >= 2:
        o.append(S("s_mov_b32", sE, e))
        P.add(o)
        lb = body(False, 1, steady)
        lb.append(S("s_add_u32", sE, sE, 1))
        lb.append(S("s_cmp_le_u32", sE, last_dma))
        lb.append(I("s_cbranch_scc1", [name + "_LOOP"]))
        P.loop(name + "_LOOP", lb)
        o = []
        e = last_dma + 1
    while e < NE:
        if e == NE - 1 and pre_hook:
            o += pre_hook
        o += body(False, 1 if e <= last_dma else 0, steady if e <= last_dma else ndma * (NE - 1 - e), ex.get(e, ()),
                  tail_hook if (e == NE - 1 and tail_hook) else ())
        e += 1
    o += mfmas(1, False)
    P.add(o)


class LdsAddr:
    def __init__(self, regs):
        self.regs = regs

    def setup(self, src):
        o = []
        for i, r in enumerate(self.regs):
            if i == 0:
                if str(r) != str(src):
                    o.append(V("v_mov_b32", r, src))
            else:
                o.append(V("v_add_u32", r, 65536 * i, self.regs[0]))
        return o

    def at(self, off):
        return self.regs[off >> 16], off & 65535


def gemm4(P, name, NE, KS, NSLOT, ndma, issue, reads, mfmas, pre, extra=None, tail_hook=None, first_vm=None,
          pre_hook=None, est=None, rd_span=None, vm_bias=None):
    ex = extra or {}

    def guard(code):
        _glab[0] += 1
        sk = f"{name}_G{_glab[0]}"
        return [I("s_cbranch_vccz", [sk])] + code + [label(sk)]

    o = []
    nxt = pre
    g = 0
    for e in range(NE):
        if e == NE - 1 and pre_hook:
            o += pre_hook
        younger = nxt - 1 - e
        vm = ndma * younger if not (e == 0 and first_vm is not None) else first_vm
        vm += (vm_bias or {}).get(e, 0)
        o += guard([waitcnt(vm=min(vm, 63))]) + [waitcnt(lgkm=0)]
        if est:
            o += est()
        o.append(I("s_barrier"))
        d = []
        while nxt < NE and nxt <= e + NSLOT - 1:
            d += guard(issue(nxt))
            nxt += 1
        if e == NE - 1 and tail_hook:
            d += list(tail_hook)
        M, R = [], []
        if e == 0:
            o += reads(0, 0, 0)
            o += d
            d = []
            groups = [(mfmas(ks % 2, ks == 0), reads(0, ks + 1, (ks + 1) % 2)) for ks in range(KS - 1)]
            g = KS - 1
        else:
            groups = []
            for ks in range(KS):
                groups.append((mfmas(g % 2, False), reads(e, ks, (g + 1) % 2)))
                g += 1
        allm = [m for ms, _ in groups for m in ms]
        n = len(groups[0][0])
        gf = interleave(allm, list(ex.get(e, ())), 0, len(allm))
        gd = interleave(allm, d, 0, max(n, len(allm) // 2))
        k = 0
        for ms, rs in groups:
            sp = rd_span or max(1, n * 3 // 4)
            o += weave(ms, interleave(ms, rs, 0, sp), gd[k:k + n], gf[k:k + n])
            k += n
    o += mfmas(g % 2, False)
    P.add(o)


def gemm5(P, NE, KS, NSLOT, head, issue, reads, mfmas, pre, extra=None, est=None, post=None):
    ex = extra or {}
    o = []
    nxt = pre
    g = 0
    for e in range(NE):
        o += head(e, nxt) + [waitcnt(lgkm=0)]
        if est:
            o += est()
        o.append(I("s_barrier"))
        d = []
        while nxt < NE and nxt <= e + NSLOT - 1:
            d += issue(nxt)
            nxt += 1
        if e == 0:
            o += reads(0, 0, 0) + d
            d = []
            groups = [(mfmas(ks, ks % 2), reads(0, ks + 1, (ks + 1) % 2)) for ks in range(KS - 1)]
            g = KS - 1
        else:
            groups = []
            for ks in range(KS):
                groups.append((mfmas(g, g % 2), reads(e, ks, (g + 1) % 2)))
                g += 1
        allm = [m for ms, _ in groups for m in ms]
        gf = interleave(allm, list(ex.get(e, ())), 0, len(allm))
        gd = interleave(allm, d, 0, max(1, len(allm) // 2))
        k = 0
        for ms, rs in groups:
            n = len(ms)
            gr = interleave(ms, rs, 0, max(1, n * 3 // 4))
            for j in range(n):
                for x in gr[j]:
                    for mm in ms[j + 1:]:
                        assert not (set(x.dst) & set(mm.src)), (e, x.text(), mm.text())
            o += weave(ms, gr, gd[k:k + n], gf[k:k + n])
            k += n
        o += list((post or {}).get(e, ()))
    o += mfmas(g, g % 2)
    P.add(o)
```

```python
from common import *
from gemm import *
import math

LOG2E = math.log2(math.e)
CSCALE = (128 ** -0.5) * LOG2E
WS_PHIQ = WS_B
WS_KVP = WS_B + 8 * MB
WS_KVF = WS_B + 15 * MB
WS_OF = WS_B + 16 * MB
WS_WOF = WS_B + 20 * MB
WS_FLAG = WS_B + 28 * MB
WOF_CG = 292 * 2304
WS_WA = WS_PART
WS_WH = WS_PART + 4 * MB
WS_PT = WS_PART + 8 * MB
F_PT = 24
BIG = 0x7fffff00
F_B1, F_KV, F_KVR, F_O, F_CTX = 0, 1, 4, 8, 16

THR_LOG2 = 60.0
HEADROOM = 40.0
LA = 6
ORDER = ["A_x", "A_c_kv", "A_w_q", "A_w_uk", "A_w_uv", "A_w_o", "B_x", "B_wqkv", "B_w_phi", "B_wo", "out", "dbg", "ws"]


def gen_fused(name, stamps=False, exp="", LD="", ST="sc1"):
    P = Prog()
    PTR = {n: s(64 + 2 * i, 2) for i, n in enumerate(ORDER)}
    sW, sWV = s(2), s(3)
    sM = s(4, 2)
    sT0, sT1, sT2 = s(6), s(7), s(90)
    sWS, sA, sB, sC, sD, sDBG = s(8, 4), s(12, 4), s(16, 4), s(20, 4), s(24, 4), s(28, 4)
    sRB1, sG1, sHEAD, sPI, sE, sFB, sSPIN = s(32), s(33), s(34), s(35), s(36), s(37), s(38)
    L = [s(40 + i) for i in range(24)]
    vL, vL16, vFZ, vOne = v(1), v(2), v(3), v(4)
    vSTP = v(127)
    t0, t1, t2, t3, t4 = [v(5 + i) for i in range(5)]
    nlab = [0]

    def lab(p):
        nlab[0] += 1
        return f"{p}{nlab[0]}"

    def mk_srd(dst, nm):
        return [S("s_mov_b32", dst[0], PTR[nm][0]), S("s_mov_b32", dst[1], PTR[nm][1]),
                S("s_mov_b32", dst[2], NBYTES[nm]), S("s_mov_b32", dst[3], 0x20000)]

    def st(i, real=False):
        if not stamps:
            return []
        r = s(92, 2)
        x = [I("s_memrealtime" if real else "s_memtime", [r], cls="smem", dst=r.regs(), src=[]), waitcnt(lgkm=0),
             I("v_writelane_b32", [vSTP, r[0], i])]
        if not real and i < 15:
            x += [I("s_memrealtime", [r], cls="smem", dst=r.regs(), src=[]), waitcnt(lgkm=0), I("v_writelane_b32", [vSTP, r[0], 40 + i])]
        return x

    ecnt = [16]

    def est(ph):
        if not (stamps and ("est" + ph) in exp):
            return None

        def fn():
            ecnt[0] += 1
            return st(ecnt[0] - 1)
        return fn

    def poll(vaddr, srd, expect, vt, soff=0):
        lp, dn = lab("PL"), lab("PD")
        return [S("s_mov_b32", sSPIN, 0), label(lp),
                I("buffer_load_dword", [vt, vaddr, srd, soff], "offen sc1"), waitcnt(vm=0),
                V("v_cmp_ne_u32", VCC, expect, vt), S("s_add_u32", sSPIN, sSPIN, 1),
                I("s_cbranch_vccz", [dn]), S("s_sleep", 1), S("s_cmp_lt_u32", sSPIN, 200000),
                I("s_cbranch_scc1", [lp]), label(dn)]

    def wg_flag(word):
        return [I("buffer_store_dword", [vOne, vFZ, sWS, sFB], f"offen offset:{4 * word} sc1")]

    def dmal(voff, srd, soff, off=0):
        return I("buffer_load_dwordx4", [voff, srd, soff],
                 ("offen" + (f" offset:{off}" if off else "") + (" " + LD if LD else "") + " lds"))

    o = []
    A = o.append
    A(S("s_cmp_ge_u32", sW, 256))
    A(I("s_cbranch_scc1", ["F_END"]))
    if "latepf" not in exp and "nocodepf" not in exp:
        NPF = 32 if "pf32" in exp else 16
        A(S("s_cmp_ge_u32", sW, NPF))
        A(I("s_cbranch_scc1", ["F_NOPF"]))
        A(I("s_getpc_b64", [s(98, 2)]))
        A(label("F_PC"))
        A(S("s_lshr_b32", sT0, sW, 3))
        A(S("s_and_b32", sT0, sT0, 1))
        A(S("s_lshl_b32", sT0, sT0, 16))
        A(V("v_lshlrev_b32", v(31), 7, v(0)))
        A(V("v_add_u32", v(31), sT0, v(31)))
        A(V("v_min_u32", v(31), "F_CODE_END-F_PC-4", v(31)))
        A(I("global_load_dword", [v(31), v(31), s(98, 2)], "", dst=[]))
        A(label("F_NOPF"))
    A(I("s_load_dwordx16", [s(64, 16), s(0, 2), 0]))
    A(I("s_load_dwordx8", [s(80, 8), s(0, 2), 64]))
    A(I("s_load_dwordx2", [s(88, 2), s(0, 2), 96]))
    if stamps:
        A(V("v_mov_b32", vSTP, 0))
    A(V("v_lshrrev_b32", t0, 6, v(0)))
    A(V("v_and_b32", vL, 63, v(0)))
    A(V("v_readfirstlane_b32", sWV, t0))
    A(V("v_lshlrev_b32", vL16, 4, vL))
    A(S("s_and_b32", sT0, sW, 7))
    A(S("s_lshr_b32", sT1, sW, 3))
    A(S("s_lshr_b32", sRB1, sT0, 1))
    A(S("s_lshl_b32", sRB1, sRB1, 3))
    A(S("s_and_b32", sT2, sT1, 7))
    A(S("s_add_u32", sRB1, sRB1, sT2))
    A(S("s_and_b32", sG1, sT0, 1))
    A(S("s_lshl_b32", sG1, sG1, 2))
    A(S("s_lshr_b32", sT2, sT1, 3))
    A(S("s_add_u32", sG1, sG1, sT2))
    A(S("s_lshl_b32", sHEAD, sT0, 2))
    A(S("s_and_b32", sT2, sT1, 3))
    A(S("s_add_u32", sHEAD, sHEAD, sT2))
    A(S("s_lshr_b32", sPI, sT1, 2))
    A(S("s_lshl_b32", sFB, sW, 8))
    A(S("s_add_u32", sFB, sFB, WS_FLAG))
    A(V("v_mov_b32", vOne, 1))
    A(V("v_mov_b32", t1, BIG))
    A(V("v_cmp_eq_u32", VCC, 0, v(0)))
    A(V("v_cndmask_b32", vFZ, t1, 0, VCC) if False else V("v_cndmask_b32", vFZ, t1, v(0), VCC))

    sSUB, sWQ, sN, sNB, sQ0, sLO4 = s(39), s(91), s(94), s(95), s(96), s(97)
    sM2 = s(98, 2)
    vTD = v(31)
    vFS = v(30)
    vS7 = v(29)
    A(V("v_mov_b32", t2, 0))
    A(V("v_cmp_eq_u32", VCC, 256, v(0)))
    A(V("v_cndmask_b32", vFS, t1, t2, VCC))
    A(V("v_lshlrev_b32", vS7, 7, v(0)))
    A(S("s_lshr_b32", sSUB, sWV, 2))
    A(S("s_and_b32", sWQ, sWV, 3))
    A(S("s_xor_b32", sLO4, sSUB, 1))

    def only(sreg, code, inv=False):
        sk = lab("ONLY")
        return [S("s_cmp_lg_u32" if inv else "s_cmp_eq_u32", sreg, 0), I("s_cbranch_scc1", [sk])] + code + [label(sk)]

    def onlyw(wv, code):
        sk = lab("ONLYW")
        return [S("s_cmp_lg_u32", sWV, wv), I("s_cbranch_scc1", [sk])] + code + [label(sk)]

    def role(sreg):
        return [S("s_cmp_lg_u32", sreg, 0), S("s_cselect_b64", VCC, -1, 0)]

    def w_off(dst, sidx, A=None):
        A = A or o.append
        A(S("s_lshl_b32", sT0, sidx, 6))
        A(V("v_add_u32", t0, sT0, vL))
        A(V("v_mul_u32_u24", t1, 9363, t0))
        A(V("v_lshrrev_b32", t1, 18, t1))
        A(V("v_mul_u32_u24", t2, 28, t1))
        A(V("v_sub_u32", t2, t0, t2))
        A(V("v_mul_u32_u24", t3, 57, t2))
        A(V("v_lshrrev_b32", t3, 9, t3))
        A(V("v_min_u32", t3, 2, t3))
        A(V("v_mul_u32_u24", t4, 1152 - 144, t3))
        A(V("v_lshl_add_u32", t4, t2, 4, t4))
        A(V("v_mul_u32_u24", t1, 3456, t1))
        A(V("v_add_u32", t4, t4, t1))
        A(S("s_mul_i32", sT0, sG1, 144))
        A(V("v_add_u32", dst, sT0, t4))

    def x_off(dst, srow0, stride, A=None):
        A = A or o.append
        A(V("v_lshrrev_b32", t0, 2, vL))
        A(V("v_add_u32", t0, srow0, t0))
        A(V("v_mul_u32_u24", t0, stride, t0))
        A(V("v_lshrrev_b32", t1, 4, vL))
        A(V("v_xor_b32", t1, t1, vL))
        A(V("v_and_b32", t1, 3, t1))
        A(V("v_lshl_add_u32", dst, t1, 4, t0))

    def x_read_consts(dst2, sbase):
        A(V("v_and_b32", t0, 31, vL))
        A(V("v_lshlrev_b32", t1, 6, t0))
        if sbase is not None:
            A(V("v_add_u32", t1, sbase, t1))
        A(V("v_lshrrev_b32", t2, 5, vL))
        A(V("v_bfe_u32", t3, vL, 2, 2))
        A(V("v_xor_b32", t2, t2, t3))
        A(V("v_lshl_add_u32", dst2[0], t2, 4, t1))
        A(V("v_xor_b32", dst2[1], 32, dst2[0]))

    def tr_lane(dst, hshift, rs):
        A(V("v_lshrrev_b32", t0, 5, vL))
        A(V("v_bfe_u32", t1, vL, 2, 2))
        A(V("v_lshl_add_u32", t0, t0, hshift, t1))
        A(V("v_mul_u32_u24", t0, rs, t0))
        A(V("v_bfe_u32", t2, vL, 4, 1))
        A(V("v_lshl_add_u32", t0, t2, 5, t0))
        A(V("v_and_b32", t2, 3, vL))
        A(V("v_lshl_add_u32", dst, t2, 3, t0))


    B1_SUB, B1_BASE, B1_IMG, PHI_BASE = 18432, 16384, 126976, 98304
    bslot = lambda e: B1_BASE + (e % 3) * 2 * B1_SUB
    IMG_RS, PHI_RS = 144, 112
    R_BASE = B1_IMG
    sHD, sSO0, sSO3, sSt3, sLD1, sLD3 = L[0:6]
    sXb, sWb, sPH, sB2 = sA, sB, sC, sD
    vG = [v(114 + i) for i in range(9)]
    vI, vH2 = v(25), v(26)
    A(S("s_and_b32", sT0, sWQ, 1))
    A(S("s_cmp_eq_u32", sT0, 1))
    A(S("s_cselect_b64", sM2, -1, 0))
    A(S("s_cselect_b32", sSt3, 64, 32 * 3456))
    A(S("s_mul_i32", L[6], sT0, 9))
    gsetup = []
    o_save, o = o, gsetup
    A = o.append
    for i in range(9):
        A(S("s_add_u32", sT2, L[6], i))
        w_off(vG[i], sT2, A)
        comp = 1024 * (i if i < 4 else 0 if i == 4 else i - 5)
        if i >= 5:
            A(S("s_lshl_b32", sT0, sRB1, 6))
            A(S("s_add_u32", sT2, sT0, 16 * (i - 5)))
            x_off(t4, sT2, 1152, A)
            A(V("v_cndmask_b32", vG[i], vG[i], t4, sM2))
        if comp:
            A(V("v_subrev_u32", vG[i], comp, vG[i]))
    o = o_save
    A = o.append
    o += gsetup
    A(S("s_lshr_b32", sT1, sWQ, 1))
    A(S("s_mul_i32", sSO0, sT1, 32 * 3456))
    A(S("s_mul_i32", sSO3, sT1, sSt3))
    A(S("s_lshl_b32", sSt3, sSt3, 1))
    A(S("s_mul_i32", L[7], sSt3, 9))
    A(S("s_and_b32", sT0, sG1, 3))
    A(S("s_lshl_b32", sT0, sT0, 1))
    A(S("s_and_b32", sT2, sRB1, 7))
    A(S("s_add_u32", sT0, sT0, sT2))
    A(S("s_cmp_ge_u32", sT0, 9))
    A(S("s_cselect_b32", sT2, 9, 0))
    A(S("s_sub_u32", sT0, sT0, sT2))
    A(S("s_mul_i32", sT0, sT0, 1 if "rotB" in exp else 0))
    A(S("s_mul_i32", sT2, sT0, 64 * 3456))
    A(S("s_add_u32", sSO0, sSO0, sT2))
    A(S("s_mul_i32", sT2, sT0, sSt3))
    A(S("s_add_u32", sSO3, sSO3, sT2))
    A(S("s_mul_i32", sT1, sT1, B1_SUB))
    A(S("s_lshl_b32", sT0, L[6], 10))
    A(S("s_add_u32", sLD1, sT1, sT0))
    A(S("s_add_u32", sLD1, sLD1, 4096))
    A(S("s_add_u32", sT0, sT1, 4096 + 5120))
    A(S("s_cmp_eq_u32", L[6], 0))
    A(S("s_cselect_b32", sLD3, sT0, sT1))
    A(waitcnt(lgkm=0))
    o += st(0) + st(62, True)
    o += mk_srd(sXb, "B_x") + mk_srd(sWb, "B_wqkv") + mk_srd(sC, "A_w_o") + mk_srd(sWS, "ws") + mk_srd(sDBG, "dbg")
    o += [S("s_cmp_eq_u32", L[6], 0), S("s_cselect_b32", sB2[0], sWb[0], sXb[0]), S("s_cselect_b32", sB2[1], sWb[1], sXb[1]),
          S("s_cselect_b32", sB2[2], sWb[2], sXb[2]), S("s_mov_b32", sB2[3], 0x20000)]

    def b1_issue(e):
        d = [S("s_add_u32", M0, sLD1, bslot(e))]
        d += [dma(vG[i], sWb, sSO0, i * 1024) for i in range(4)]
        d.append(S("s_add_u32", M0, sLD1, bslot(e) + 4096))
        d.append(dma(vG[4], sWb, sSO0))
        d.append(S("s_add_u32", M0, sLD3, bslot(e)))
        d += [dma(vG[5 + i], sB2, sSO3, i * 1024) for i in range(4)]
        d += [S("s_add_u32", sSO0, sSO0, 64 * 3456), S("s_add_u32", sSO3, sSO3, sSt3),
              S("s_cmp_ge_u32", sSO0, 9 * 64 * 3456), S("s_cselect_b32", sT0, 9 * 64 * 3456, 0), S("s_cselect_b32", sT1, L[7], 0),
              S("s_sub_u32", sSO0, sSO0, sT0), S("s_sub_u32", sSO3, sSO3, sT1)]
        return d

    def stage_rows(srd, sbytes, n):
        r = [S("s_mul_i32", sT0, sWQ, n * 1024), S("s_add_u32", sT1, sT0, sbytes)]
        for g0 in range(0, n, 4):
            r.append(S("s_add_u32", M0, sT0, R_BASE + g0 * 1024))
            r += [I("buffer_load_dwordx4", [vL16, srd, sT1], f"offen offset:{i * 1024}" + (" nt" if "rnt" in exp else "") + " lds") for i in range(min(4, n - g0))]
            r.append(S("s_add_u32", sT1, sT1, 4096))
        return r

    o += only(sLO4, b1_issue(0) + b1_issue(1))
    A(V("v_subrev_u32", t0, 256, v(0)))
    A(V("v_cmp_gt_u32", VCC, 64, t0))
    A(V("v_lshlrev_b32", t0, 2, t0))
    A(V("v_mov_b32", t1, BIG))
    A(V("v_cndmask_b32", t0, t1, t0, VCC))
    A(V("v_mov_b32", t2, 0))
    svc = [I("buffer_store_dword", [t2, t0, sWS, sFB], "offen sc1"), S("s_mul_i32", sT2, sW, 16 * 1152)] + stage_rows(sC, sT2, 5)
    if "latepf" in exp:
        svc += only(sWQ, [I("s_getpc_b64", [sM2]), label("F_PC"), S("s_lshr_b32", sT0, sW, 3), S("s_lshl_b32", sT0, sT0, 12),
                          V("v_and_b32", t3, 31, vL), V("v_lshlrev_b32", t3, 7, t3), V("v_add_u32", t3, sT0, t3),
                          V("v_min_u32", t3, "F_CODE_END-F_PC-4", t3),
                          I("global_load_dword", [vTD, t3, sM2], "", dst=[])], inv=True)
    o += only(sSUB, svc)
    sTD = s(56, 4)
    sR0, sALT, sR1 = L[8], L[9], L[20]
    A(S("s_add_u32", sT0, sW, 256))
    A(S("s_cmp_eq_u32", sWV, 7))
    A(S("s_cselect_b32", sT2, sW, sT0))
    A(S("s_cselect_b32", sALT, 1, 0))
    A(S("s_cmp_lt_u32", sW, 32))
    A(S("s_cselect_b32", sT0, 6, 99))
    A(S("s_cmp_eq_u32", sWV, sT0))
    A(S("s_cselect_b32", sALT, 1, sALT))
    A(S("s_and_b32", sT0, sT2, 7))
    A(S("s_mul_i32", sR0, sT0, WOF_CG))
    A(S("s_mul_i32", L[22], sT0, 144))
    A(S("s_lshr_b32", sT2, sT2, 3))
    A(S("s_add_u32", sT0, sT2, 256))
    A(S("s_mul_i32", sT0, sT0, 2304))
    A(S("s_add_u32", sR0, sR0, sT0))
    A(S("s_add_u32", sR0, sR0, WS_WOF))
    A(S("s_mul_i32", sT0, sT2, 18))
    A(S("s_mul_i32", sT1, sT2, 144))
    A(S("s_sub_u32", sT1, sT1, 32 * 144 - 8))
    A(S("s_cmp_lt_u32", sT2, 32))
    A(S("s_cselect_b32", sT0, sT0, sT1))
    A(S("s_cselect_b32", sT2, 1, 18))
    A(S("s_mul_i32", sT0, sT0, 1152))
    A(S("s_add_u32", L[22], L[22], sT0))
    BJ = R_BASE + 20480
    A(S("s_and_b32", sT1, sWV, 1))
    A(S("s_mul_i32", L[21], sT1, 3072))
    A(S("s_add_u32", L[21], L[21], BJ))
    alt = mk_srd(sTD, "B_wo") + [S("s_mov_b32", M0, L[21])]
    for i in range(3):
        alt += [V("v_add_u32", t0, 64 * i, vL), V("v_min_u32", t0, 143, t0), V("v_mul_u32_u24", t1, 57, t0), V("v_lshrrev_b32", t1, 9, t1),
                V("v_mul_u32_u24", t2, 9, t1), V("v_sub_u32", t0, t0, t2),
                V("v_lshrrev_b32", t2, 3, t1), V("v_and_b32", t3, 3, t1), V("v_lshl_add_u32", t2, t2, 2, t3),
                V("v_mul_u32_u24", t2, sT2, t2), V("v_bfe_u32", t3, t1, 2, 1), V("v_mad_u32_u24", t2, t3, 9, t2),
                V("v_mul_u32_u24", t2, 1152, t2), V("v_lshl_add_u32", t2, t0, 4, t2), V("v_add_u32", t2, 4096 - 1024 * i, t2),
                S("s_sub_u32", sT0, L[22], 4096) if False else S("s_mov_b32", sT0, L[22]),
                V("v_add_u32", t2, sT0, t2), V("v_subrev_u32", t2, 4096, t2),
                dma(t2, sTD, 0, i * 1024)]
    o += only(sALT, alt)

    def touch_jobs(lst):
        jobs = []
        for nm, per in lst:
            for f0 in range(0, per, 64):
                n = min(64, per - f0)
                jobs.append(mk_srd(sTD, nm) + [S("s_mul_i32", L[23], sW, per * 128), S("s_add_u32", L[23], L[23], f0 * 128),
                                               V("v_min_u32", t0, n - 1, vL), V("v_lshlrev_b32", t0, 7, t0),
                                               I("buffer_load_dword", [vTD, t0, sTD, L[23]], "offen", dst=[])])
        return jobs

    def xtouch_jobs(nm, rows):
        jobs = []
        per = rows // 32
        for r0 in range(0, per, 8):
            n = min(8, per - r0) * 8
            jobs.append(mk_srd(sTD, nm) + [S("s_lshr_b32", L[23], sW, 3), S("s_mul_i32", L[23], L[23], per * 8192),
                                           S("s_and_b32", L[22], sW, 7), S("s_lshl_b32", L[22], L[22], 10),
                                           S("s_add_u32", L[23], L[23], L[22]), S("s_add_u32", L[23], L[23], r0 * 8192),
                                           V("v_min_u32", t0, n - 1, vL), V("v_and_b32", t1, 7, t0), V("v_lshrrev_b32", t0, 3, t0),
                                           V("v_lshlrev_b32", t0, 13, t0), V("v_lshl_add_u32", t0, t1, 7, t0),
                                           I("buffer_load_dword", [vTD, t0, sTD, L[23]], "offen" + (" nt" if "xnt" in exp else ""), dst=[])])
        return jobs

    A(S("s_lshl_b32", sT0, sG1, 2))
    A(S("s_add_u32", sHD, sWQ, sT0))
    A(V("v_bfe_u32", t0, vL, 3, 2))
    A(V("v_and_b32", t1, 3, vL))
    A(V("v_lshl_add_u32", vI, t0, 2, t1))
    A(V("v_bfe_u32", vH2, vL, 2, 1))
    raw_ = [v(88 + i) for i in range(8)] + [v(112), v(113)]
    WP = [v(96, 4), v(100, 4)]
    o += mk_srd(sPH, "B_w_phi")
    A(V("v_mad_u32_u24", t0, vH2, 9, vI))
    A(V("v_lshrrev_b32", t1, 5, vL))
    A(V("v_mul_u32_u24", t2, 8 * 36, t1))
    A(V("v_lshl_add_u32", t2, t0, 1, t2))
    A(S("s_mul_i32", sT0, sHD, 648))
    A(V("v_add_u32", t2, sT0, t2))
    A(V("v_mov_b32", t4, BIG))
    A(V("v_cmp_lt_u32", sM, vI, 9))
    A(V("v_cndmask_b32", t2, t4, t2, sM))
    A(V("v_cmp_eq_u32", sM, t1, 0))
    A(V("v_cndmask_b32", t3, t4, t2, sM))
    for j in range(8):
        A(I("buffer_load_ushort", [raw_[j], t2, sPH, 0], f"offen offset:{36 * j}" if j else "offen"))
    for j in range(2):
        A(I("buffer_load_ushort", [raw_[8 + j], t3, sPH, 0], f"offen offset:{36 * (16 + j)}"))
    kjobs = touch_jobs([("A_c_kv", 64), ("A_w_uk", 128), ("A_w_uv", 128)]) if "notouch" not in exp else []
    if "xt" in exp:
        kjobs = touch_jobs([("A_c_kv", 64)]) + xtouch_jobs("A_w_uk", 512) + xtouch_jobs("A_w_uv", 512)
    if "nokt" in exp:
        kjobs = []
    if "kt0" in exp:
        for e, r in enumerate(kjobs):
            o += onlyw(4 + e % 4, r)
        kjobs = []
    bXa = [LdsAddr([v(16), v(17)]), LdsAddr([v(18), v(19)])]
    bWa = LdsAddr([v(20), v(21)])
    x_read_consts([v(16), v(18)], None)
    tr_lane(t3, 3, 448)
    A(S("s_lshl_b32", sT0, sWV, 6))
    A(V("v_add_u32", v(20), sT0, t3))
    o += bXa[0].setup(v(16)) + bXa[1].setup(v(18)) + bWa.setup(v(20))
    acc = [v(32, 16), v(48, 16)]
    Xf = [[v(64 + (b * 2 + m) * 4, 4) for m in range(2)] for b in range(2)]
    Wf = [v(80, 4), v(84, 4)]

    def b1_reads(e, k4, b):
        sl, ks = bslot(e) + (k4 >> 1) * B1_SUB, k4 & 1
        r = [dsr128(Xf[b][0], *bXa[ks].at(sl))]
        for t in range(2):
            r.append(dsrtr(Wf[b][2 * t:2 * t + 2], *bWa.at(sl + 4096 + (16 * ks + 4 * t) * 448)))
        r.append(dsr128(Xf[b][1], *bXa[ks].at(sl + 2048)))
        return r

    def b1_mfmas(b, first):
        return [mfma(acc[m], Xf[b][m], Wf[b], 0 if first else acc[m]) for m in range(2)]

    A(S("s_sub_u32", sT0, 15, sPI))
    A(S("s_cmp_eq_u32", sSUB, 0))
    A(S("s_cselect_b32", sT2, sPI, sT0))
    A(S("s_add_u32", sN, sT2, 1))
    A(S("s_lshl_b32", sN, sN, 2))
    A(S("s_add_u32", sNB, sT0, 1))
    A(S("s_lshl_b32", sNB, sNB, 2))
    A(S("s_lshl_b32", sQ0, sT2, 7))
    A(S("s_lshl_b32", sT1, sWQ, 5))
    A(S("s_add_u32", sQ0, sQ0, sT1))
    kslot = lambda c: (c % 5) * 32768
    kXg, kWg = [v(10), v(11), v(12), v(13)], [v(14), v(15)]
    sPX, sPW, sO1, sO2, kWM, kWN = L[10:16]
    sCK, sWk, sWv = sA, sB, sC
    A(S("s_lshl_b32", sT0, sPI, 8))
    A(S("s_lshl_b32", sT1, sWQ, 6))
    A(S("s_add_u32", sT2, sT0, sT1))
    x_off(kXg[0], sT2, 1024)
    for i in range(1, 4):
        A(V("v_add_u32", kXg[i], i * (16384 - 1024), kXg[0]))
    A(S("s_lshl_b32", sT0, sWQ, 3))
    A(V("v_lshrrev_b32", t0, 4, vL))
    A(V("v_add_u32", t1, sT0, t0))
    A(V("v_lshlrev_b32", t1, 13, t1))
    A(V("v_lshrrev_b32", t2, 2, vL))
    A(V("v_xor_b32", t2, t2, t0))
    A(V("v_and_b32", t2, 3, t2))
    A(V("v_and_b32", t3, 3, vL))
    A(V("v_lshl_add_u32", t2, t2, 2, t3))
    A(V("v_lshl_add_u32", t1, t2, 4, t1))
    A(S("s_lshl_b32", sT0, sHEAD, 8))
    A(V("v_add_u32", kWg[0], sT0, t1))
    A(V("v_add_u32", kWg[1], 4 * 8192 - 1024, kWg[0]))
    A(S("s_lshl_b32", sPX, sWQ, 12))
    A(S("s_lshl_b32", sPW, sWQ, 11))
    A(S("s_add_u32", sPW, sPW, 16384))
    A(S("s_and_b32", kWM, sWV, 1))
    A(S("s_lshr_b32", kWN, sWV, 1))

    sKC = L[21]
    A(S("s_and_b32", sT0, sHEAD, 3))
    A(S("s_lshl_b32", sT0, sT0, 1))
    A(S("s_add_u32", sKC, sT0, sPI))
    A(S("s_lshl_b32", sKC, sKC, 1))
    A(S("s_and_b32", sKC, sKC, 15))
    A(S("s_mul_i32", sKC, sKC, 1 if "rotK" in exp else 0))

    def kv_issue(c):
        d = [S("s_add_u32", M0, sPX, kslot(c)), S("s_lshl_b32", sO1, sKC, 6)]
        d += [dma(kXg[i], sCK, sO1, i * 1024) for i in range(4)]
        d += [S("s_add_u32", M0, sPW, kslot(c)), S("s_lshl_b32", sO2, sKC, 18)]
        d += [dma(kWg[i], sWk, sO2, i * 1024) for i in range(2)]
        d.append(S("s_add_u32", M0, sPW, kslot(c) + 8192))
        d += [dma(kWg[i], sWv, sO2, i * 1024) for i in range(2)]
        d += [S("s_add_u32", sKC, sKC, 1), S("s_and_b32", sKC, sKC, 15)]
        return d

    vRr, vRs, vRs2, vRrB, vRs3 = v(104), v(105), v(106), v(110), v(111)
    RF = [a(4 * j, 4) for j in range(3)]
    XE = [v(107 + j) for j in range(3)]
    tr_lane(t3, 2, 1152)
    A(S("s_lshr_b32", sT0, sWV, 1))
    A(S("s_mul_i32", sT0, sT0, 288))
    A(S("s_lshl_b32", sT1, kWM, 7))
    A(S("s_add_u32", sT0, sT0, sT1))
    A(S("s_add_u32", sT0, sT0, R_BASE))
    A(V("v_add_u32", vRr, sT0, t3))
    A(S("s_mul_i32", sT0, sWV, 144))
    A(S("s_add_u32", sT0, sT0, R_BASE))
    A(V("v_and_b32", t0, 31, vL))
    A(V("v_lshrrev_b32", t1, 5, vL))
    A(V("v_bfe_u32", t4, vL, 2, 2))
    A(V("v_lshl_add_u32", t4, t1, 2, t4))
    A(V("v_mul_u32_u24", t4, 1152 - 144, t4))
    A(V("v_sub_u32", t4, t3, t4))
    A(S("s_and_b32", sT1, sWV, 1))
    A(S("s_mul_i32", sT1, sT1, 3072))
    A(S("s_add_u32", sT1, sT1, BJ))
    A(V("v_add_u32", vRrB, sT1, t4))
    A(V("v_lshlrev_b32", t4, 7, t1))
    A(V("v_lshl_add_u32", t4, t0, 4, t4))
    A(V("v_mov_b32", t2, BIG))
    A(V("v_cmp_gt_u32", VCC, 8, t0))
    A(V("v_cndmask_b32", vRs2, t2, t4, VCC))
    A(V("v_lshlrev_b32", t4, 8, t1))
    A(V("v_lshl_add_u32", t4, t0, 4, t4))
    A(S("s_lshl_b32", sT1, kWM, 4))
    A(V("v_cmp_gt_u32", VCC, sT1, t0))
    A(V("v_cndmask_b32", vRs3, t2, t4, VCC))
    A(S("s_lshr_b32", sT0, sWV, 1))
    A(S("s_lshl_b32", sT0, sT0, 8))
    A(S("s_add_u32", sT0, sT0, sW))
    A(S("s_lshl_b32", sR1, sT0, 12))
    A(S("s_lshl_b32", sT1, kWM, 11))
    A(S("s_add_u32", sR1, sR1, sT1))
    A(S("s_add_u32", sR1, sR1, WS_WA))
    A(S("s_lshl_b32", sT0, sT0, 9))
    A(S("s_add_u32", sT0, sT0, WS_WH))
    A(V("v_add_u32", vRs3, sT0, vRs3))
    r1 = [dsrtr(RF[j][2 * t:2 * t + 2], vRr, 8 * t * 1152 + 64 * j) for j in range(3) for t in range(2)]
    r1 += [bstore4(RF[0], vL16, sWS, sR1, 0, ST), bstore4(RF[1], vL16, sWS, sR1, 1024, ST), bstore4(RF[2], vRs3, sWS, 0, 0, ST)]
    a2 = [dsrtr(RF[j][2 * t:2 * t + 2], vRrB, 8 * t * 144 + 64 * j) for j in range(3) for t in range(2)]
    a2 += [bstore4(RF[0], vL16, sWS, sR0, 0, ST), bstore4(RF[1], vL16, sWS, sR0, 1024, ST), bstore4(RF[2], vRs2, sWS, sR0, 2048, ST)]
    pk_ = [forget(raw_)] + [V("v_lshl_or_b32", WP[0][p], raw_[2 * p + 1], 16, raw_[2 * p]) for p in range(4)]
    pk_ += [V("v_lshl_or_b32", WP[1][0], raw_[9], 16, raw_[8])] + [V("v_mov_b32", WP[1][p], 0) for p in range(1, 4)]
    extra = {e: [] for e in range(9)}
    extra[1] = only(sSUB, [waitcnt(vm=0)]) + onlyw(4, [I("buffer_atomic_add", [vOne, vFS, sDBG, 0], "offen sc1")])
    extra[2] = r1
    extra[3] = pk_ + only(sALT, a2)
    for e, r in enumerate(kjobs):
        extra[4 if "kt4" in exp else 6] += onlyw(4 + e % 4, r)
    extra[7] = mk_srd(sCK, "A_c_kv") + mk_srd(sWk, "A_w_uk") + mk_srd(sWv, "A_w_uv") + only(sLO4, kv_issue(0))
    hook = only(sLO4, kv_issue(1))
    o += role(sLO4)
    P.add(o)
    gemm4(P, "B1", 9, 4, 3, 9, b1_issue, b1_reads, b1_mfmas, pre=2, rd_span=2, tail_hook=hook, extra=extra,
          first_vm=9 + 10, est=est("B1"), vm_bias={8: 8})
    o = []
    A = o.append
    o += st(1)
    vIW, vQr = v(22), v(23)
    A(V("v_and_b32", t0, 31, vL))
    A(S("s_lshl_b32", sT0, sWV, 5))
    A(V("v_add_u32", t0, sT0, t0))
    A(V("v_mul_u32_u24", t0, IMG_RS, t0))
    A(V("v_lshrrev_b32", t1, 5, vL))
    A(V("v_lshl_add_u32", t0, t1, 3, t0))
    A(V("v_add_u32", vIW, B1_IMG, t0))
    pk = v(64, 16)
    for m in range(2):
        for r in range(8):
            A(V("v_cvt_pk_bf16_f32", pk[8 * m + r], acc[m][2 * r], acc[m][2 * r + 1]))
    A(S("s_cmp_lg_u32", sWV, 7))
    A(I("s_cbranch_scc1", ["B1_NZ"]))
    for r in range(16):
        A(V("v_mov_b32", pk[r], 0))
    A(label("B1_NZ"))
    for m in range(2):
        for g in range(4):
            A(I("ds_write_b64", [vIW, pk[8 * m + 2 * g:8 * m + 2 * g + 2]], f"offset:{(32 * m + 8 * g) * 2}"))
    tr_lane(t3, 3, IMG_RS)
    A(S("s_mul_i32", sT0, sWV, 18 * IMG_RS))
    A(S("s_add_u32", sT0, sT0, B1_IMG))
    A(V("v_add_u32", vQr, sT0, t3))
    A(waitcnt(lgkm=0))
    A(I("s_barrier"))
    o += only(sLO4, kv_issue(2))
    Qf = [[v(64 + (sb * 2 + ks) * 4, 4) for ks in range(2)] for sb in range(2)]
    for sb in range(2):
        for ks in range(2):
            for t in range(2):
                A(dsrtr(Qf[sb][ks][2 * t:2 * t + 2], vQr, (16 * ks + 4 * t) * IMG_RS + 64 * sb))
    for sb in range(2):
        for ks in range(2):
            A(mfma(acc[sb], WP[ks], Qf[sb][ks], 0 if ks == 0 else acc[sb]))
    PHI = [v(64, 12), v(76, 12)]
    E = [v(96 + i) for i in range(18)]
    sL2 = sT2
    A(S("s_mov_b32", sL2, float(LOG2E)))
    for sb in range(2):
        x = acc[sb]
        mx, mn, u0, u1 = t0, t1, t2, t3
        A(V("v_max3_f32", mx, x[0], x[1], x[2]))
        A(V("v_min3_f32", mn, x[0], x[1], x[2]))
        for r in (3, 5, 7):
            A(V("v_max3_f32", mx, mx, x[r], x[r + 1]))
            A(V("v_min3_f32", mn, mn, x[r], x[r + 1]))
        A(V("v_mov_b32", u0, mx))
        A(V("v_mov_b32", u1, mn))
        A(V("v_permlane32_swap_b32", mx, u0))
        A(V("v_permlane32_swap_b32", mn, u1))
        A(V("v_max_f32", mx, mx, u0))
        A(V("v_min_f32", mn, mn, u1))
        A(V("v_mul_f32", mx, sL2, mx))
        A(V("v_mul_f32", mn, sL2, mn))
        for i in range(9):
            A(V("v_fma_f32", E[i], x[i], sL2, Neg(mx)))
            A(V("v_fma_f32", E[9 + i], Neg(x[i]), sL2, mn))
        for i in range(18):
            A(V("v_exp_f32", E[i], E[i]))
        sp, sn = mx, mn
        A(V("v_add_f32", sp, E[0], E[1]))
        A(V("v_add_f32", sn, E[9], E[10]))
        for i in range(2, 9):
            A(V("v_add_f32", sp, sp, E[i]))
            A(V("v_add_f32", sn, sn, E[9 + i]))
        A(V("v_mov_b32", u0, sp))
        A(V("v_mov_b32", u1, sn))
        A(V("v_permlane32_swap_b32", sp, u0))
        A(V("v_permlane32_swap_b32", sn, u1))
        A(V("v_add_f32", sp, sp, u0))
        A(V("v_add_f32", sn, sn, u1))
        A(V("v_rcp_f32", sp, sp))
        A(V("v_rcp_f32", sn, sn))
        for i in range(9):
            A(V("v_mul_f32", E[i], E[i], sp))
            A(V("v_mul_f32", E[9 + i], E[9 + i], sn))
        for p in range(9):
            A(V("v_cvt_pk_bf16_f32", PHI[sb][p], E[2 * p], E[2 * p + 1]))
        for p in range(9, 12):
            A(V("v_mov_b32", PHI[sb][p], 0))
    A(S("s_cmp_ge_u32", sWV, 4))
    A(I("s_cbranch_scc1", ["B1_K"]))
    A(S("s_lshl_b32", sT0, sRB1, 6))
    A(S("s_add_u32", sT0, sT0, sHD))
    A(S("s_mul_i32", sT0, sT0, 3072))
    A(S("s_add_u32", sT0, sT0, WS_PHIQ))
    A(S("s_add_u32", sT1, sT0, 32 * 3072))
    for sb in range(2):
        for F in range(3):
            A(bstore4(PHI[sb][4 * F:4 * F + 4], vL16, sWS, sT1 if sb else sT0, F * 1024, ST))
    A(I("s_branch", ["B1_DONE"]))
    A(label("B1_K"))
    vPW, vPR, vVR, vPR1 = v(24), v(27), v(28), v(114)
    A(S("s_sub_u32", sT0, sWV, 4))
    A(S("s_mul_i32", sT0, sT0, 64 * PHI_RS))
    A(S("s_add_u32", sT0, sT0, PHI_BASE))
    A(V("v_and_b32", t0, 31, vL))
    A(V("v_mul_u32_u24", t0, PHI_RS, t0))
    A(V("v_lshrrev_b32", t1, 5, vL))
    A(V("v_mul_u32_u24", t2, 48, t1))
    A(V("v_add3_u32", vPW, t0, t2, sT0))
    for sb in range(2):
        for F in range(3):
            A(I("ds_write_b128", [vPW, PHI[sb][4 * F:4 * F + 4]], f"offset:{sb * 32 * PHI_RS + 16 * F}"))
    A(V("v_bfe_u32", t2, vL, 2, 2))
    A(V("v_lshl_add_u32", t0, t1, 3, t2))
    A(V("v_mul_u32_u24", t0, PHI_RS, t0))
    A(V("v_and_b32", t2, 1, vL))
    A(V("v_mul_u32_u24", t2, 48, t2))
    A(V("v_add_u32", t0, t0, t2))
    A(V("v_bfe_u32", t2, vL, 1, 1))
    A(V("v_lshl_add_u32", t0, t2, 3, t0))
    A(V("v_add_u32", t0, sT0, t0))
    A(V("v_bfe_u32", t2, vL, 4, 1))
    A(V("v_lshl_add_u32", vPR, t2, 4, t0))
    A(V("v_add_u32", vPR1, 32, t0))
    A(V("v_min_u32", t0, 8, vI))
    A(V("v_mad_u32_u24", t0, vH2, 9, t0))
    A(S("s_mul_i32", sT0, sWV, 18))
    A(S("s_add_u32", sT0, sT0, 72))
    A(V("v_add_u32", t0, sT0, t0))
    A(V("v_mul_u32_u24", t0, IMG_RS, t0))
    A(V("v_lshl_add_u32", t0, t1, 4, t0))
    A(V("v_add_u32", vVR, B1_IMG, t0))
    Vf = [v(96 + 4 * ks, 4) for ks in range(4)]
    Af = [[a(64 + (T * 4 + ks) * 4, 4) for ks in range(4)] for T in range(2)]
    for ks in range(4):
        A(dsr128(Vf[ks], vVR, 32 * ks))
    for T in range(2):
        for ks in range(4):
            for t in range(2):
                A(dsrtr(Af[T][ks][2 * t:2 * t + 2], vPR1 if T else vPR, (16 * ks + 4 * t) * PHI_RS))
    A(V("v_cmp_eq_u32", sM, vI, 9))
    A(V("v_mov_b32", t4, 0x3f803f80))
    for ks in range(4):
        for r in range(4):
            A(V("v_cndmask_b32", Vf[ks][r], Vf[ks][r], t4, sM))
    for T in range(2):
        for ks in range(4):
            A(mfma(acc[T], Af[T][ks], Vf[ks], 0 if ks == 0 else acc[T]))
    A(S("s_lshl_b32", sT0, sRB1, 5))
    A(S("s_add_u32", sT0, sT0, sHD))
    A(S("s_mul_i32", sT0, sT0, 6144))
    A(S("s_add_u32", sT0, sT0, WS_KVP))
    A(S("s_add_u32", sT1, sT0, 4096))
    for g in range(6):
        A(bstore4(acc[g // 4][4 * (g % 4):4 * (g % 4) + 4], vL16, sWS, sT1 if g >= 4 else sT0, (g % 4) * 1024, ST))
    A(label("B1_DONE"))
    o += st(2)

    kXa = [LdsAddr([v(16), v(17), v(18)]), LdsAddr([v(19), v(20), v(21)])]
    kWa = LdsAddr([v(22), v(23), v(24)])
    A(S("s_lshl_b32", sT2, kWM, 13))
    x_read_consts([v(16), v(19)], sT2)
    tr_lane(t3, 3, 256)
    A(V("v_xor_b32", t1, kWN, t1))
    A(V("v_lshl_add_u32", v(22), t1, 6, t3))
    o += kXa[0].setup(v(16)) + kXa[1].setup(v(19)) + kWa.setup(v(22))
    kacc = [[a((m * 2 + j) * 16, 16) for j in range(2)] for m in range(4)]
    kXf = [[v(32 + (b * 4 + m) * 4, 4) for m in range(4)] for b in range(2)]
    kWf = [[v(64 + (b * 2 + j) * 4, 4) for j in range(2)] for b in range(2)]

    def kv_reads(c, ks, b):
        sl = kslot(c)
        r = [dsr128(kXf[b][0], *kXa[ks].at(sl))]
        for j in range(2):
            for t in range(2):
                r.append(dsrtr(kWf[b][j][2 * t:2 * t + 2], *kWa.at(sl + 16384 + j * 8192 + (16 * ks + 4 * t) * 256)))
        for m in range(1, 4):
            r.append(dsr128(kXf[b][m], *kXa[ks].at(sl + m * 2048)))
        return r

    def kv_mfmas(b, first):
        r = []
        for m in range(4):
            r.append(mfma(kacc[m][0], kWf[b][0], kXf[b][m], 0 if first else kacc[m][0]))
            r.append(mfma(kacc[m][1], kXf[b][m], kWf[b][1], 0 if first else kacc[m][1]))
        return r

    QS = 49152
    qslot = lambda c: 16384 + ((c + 1) % 3) * QS
    qXg = [v(123), v(124), v(125), v(126)]
    sQX, sQW, sQWo = L[2], L[3], L[4]
    qsetup = []
    o_save, o = o, qsetup
    A = o.append
    A(S("s_mul_i32", L[0], sPI, 128))
    A(S("s_mul_i32", L[1], sPI, -128))
    A(V("v_mov_b32", t2, L[1]))
    A(V("v_add_u32", t2, 15 * 128, t2))
    A(V("v_mov_b32", t3, L[0]))
    A(V("v_cmp_gt_u32", sM, 2, sWQ))
    A(V("v_cndmask_b32", t3, t2, t3, sM))
    A(V("v_mov_b32", t2, sWQ))
    A(V("v_and_b32", t2, 1, t2))
    A(V("v_lshl_add_u32", t3, t2, 6, t3))
    A(V("v_lshrrev_b32", t0, 3, vL))
    A(V("v_add_u32", t0, t3, t0))
    A(V("v_mul_u32_u24", t0, 1152, t0))
    A(V("v_lshrrev_b32", t1, 4, vL))
    A(V("v_xor_b32", t1, t1, vL))
    A(V("v_and_b32", t1, 7, t1))
    A(V("v_lshl_add_u32", qXg[0], t1, 4, t0))
    A(V("v_xor_b32", t1, 4, t1))
    A(V("v_lshl_add_u32", qXg[1], t1, 4, t0))
    A(V("v_add_u32", qXg[1], 8 * 1152 - 1024, qXg[1]))
    A(V("v_add_u32", qXg[2], 16 * 1152 - 2048, qXg[0]))
    A(V("v_add_u32", qXg[3], 16 * 1152 - 2048, qXg[1]))
    A(S("s_mul_i32", sQX, sWQ, 8192))
    A(S("s_mul_i32", sQW, sWQ, 4096))
    A(S("s_mul_i32", sQWo, sWQ, 8 * 8192))
    o = o_save
    A = o.append
    sXq, sWqq = sA, sB

    def q_issue(c):
        d = []
        for hf in range(2):
            d += [S("s_add_u32", M0, sQX, qslot(c) + 4096 * hf), S("s_mov_b32", sO1, 128 * c + hf * 32 * 1152)]
            d += [dma(qXg[i], sXq, sO1, i * 1024) for i in range(4)]
        for hf in range(2):
            d += [S("s_add_u32", M0, sQW, qslot(c) + 32768 + 2048 * hf), S("s_add_u32", sO2, sQWo, (64 * c + 8 * hf) * 8192)]
            d += [dma(kWg[i], sWqq, sO2, i * 1024) for i in range(2)]
        return d

    vPZ, vPZr = v(80), v(81)
    A(V("v_mov_b32", vPZ, 0))
    extra = {e: [] for e in range(16)}
    extra[1] = qsetup
    extra[3] = only(sSUB, [waitcnt(vm=0)])
    extra[4] = onlyw(4, [I("buffer_store_dword", [vOne, vFS, sWS, sFB], f"offen offset:{4 * F_B1} sc1"),
                         I("buffer_atomic_add", [vOne, vFS, sDBG, 0], "offen offset:4 sc1")])
    if "l2q" in exp:
        for e, r in enumerate(touch_jobs([("A_x", 72)]) + xtouch_jobs("A_w_q", 576)):
            extra[2] += onlyw(5 + e % 3, r)
        for e in range(9):
            r = mk_srd(sTD, "A_x") + [S("s_lshr_b32", L[23], sW, 3), S("s_mul_i32", L[23], L[23], 576 * 128),
                                      S("s_add_u32", L[23], L[23], e * 8192), V("v_lshlrev_b32", t0, 7, vL),
                                      I("buffer_load_dword", [vTD, t0, sTD, L[23]], "offen", dst=[])]
            ep = (6 + e // 2) if "l2thin" in exp else (8 + 2 * (e // 5))
            extra[ep] += onlyw(5 + e % 3, r)
    elif "notouch" not in exp:
        qj = touch_jobs([("A_x", 72), ("A_w_q", 144)])
        for e, r in enumerate(qj):
            extra[5 + 3 * (e // 3)] += onlyw(5 + e % 3, r)
    okz = lab("Z_OK")
    extra[7] += onlyw(4, [I("buffer_load_dword", [vPZr, vPZ, sDBG, 0], "offen sc1", dst=[])])
    extra[11] += onlyw(4, [waitcnt(vm=0), V("v_cmp_ne_u32", VCC, 256, vPZr), nop(2), I("s_cbranch_vccz", [okz])] +
                       poll(vPZ, sDBG, 256, vPZr) + [label(okz), S("s_mov_b64", VCC, 0)])
    extra[14] += mk_srd(sXq, "A_x") + mk_srd(sWqq, "A_w_q") + only(sSUB, q_issue(0))
    hook = only(sSUB, q_issue(1))
    o += role(sLO4)
    P.add(o)
    gemm4(P, "KV", 16, 2, 5, 8, kv_issue, kv_reads, kv_mfmas, pre=3, tail_hook=hook, extra=extra, est=est("KV"))
    o = []
    A = o.append
    o += st(3)
    kK, kV0, kV1 = L[18], L[19], L[20]
    A(S("s_lshl_b32", sT0, sHEAD, 19))
    A(S("s_lshl_b32", sT1, sPI, 16))
    A(S("s_add_u32", sT0, sT0, sT1))
    A(S("s_lshl_b32", sT1, kWM, 15))
    A(S("s_add_u32", sT0, sT0, sT1))
    vSTm = [v(10), v(11), v(12), v(13)]
    A(V("v_add_u32", vSTm[0], sT0, vL16))
    for m in range(1, 4):
        A(V("v_add_u32", vSTm[m], 8192 * m, vSTm[0]))
    A(S("s_lshl_b32", kK, kWN, 11))
    A(S("s_lshl_b32", kV0, kWN, 10))
    A(S("s_add_u32", kK, kK, WS_KF))
    A(S("s_add_u32", kV0, kV0, WS_VF))
    A(S("s_add_u32", kV1, kV0, 4096))
    TT = [v(96 + i) for i in range(16)]
    CV = [v(112 + i) for i in range(8)]
    PKs = [v(28, 4), v(112, 4)]

    def kv_st(n):
        tile, b = n // 2, n % 2
        m, j = tile // 2, tile % 2
        src = a(16 * tile + 8 * b, 8)
        pk = PKs[0]
        r = [V("v_accvgpr_read_b32", CV[q], src[q]) for q in range(8)]
        r += [V("v_cvt_pk_bf16_f32", pk[q], CV[2 * q], CV[2 * q + 1]) for q in range(4)]
        KST = "" if "kvplain" in exp else ST
        if j == 0:
            r.append(bstore4(pk, vSTm[m], sWS, kK, b * 1024, KST))
        else:
            r.append(bstore4(pk, vSTm[m], sWS, kV1 if b else kV0, 0, KST))
        return r

    o += only(sSUB, [waitcnt(vm=24)])
    for n in (12, 13):
        o += kv_st(n)
    o += st(4)

    qXa = [v(16), v(17), v(18), v(19)]
    qWa = [v(20), v(21)]
    A(S("s_lshr_b32", sT2, sWV, 1))
    A(S("s_lshl_b32", sT2, sT2, 13))
    A(S("s_add_u32", sT2, sT2, qslot(0)))
    A(V("v_and_b32", t0, 31, vL))
    A(V("v_lshlrev_b32", t1, 7, t0))
    A(V("v_add_u32", t1, sT2, t1))
    A(V("v_lshrrev_b32", t2, 5, vL))
    A(V("v_bfe_u32", t3, vL, 1, 3))
    A(V("v_xor_b32", t2, t2, t3))
    A(V("v_lshl_add_u32", qXa[0], t2, 4, t1))
    for ks in range(1, 4):
        A(V("v_xor_b32", qXa[ks], ks << 5, qXa[0]))
    tr_lane(t3, 3, 256)
    A(S("s_and_b32", sT0, sWV, 1))
    A(S("s_lshl_b32", sT0, sT0, 1))
    A(V("v_xor_b32", t1, sT0, t1))
    A(V("v_lshl_add_u32", qWa[0], t1, 6, t3))
    A(V("v_add_u32", qWa[0], qslot(0) + 32768, qWa[0]))
    A(V("v_xor_b32", qWa[1], 64, qWa[0]))
    Sb = [v(32, 16), v(48, 16)]
    NEGM = v(64, 16)
    Pb = [v(80, 8), v(88, 8)]
    T = TT
    O = [a(16 * i, 16) for i in range(4)]
    Q = [a(64 + 4 * i, 4) for i in range(8)]
    FR = [a(96 + 4 * i, 4) for i in range(8)]
    qacc = [[v(32 + 16 * (2 * m + j), 16) for j in range(2)] for m in range(2)]
    qXf = [[v(96 + (2 * b + m) * 4, 4) for m in range(2)] for b in range(2)]
    qWf = [[FR[2 * b + j] for j in range(2)] for b in range(2)]

    def q_reads(c, ks, b):
        r = []
        if ks == 0 and c > 0:
            r += [V("v_add_u32", x, qslot(c) - qslot(c - 1), x) for x in qXa + qWa]
        r.append(dsr128(qXf[b][0], qXa[ks]))
        for j in range(2):
            for t in range(2):
                r.append(dsrtr(qWf[b][j][2 * t:2 * t + 2], qWa[j], (16 * ks + 4 * t) * 256))
        r.append(dsr128(qXf[b][1], qXa[ks], 4096))
        return r

    def q_mfmas(b, first):
        return [mfma(qacc[m][j], qWf[b][j], qXf[b][m], 0 if first else qacc[m][j]) for m in range(2) for j in range(2)]

    ASLOT = 32768
    sK, sV = sC, sD
    sKO, sVO, sWRA, sRDA, sCNT, sREM = L[0:6]
    sMk = [s(56 + 2 * i, 2) for i in range(4)]
    vKVg, vAc, vAn = v(124), v(125), v(126)
    zo = [V("v_accvgpr_write_b32", O[dt][r], 0) for dt in range(4) for r in range(16)]
    todo = [n for n in range(16) if n not in (12, 13)]
    extra = {e: [] for e in range(9)}
    for i, n in enumerate(todo):
        extra[i // 4] += kv_st(n)
    extra[4] = zo[:32] + only(sLO4, [waitcnt(vm=0)]) + only(sSUB, [waitcnt(vm=12)])
    extra[5] = onlyw(0, wg_flag(F_KV)) + zo[32:]
    vP0, vP1 = v(120), v(121)
    o += [S("s_and_b32", sT0, sW, 31), V("v_and_b32", vP0, 3 if "stag" in exp else 7, vL), V("v_lshlrev_b32", vP0, 5, vP0),
          V("v_add_u32", vP0, sT0, vP0), V("v_lshlrev_b32", vP0, 8, vP0), V("v_add_u32", vP0, WS_FLAG + 4 * F_KV, vP0)]
    vP4, vP4r = v(122), t4
    A(V("v_mov_b32", vP4, 4))
    extra[7] = onlyw(1, [I("buffer_load_dword", [vP4r, vP4, sDBG, 0], "offen sc1", dst=[])]) + \
        onlyw(0, [I("buffer_load_dword", [vP1, vP0, sWS, 0], "offen sc1", dst=[])])
    okl, okr = lab("Q_OK"), lab("Q_OKR")
    pre = onlyw(0, [waitcnt(vm=0), V("v_cmp_ne_u32", VCC, 1, vP1), nop(2), I("s_cbranch_vccz", [okl])] +
                poll(vP0, sWS, 1, vP1) + [label(okl), S("s_mov_b64", VCC, 0)])
    pre += onlyw(1, [waitcnt(vm=0), V("v_cmp_ne_u32", VCC, 256, vP4r), nop(2), I("s_cbranch_vccz", [okr])] +
                 poll(vP4, sDBG, 256, vP4r) + [label(okr), S("s_mov_b64", VCC, 0)])
    sGR, sCQ = L[6], L[7]
    sUN, sU0, sWH_, sW1, sW2, sW3, sKB = s(20), s(21), s(22), s(23), s(24), s(25), s(26)

    def wblock(dst, i):
        return [S("s_add_u32", dst, sCQ, i), S("s_and_b32", dst, dst, 3), S("s_lshl_b32", sT1, sGR, 2), S("s_add_u32", dst, dst, sT1),
                S("s_lshl_b32", sT1, sCQ, 5), S("s_add_u32", dst, dst, sT1), S("s_lshl_b32", dst, dst, 15),
                S("s_add_u32", dst, dst, WS_WA)]

    A(S("s_lshr_b32", sGR, sHEAD, 2))
    A(S("s_and_b32", sCQ, sHEAD, 3))
    o += wblock(sW1, 1) + wblock(sW2, 2) + wblock(sW3, 3) + wblock(sWH_, sWQ)
    A(S("s_sub_u32", sWH_, sWH_, WS_WA))
    A(S("s_lshr_b32", sWH_, sWH_, 3))
    A(S("s_add_u32", sWH_, sWH_, WS_WH))
    A(S("s_sub_u32", sWH_, sWH_, sPX))
    A(S("s_lshr_b32", sU0, sNB, 1))
    A(S("s_lshl_b32", sKB, sHEAD, 19))
    hook = [V("v_add_u32", vKVg, sPX, vL16)]
    H = hook.append
    H(S("s_lshl_b32", sT0, sSUB, 15))
    H(S("s_add_u32", sT0, sT0, sPX))
    H(S("s_add_u32", sT0, sT0, 2 * ASLOT))
    H(S("s_mov_b32", M0, sT0))
    H(S("s_lshl_b32", sT1, sSUB, 14))
    H(S("s_add_u32", sT1, sT1, sKB))
    H(S("s_add_u32", sT1, sT1, WS_KF + 8192))
    for i in range(4):
        H(dmal(vKVg, sWS, sT1, i * 1024))
    H(S("s_add_u32", M0, sT0, 16384))
    H(S("s_cmp_ge_u32", sWQ, 2))
    H(S("s_cselect_b32", sT1, WS_VF - 8192, WS_KF))
    H(S("s_cmp_eq_u32", sSUB, 1))
    H(S("s_cselect_b32", sT1, WS_VF + 8192, sT1))
    H(S("s_add_u32", sT1, sT1, sKB))
    for i in range(4):
        H(dmal(vKVg, sWS, sT1, i * 1024))
    hook += wblock(sT0, 0)
    H(S("s_lshl_b32", sT1, sSUB, 14))
    H(S("s_add_u32", sT0, sT0, sT1))
    H(S("s_add_u32", sT1, sT1, sPX))
    H(S("s_add_u32", M0, sT1, 131072))
    for i in range(4):
        H(dmal(vKVg, sWS, sT0, i * 1024))

    def kvdma():
        d = [S("s_mov_b32", M0, sWRA)]
        for i in range(4):
            d.append(dmal(vKVg, sWS, sKO, i * 1024))
        d.append(S("s_add_u32", M0, sWRA, 16384))
        for i in range(4):
            d.append(dmal(vKVg, sWS, sVO, i * 1024))
        d += [S("s_add_u32", sKO, sKO, 16384), S("s_add_u32", sVO, sVO, 16384), S("s_add_u32", sWRA, sWRA, ASLOT),
              S("s_and_b32", sWRA, sWRA, 4 * ASLOT - 1), S("s_add_u32", sUN, sUN, 1),
              S("s_cmp_eq_u32", sUN, sU0), S("s_cselect_b32", sKO, sWH_, sKO),
              S("s_sub_u32", sT0, sUN, 1), S("s_cmp_eq_u32", sT0, sU0), S("s_cselect_b32", sKO, sW1, sKO),
              S("s_sub_u32", sT0, sUN, 2), S("s_cmp_eq_u32", sT0, sU0), S("s_cselect_b32", sKO, sW2, sKO),
              S("s_add_u32", sT0, sKO, 16384), S("s_cmp_gt_u32", sUN, sU0), S("s_cselect_b32", sVO, sT0, sVO)]
        return d

    def guarded_dma():
        lb = lab("A_ND")
        return [S("s_cmp_lg_u32", sSUB, 0), I("s_cbranch_scc1", [lb])] + kvdma() + [label(lb)]

    H(S("s_mov_b32", sWRA, sPX))
    H(S("s_add_u32", sKO, sKB, WS_KF + 5 * 8192))
    H(S("s_add_u32", sVO, sKB, WS_VF + 3 * 8192))
    H(S("s_mov_b32", sUN, 2))
    o += role(sSUB)
    P.add(o)
    gemm4(P, "Q", 9, 4, 3, 12, q_issue, q_reads, q_mfmas, pre=2, extra=extra, tail_hook=hook, pre_hook=pre, est=est("Q"),
          first_vm=12 + 2)
    o = []
    A = o.append
    o += st(5)
    sCc = sT1
    A(S("s_mov_b32", sCc, float(CSCALE)))
    A(S("s_lshr_b32", sT0, sWV, 1))
    A(S("s_lshl_b32", sT0, sT0, 14))
    A(S("s_and_b32", sT2, sWV, 1))
    A(S("s_lshl_b32", sT2, sT2, 12))
    A(S("s_add_u32", sT0, sT0, sT2))
    A(V("v_add_u32", t0, sT0, vL16))
    A(I("s_barrier"))
    for m in range(2):
        for j in range(2):
            x = qacc[m][j]
            for r in range(16):
                A(V("v_mul_f32", x[r], sCc, x[r]))
            for r in range(8):
                A(V("v_cvt_pk_bf16_f32", x[r], x[2 * r], x[2 * r + 1]))
            for b in range(2):
                A(I("ds_write_b128", [t0, x[4 * b:4 * b + 4]], f"offset:{m * 8192 + (2 * j + b) * 1024}"))
    A(S("s_lshl_b32", sT0, sWV, 13))
    A(V("v_add_u32", v(122), sT0, vL16))
    o += st(6)

    vPC, vP1 = v(20), v(21)
    sXD = s(27)
    A(S("s_mov_b32", sXD, 1))
    vWB = [v(22), v(23), v(24), v(25)]
    vWHf = v(26)
    A(S("s_lshl_b32", sT0, sPI, 5))
    A(S("s_add_u32", sT0, sT0, sGR))
    A(S("s_lshl_b32", sT0, sT0, 8))
    A(S("s_lshl_b32", sT1, sWV, 2))
    A(S("s_add_u32", sT0, sT0, sT1))
    A(S("s_add_u32", sT0, sT0, WS_FLAG + 4 * F_CTX))
    A(V("v_and_b32", t0, 3, vL))
    A(V("v_lshlrev_b32", t0, 11, t0))
    A(V("v_add_u32", vPC, sT0, t0))
    A(V("v_add_u32", vWB[0], 131072, vL16))
    sSL = L[8]
    for i in range(1, 5):
        A(S("s_add_u32", sT0, sU0, (i % 4) + 2))
        A(S("s_and_b32", sT0, sT0, 3))
        A(S("s_lshl_b32", sT0, sT0, 15))
        if i < 4:
            A(V("v_add_u32", vWB[i], sT0, vL16))
        if i == 3:
            A(S("s_mov_b32", sSL, sT0))
    A(V("v_and_b32", t0, 15, vL))
    A(V("v_lshrrev_b32", t1, 5, vL))
    A(V("v_lshlrev_b32", t1, 8, t1))
    A(V("v_lshl_add_u32", t0, t0, 4, t1))
    A(V("v_add_u32", vWHf, sT0, t0))
    XA = [a(64 + 4 * i, 4) for i in range(8)] + [a(4 * i, 4) for i in range(16)] + [a(96 + 4 * i, 4) for i in range(8)]

    vLs, vThr, vLB, vD, vNINF = v(10), v(11), v(12), v(13), v(14)
    vB = [v(15), v(16)]
    vF, vDl, vFW = v(17), v(18), v(19)
    A(V("v_mov_b32", vLs, 0))
    A(V("v_mov_b32", vThr, float(2.0 ** THR_LOG2)))
    A(V("v_mov_b32", vNINF, 0xff800000))
    A(V("v_and_b32", t0, 31, vL))
    A(V("v_lshrrev_b32", t1, 5, vL))
    A(V("v_lshlrev_b32", t1, 2, t1))
    A(V("v_sub_u32", t0, t0, t1))
    A(V("v_add_u32", vD, sQ0, t0))
    A(S("s_lshl_b32", sT0, sWV, 2))
    A(V("v_mov_b32", t0, sT0))
    A(V("v_mov_b32", t1, BIG))
    A(V("v_cmp_eq_u32", VCC, 0, vL))
    A(V("v_cndmask_b32", vFW, t1, t0, VCC))

    def wave_flag(word):
        return [I("buffer_store_dword", [vOne, vFW, sWS, sFB], f"offen offset:{4 * word} sc1")]

    if "prio" in exp:
        o += only(sSUB, [S("s_setprio", 1)])
    A(waitcnt(vm=0, lgkm=0))
    A(I("s_barrier"))
    vA = vAc
    A(V("v_add_u32", vA, 2 * ASLOT, vL16))
    for db in range(8):
        A(dsr128(Q[db], v(122), db * 1024))
    for db in range(8):
        A(dsr128(FR[db], vA, 16384 + db * 1024))
    A(waitcnt(lgkm=8))
    A(I("s_barrier"))
    o += guarded_dma()
    for db in range(8):
        A(mfma(Sb[0], FR[db], Q[db], 0 if db == 0 else Sb[0]))
    A(S("s_mov_b32", sRDA, 2 * ASLOT))

    def frag_read(n, half):
        off = 16384 + half * 8192 + n * 1024 if n < 8 else half * 8192 + (n - 8) * 1024
        return dsr128(FR[n % 8], vA, off)

    def tail_pair(p, q0, q1, P_):
        r = []
        if p == 0:
            r.append(V("v_mov_b32", vB[0], q0))
            r.append(V("v_mov_b32", vB[1], q1))
        else:
            r.append(V("v_add_f32", vB[0], vB[0], q0))
            r.append(V("v_add_f32", vB[1], vB[1], q1))
        r.append(V("v_cvt_pk_bf16_f32", P_[p], q0, q1))
        return r

    def mask_ops(S_):
        r = []
        for g in range(4):
            for k in range(4):
                r.append(V("v_cmp_lt_i32", sMk[k], vD, 8 * g + k))
            for k in range(4):
                r.append(V("v_cndmask_b32", S_[4 * g + k], S_[4 * g + k], vNINF, sMk[k]))
        r.append(V("v_subrev_u32", vD, 32, vD))
        return r

    def softmax(cb, masked):
        S_, P_ = Sb[cb], Pb[cb]
        r = mask_ops(S_) if masked else []
        for p in range(8):
            r.append(V("v_exp_f32", T[(2 * p) % 8], S_[2 * p]))
            r.append(V("v_exp_f32", T[(2 * p + 1) % 8], S_[2 * p + 1]))
            if p > 0:
                r += tail_pair(p - 1, T[(2 * p - 2) % 8], T[(2 * p - 1) % 8], P_)
        r += tail_pair(7, T[6], T[7], P_)
        r.append(V("v_add_f32", vB[0], vB[0], vB[1]))
        return r

    def rowmax(S_, dst, tmp):
        r = [V("v_max3_f32", dst, S_[0], S_[1], S_[2])]
        for q in range(3, 15, 2):
            r.append(V("v_max3_f32", dst, dst, S_[q], S_[q + 1]))
        r += [V("v_max_f32", dst, dst, S_[15]), V("v_mov_b32", tmp, dst), V("v_permlane32_swap_b32", dst, tmp),
              V("v_max_f32", dst, dst, tmp), V("v_add_f32", dst, HEADROOM, dst)]
        return r

    slow_sites = []

    def step(half, has_pv, has_qk, masked, ctl=()):
        cb, nb = half, 1 - half
        M, frs = [], []
        if has_pv:
            for vb in range(2):
                for dt in range(4):
                    M.append(mfma(O[dt], FR[(4 * vb + dt) % 8], Pb[nb][4 * vb:4 * vb + 4], O[dt]))
                    frs.append(4 * vb + dt)
        if has_qk:
            for db in range(8):
                M.append(mfma(Sb[nb], FR[db], Q[db], NEGM if db == 0 else Sb[nb]))
                frs.append(8 + db)
        n = len(M)
        seq = [(x, half) for x in frs] + [(x, 1 - half) for x in range(16)]
        gaps = [[] for _ in M]
        g3 = [[] for _ in M]
        for j in range(n):
            if half == 1 and j + LA == n:
                gaps[j].append(V("v_add_u32", vA, sRDA, vL16))
            gaps[j].append(frag_read(*seq[j + LA]))
            if j % 2 == 1 and j + 1 < n:
                g3[j].append(waitcnt(lgkm=LA - 2))
        if has_pv:
            gaps[0].append(V("v_add_f32", vLs, vLs, vB[0]))
        if half == 0:
            gaps[0] += [waitcnt(vm=8), I("s_barrier")]
            gaps[1] += guarded_dma()
        else:
            gaps[0] += [S("s_add_u32", sRDA, sRDA, ASLOT), S("s_and_b32", sRDA, sRDA, 4 * ASLOT - 1)]
            gaps[1] += list(ctl)
        smx = softmax(cb, masked) + [V("v_cmp_gt_f32", VCC, vB[0], vThr)]
        g2 = interleave(M, smx, 2 if has_pv else 1, n - 1)
        sl, rt = lab("A_SLOW"), lab("A_RET")
        g3[n - 1] += [I("s_cbranch_vccnz", [sl]), label(rt)]
        slow_sites.append((sl, rt, cb, has_qk))
        return weave(M, gaps, g2, g3)

    for n in range(LA):
        A(dsr128(FR[n], vA, n * 1024))
    o += mask_ops(Sb[0]) + rowmax(Sb[0], vDl, t1)
    for r in range(16):
        A(V("v_sub_f32", NEGM[r], 0, vDl))
    for r in range(16):
        A(V("v_sub_f32", Sb[0][r], Sb[0][r], vDl))
    o += step(0, False, True, False) + step(1, True, True, True)
    if "stag" in exp:
        o += onlyw(4, [V("v_add_u32", v(120), 128 * 256, v(120))] + poll(v(120), sWS, 1, v(121)))
    A(S("s_sub_u32", sREM, sNB, sN))
    A(S("s_lshr_b32", sREM, sREM, 1))
    A(S("s_add_u32", sREM, sREM, 1))
    A(S("s_cmp_eq_u32", sN, 4))
    A(I("s_cbranch_scc1", ["A_PF"]))
    A(S("s_sub_u32", sT0, sN, 6))
    A(S("s_lshl_b32", sT0, sT0, 5))
    A(V("v_subrev_u32", vD, sT0, vD))
    A(S("s_lshr_b32", sCNT, sN, 1))
    A(S("s_sub_u32", sCNT, sCNT, 3))
    P.add(o)
    lb = step(0, True, True, False) + step(1, True, True, False, ctl=[S("s_sub_u32", sCNT, sCNT, 1), S("s_cmp_lg_u32", sCNT, 0)])
    lb += [I("s_cbranch_scc1", ["A_LOOP"])]
    P.loop("A_LOOP", lb)
    SK = "noskip" not in exp
    o = []
    A = o.append
    if SK:
        o += [S("s_cmp_eq_u32", sWQ, 0), I("s_cbranch_scc1", ["A_E0"])]
    o += step(0, True, True, True)
    if SK:
        o += [S("s_cmp_eq_u32", sWQ, 1), I("s_cbranch_scc1", ["A_E1"])]
    o += step(1, True, True, True)
    A(label("A_PF"))
    A(S("s_sub_u32", sREM, sREM, 1))
    if SK:
        o += [S("s_cmp_le_u32", sWQ, 2), I("s_cbranch_scc1", ["A_E0"])]
    o += step(0, True, True, True)
    A(label("A_E1"))
    o += step(1, True, False, True)
    A(V("v_add_f32", vLs, vLs, vB[0]))
    A(S("s_cmp_eq_u32", sREM, 0))
    A(I("s_cbranch_scc1", ["A_FIN"]))
    A(waitcnt(vm=8))
    A(I("s_barrier"))
    o += guarded_dma()
    A(S("s_sub_u32", sREM, sREM, 1))
    A(label("A_FIN"))

    def fin(half):
        M = [mfma(O[dt], FR[4 * vb + dt], Pb[1 - half][4 * vb:4 * vb + 4], O[dt]) for vb in range(2) for dt in range(4)]
        gaps = [[] for _ in M]
        for j in range(8 - LA):
            gaps[j].append(frag_read(j + LA, half))
        return weave(M, gaps)

    o += fin(0)
    if SK:
        A(I("s_branch", ["A_EPI"]))
        A(label("A_E0"))
        o += step(0, True, False, True)
        A(V("v_add_f32", vLs, vLs, vB[0]))
        o += fin(1)
        A(label("A_EPI"))
    o += st(7)
    A(V("v_mov_b32", t0, vLs))
    A(V("v_permlane32_swap_b32", t0, vLs))
    A(V("v_add_f32", t0, t0, vLs))
    A(V("v_rcp_f32", vF, t0))
    A(S("s_lshl_b32", sT0, sQ0, 13))
    A(S("s_lshl_b32", sT1, sHEAD, 13))
    A(S("s_add_u32", sT0, sT0, sT1))
    A(S("s_add_u32", sT0, sT0, WS_CTX))
    A(S("s_add_u32", sT1, sT0, 4096))
    for dt in range(4):
        Tm, Pk = Sb[dt % 2], Pb[dt % 2]
        for r in range(16):
            A(V("v_accvgpr_read_b32", Tm[r], O[dt][r]))
        for r in range(16):
            A(V("v_mul_f32", Tm[r], Tm[r], vF))
        for r in range(8):
            A(V("v_cvt_pk_bf16_f32", Pk[r], Tm[2 * r], Tm[2 * r + 1]))
        for b in range(2):
            db = 2 * dt + b
            A(bstore4(Pk[4 * b:4 * b + 4], vL16, sWS, sT0 if db < 4 else sT1, (db % 4) * 1024, "" if "ctxplain" in exp else ST))
        for r in range(8):
            A(V("v_accvgpr_write_b32", XA[2 * dt + r // 4][r % 4], Pk[r]))
    A(S("s_cmp_eq_u32", sSUB, 0))
    A(I("s_cbranch_scc1", ["A_SHORT"]))
    A(S("s_cmp_eq_u32", sREM, 0))
    A(I("s_cbranch_scc1", ["A_DONE"]))
    A(I("s_barrier"))
    A(I("s_branch", ["A_DONE"]))
    A(label("A_SHORT"))
    def interval(work):
        return [waitcnt(vm=8), I("s_barrier")] + work + kvdma()

    def checked(vaddr, vres):
        ok = lab("SJ_OK")
        return [V("v_cmp_ne_u32", VCC, 1, vres), nop(2), I("s_cbranch_vccz", [ok])] + poll(vaddr, sWS, 1, vres) + [label(ok)]

    vJ, vJr = v(116), v(117)
    A(S("s_cmp_ge_u32", sW, 48))
    A(I("s_cbranch_scc1", ["A_NKVR"]))
    sJ, sJo = L[16], L[17]
    A(S("s_lshl_b32", sJ, sW, 2))
    A(S("s_add_u32", sJ, sJ, sWQ))
    A(S("s_mul_i32", sT0, sJ, 43691))
    A(S("s_lshr_b32", sT0, sT0, 20))
    A(S("s_lshr_b32", sT1, sT0, 2))
    A(S("s_and_b32", sT0, sT0, 3))
    A(S("s_lshl_b32", sT0, sT0, 6))
    A(S("s_add_u32", sT0, sT0, sT1))
    A(V("v_bfe_u32", t0, vL, 3, 2))
    A(V("v_lshlrev_b32", t0, 1, t0))
    A(V("v_and_b32", t1, 7, vL))
    A(V("v_lshl_add_u32", t0, t1, 3, t0))
    A(V("v_add_u32", t0, sT0, t0))
    A(V("v_lshlrev_b32", t0, 8, t0))
    A(V("v_add_u32", vJ, WS_FLAG + 4 * F_B1, t0))
    A(S("s_lshl_b32", sJo, sJ, 10))
    A(S("s_add_u32", sJo, sJo, WS_KVP))
    R = [v(32 + 4 * i, 4) for i in range(16)]
    KS_ = v(96, 4)

    def kvr_loads():
        r = []
        for i in range(16):
            r += [bload4(R[i], vL16, sWS, sJo, 0, LD), S("s_add_u32", sJo, sJo, 192 * 1024)]
        return r

    def kvr_sum(first):
        r = [forget(R)]
        for step_ in (1, 2, 4, 8):
            for w in range(0, 16, 2 * step_):
                r += [V("v_add_f32", R[w][q], R[w][q], R[w + step_][q]) for q in range(4)]
        r += [V("v_mov_b32", KS_[q], R[0][q]) if first else V("v_add_f32", KS_[q], KS_[q], R[0][q]) for q in range(4)]
        return r

    o += interval([I("buffer_load_dword", [vJr, vJ, sWS, 0], "offen sc1", dst=[])])
    o += interval(wave_flag(F_CTX) + checked(vJ, vJr) + kvr_loads())
    o += interval(kvr_sum(True) + kvr_loads())
    o += interval(kvr_sum(False) + [
        V("v_cvt_pk_bf16_f32", KS_[0], KS_[0], KS_[1]), V("v_cvt_pk_bf16_f32", KS_[1], KS_[2], KS_[3]),
        S("s_lshr_b32", sT0, sJ, 1), S("s_lshl_b32", sT0, sT0, 10), S("s_and_b32", sT1, sJ, 1), S("s_lshl_b32", sT1, sT1, 3),
        S("s_add_u32", sT0, sT0, sT1), S("s_add_u32", sT0, sT0, WS_KVF),
        I("buffer_store_dwordx2", [KS_[0:2], vL16, sWS, sT0], "offen " + ST)])
    o += interval(wave_flag(F_KVR))
    A(S("s_sub_u32", sREM, sREM, 5))
    A(I("s_branch", ["A_DL0"]))
    A(label("A_NKVR"))
    A(S("s_sub_u32", L[18], sW, 96))
    A(S("s_cmp_ge_u32", L[18], 128))
    A(I("s_cbranch_scc1", ["A_DL0"]))
    sSB, sH0 = L[16], L[17]
    A(S("s_lshr_b32", sSB, L[18], 1))
    A(S("s_and_b32", sH0, L[18], 1))
    A(S("s_lshl_b32", sH0, sH0, 4))
    A(S("s_lshl_b32", sT0, sWQ, 2))
    A(S("s_add_u32", sH0, sH0, sT0))
    A(S("s_mul_i32", sT0, sH0, 6))
    A(V("v_min_u32", t0, 23, vL))
    A(V("v_add_u32", t0, sT0, t0))
    A(V("v_and_b32", t1, 3, t0))
    A(V("v_lshrrev_b32", t0, 2, t0))
    A(V("v_lshlrev_b32", t0, 8, t0))
    A(V("v_lshl_add_u32", t0, t1, 2, t0))
    A(V("v_add_u32", vJ, WS_FLAG + 4 * F_KVR, t0))
    Pf = [[v(32 + 12 * k + 4 * F, 4) for F in range(3)] for k in range(4)]
    Kf = [[a(12 * k + 4 * F, 4) for F in range(3)] for k in range(4)]
    Cs = [v(80, 16), v(96, 16)]
    ld = [S("s_lshl_b32", sT0, sSB, 5), S("s_add_u32", sT0, sT0, sH0), S("s_mul_i32", sT0, sT0, 3072),
          S("s_add_u32", sT0, sT0, WS_PHIQ), S("s_mul_i32", sT1, sH0, 3072), S("s_add_u32", sT1, sT1, WS_KVF)]
    for k in range(4):
        for F in range(3):
            ld += [bload4(Pf[k][F], vL16, sWS, sT0, F * 1024, LD), bload4(Kf[k][F], vL16, sWS, sT1, F * 1024, LD)]
        ld += [S("s_add_u32", sT0, sT0, 3072), S("s_add_u32", sT1, sT1, 3072)]
    cp = [forget([x for k in range(4) for x in Pf[k] + Kf[k]]),
          S("s_mul_i32", sT2, sSB, 36), S("s_add_u32", sT0, sT2, sH0), S("s_lshl_b32", sT0, sT0, 10), S("s_add_u32", sT0, sT0, WS_OF),
          S("s_lshr_b32", sT1, sH0, 3), S("s_add_u32", sT1, sT1, sT2), S("s_lshl_b32", sT1, sT1, 10),
          S("s_add_u32", sT1, sT1, WS_OF + 32 * 1024), S("s_and_b32", sT2, sH0, 7), S("s_lshl_b32", sT2, sT2, 1),
          S("s_add_u32", sT1, sT1, sT2)]
    XO = [v(112), v(113), v(114), v(115)]
    for k in range(4):
        C = Cs[k % 2]
        cp += [mfma(C, Kf[k][F], Pf[k][F], 0 if F == 0 else C) for F in range(3)]
        cp += [V("v_add_f32", t0, 1e-6, C[9]), V("v_rcp_f32", t0, t0)]
        cp += [V("v_mul_f32", C[i], C[i], t0) for i in range(9)]
        cp += [V("v_cvt_pk_bf16_f32", Pf[k][0][p], C[2 * p], C[2 * p + 1]) for p in range(4)]
        cp += [V("v_mov_b32", XO[k], C[8]), bstore4(Pf[k][0], vL16, sWS, sT0, k * 1024, ST)]
    cp += [V("v_cvt_pk_bf16_f32", XO[0], XO[0], XO[1]), V("v_cvt_pk_bf16_f32", XO[1], XO[2], XO[3]),
           I("buffer_store_dwordx2", [v(112, 2), vL16, sWS, sT1], "offen " + ST)]
    o += interval([I("buffer_load_dword", [vJr, vJ, sWS, 0], "offen sc1", dst=[])])
    o += interval(wave_flag(F_CTX) + checked(vJ, vJr) + ld)
    o += interval(cp)
    o += interval(wave_flag(F_O))
    A(S("s_sub_u32", sREM, sREM, 4))
    xl = []
    for i in range(1, 4):
        xl += [S("s_add_u32", sT0, sCQ, i), S("s_and_b32", sT0, sT0, 3), S("s_lshl_b32", sT1, sGR, 2), S("s_add_u32", sT0, sT0, sT1),
               S("s_add_u32", sT0, sT0, sQ0), S("s_lshl_b32", sT0, sT0, 13), S("s_add_u32", sT0, sT0, WS_CTX),
               S("s_add_u32", sT1, sT0, 4096)]
        xl += [I("buffer_load_dwordx4", [XA[8 * i + db], vL16, sWS, sT0 if db < 4 else sT1],
                 f"offen offset:{(db % 4) * 1024}" + (" " + LD if LD else ""), dst=[]) for db in range(8)]
    A(label("A_DL0"))
    A(S("s_cmp_lt_u32", sREM, 4 if "xjob" in exp else 1000))
    A(I("s_cbranch_scc1", ["A_DL1"]))
    o += interval([])
    o += interval(wave_flag(F_CTX) + [])
    o += interval(poll(vPC, sWS, 1, vP1) + xl)
    A(S("s_sub_u32", sREM, sREM, 3))
    A(S("s_mov_b32", sXD, 0))
    A(label("A_DL1"))
    P.add(o)
    lb = [waitcnt(vm=8), I("s_barrier")] + kvdma()
    lb += [S("s_sub_u32", sREM, sREM, 1), S("s_cmp_lg_u32", sREM, 0), I("s_cbranch_scc1", ["A_DL"])]
    P.loop("A_DL", lb)
    o = [waitcnt(vm=0)] + wave_flag(F_CTX)
    A = o.append
    A(label("A_DONE"))
    o += st(8)
    A(I("s_barrier"))
    o += st(16)
    A(S("s_lshl_b32", sT1, sSUB, 14))
    A(S("s_add_u32", sT0, sW3, sT1))
    A(S("s_add_u32", sT1, sT1, sPX))
    A(S("s_add_u32", M0, sT1, sSL))
    for q in range(4):
        A(dmal(vKVg, sWS, sT0, q * 1024))
    pacc = [v(32 + 16 * j, 16) for j in range(5)]
    WR = [v(112, 4), v(116, 4), v(120, 4), v(10, 4), v(14, 4)]
    seq = [(k, j) for k in range(8) for j in range(5)] + [(k, j) for j in range(5) for k in range(8, 32)]
    WLA = 4

    def wread(n):
        k, j = seq[n]
        if j < 4:
            return dsr128(WR[n % 5], vWB[k // 8], (k % 8) * 4096 + j * 1024)
        return dsr128(WR[n % 5], vWHf, k * 512)

    sPT0 = L[9]
    A(S("s_lshl_b32", sPT0, sPI, 2))
    A(S("s_add_u32", sPT0, sPT0, sCQ))
    A(S("s_lshl_b32", sPT0, sPT0, 3))
    A(S("s_add_u32", sT0, sPT0, sWV))
    A(S("s_lshl_b32", sT0, sT0, 3))
    A(S("s_add_u32", sT0, sT0, sGR))
    A(S("s_mul_i32", sT0, sT0, 9216))
    sPTs = [L[0], L[1], L[2]]
    A(S("s_add_u32", sPTs[0], sT0, WS_PT))
    A(S("s_add_u32", sPTs[1], sPTs[0], 4096))
    A(S("s_add_u32", sPTs[2], sPTs[0], 8192))

    def pstore(j):
        r = []
        for b in range(2 if j < 4 else 1):
            r += [V("v_cvt_pk_bf16_f32", pacc[j][4 * b + q], pacc[j][8 * b + 2 * q], pacc[j][8 * b + 2 * q + 1]) for q in range(4)]
            pi_ = 2 * j + b
            r.append(bstore4(pacc[j][4 * b:4 * b + 4], vL16, sWS, sPTs[pi_ // 4], (pi_ % 4) * 1024, ST))
        return r

    for n in range(WLA):
        A(wread(n))
    pend = []
    NF, NP = (3, 14)
    vTK, vTO, vTA = v(27), v(28), v(29)
    A(V("v_mov_b32", t1, BIG))
    A(V("v_mov_b32", t0, 8))
    A(V("v_cmp_eq_u32", VCC, 0, vL))
    A(V("v_cndmask_b32", vTO, t1, t0, VCC))

    def ticket():
        return onlyw(7, [V("v_mov_b32", vTK, 1), I("buffer_atomic_add", [vTK, vTO, sDBG, 0], "offen sc0 sc1", dst=[])])

    for n, (k, j) in enumerate(seq):
        A(mfma(pacc[j], WR[n % 5], XA[k], 0 if k == 0 else pacc[j]))
        if n == 48:
            A(I("s_barrier"))
        if n + WLA < len(seq):
            A(wread(n + WLA))
        if n == NF:
            o += only(sSUB, [waitcnt(vm=4)] + wave_flag(F_CTX))
        if n == NP:
            o += poll(vPC, sWS, 1, vP1) + xl + st(9)
        if n in (39, 47, 55):
            A(waitcnt(vm={39: 16, 47: 8, 55: 0}[n]))
        if k == 12 and j > 0:
            pend = pstore(j - 1)
        if k == 20 and j == 4:
            o += ticket()
        if pend:
            o += pend[:2]
            pend = pend[2:]
    o += pstore(4)
    o += st(10)
    vW2, vLx, vW2x, vWr, vSt, vPO = v(22), v(23), v(24), v(25), v(26), v(20)
    vRdw = [v(30), v(31), v(123)]
    RS = 304
    A(V("v_and_b32", t0, 7, vL))
    A(V("v_lshrrev_b32", t1, 5, vL))
    A(V("v_lshlrev_b32", t1, 7, t1))
    A(V("v_lshl_add_u32", vW2, t0, 4, t1))
    A(V("v_mov_b32", t2, BIG))
    A(S("s_cmp_lt_u32", sWV, 4))
    A(S("s_cselect_b64", sM, -1, 0))
    A(V("v_cndmask_b32", vLx, t2, vL16, sM))
    A(V("v_cndmask_b32", vW2x, t2, vW2, sM))
    A(V("v_and_b32", t0, 31, vL))
    A(V("v_mul_u32_u24", t0, RS, t0))
    A(V("v_lshrrev_b32", t1, 5, vL))
    A(V("v_lshl_add_u32", t0, t1, 4, t0))
    A(S("s_mul_i32", sT0, sWV, 64 * RS))
    A(V("v_add_u32", vWr, sT0, t0))
    A(V("v_mul_u32_u24", t1, 43691, v(0)))
    A(V("v_lshrrev_b32", t1, 18, t1))
    A(V("v_mul_u32_u24", t2, 6, t1))
    A(V("v_sub_u32", t2, v(0), t2))
    A(V("v_mul_u32_u24", t0, RS, t1))
    A(V("v_mul_u32_u24", t3, 48, t2))
    A(V("v_add_u32", vRdw[0], t0, t3))
    A(V("v_add_u32", vRdw[1], 3 * 64 * RS, vRdw[0]))
    A(V("v_add_u32", vRdw[2], 6 * 64 * RS, vRdw[0]))
    A(V("v_mul_u32_u24", t1, 2304, t1))
    A(V("v_mul_u32_u24", t3, 24, t2))
    A(V("v_add_u32", vSt, t1, t3))
    A(V("v_bfe_u32", t0, vL, 2, 2))
    A(V("v_lshlrev_b32", t0, 8, t0))
    A(V("v_and_b32", t1, 3, vL))
    A(V("v_lshl_add_u32", t0, t1, 2, t0))
    A(V("v_add_u32", vPO, WS_FLAG + 96 * 256 + 4 * F_O, t0))
    sOUT = sA
    o += mk_srd(sOUT, "out")
    sXo0, sXo1, sWo_ = L[13], L[14], L[15]
    bfr = [a(64 + 4 * i, 4) for i in range(16)] + [v(64 + 4 * i, 4) for i in range(4)] + [v(96 + 4 * i, 4) for i in range(5)]
    bacc = [[a(0, 16), a(16, 16), a(32, 16)], [a(48, 16), v(32, 16), v(48, 16)]]

    def oloads(X, W, xstep, wstep, masked=False, x=True, w=True):
        va, vw = (vLx, vW2x) if masked else (vL16, vW2)
        r = []
        if x:
            r += [bload4(X[0], va, sWS, sXo0, 0, LD), bload4(X[1], va, sWS, sXo1, 0, LD),
                  S("s_add_u32", sXo0, sXo0, xstep), S("s_add_u32", sXo1, sXo1, xstep)]
        if w:
            r += [bload4(W[0], va, sWS, sWo_, 0, LD), bload4(W[1], va, sWS, sWo_, 1024, LD),
                  bload4(W[2], vw, sWS, sWo_, 2048, LD), S("s_add_u32", sWo_, sWo_, wstep)]
        return r

    def bout_loads():
        r = [S("s_mul_i32", sXo0, sRB1, 72), S("s_add_u32", sXo0, sXo0, sWV), S("s_lshl_b32", sXo0, sXo0, 10),
             S("s_add_u32", sXo0, sXo0, WS_OF), S("s_add_u32", sXo1, sXo0, 36 * 1024), S("s_mul_i32", sWo_, sG1, WOF_CG),
             S("s_mul_i32", sT0, sWV, 2304), S("s_add_u32", sWo_, sWo_, sT0), S("s_add_u32", sWo_, sWo_, WS_WOF + 256 * 2304)]
        for it in range(5):
            r += oloads(bfr[5 * it:5 * it + 2], bfr[5 * it + 2:5 * it + 5], 8192, 8 * 2304, masked=(it == 4))
        return r

    A(waitcnt(vm=0))
    o += wave_flag(F_PT)
    TKA = 160000
    A(V("v_mov_b32", vTA, TKA))
    A(label("B_TOP"))
    o += onlyw(7, [waitcnt(vm=0), V("v_readfirstlane_b32", sT0, vTK), V("v_mov_b32", vTK, sT0), I("ds_write_b32", [vTA, vTK])])
    A(waitcnt(lgkm=0))
    A(I("s_barrier"))
    A(I("ds_read_b32", [t0, vTA]))
    A(V("v_readfirstlane_b32", sT0, t0))
    A(S("s_cmp_ge_u32", sT0, 256))
    A(I("s_cbranch_scc1", ["B_END"]))
    A(S("s_lshr_b32", sRB1, sT0, 3))
    A(S("s_and_b32", sG1, sT0, 7))
    A(S("s_lshl_b32", sT2, sRB1, 10))
    o += poll(vPO, sWS, 1, vP1, sT2)
    o += bout_loads()
    for it in range(5):
        X, W = bfr[5 * it:5 * it + 2], bfr[5 * it + 2:5 * it + 5]
        o += [mfma(bacc[qb][j], W[j], X[qb], 0 if it == 0 else bacc[qb][j]) for j in range(3) for qb in range(2)]
    o += st(11)
    o += ticket()
    for qb in range(2):
        for j in range(3):
            for g in range(4 if j < 2 else 1):
                A(I("ds_write_b128", [vWr, bacc[qb][j][4 * g:4 * g + 4]], f"offset:{qb * 32 * RS + (32 * j + 8 * g) * 4}"))
    sk = lab("O_SK")
    o += [waitcnt(lgkm=0), I("s_barrier"), S("s_cmp_ge_u32", sWV, 6), I("s_cbranch_scc1", [sk])]
    RR = [[v(32 + 12 * w + 4 * q, 4) for q in range(3)] for w in range(7)] + [[v(116, 4), v(10, 4), v(14, 4)]]
    for ww in range(8):
        o += [dsr128(RR[ww][q], vRdw[ww // 3], (ww % 3) * 64 * RS + 16 * q) for q in range(3)]
    for step_ in (1, 2, 4):
        for w in range(0, 8, 2 * step_):
            o += [V("v_add_f32", RR[w][q][r], RR[w][q][r], RR[w + step_][q][r]) for q in range(3) for r in range(4)]
    PKo = v(44, 6)
    o += [V("v_cvt_pk_bf16_f32", PKo[x], RR[0][x // 2][(2 * x) % 4], RR[0][x // 2][(2 * x) % 4 + 1]) for x in range(6)]
    o += [S("s_mul_i32", sT0, sRB1, 64 * 2304), S("s_mul_i32", sT1, sG1, 144), S("s_add_u32", sT0, sT0, sT1),
          S("s_add_u32", sT0, sT0, 1152), bstore4(PKo[0:4], vSt, sOUT, sT0),
          I("buffer_store_dwordx2", [PKo[4:6], vSt, sOUT, sT0], "offen offset:16")]
    A(label(sk))
    A(nop(8))
    A(I("s_branch", ["B_TOP"]))
    A(label("B_END"))
    o += st(12)
    A(S("s_and_b32", sT0, sW, 0xf8))
    A(S("s_lshl_b32", sT0, sT0, 8))
    A(S("s_lshl_b32", sT1, sGR, 2))
    A(S("s_add_u32", sT0, sT0, sT1))
    A(S("s_add_u32", sT0, sT0, WS_FLAG + 4 * F_PT))
    A(V("v_and_b32", t0, 7, vL))
    A(V("v_lshlrev_b32", t0, 8, t0))
    A(V("v_add_u32", t0, sT0, t0))
    o += poll(t0, sWS, 1, vP1)
    o += st(25)
    A(S("s_sub_u32", sT0, 15, sPI))
    A(S("s_cmp_lt_u32", sGR, 4))
    A(S("s_cselect_b32", sT0, sPI, sT0))
    A(S("s_lshl_b32", sT0, sT0, 7))
    A(S("s_and_b32", sT1, sGR, 3))
    A(S("s_lshl_b32", sT1, sT1, 5))
    A(S("s_add_u32", sT0, sT0, sT1))
    A(V("v_and_b32", t0, 31, vL))
    A(V("v_add_u32", t0, sT0, t0))
    A(V("v_mul_u32_u24", t0, 2304, t0))
    A(V("v_lshrrev_b32", t1, 5, vL))
    A(V("v_lshl_add_u32", t0, t1, 4, t0))
    A(S("s_mul_i32", sT0, sCQ, 288))
    A(V("v_add_u32", t0, sT0, t0))
    A(S("s_add_u32", sT0, sPT0, sGR))
    A(S("s_mul_i32", sT0, sT0, 8 * 9216))
    A(S("s_add_u32", L[10], sT0, WS_PT))

    def gather(spiece):
        G_ = [v(32 + 4 * i, 4) for i in range(8)]
        Sm = [v(64 + i) for i in range(8)]
        r = [S("s_lshl_b32", sT0, spiece, 10), S("s_add_u32", sT0, sT0, L[10])]
        for i in range(8):
            r += [bload4(G_[i], vL16, sWS, sT0, 0, LD), S("s_add_u32", sT0, sT0, 9216)]
        for i in range(8):
            for q in range(4):
                if i == 0:
                    r += [V("v_lshlrev_b32", Sm[2 * q], 16, G_[0][q]), V("v_and_b32", Sm[2 * q + 1], 0xffff0000, G_[0][q])]
                else:
                    r += [V("v_lshlrev_b32", t2, 16, G_[i][q]), V("v_and_b32", t3, 0xffff0000, G_[i][q]),
                          V("v_add_f32", Sm[2 * q], Sm[2 * q], t2), V("v_add_f32", Sm[2 * q + 1], Sm[2 * q + 1], t3)]
        D = v(72, 4)
        r += [V("v_cvt_pk_bf16_f32", D[q], Sm[2 * q], Sm[2 * q + 1]) for q in range(4)]
        r += [V("v_permlane32_swap_b32", D[0], D[2]), V("v_permlane32_swap_b32", D[1], D[3]),
              S("s_lshl_b32", sT0, spiece, 5), bstore4(D, t0, sOUT, sT0)]
        return r

    o += gather(sWV)
    A(S("s_mov_b32", L[11], 8))
    o += onlyw(7, gather(L[11]))
    if stamps:
        o += st(13) + [waitcnt(vm=0)] + st(14) + st(63, True)
        A(S("s_lshl_b32", sT0, sW, 3))
        A(S("s_add_u32", sT0, sT0, sWV))
        A(S("s_lshl_b32", sT0, sT0, 8))
        A(S("s_add_u32", sT0, sT0, 200 * MB))
        A(V("v_lshlrev_b32", t0, 2, vL))
        A(I("buffer_store_dword", [vSTP, t0, sWS, sT0], "offen"))
    P.add(o)
    P.out.append(label("F_END"))
    P.out.append(I("s_endpgm"))

    for sl, rt, cb, has_qk in slow_sites:
        P.st = State()
        nb = 1 - cb
        S_ = Sb[cb]
        b = [label(sl), nop(16), nop(4)]
        B = b.append
        b += rowmax(S_, t0, t1)
        B(V("v_max_f32", vDl, 0, t0))
        B(V("v_exp_f32", vF, Neg(vDl)))
        for r in range(16):
            B(V("v_sub_f32", NEGM[r], NEGM[r], vDl))
            B(V("v_sub_f32", S_[r], S_[r], vDl))
            if has_qk:
                B(V("v_sub_f32", Sb[nb][r], Sb[nb][r], vDl))
        B(V("v_mul_f32", vLs, vLs, vF))
        for dt in range(4):
            for r0 in range(0, 16, 8):
                for r in range(8):
                    B(V("v_accvgpr_read_b32", T[8 + r], O[dt][r0 + r]))
                for r in range(8):
                    B(V("v_mul_f32", T[8 + r], T[8 + r], vF))
                for r in range(8):
                    B(V("v_accvgpr_write_b32", O[dt][r0 + r], T[8 + r]))
        b += softmax(cb, False)
        B(nop(4))
        B(I("s_branch", [rt]))
        P.add(b)
    P.out.append(label("F_CODE_END"))
    P.out.append(I("s_endpgm"))
    return kernel_text(name, P, 256, 128, nsgpr=102)
```

```python
from common import *
from gemm import *
import math

LOG2E = math.log2(math.e)
CSCALE = (128 ** -0.5) * LOG2E
WS_PHIQ = WS_B
WS_KVP = WS_B + 8 * MB
WS_KVF = WS_B + 15 * MB
WS_OF = WS_B + 16 * MB
WS_WOF = WS_B + 20 * MB
WS_FLAG = WS_B + 28 * MB
WOF_CG = 292 * 2304
WS_WA = WS_PART
WS_WH = WS_PART + 4 * MB
WS_PT = WS_PART + 8 * MB
F_PT = 24
BIG = 0x7fffff00
F_B1, F_KV, F_KVR, F_O, F_CTX = 0, 1, 4, 8, 16

THR_LOG2 = 60.0
HEADROOM = 40.0
LA = 6
ORDER = ["A_x", "A_c_kv", "A_w_q", "A_w_uk", "A_w_uv", "A_w_o", "B_x", "B_wqkv", "B_w_phi", "B_wo", "out", "dbg", "ws"]


def gen_fused(name, stamps=False, exp="", LD="", ST="sc1"):
    P = Prog()
    PTR = {n: s(64 + 2 * i, 2) for i, n in enumerate(ORDER)}
    sW, sWV = s(2), s(3)
    sM = s(4, 2)
    sT0, sT1, sT2 = s(6), s(7), s(90)
    sWS, sA, sB, sC, sD, sDBG = s(8, 4), s(12, 4), s(16, 4), s(20, 4), s(24, 4), s(28, 4)
    sRB1, sG1, sHEAD, sPI, sE, sFB, sSPIN = s(32), s(33), s(34), s(35), s(36), s(37), s(38)
    L = [s(40 + i) for i in range(24)]
    vL, vL16, vFZ, vOne = v(1), v(2), v(3), v(4)
    vSTP = v(127)
    t0, t1, t2, t3, t4 = [v(5 + i) for i in range(5)]
    nlab = [0]

    def lab(p):
        nlab[0] += 1
        return f"{p}{nlab[0]}"

    def mk_srd(dst, nm):
        return [S("s_mov_b32", dst[0], PTR[nm][0]), S("s_mov_b32", dst[1], PTR[nm][1]),
                S("s_mov_b32", dst[2], NBYTES[nm]), S("s_mov_b32", dst[3], 0x20000)]

    def st(i, real=False):
        if not stamps:
            return []
        r = s(92, 2)
        x = [I("s_memrealtime" if real else "s_memtime", [r], cls="smem", dst=r.regs(), src=[]), waitcnt(lgkm=0),
             I("v_writelane_b32", [vSTP, r[0], i])]
        if not real and i < 15:
            x += [I("s_memrealtime", [r], cls="smem", dst=r.regs(), src=[]), waitcnt(lgkm=0), I("v_writelane_b32", [vSTP, r[0], 40 + i])]
        return x

    ecnt = [16]

    def est(ph):
        if not (stamps and ("est" + ph) in exp):
            return None

        def fn():
            ecnt[0] += 1
            return st(ecnt[0] - 1)
        return fn

    def poll(vaddr, srd, expect, vt, soff=0):
        lp, dn = lab("PL"), lab("PD")
        return [S("s_mov_b32", sSPIN, 0), label(lp),
                I("buffer_load_dword", [vt, vaddr, srd, soff], "offen sc1"), waitcnt(vm=0),
                V("v_cmp_ne_u32", VCC, expect, vt), S("s_add_u32", sSPIN, sSPIN, 1),
                I("s_cbranch_vccz", [dn]), S("s_sleep", 1), S("s_cmp_lt_u32", sSPIN, 200000),
                I("s_cbranch_scc1", [lp]), label(dn)]

    def wg_flag(word):
        return [I("buffer_store_dword", [vOne, vFZ, sWS, sFB], f"offen offset:{4 * word} sc1")]

    def dmal(voff, srd, soff, off=0):
        return I("buffer_load_dwordx4", [voff, srd, soff],
                 ("offen" + (f" offset:{off}" if off else "") + (" " + LD if LD else "") + " lds"))

    o = []
    A = o.append
    A(S("s_cmp_ge_u32", sW, 256))
    A(I("s_cbranch_scc1", ["F_END"]))
    if "latepf" not in exp and "nocodepf" not in exp:
        NPF = 32 if "pf32" in exp else 16
        A(S("s_cmp_ge_u32", sW, NPF))
        A(I("s_cbranch_scc1", ["F_NOPF"]))
        A(I("s_getpc_b64", [s(98, 2)]))
        A(label("F_PC"))
        A(S("s_lshr_b32", sT0, sW, 3))
        A(S("s_and_b32", sT0, sT0, 1))
        A(S("s_lshl_b32", sT0, sT0, 16))
        A(V("v_lshlrev_b32", v(31), 7, v(0)))
        A(V("v_add_u32", v(31), sT0, v(31)))
        A(V("v_min_u32", v(31), "F_CODE_END-F_PC-4", v(31)))
        A(I("global_load_dword", [v(31), v(31), s(98, 2)], "", dst=[]))
        A(label("F_NOPF"))
    A(I("s_load_dwordx16", [s(64, 16), s(0, 2), 0]))
    A(I("s_load_dwordx8", [s(80, 8), s(0, 2), 64]))
    A(I("s_load_dwordx2", [s(88, 2), s(0, 2), 96]))
    if stamps:
        A(V("v_mov_b32", vSTP, 0))
    A(V("v_lshrrev_b32", t0, 6, v(0)))
    A(V("v_and_b32", vL, 63, v(0)))
    A(V("v_readfirstlane_b32", sWV, t0))
    A(V("v_lshlrev_b32", vL16, 4, vL))
    A(S("s_and_b32", sT0, sW, 7))
    A(S("s_lshr_b32", sT1, sW, 3))
    A(S("s_lshr_b32", sRB1, sT0, 1))
    A(S("s_lshl_b32", sRB1, sRB1, 3))
    A(S("s_and_b32", sT2, sT1, 7))
    A(S("s_add_u32", sRB1, sRB1, sT2))
    A(S("s_and_b32", sG1, sT0, 1))
    A(S("s_lshl_b32", sG1, sG1, 2))
    A(S("s_lshr_b32", sT2, sT1, 3))
    A(S("s_add_u32", sG1, sG1, sT2))
    A(S("s_lshl_b32", sHEAD, sT0, 2))
    A(S("s_and_b32", sT2, sT1, 3))
    A(S("s_add_u32", sHEAD, sHEAD, sT2))
    A(S("s_lshr_b32", sPI, sT1, 2))
    A(S("s_lshl_b32", sFB, sW, 8))
    A(S("s_add_u32", sFB, sFB, WS_FLAG))
    A(V("v_mov_b32", vOne, 1))
    A(V("v_mov_b32", t1, BIG))
    A(V("v_cmp_eq_u32", VCC, 0, v(0)))
    A(V("v_cndmask_b32", vFZ, t1, 0, VCC) if False else V("v_cndmask_b32", vFZ, t1, v(0), VCC))

    sSUB, sWQ, sN, sNB, sQ0, sLO4 = s(39), s(91), s(94), s(95), s(96), s(97)
    sM2 = s(98, 2)
    vTD = v(31)
    vFS = v(30)
    vS7 = v(29)
    A(V("v_mov_b32", t2, 0))
    A(V("v_cmp_eq_u32", VCC, 256, v(0)))
    A(V("v_cndmask_b32", vFS, t1, t2, VCC))
    A(V("v_lshlrev_b32", vS7, 7, v(0)))
    A(S("s_lshr_b32", sSUB, sWV, 2))
    A(S("s_and_b32", sWQ, sWV, 3))
    A(S("s_xor_b32", sLO4, sSUB, 1))

    def only(sreg, code, inv=False):
        sk = lab("ONLY")
        return [S("s_cmp_lg_u32" if inv else "s_cmp_eq_u32", sreg, 0), I("s_cbranch_scc1", [sk])] + code + [label(sk)]

    def onlyw(wv, code):
        sk = lab("ONLYW")
        return [S("s_cmp_lg_u32", sWV, wv), I("s_cbranch_scc1", [sk])] + code + [label(sk)]

    def role(sreg):
        return [S("s_cmp_lg_u32", sreg, 0), S("s_cselect_b64", VCC, -1, 0)]

    def w_off(dst, sidx, A=None):
        A = A or o.append
        A(S("s_lshl_b32", sT0, sidx, 6))
        A(V("v_add_u32", t0, sT0, vL))
        A(V("v_mul_u32_u24", t1, 9363, t0))
        A(V("v_lshrrev_b32", t1, 18, t1))
        A(V("v_mul_u32_u24", t2, 28, t1))
        A(V("v_sub_u32", t2, t0, t2))
        A(V("v_mul_u32_u24", t3, 57, t2))
        A(V("v_lshrrev_b32", t3, 9, t3))
        A(V("v_min_u32", t3, 2, t3))
        A(V("v_mul_u32_u24", t4, 1152 - 144, t3))
        A(V("v_lshl_add_u32", t4, t2, 4, t4))
        A(V("v_mul_u32_u24", t1, 3456, t1))
        A(V("v_add_u32", t4, t4, t1))
        A(S("s_mul_i32", sT0, sG1, 144))
        A(V("v_add_u32", dst, sT0, t4))

    def x_off(dst, srow0, stride, A=None):
        A = A or o.append
        A(V("v_lshrrev_b32", t0, 2, vL))
        A(V("v_add_u32", t0, srow0, t0))
        A(V("v_mul_u32_u24", t0, stride, t0))
        A(V("v_lshrrev_b32", t1, 4, vL))
        A(V("v_xor_b32", t1, t1, vL))
        A(V("v_and_b32", t1, 3, t1))
        A(V("v_lshl_add_u32", dst, t1, 4, t0))

    def x_read_consts(dst2, sbase):
        A(V("v_and_b32", t0, 31, vL))
        A(V("v_lshlrev_b32", t1, 6, t0))
        if sbase is not None:
            A(V("v_add_u32", t1, sbase, t1))
        A(V("v_lshrrev_b32", t2, 5, vL))
        A(V("v_bfe_u32", t3, vL, 2, 2))
        A(V("v_xor_b32", t2, t2, t3))
        A(V("v_lshl_add_u32", dst2[0], t2, 4, t1))
        A(V("v_xor_b32", dst2[1], 32, dst2[0]))

    def tr_lane(dst, hshift, rs):
        A(V("v_lshrrev_b32", t0, 5, vL))
        A(V("v_bfe_u32", t1, vL, 2, 2))
        A(V("v_lshl_add_u32", t0, t0, hshift, t1))
        A(V("v_mul_u32_u24", t0, rs, t0))
        A(V("v_bfe_u32", t2, vL, 4, 1))
        A(V("v_lshl_add_u32", t0, t2, 5, t0))
        A(V("v_and_b32", t2, 3, vL))
        A(V("v_lshl_add_u32", dst, t2, 3, t0))


    B1_SUB, B1_BASE, B1_IMG, PHI_BASE = 18432, 16384, 126976, 98304
    bslot = lambda e: B1_BASE + (e % 3) * 2 * B1_SUB
    IMG_RS, PHI_RS = 144, 112
    R_BASE = B1_IMG
    sHD, sSO0, sSO3, sSt3, sLD1, sLD3 = L[0:6]
    sXb, sWb, sPH, sB2 = sA, sB, sC, sD
    vG = [v(114 + i) for i in range(9)]
    vI, vH2 = v(25), v(26)
    A(S("s_and_b32", sT0, sWQ, 1))
    A(S("s_cmp_eq_u32", sT0, 1))
    A(S("s_cselect_b64", sM2, -1, 0))
    A(S("s_cselect_b32", sSt3, 64, 32 * 3456))
    A(S("s_mul_i32", L[6], sT0, 9))
    gsetup = []
    o_save, o = o, gsetup
    A = o.append
    for i in range(9):
        A(S("s_add_u32", sT2, L[6], i))
        w_off(vG[i], sT2, A)
        comp = 1024 * (i if i < 4 else 0 if i == 4 else i - 5)
        if i >= 5:
            A(S("s_lshl_b32", sT0, sRB1, 6))
            A(S("s_add_u32", sT2, sT0, 16 * (i - 5)))
            x_off(t4, sT2, 1152, A)
            A(V("v_cndmask_b32", vG[i], vG[i], t4, sM2))
        if comp:
            A(V("v_subrev_u32", vG[i], comp, vG[i]))
    o = o_save
    A = o.append
    o += gsetup
    A(S("s_lshr_b32", sT1, sWQ, 1))
    A(S("s_mul_i32", sSO0, sT1, 32 * 3456))
    A(S("s_mul_i32", sSO3, sT1, sSt3))
    A(S("s_lshl_b32", sSt3, sSt3, 1))
    A(S("s_mul_i32", L[7], sSt3, 9))
    A(S("s_and_b32", sT0, sG1, 3))
    A(S("s_lshl_b32", sT0, sT0, 1))
    A(S("s_and_b32", sT2, sRB1, 7))
    A(S("s_add_u32", sT0, sT0, sT2))
    A(S("s_cmp_ge_u32", sT0, 9))
    A(S("s_cselect_b32", sT2, 9, 0))
    A(S("s_sub_u32", sT0, sT0, sT2))
    A(S("s_mul_i32", sT0, sT0, 1 if "rotB" in exp else 0))
    A(S("s_mul_i32", sT2, sT0, 64 * 3456))
    A(S("s_add_u32", sSO0, sSO0, sT2))
    A(S("s_mul_i32", sT2, sT0, sSt3))
    A(S("s_add_u32", sSO3, sSO3, sT2))
    A(S("s_mul_i32", sT1, sT1, B1_SUB))
    A(S("s_lshl_b32", sT0, L[6], 10))
    A(S("s_add_u32", sLD1, sT1, sT0))
    A(S("s_add_u32", sLD1, sLD1, 4096))
    A(S("s_add_u32", sT0, sT1, 4096 + 5120))
    A(S("s_cmp_eq_u32", L[6], 0))
    A(S("s_cselect_b32", sLD3, sT0, sT1))
    A(waitcnt(lgkm=0))
    o += st(0) + st(62, True)
    o += mk_srd(sXb, "B_x") + mk_srd(sWb, "B_wqkv") + mk_srd(sC, "A_w_o") + mk_srd(sWS, "ws") + mk_srd(sDBG, "dbg")
    o += [S("s_cmp_eq_u32", L[6], 0), S("s_cselect_b32", sB2[0], sWb[0], sXb[0]), S("s_cselect_b32", sB2[1], sWb[1], sXb[1]),
          S("s_cselect_b32", sB2[2], sWb[2], sXb[2]), S("s_mov_b32", sB2[3], 0x20000)]

    def b1_issue(e):
        d = [S("s_add_u32", M0, sLD1, bslot(e))]
        d += [dma(vG[i], sWb, sSO0, i * 1024) for i in range(4)]
        d.append(S("s_add_u32", M0, sLD1, bslot(e) + 4096))
        d.append(dma(vG[4], sWb, sSO0))
        d.append(S("s_add_u32", M0, sLD3, bslot(e)))
        d += [dma(vG[5 + i], sB2, sSO3, i * 1024) for i in range(4)]
        d += [S("s_add_u32", sSO0, sSO0, 64 * 3456), S("s_add_u32", sSO3, sSO3, sSt3),
              S("s_cmp_ge_u32", sSO0, 9 * 64 * 3456), S("s_cselect_b32", sT0, 9 * 64 * 3456, 0), S("s_cselect_b32", sT1, L[7], 0),
              S("s_sub_u32", sSO0, sSO0, sT0), S("s_sub_u32", sSO3, sSO3, sT1)]
        return d

    def stage_rows(srd, sbytes, n):
        r = [S("s_mul_i32", sT0, sWQ, n * 1024), S("s_add_u32", sT1, sT0, sbytes)]
        for g0 in range(0, n, 4):
            r.append(S("s_add_u32", M0, sT0, R_BASE + g0 * 1024))
            r += [I("buffer_load_dwordx4", [vL16, srd, sT1], f"offen offset:{i * 1024}" + (" nt" if "rnt" in exp else "") + " lds") for i in range(min(4, n - g0))]
            r.append(S("s_add_u32", sT1, sT1, 4096))
        return r

    o += only(sLO4, b1_issue(0) + b1_issue(1))
    A(V("v_subrev_u32", t0, 256, v(0)))
    A(V("v_cmp_gt_u32", VCC, 64, t0))
    A(V("v_lshlrev_b32", t0, 2, t0))
    A(V("v_mov_b32", t1, BIG))
    A(V("v_cndmask_b32", t0, t1, t0, VCC))
    A(V("v_mov_b32", t2, 0))
    svc = [I("buffer_store_dword", [t2, t0, sWS, sFB], "offen sc1"), S("s_mul_i32", sT2, sW, 16 * 1152)] + stage_rows(sC, sT2, 5)
    if "latepf" in exp:
        svc += only(sWQ, [I("s_getpc_b64", [sM2]), label("F_PC"), S("s_lshr_b32", sT0, sW, 3), S("s_lshl_b32", sT0, sT0, 12),
                          V("v_and_b32", t3, 31, vL), V("v_lshlrev_b32", t3, 7, t3), V("v_add_u32", t3, sT0, t3),
                          V("v_min_u32", t3, "F_CODE_END-F_PC-4", t3),
                          I("global_load_dword", [vTD, t3, sM2], "", dst=[])], inv=True)
    o += only(sSUB, svc)
    sTD = s(56, 4)
    sR0, sALT, sR1 = L[8], L[9], L[20]
    A(S("s_add_u32", sT0, sW, 256))
    A(S("s_cmp_eq_u32", sWV, 7))
    A(S("s_cselect_b32", sT2, sW, sT0))
    A(S("s_cselect_b32", sALT, 1, 0))
    A(S("s_cmp_lt_u32", sW, 32))
    A(S("s_cselect_b32", sT0, 6, 99))
    A(S("s_cmp_eq_u32", sWV, sT0))
    A(S("s_cselect_b32", sALT, 1, sALT))
    A(S("s_and_b32", sT0, sT2, 7))
    A(S("s_mul_i32", sR0, sT0, WOF_CG))
    A(S("s_mul_i32", L[22], sT0, 144))
    A(S("s_lshr_b32", sT2, sT2, 3))
    A(S("s_add_u32", sT0, sT2, 256))
    A(S("s_mul_i32", sT0, sT0, 2304))
    A(S("s_add_u32", sR0, sR0, sT0))
    A(S("s_add_u32", sR0, sR0, WS_WOF))
    A(S("s_mul_i32", sT0, sT2, 18))
    A(S("s_mul_i32", sT1, sT2, 144))
    A(S("s_sub_u32", sT1, sT1, 32 * 144 - 8))
    A(S("s_cmp_lt_u32", sT2, 32))
    A(S("s_cselect_b32", sT0, sT0, sT1))
    A(S("s_cselect_b32", sT2, 1, 18))
    A(S("s_mul_i32", sT0, sT0, 1152))
    A(S("s_add_u32", L[22], L[22], sT0))
    BJ = R_BASE + 20480
    A(S("s_and_b32", sT1, sWV, 1))
    A(S("s_mul_i32", L[21], sT1, 3072))
    A(S("s_add_u32", L[21], L[21], BJ))
    alt = mk_srd(sTD, "B_wo") + [S("s_mov_b32", M0, L[21])]
    for i in range(3):
        alt += [V("v_add_u32", t0, 64 * i, vL), V("v_min_u32", t0, 143, t0), V("v_mul_u32_u24", t1, 57, t0), V("v_lshrrev_b32", t1, 9, t1),
                V("v_mul_u32_u24", t2, 9, t1), V("v_sub_u32", t0, t0, t2),
                V("v_lshrrev_b32", t2, 3, t1), V("v_and_b32", t3, 3, t1), V("v_lshl_add_u32", t2, t2, 2, t3),
                V("v_mul_u32_u24", t2, sT2, t2), V("v_bfe_u32", t3, t1, 2, 1), V("v_mad_u32_u24", t2, t3, 9, t2),
                V("v_mul_u32_u24", t2, 1152, t2), V("v_lshl_add_u32", t2, t0, 4, t2), V("v_add_u32", t2, 4096 - 1024 * i, t2),
                S("s_sub_u32", sT0, L[22], 4096) if False else S("s_mov_b32", sT0, L[22]),
                V("v_add_u32", t2, sT0, t2), V("v_subrev_u32", t2, 4096, t2),
                dma(t2, sTD, 0, i * 1024)]
    o += only(sALT, alt)

    def touch_jobs(lst):
        jobs = []
        for nm, per in lst:
            for f0 in range(0, per, 64):
                n = min(64, per - f0)
                jobs.append(mk_srd(sTD, nm) + [S("s_mul_i32", L[23], sW, per * 128), S("s_add_u32", L[23], L[23], f0 * 128),
                                               V("v_min_u32", t0, n - 1, vL), V("v_lshlrev_b32", t0, 7, t0),
                                               I("buffer_load_dword", [vTD, t0, sTD, L[23]], "offen", dst=[])])
        return jobs

    def xtouch_jobs(nm, rows):
        jobs = []
        per = rows // 32
        for r0 in range(0, per, 8):
            n = min(8, per - r0) * 8
            jobs.append(mk_srd(sTD, nm) + [S("s_lshr_b32", L[23], sW, 3), S("s_mul_i32", L[23], L[23], per * 8192),
                                           S("s_and_b32", L[22], sW, 7), S("s_lshl_b32", L[22], L[22], 10),
                                           S("s_add_u32", L[23], L[23], L[22]), S("s_add_u32", L[23], L[23], r0 * 8192),
                                           V("v_min_u32", t0, n - 1, vL), V("v_and_b32", t1, 7, t0), V("v_lshrrev_b32", t0, 3, t0),
                                           V("v_lshlrev_b32", t0, 13, t0), V("v_lshl_add_u32", t0, t1, 7, t0),
                                           I("buffer_load_dword", [vTD, t0, sTD, L[23]], "offen" + (" nt" if "xnt" in exp else ""), dst=[])])
        return jobs

    A(S("s_lshl_b32", sT0, sG1, 2))
    A(S("s_add_u32", sHD, sWQ, sT0))
    A(V("v_bfe_u32", t0, vL, 3, 2))
    A(V("v_and_b32", t1, 3, vL))
    A(V("v_lshl_add_u32", vI, t0, 2, t1))
    A(V("v_bfe_u32", vH2, vL, 2, 1))
    raw_ = [v(88 + i) for i in range(8)] + [v(112), v(113)]
    WP = [v(96, 4), v(100, 4)]
    o += mk_srd(sPH, "B_w_phi")
    A(V("v_mad_u32_u24", t0, vH2, 9, vI))
    A(V("v_lshrrev_b32", t1, 5, vL))
    A(V("v_mul_u32_u24", t2, 8 * 36, t1))
    A(V("v_lshl_add_u32", t2, t0, 1, t2))
    A(S("s_mul_i32", sT0, sHD, 648))
    A(V("v_add_u32", t2, sT0, t2))
    A(V("v_mov_b32", t4, BIG))
    A(V("v_cmp_lt_u32", sM, vI, 9))
    A(V("v_cndmask_b32", t2, t4, t2, sM))
    A(V("v_cmp_eq_u32", sM, t1, 0))
    A(V("v_cndmask_b32", t3, t4, t2, sM))
    for j in range(8):
        A(I("buffer_load_ushort", [raw_[j], t2, sPH, 0], f"offen offset:{36 * j}" if j else "offen"))
    for j in range(2):
        A(I("buffer_load_ushort", [raw_[8 + j], t3, sPH, 0], f"offen offset:{36 * (16 + j)}"))
    kjobs = touch_jobs([("A_c_kv", 64), ("A_w_uk", 128), ("A_w_uv", 128)]) if "notouch" not in exp else []
    if "xt" in exp:
        kjobs = touch_jobs([("A_c_kv", 64)]) + xtouch_jobs("A_w_uk", 512) + xtouch_jobs("A_w_uv", 512)
    if "nokt" in exp:
        kjobs = []
    if "kt0" in exp:
        for e, r in enumerate(kjobs):
            o += onlyw(4 + e % 4, r)
        kjobs = []
    bXa = [LdsAddr([v(16), v(17)]), LdsAddr([v(18), v(19)])]
    bWa = LdsAddr([v(20), v(21)])
    x_read_consts([v(16), v(18)], None)
    tr_lane(t3, 3, 448)
    A(S("s_lshl_b32", sT0, sWV, 6))
    A(V("v_add_u32", v(20), sT0, t3))
    o += bXa[0].setup(v(16)) + bXa[1].setup(v(18)) + bWa.setup(v(20))
    acc = [v(32, 16), v(48, 16)]
    Xf = [[v(64 + (b * 2 + m) * 4, 4) for m in range(2)] for b in range(2)]
    Wf = [v(80, 4), v(84, 4)]

    def b1_reads(e, k4, b):
        sl, ks = bslot(e) + (k4 >> 1) * B1_SUB, k4 & 1
        r = [dsr128(Xf[b][0], *bXa[ks].at(sl))]
        for t in range(2):
            r.append(dsrtr(Wf[b][2 * t:2 * t + 2], *bWa.at(sl + 4096 + (16 * ks + 4 * t) * 448)))
        r.append(dsr128(Xf[b][1], *bXa[ks].at(sl + 2048)))
        return r

    def b1_mfmas(b, first):
        return [mfma(acc[m], Xf[b][m], Wf[b], 0 if first else acc[m]) for m in range(2)]

    A(S("s_sub_u32", sT0, 15, sPI))
    A(S("s_cmp_eq_u32", sSUB, 0))
    A(S("s_cselect_b32", sT2, sPI, sT0))
    A(S("s_add_u32", sN, sT2, 1))
    A(S("s_lshl_b32", sN, sN, 2))
    A(S("s_add_u32", sNB, sT0, 1))
    A(S("s_lshl_b32", sNB, sNB, 2))
    A(S("s_lshl_b32", sQ0, sT2, 7))
    A(S("s_lshl_b32", sT1, sWQ, 5))
    A(S("s_add_u32", sQ0, sQ0, sT1))
    kslot = lambda c: (c % 5) * 32768
    kXg, kWg = [v(10), v(11), v(12), v(13)], [v(14), v(15)]
    sPX, sPW, sO1, sO2, kWM, kWN = L[10:16]
    sCK, sWk, sWv = sA, sB, sC
    A(S("s_lshl_b32", sT0, sPI, 8))
    A(S("s_lshl_b32", sT1, sWQ, 6))
    A(S("s_add_u32", sT2, sT0, sT1))
    x_off(kXg[0], sT2, 1024)
    for i in range(1, 4):
        A(V("v_add_u32", kXg[i], i * (16384 - 1024), kXg[0]))
    A(S("s_lshl_b32", sT0, sWQ, 3))
    A(V("v_lshrrev_b32", t0, 4, vL))
    A(V("v_add_u32", t1, sT0, t0))
    A(V("v_lshlrev_b32", t1, 13, t1))
    A(V("v_lshrrev_b32", t2, 2, vL))
    A(V("v_xor_b32", t2, t2, t0))
    A(V("v_and_b32", t2, 3, t2))
    A(V("v_and_b32", t3, 3, vL))
    A(V("v_lshl_add_u32", t2, t2, 2, t3))
    A(V("v_lshl_add_u32", t1, t2, 4, t1))
    A(S("s_lshl_b32", sT0, sHEAD, 8))
    A(V("v_add_u32", kWg[0], sT0, t1))
    A(V("v_add_u32", kWg[1], 4 * 8192 - 1024, kWg[0]))
    A(S("s_lshl_b32", sPX, sWQ, 12))
    A(S("s_lshl_b32", sPW, sWQ, 11))
    A(S("s_add_u32", sPW, sPW, 16384))
    A(S("s_and_b32", kWM, sWV, 1))
    A(S("s_lshr_b32", kWN, sWV, 1))

    sKC = L[21]
    A(S("s_and_b32", sT0, sHEAD, 3))
    A(S("s_lshl_b32", sT0, sT0, 1))
    A(S("s_add_u32", sKC, sT0, sPI))
    A(S("s_lshl_b32", sKC, sKC, 1))
    A(S("s_and_b32", sKC, sKC, 15))
    A(S("s_mul_i32", sKC, sKC, 1 if "rotK" in exp else 0))

    def kv_issue(c):
        d = [S("s_add_u32", M0, sPX, kslot(c)), S("s_lshl_b32", sO1, sKC, 6)]
        d += [dma(kXg[i], sCK, sO1, i * 1024) for i in range(4)]
        d += [S("s_add_u32", M0, sPW, kslot(c)), S("s_lshl_b32", sO2, sKC, 18)]
        d += [dma(kWg[i], sWk, sO2, i * 1024) for i in range(2)]
        d.append(S("s_add_u32", M0, sPW, kslot(c) + 8192))
        d += [dma(kWg[i], sWv, sO2, i * 1024) for i in range(2)]
        d += [S("s_add_u32", sKC, sKC, 1), S("s_and_b32", sKC, sKC, 15)]
        return d

    vRr, vRs, vRs2, vRrB, vRs3 = v(104), v(105), v(106), v(110), v(111)
    RF = [a(4 * j, 4) for j in range(3)]
    XE = [v(107 + j) for j in range(3)]
    tr_lane(t3, 2, 1152)
    A(S("s_lshr_b32", sT0, sWV, 1))
    A(S("s_mul_i32", sT0, sT0, 288))
    A(S("s_lshl_b32", sT1, kWM, 7))
    A(S("s_add_u32", sT0, sT0, sT1))
    A(S("s_add_u32", sT0, sT0, R_BASE))
    A(V("v_add_u32", vRr, sT0, t3))
    A(S("s_mul_i32", sT0, sWV, 144))
    A(S("s_add_u32", sT0, sT0, R_BASE))
    A(V("v_and_b32", t0, 31, vL))
    A(V("v_lshrrev_b32", t1, 5, vL))
    A(V("v_bfe_u32", t4, vL, 2, 2))
    A(V("v_lshl_add_u32", t4, t1, 2, t4))
    A(V("v_mul_u32_u24", t4, 1152 - 144, t4))
    A(V("v_sub_u32", t4, t3, t4))
    A(S("s_and_b32", sT1, sWV, 1))
    A(S("s_mul_i32", sT1, sT1, 3072))
    A(S("s_add_u32", sT1, sT1, BJ))
    A(V("v_add_u32", vRrB, sT1, t4))
    A(V("v_lshlrev_b32", t4, 7, t1))
    A(V("v_lshl_add_u32", t4, t0, 4, t4))
    A(V("v_mov_b32", t2, BIG))
    A(V("v_cmp_gt_u32", VCC, 8, t0))
    A(V("v_cndmask_b32", vRs2, t2, t4, VCC))
    A(V("v_lshlrev_b32", t4, 8, t1))
    A(V("v_lshl_add_u32", t4, t0, 4, t4))
    A(S("s_lshl_b32", sT1, kWM, 4))
    A(V("v_cmp_gt_u32", VCC, sT1, t0))
    A(V("v_cndmask_b32", vRs3, t2, t4, VCC))
    A(S("s_lshr_b32", sT0, sWV, 1))
    A(S("s_lshl_b32", sT0, sT0, 8))
    A(S("s_add_u32", sT0, sT0, sW))
    A(S("s_lshl_b32", sR1, sT0, 12))
    A(S("s_lshl_b32", sT1, kWM, 11))
    A(S("s_add_u32", sR1, sR1, sT1))
    A(S("s_add_u32", sR1, sR1, WS_WA))
    A(S("s_lshl_b32", sT0, sT0, 9))
    A(S("s_add_u32", sT0, sT0, WS_WH))
    A(V("v_add_u32", vRs3, sT0, vRs3))
    r1 = [dsrtr(RF[j][2 * t:2 * t + 2], vRr, 8 * t * 1152 + 64 * j) for j in range(3) for t in range(2)]
    r1 += [bstore4(RF[0], vL16, sWS, sR1, 0, ST), bstore4(RF[1], vL16, sWS, sR1, 1024, ST), bstore4(RF[2], vRs3, sWS, 0, 0, ST)]
    a2 = [dsrtr(RF[j][2 * t:2 * t + 2], vRrB, 8 * t * 144 + 64 * j) for j in range(3) for t in range(2)]
    a2 += [bstore4(RF[0], vL16, sWS, sR0, 0, ST), bstore4(RF[1], vL16, sWS, sR0, 1024, ST), bstore4(RF[2], vRs2, sWS, sR0, 2048, ST)]
    pk_ = [forget(raw_)] + [V("v_lshl_or_b32", WP[0][p], raw_[2 * p + 1], 16, raw_[2 * p]) for p in range(4)]
    pk_ += [V("v_lshl_or_b32", WP[1][0], raw_[9], 16, raw_[8])] + [V("v_mov_b32", WP[1][p], 0) for p in range(1, 4)]
    extra = {e: [] for e in range(9)}
    extra[1] = only(sSUB, [waitcnt(vm=0)]) + onlyw(4, [I("buffer_atomic_add", [vOne, vFS, sDBG, 0], "offen sc1")])
    extra[2] = r1
    extra[3] = pk_ + only(sALT, a2)
    for e, r in enumerate(kjobs):
        extra[4 if "kt4" in exp else 6] += onlyw(4 + e % 4, r)
    extra[7] = mk_srd(sCK, "A_c_kv") + mk_srd(sWk, "A_w_uk") + mk_srd(sWv, "A_w_uv") + only(sLO4, kv_issue(0))
    hook = only(sLO4, kv_issue(1))
    o += role(sLO4)
    P.add(o)
    gemm4(P, "B1", 9, 4, 3, 9, b1_issue, b1_reads, b1_mfmas, pre=2, rd_span=2, tail_hook=hook, extra=extra,
          first_vm=9 + 10, est=est("B1"), vm_bias={8: 8})
    o = []
    A = o.append
    o += st(1)
    vIW, vQr = v(22), v(23)
    A(V("v_and_b32", t0, 31, vL))
    A(S("s_lshl_b32", sT0, sWV, 5))
    A(V("v_add_u32", t0, sT0, t0))
    A(V("v_mul_u32_u24", t0, IMG_RS, t0))
    A(V("v_lshrrev_b32", t1, 5, vL))
    A(V("v_lshl_add_u32", t0, t1, 3, t0))
    A(V("v_add_u32", vIW, B1_IMG, t0))
    pk = v(64, 16)
    for m in range(2):
        for r in range(8):
            A(V("v_cvt_pk_bf16_f32", pk[8 * m + r], acc[m][2 * r], acc[m][2 * r + 1]))
    A(S("s_cmp_lg_u32", sWV, 7))
    A(I("s_cbranch_scc1", ["B1_NZ"]))
    for r in range(16):
        A(V("v_mov_b32", pk[r], 0))
    A(label("B1_NZ"))
    for m in range(2):
        for g in range(4):
            A(I("ds_write_b64", [vIW, pk[8 * m + 2 * g:8 * m + 2 * g + 2]], f"offset:{(32 * m + 8 * g) * 2}"))
    tr_lane(t3, 3, IMG_RS)
    A(S("s_mul_i32", sT0, sWV, 18 * IMG_RS))
    A(S("s_add_u32", sT0, sT0, B1_IMG))
    A(V("v_add_u32", vQr, sT0, t3))
    A(waitcnt(lgkm=0))
    A(I("s_barrier"))
    o += only(sLO4, kv_issue(2))
    Qf = [[v(64 + (sb * 2 + ks) * 4, 4) for ks in range(2)] for sb in range(2)]
    for sb in range(2):
        for ks in range(2):
            for t in range(2):
                A(dsrtr(Qf[sb][ks][2 * t:2 * t + 2], vQr, (16 * ks + 4 * t) * IMG_RS + 64 * sb))
    for sb in range(2):
        for ks in range(2):
            A(mfma(acc[sb], WP[ks], Qf[sb][ks], 0 if ks == 0 else acc[sb]))
    PHI = [v(64, 12), v(76, 12)]
    E = [v(96 + i) for i in range(18)]
    sL2 = sT2
    A(S("s_mov_b32", sL2, float(LOG2E)))
    for sb in range(2):
        x = acc[sb]
        mx, mn, u0, u1 = t0, t1, t2, t3
        A(V("v_max3_f32", mx, x[0], x[1], x[2]))
        A(V("v_min3_f32", mn, x[0], x[1], x[2]))
        for r in (3, 5, 7):
            A(V("v_max3_f32", mx, mx, x[r], x[r + 1]))
            A(V("v_min3_f32", mn, mn, x[r], x[r + 1]))
        A(V("v_mov_b32", u0, mx))
        A(V("v_mov_b32", u1, mn))
        A(V("v_permlane32_swap_b32", mx, u0))
        A(V("v_permlane32_swap_b32", mn, u1))
        A(V("v_max_f32", mx, mx, u0))
        A(V("v_min_f32", mn, mn, u1))
        A(V("v_mul_f32", mx, sL2, mx))
        A(V("v_mul_f32", mn, sL2, mn))
        for i in range(9):
            A(V("v_fma_f32", E[i], x[i], sL2, Neg(mx)))
            A(V("v_fma_f32", E[9 + i], Neg(x[i]), sL2, mn))
        for i in range(18):
            A(V("v_exp_f32", E[i], E[i]))
        sp, sn = mx, mn
        A(V("v_add_f32", sp, E[0], E[1]))
        A(V("v_add_f32", sn, E[9], E[10]))
        for i in range(2, 9):
            A(V("v_add_f32", sp, sp, E[i]))
            A(V("v_add_f32", sn, sn, E[9 + i]))
        A(V("v_mov_b32", u0, sp))
        A(V("v_mov_b32", u1, sn))
        A(V("v_permlane32_swap_b32", sp, u0))
        A(V("v_permlane32_swap_b32", sn, u1))
        A(V("v_add_f32", sp, sp, u0))
        A(V("v_add_f32", sn, sn, u1))
        A(V("v_rcp_f32", sp, sp))
        A(V("v_rcp_f32", sn, sn))
        for i in range(9):
            A(V("v_mul_f32", E[i], E[i], sp))
            A(V("v_mul_f32", E[9 + i], E[9 + i], sn))
        for p in range(9):
            A(V("v_cvt_pk_bf16_f32", PHI[sb][p], E[2 * p], E[2 * p + 1]))
        for p in range(9, 12):
            A(V("v_mov_b32", PHI[sb][p], 0))
    A(S("s_cmp_ge_u32", sWV, 4))
    A(I("s_cbranch_scc1", ["B1_K"]))
    A(S("s_lshl_b32", sT0, sRB1, 6))
    A(S("s_add_u32", sT0, sT0, sHD))
    A(S("s_mul_i32", sT0, sT0, 3072))
    A(S("s_add_u32", sT0, sT0, WS_PHIQ))
    A(S("s_add_u32", sT1, sT0, 32 * 3072))
    for sb in range(2):
        for F in range(3):
            A(bstore4(PHI[sb][4 * F:4 * F + 4], vL16, sWS, sT1 if sb else sT0, F * 1024, ST))
    A(I("s_branch", ["B1_DONE"]))
    A(label("B1_K"))
    vPW, vPR, vVR, vPR1 = v(24), v(27), v(28), v(114)
    A(S("s_sub_u32", sT0, sWV, 4))
    A(S("s_mul_i32", sT0, sT0, 64 * PHI_RS))
    A(S("s_add_u32", sT0, sT0, PHI_BASE))
    A(V("v_and_b32", t0, 31, vL))
    A(V("v_mul_u32_u24", t0, PHI_RS, t0))
    A(V("v_lshrrev_b32", t1, 5, vL))
    A(V("v_mul_u32_u24", t2, 48, t1))
    A(V("v_add3_u32", vPW, t0, t2, sT0))
    for sb in range(2):
        for F in range(3):
            A(I("ds_write_b128", [vPW, PHI[sb][4 * F:4 * F + 4]], f"offset:{sb * 32 * PHI_RS + 16 * F}"))
    A(V("v_bfe_u32", t2, vL, 2, 2))
    A(V("v_lshl_add_u32", t0, t1, 3, t2))
    A(V("v_mul_u32_u24", t0, PHI_RS, t0))
    A(V("v_and_b32", t2, 1, vL))
    A(V("v_mul_u32_u24", t2, 48, t2))
    A(V("v_add_u32", t0, t0, t2))
    A(V("v_bfe_u32", t2, vL, 1, 1))
    A(V("v_lshl_add_u32", t0, t2, 3, t0))
    A(V("v_add_u32", t0, sT0, t0))
    A(V("v_bfe_u32", t2, vL, 4, 1))
    A(V("v_lshl_add_u32", vPR, t2, 4, t0))
    A(V("v_add_u32", vPR1, 32, t0))
    A(V("v_min_u32", t0, 8, vI))
    A(V("v_mad_u32_u24", t0, vH2, 9, t0))
    A(S("s_mul_i32", sT0, sWV, 18))
    A(S("s_add_u32", sT0, sT0, 72))
    A(V("v_add_u32", t0, sT0, t0))
    A(V("v_mul_u32_u24", t0, IMG_RS, t0))
    A(V("v_lshl_add_u32", t0, t1, 4, t0))
    A(V("v_add_u32", vVR, B1_IMG, t0))
    Vf = [v(96 + 4 * ks, 4) for ks in range(4)]
    Af = [[a(64 + (T * 4 + ks) * 4, 4) for ks in range(4)] for T in range(2)]
    for ks in range(4):
        A(dsr128(Vf[ks], vVR, 32 * ks))
    for T in range(2):
        for ks in range(4):
            for t in range(2):
                A(dsrtr(Af[T][ks][2 * t:2 * t + 2], vPR1 if T else vPR, (16 * ks + 4 * t) * PHI_RS))
    A(V("v_cmp_eq_u32", sM, vI, 9))
    A(V("v_mov_b32", t4, 0x3f803f80))
    for ks in range(4):
        for r in range(4):
            A(V("v_cndmask_b32", Vf[ks][r], Vf[ks][r], t4, sM))
    for T in range(2):
        for ks in range(4):
            A(mfma(acc[T], Af[T][ks], Vf[ks], 0 if ks == 0 else acc[T]))
    A(S("s_lshl_b32", sT0, sRB1, 5))
    A(S("s_add_u32", sT0, sT0, sHD))
    A(S("s_mul_i32", sT0, sT0, 6144))
    A(S("s_add_u32", sT0, sT0, WS_KVP))
    A(S("s_add_u32", sT1, sT0, 4096))
    for g in range(6):
        A(bstore4(acc[g // 4][4 * (g % 4):4 * (g % 4) + 4], vL16, sWS, sT1 if g >= 4 else sT0, (g % 4) * 1024, ST))
    A(label("B1_DONE"))
    o += st(2)

    kXa = [LdsAddr([v(16), v(17), v(18)]), LdsAddr([v(19), v(20), v(21)])]
    kWa = LdsAddr([v(22), v(23), v(24)])
    A(S("s_lshl_b32", sT2, kWM, 13))
    x_read_consts([v(16), v(19)], sT2)
    tr_lane(t3, 3, 256)
    A(V("v_xor_b32", t1, kWN, t1))
    A(V("v_lshl_add_u32", v(22), t1, 6, t3))
    o += kXa[0].setup(v(16)) + kXa[1].setup(v(19)) + kWa.setup(v(22))
    kacc = [[a((m * 2 + j) * 16, 16) for j in range(2)] for m in range(4)]
    kXf = [[v(32 + (b * 4 + m) * 4, 4) for m in range(4)] for b in range(2)]
    kWf = [[v(64 + (b * 2 + j) * 4, 4) for j in range(2)] for b in range(2)]

    def kv_reads(c, ks, b):
        sl = kslot(c)
        r = [dsr128(kXf[b][0], *kXa[ks].at(sl))]
        for j in range(2):
            for t in range(2):
                r.append(dsrtr(kWf[b][j][2 * t:2 * t + 2], *kWa.at(sl + 16384 + j * 8192 + (16 * ks + 4 * t) * 256)))
        for m in range(1, 4):
            r.append(dsr128(kXf[b][m], *kXa[ks].at(sl + m * 2048)))
        return r

    def kv_mfmas(b, first):
        r = []
        for m in range(4):
            r.append(mfma(kacc[m][0], kWf[b][0], kXf[b][m], 0 if first else kacc[m][0]))
            r.append(mfma(kacc[m][1], kXf[b][m], kWf[b][1], 0 if first else kacc[m][1]))
        return r

    QS = 49152
    qslot = lambda c: 16384 + ((c + 1) % 3) * QS
    qXg = [v(123), v(124), v(125), v(126)]
    sQX, sQW, sQWo = L[2], L[3], L[4]
    qsetup = []
    o_save, o = o, qsetup
    A = o.append
    A(S("s_mul_i32", L[0], sPI, 128))
    A(S("s_mul_i32", L[1], sPI, -128))
    A(V("v_mov_b32", t2, L[1]))
    A(V("v_add_u32", t2, 15 * 128, t2))
    A(V("v_mov_b32", t3, L[0]))
    A(V("v_cmp_gt_u32", sM, 2, sWQ))
    A(V("v_cndmask_b32", t3, t2, t3, sM))
    A(V("v_mov_b32", t2, sWQ))
    A(V("v_and_b32", t2, 1, t2))
    A(V("v_lshl_add_u32", t3, t2, 6, t3))
    A(V("v_lshrrev_b32", t0, 3, vL))
    A(V("v_add_u32", t0, t3, t0))
    A(V("v_mul_u32_u24", t0, 1152, t0))
    A(V("v_lshrrev_b32", t1, 4, vL))
    A(V("v_xor_b32", t1, t1, vL))
    A(V("v_and_b32", t1, 7, t1))
    A(V("v_lshl_add_u32", qXg[0], t1, 4, t0))
    A(V("v_xor_b32", t1, 4, t1))
    A(V("v_lshl_add_u32", qXg[1], t1, 4, t0))
    A(V("v_add_u32", qXg[1], 8 * 1152 - 1024, qXg[1]))
    A(V("v_add_u32", qXg[2], 16 * 1152 - 2048, qXg[0]))
    A(V("v_add_u32", qXg[3], 16 * 1152 - 2048, qXg[1]))
    A(S("s_mul_i32", sQX, sWQ, 8192))
    A(S("s_mul_i32", sQW, sWQ, 4096))
    A(S("s_mul_i32", sQWo, sWQ, 8 * 8192))
    o = o_save
    A = o.append
    sXq, sWqq = sA, sB

    def q_issue(c):
        d = []
        for hf in range(2):
            d += [S("s_add_u32", M0, sQX, qslot(c) + 4096 * hf), S("s_mov_b32", sO1, 128 * c + hf * 32 * 1152)]
            d += [dma(qXg[i], sXq, sO1, i * 1024) for i in range(4)]
        for hf in range(2):
            d += [S("s_add_u32", M0, sQW, qslot(c) + 32768 + 2048 * hf), S("s_add_u32", sO2, sQWo, (64 * c + 8 * hf) * 8192)]
            d += [dma(kWg[i], sWqq, sO2, i * 1024) for i in range(2)]
        return d

    vPZ, vPZr = v(80), v(81)
    A(V("v_mov_b32", vPZ, 0))
    extra = {e: [] for e in range(16)}
    extra[1] = qsetup
    extra[3] = only(sSUB, [waitcnt(vm=0)])
    extra[4] = onlyw(4, [I("buffer_store_dword", [vOne, vFS, sWS, sFB], f"offen offset:{4 * F_B1} sc1"),
                         I("buffer_atomic_add", [vOne, vFS, sDBG, 0], "offen offset:4 sc1")])
    if "l2q" in exp:
        for e, r in enumerate(touch_jobs([("A_x", 72)]) + xtouch_jobs("A_w_q", 576)):
            extra[2] += onlyw(5 + e % 3, r)
        for e in range(9):
            r = mk_srd(sTD, "A_x") + [S("s_lshr_b32", L[23], sW, 3), S("s_mul_i32", L[23], L[23], 576 * 128),
                                      S("s_add_u32", L[23], L[23], e * 8192), V("v_lshlrev_b32", t0, 7, vL),
                                      I("buffer_load_dword", [vTD, t0, sTD, L[23]], "offen", dst=[])]
            ep = (6 + e // 2) if "l2thin" in exp else (8 + 2 * (e // 5))
            extra[ep] += onlyw(5 + e % 3, r)
    elif "notouch" not in exp:
        qj = touch_jobs([("A_x", 72), ("A_w_q", 144)])
        for e, r in enumerate(qj):
            extra[5 + 3 * (e // 3)] += onlyw(5 + e % 3, r)
    okz = lab("Z_OK")
    extra[7] += onlyw(4, [I("buffer_load_dword", [vPZr, vPZ, sDBG, 0], "offen sc1", dst=[])])
    extra[11] += onlyw(4, [waitcnt(vm=0), V("v_cmp_ne_u32", VCC, 256, vPZr), nop(2), I("s_cbranch_vccz", [okz])] +
                       poll(vPZ, sDBG, 256, vPZr) + [label(okz), S("s_mov_b64", VCC, 0)])
    extra[14] += mk_srd(sXq, "A_x") + mk_srd(sWqq, "A_w_q") + only(sSUB, q_issue(0))
    hook = only(sSUB, q_issue(1))
    o += role(sLO4)
    P.add(o)
    gemm4(P, "KV", 16, 2, 5, 8, kv_issue, kv_reads, kv_mfmas, pre=3, tail_hook=hook, extra=extra, est=est("KV"))
    o = []
    A = o.append
    o += st(3)
    kK, kV0, kV1 = L[18], L[19], L[20]
    A(S("s_lshl_b32", sT0, sHEAD, 19))
    A(S("s_lshl_b32", sT1, sPI, 16))
    A(S("s_add_u32", sT0, sT0, sT1))
    A(S("s_lshl_b32", sT1, kWM, 15))
    A(S("s_add_u32", sT0, sT0, sT1))
    vSTm = [v(10), v(11), v(12), v(13)]
    A(V("v_add_u32", vSTm[0], sT0, vL16))
    for m in range(1, 4):
        A(V("v_add_u32", vSTm[m], 8192 * m, vSTm[0]))
    A(S("s_lshl_b32", kK, kWN, 11))
    A(S("s_lshl_b32", kV0, kWN, 10))
    A(S("s_add_u32", kK, kK, WS_KF))
    A(S("s_add_u32", kV0, kV0, WS_VF))
    A(S("s_add_u32", kV1, kV0, 4096))
    TT = [v(96 + i) for i in range(16)]
    CV = [v(112 + i) for i in range(8)]
    PKs = [v(28, 4), v(112, 4)]

    def kv_st(n):
        tile, b = n // 2, n % 2
        m, j = tile // 2, tile % 2
        src = a(16 * tile + 8 * b, 8)
        pk = PKs[0]
        r = [V("v_accvgpr_read_b32", CV[q], src[q]) for q in range(8)]
        r += [V("v_cvt_pk_bf16_f32", pk[q], CV[2 * q], CV[2 * q + 1]) for q in range(4)]
        KST = "" if "kvplain" in exp else ST
        if j == 0:
            r.append(bstore4(pk, vSTm[m], sWS, kK, b * 1024, KST))
        else:
            r.append(bstore4(pk, vSTm[m], sWS, kV1 if b else kV0, 0, KST))
        return r

    o += only(sSUB, [waitcnt(vm=24)])
    for n in (12, 13):
        o += kv_st(n)
    o += st(4)

    qXa = [v(16), v(17), v(18), v(19)]
    qWa = [v(20), v(21)]
    A(S("s_lshr_b32", sT2, sWV, 1))
    A(S("s_lshl_b32", sT2, sT2, 13))
    A(S("s_add_u32", sT2, sT2, qslot(0)))
    A(V("v_and_b32", t0, 31, vL))
    A(V("v_lshlrev_b32", t1, 7, t0))
    A(V("v_add_u32", t1, sT2, t1))
    A(V("v_lshrrev_b32", t2, 5, vL))
    A(V("v_bfe_u32", t3, vL, 1, 3))
    A(V("v_xor_b32", t2, t2, t3))
    A(V("v_lshl_add_u32", qXa[0], t2, 4, t1))
    for ks in range(1, 4):
        A(V("v_xor_b32", qXa[ks], ks << 5, qXa[0]))
    tr_lane(t3, 3, 256)
    A(S("s_and_b32", sT0, sWV, 1))
    A(S("s_lshl_b32", sT0, sT0, 1))
    A(V("v_xor_b32", t1, sT0, t1))
    A(V("v_lshl_add_u32", qWa[0], t1, 6, t3))
    A(V("v_add_u32", qWa[0], qslot(0) + 32768, qWa[0]))
    A(V("v_xor_b32", qWa[1], 64, qWa[0]))
    Sb = [v(32, 16), v(48, 16)]
    NEGM = v(64, 16)
    Pb = [v(80, 8), v(88, 8)]
    T = TT
    O = [a(16 * i, 16) for i in range(4)]
    Q = [a(64 + 4 * i, 4) for i in range(8)]
    FR = [a(96 + 4 * i, 4) for i in range(8)]
    qacc = [[v(32 + 16 * (2 * m + j), 16) for j in range(2)] for m in range(2)]
    qXf = [[v(96 + (2 * b + m) * 4, 4) for m in range(2)] for b in range(2)]
    qWf = [[FR[2 * b + j] for j in range(2)] for b in range(2)]

    def q_reads(c, ks, b):
        r = []
        if ks == 0 and c > 0:
            r += [V("v_add_u32", x, qslot(c) - qslot(c - 1), x) for x in qXa + qWa]
        r.append(dsr128(qXf[b][0], qXa[ks]))
        for j in range(2):
            for t in range(2):
                r.append(dsrtr(qWf[b][j][2 * t:2 * t + 2], qWa[j], (16 * ks + 4 * t) * 256))
        r.append(dsr128(qXf[b][1], qXa[ks], 4096))
        return r

    def q_mfmas(b, first):
        return [mfma(qacc[m][j], qWf[b][j], qXf[b][m], 0 if first else qacc[m][j]) for m in range(2) for j in range(2)]

    ASLOT = 32768
    sK, sV = sC, sD
    sKO, sVO, sWRA, sRDA, sCNT, sREM = L[0:6]
    sMk = [s(56 + 2 * i, 2) for i in range(4)]
    vKVg, vAc, vAn = v(124), v(125), v(126)
    zo = [V("v_accvgpr_write_b32", O[dt][r], 0) for dt in range(4) for r in range(16)]
    todo = [n for n in range(16) if n not in (12, 13)]
    extra = {e: [] for e in range(9)}
    for i, n in enumerate(todo):
        extra[i // 4] += kv_st(n)
    extra[4] = zo[:32] + only(sLO4, [waitcnt(vm=0)]) + only(sSUB, [waitcnt(vm=12)])
    extra[5] = onlyw(0, wg_flag(F_KV)) + zo[32:]
    vP0, vP1 = v(120), v(121)
    o += [S("s_and_b32", sT0, sW, 31), V("v_and_b32", vP0, 3 if "stag" in exp else 7, vL), V("v_lshlrev_b32", vP0, 5, vP0),
          V("v_add_u32", vP0, sT0, vP0), V("v_lshlrev_b32", vP0, 8, vP0), V("v_add_u32", vP0, WS_FLAG + 4 * F_KV, vP0)]
    vP4, vP4r = v(122), t4
    A(V("v_mov_b32", vP4, 4))
    extra[7] = onlyw(1, [I("buffer_load_dword", [vP4r, vP4, sDBG, 0], "offen sc1", dst=[])]) + \
        onlyw(0, [I("buffer_load_dword", [vP1, vP0, sWS, 0], "offen sc1", dst=[])])
    okl, okr = lab("Q_OK"), lab("Q_OKR")
    pre = onlyw(0, [waitcnt(vm=0), V("v_cmp_ne_u32", VCC, 1, vP1), nop(2), I("s_cbranch_vccz", [okl])] +
                poll(vP0, sWS, 1, vP1) + [label(okl), S("s_mov_b64", VCC, 0)])
    pre += onlyw(1, [waitcnt(vm=0), V("v_cmp_ne_u32", VCC, 256, vP4r), nop(2), I("s_cbranch_vccz", [okr])] +
                 poll(vP4, sDBG, 256, vP4r) + [label(okr), S("s_mov_b64", VCC, 0)])
    sGR, sCQ = L[6], L[7]
    sUN, sU0, sWH_, sW1, sW2, sW3, sKB = s(20), s(21), s(22), s(23), s(24), s(25), s(26)

    def wblock(dst, i):
        return [S("s_add_u32", dst, sCQ, i), S("s_and_b32", dst, dst, 3), S("s_lshl_b32", sT1, sGR, 2), S("s_add_u32", dst, dst, sT1),
                S("s_lshl_b32", sT1, sCQ, 5), S("s_add_u32", dst, dst, sT1), S("s_lshl_b32", dst, dst, 15),
                S("s_add_u32", dst, dst, WS_WA)]

    A(S("s_lshr_b32", sGR, sHEAD, 2))
    A(S("s_and_b32", sCQ, sHEAD, 3))
    o += wblock(sW1, 1) + wblock(sW2, 2) + wblock(sW3, 3) + wblock(sWH_, sWQ)
    A(S("s_sub_u32", sWH_, sWH_, WS_WA))
    A(S("s_lshr_b32", sWH_, sWH_, 3))
    A(S("s_add_u32", sWH_, sWH_, WS_WH))
    A(S("s_sub_u32", sWH_, sWH_, sPX))
    A(S("s_lshr_b32", sU0, sNB, 1))
    A(S("s_lshl_b32", sKB, sHEAD, 19))
    hook = [V("v_add_u32", vKVg, sPX, vL16)]
    H = hook.append
    H(S("s_lshl_b32", sT0, sSUB, 15))
    H(S("s_add_u32", sT0, sT0, sPX))
    H(S("s_add_u32", sT0, sT0, 2 * ASLOT))
    H(S("s_mov_b32", M0, sT0))
    H(S("s_lshl_b32", sT1, sSUB, 14))
    H(S("s_add_u32", sT1, sT1, sKB))
    H(S("s_add_u32", sT1, sT1, WS_KF + 8192))
    for i in range(4):
        H(dmal(vKVg, sWS, sT1, i * 1024))
    H(S("s_add_u32", M0, sT0, 16384))
    H(S("s_cmp_ge_u32", sWQ, 2))
    H(S("s_cselect_b32", sT1, WS_VF - 8192, WS_KF))
    H(S("s_cmp_eq_u32", sSUB, 1))
    H(S("s_cselect_b32", sT1, WS_VF + 8192, sT1))
    H(S("s_add_u32", sT1, sT1, sKB))
    for i in range(4):
        H(dmal(vKVg, sWS, sT1, i * 1024))
    hook += wblock(sT0, 0)
    H(S("s_lshl_b32", sT1, sSUB, 14))
    H(S("s_add_u32", sT0, sT0, sT1))
    H(S("s_add_u32", sT1, sT1, sPX))
    H(S("s_add_u32", M0, sT1, 131072))
    for i in range(4):
        H(dmal(vKVg, sWS, sT0, i * 1024))

    def kvdma():
        d = [S("s_mov_b32", M0, sWRA)]
        for i in range(4):
            d.append(dmal(vKVg, sWS, sKO, i * 1024))
        d.append(S("s_add_u32", M0, sWRA, 16384))
        for i in range(4):
            d.append(dmal(vKVg, sWS, sVO, i * 1024))
        d += [S("s_add_u32", sKO, sKO, 16384), S("s_add_u32", sVO, sVO, 16384), S("s_add_u32", sWRA, sWRA, ASLOT),
              S("s_and_b32", sWRA, sWRA, 4 * ASLOT - 1), S("s_add_u32", sUN, sUN, 1),
              S("s_cmp_eq_u32", sUN, sU0), S("s_cselect_b32", sKO, sWH_, sKO),
              S("s_sub_u32", sT0, sUN, 1), S("s_cmp_eq_u32", sT0, sU0), S("s_cselect_b32", sKO, sW1, sKO),
              S("s_sub_u32", sT0, sUN, 2), S("s_cmp_eq_u32", sT0, sU0), S("s_cselect_b32", sKO, sW2, sKO),
              S("s_add_u32", sT0, sKO, 16384), S("s_cmp_gt_u32", sUN, sU0), S("s_cselect_b32", sVO, sT0, sVO)]
        return d

    def guarded_dma():
        lb = lab("A_ND")
        return [S("s_cmp_lg_u32", sSUB, 0), I("s_cbranch_scc1", [lb])] + kvdma() + [label(lb)]

    H(S("s_mov_b32", sWRA, sPX))
    H(S("s_add_u32", sKO, sKB, WS_KF + 5 * 8192))
    H(S("s_add_u32", sVO, sKB, WS_VF + 3 * 8192))
    H(S("s_mov_b32", sUN, 2))
    o += role(sSUB)
    P.add(o)
    gemm4(P, "Q", 9, 4, 3, 12, q_issue, q_reads, q_mfmas, pre=2, extra=extra, tail_hook=hook, pre_hook=pre, est=est("Q"),
          first_vm=12 + 2)
    o = []
    A = o.append
    o += st(5)
    sCc = sT1
    A(S("s_mov_b32", sCc, float(CSCALE)))
    A(S("s_lshr_b32", sT0, sWV, 1))
    A(S("s_lshl_b32", sT0, sT0, 14))
    A(S("s_and_b32", sT2, sWV, 1))
    A(S("s_lshl_b32", sT2, sT2, 12))
    A(S("s_add_u32", sT0, sT0, sT2))
    A(V("v_add_u32", t0, sT0, vL16))
    A(I("s_barrier"))
    for m in range(2):
        for j in range(2):
            x = qacc[m][j]
            for r in range(16):
                A(V("v_mul_f32", x[r], sCc, x[r]))
            for r in range(8):
                A(V("v_cvt_pk_bf16_f32", x[r], x[2 * r], x[2 * r + 1]))
            for b in range(2):
                A(I("ds_write_b128", [t0, x[4 * b:4 * b + 4]], f"offset:{m * 8192 + (2 * j + b) * 1024}"))
    A(S("s_lshl_b32", sT0, sWV, 13))
    A(V("v_add_u32", v(122), sT0, vL16))
    o += st(6)

    vPC, vP1 = v(20), v(21)
    sXD = s(27)
    A(S("s_mov_b32", sXD, 1))
    vWB = [v(22), v(23), v(24), v(25)]
    vWHf = v(26)
    A(S("s_lshl_b32", sT0, sPI, 5))
    A(S("s_add_u32", sT0, sT0, sGR))
    A(S("s_lshl_b32", sT0, sT0, 8))
    A(S("s_lshl_b32", sT1, sWV, 2))
    A(S("s_add_u32", sT0, sT0, sT1))
    A(S("s_add_u32", sT0, sT0, WS_FLAG + 4 * F_CTX))
    A(V("v_and_b32", t0, 3, vL))
    A(V("v_lshlrev_b32", t0, 11, t0))
    A(V("v_add_u32", vPC, sT0, t0))
    A(V("v_add_u32", vWB[0], 131072, vL16))
    sSL = L[8]
    for i in range(1, 5):
        A(S("s_add_u32", sT0, sU0, (i % 4) + 2))
        A(S("s_and_b32", sT0, sT0, 3))
        A(S("s_lshl_b32", sT0, sT0, 15))
        if i < 4:
            A(V("v_add_u32", vWB[i], sT0, vL16))
        if i == 3:
            A(S("s_mov_b32", sSL, sT0))
    A(V("v_and_b32", t0, 15, vL))
    A(V("v_lshrrev_b32", t1, 5, vL))
    A(V("v_lshlrev_b32", t1, 8, t1))
    A(V("v_lshl_add_u32", t0, t0, 4, t1))
    A(V("v_add_u32", vWHf, sT0, t0))
    XA = [a(64 + 4 * i, 4) for i in range(8)] + [a(4 * i, 4) for i in range(16)] + [a(96 + 4 * i, 4) for i in range(8)]

    vLs, vThr, vLB, vD, vNINF = v(10), v(11), v(12), v(13), v(14)
    vB = [v(15), v(16)]
    vF, vDl, vFW = v(17), v(18), v(19)
    A(V("v_mov_b32", vLs, 0))
    A(V("v_mov_b32", vThr, float(2.0 ** THR_LOG2)))
    A(V("v_mov_b32", vNINF, 0xff800000))
    A(V("v_and_b32", t0, 31, vL))
    A(V("v_lshrrev_b32", t1, 5, vL))
    A(V("v_lshlrev_b32", t1, 2, t1))
    A(V("v_sub_u32", t0, t0, t1))
    A(V("v_add_u32", vD, sQ0, t0))
    A(S("s_lshl_b32", sT0, sWV, 2))
    A(V("v_mov_b32", t0, sT0))
    A(V("v_mov_b32", t1, BIG))
    A(V("v_cmp_eq_u32", VCC, 0, vL))
    A(V("v_cndmask_b32", vFW, t1, t0, VCC))

    def wave_flag(word):
        return [I("buffer_store_dword", [vOne, vFW, sWS, sFB], f"offen offset:{4 * word} sc1")]

    if "prio" in exp:
        o += only(sSUB, [S("s_setprio", 1)])
    A(waitcnt(vm=0, lgkm=0))
    A(I("s_barrier"))
    vA = vAc
    A(V("v_add_u32", vA, 2 * ASLOT, vL16))
    for db in range(8):
        A(dsr128(Q[db], v(122), db * 1024))
    for db in range(8):
        A(dsr128(FR[db], vA, 16384 + db * 1024))
    A(waitcnt(lgkm=8))
    A(I("s_barrier"))
    o += guarded_dma()
    for db in range(8):
        A(mfma(Sb[0], FR[db], Q[db], 0 if db == 0 else Sb[0]))
    A(S("s_mov_b32", sRDA, 2 * ASLOT))

    def frag_read(n, half):
        off = 16384 + half * 8192 + n * 1024 if n < 8 else half * 8192 + (n - 8) * 1024
        return dsr128(FR[n % 8], vA, off)

    def tail_pair(p, q0, q1, P_):
        r = []
        if p == 0:
            r.append(V("v_mov_b32", vB[0], q0))
            r.append(V("v_mov_b32", vB[1], q1))
        else:
            r.append(V("v_add_f32", vB[0], vB[0], q0))
            r.append(V("v_add_f32", vB[1], vB[1], q1))
        r.append(V("v_cvt_pk_bf16_f32", P_[p], q0, q1))
        return r

    def mask_ops(S_):
        r = []
        for g in range(4):
            for k in range(4):
                r.append(V("v_cmp_lt_i32", sMk[k], vD, 8 * g + k))
            for k in range(4):
                r.append(V("v_cndmask_b32", S_[4 * g + k], S_[4 * g + k], vNINF, sMk[k]))
        r.append(V("v_subrev_u32", vD, 32, vD))
        return r

    def softmax(cb, masked):
        S_, P_ = Sb[cb], Pb[cb]
        r = mask_ops(S_) if masked else []
        for p in range(8):
            r.append(V("v_exp_f32", T[(2 * p) % 8], S_[2 * p]))
            r.append(V("v_exp_f32", T[(2 * p + 1) % 8], S_[2 * p + 1]))
            if p > 0:
                r += tail_pair(p - 1, T[(2 * p - 2) % 8], T[(2 * p - 1) % 8], P_)
        r += tail_pair(7, T[6], T[7], P_)
        r.append(V("v_add_f32", vB[0], vB[0], vB[1]))
        return r

    def rowmax(S_, dst, tmp):
        r = [V("v_max3_f32", dst, S_[0], S_[1], S_[2])]
        for q in range(3, 15, 2):
            r.append(V("v_max3_f32", dst, dst, S_[q], S_[q + 1]))
        r += [V("v_max_f32", dst, dst, S_[15]), V("v_mov_b32", tmp, dst), V("v_permlane32_swap_b32", dst, tmp),
              V("v_max_f32", dst, dst, tmp), V("v_add_f32", dst, HEADROOM, dst)]
        return r

    slow_sites = []

    def step(half, has_pv, has_qk, masked, ctl=()):
        cb, nb = half, 1 - half
        M, frs = [], []
        if has_pv:
            for vb in range(2):
                for dt in range(4):
                    M.append(mfma(O[dt], FR[(4 * vb + dt) % 8], Pb[nb][4 * vb:4 * vb + 4], O[dt]))
                    frs.append(4 * vb + dt)
        if has_qk:
            for db in range(8):
                M.append(mfma(Sb[nb], FR[db], Q[db], NEGM if db == 0 else Sb[nb]))
                frs.append(8 + db)
        n = len(M)
        seq = [(x, half) for x in frs] + [(x, 1 - half) for x in range(16)]
        gaps = [[] for _ in M]
        g3 = [[] for _ in M]
        for j in range(n):
            if half == 1 and j + LA == n:
                gaps[j].append(V("v_add_u32", vA, sRDA, vL16))
            gaps[j].append(frag_read(*seq[j + LA]))
            if j % 2 == 1 and j + 1 < n:
                g3[j].append(waitcnt(lgkm=LA - 2))
        if has_pv:
            gaps[0].append(V("v_add_f32", vLs, vLs, vB[0]))
        if half == 0:
            gaps[0] += [waitcnt(vm=8), I("s_barrier")]
            gaps[1] += guarded_dma()
        else:
            gaps[0] += [S("s_add_u32", sRDA, sRDA, ASLOT), S("s_and_b32", sRDA, sRDA, 4 * ASLOT - 1)]
            gaps[1] += list(ctl)
        smx = softmax(cb, masked) + [V("v_cmp_gt_f32", VCC, vB[0], vThr)]
        g2 = interleave(M, smx, 2 if has_pv else 1, n - 1)
        sl, rt = lab("A_SLOW"), lab("A_RET")
        g3[n - 1] += [I("s_cbranch_vccnz", [sl]), label(rt)]
        slow_sites.append((sl, rt, cb, has_qk))
        return weave(M, gaps, g2, g3)

    for n in range(LA):
        A(dsr128(FR[n], vA, n * 1024))
    o += mask_ops(Sb[0]) + rowmax(Sb[0], vDl, t1)
    for r in range(16):
        A(V("v_sub_f32", NEGM[r], 0, vDl))
    for r in range(16):
        A(V("v_sub_f32", Sb[0][r], Sb[0][r], vDl))
    o += step(0, False, True, False) + step(1, True, True, True)
    if "stag" in exp:
        o += onlyw(4, [V("v_add_u32", v(120), 128 * 256, v(120))] + poll(v(120), sWS, 1, v(121)))
    A(S("s_sub_u32", sREM, sNB, sN))
    A(S("s_lshr_b32", sREM, sREM, 1))
    A(S("s_add_u32", sREM, sREM, 1))
    A(S("s_cmp_eq_u32", sN, 4))
    A(I("s_cbranch_scc1", ["A_PF"]))
    A(S("s_sub_u32", sT0, sN, 6))
    A(S("s_lshl_b32", sT0, sT0, 5))
    A(V("v_subrev_u32", vD, sT0, vD))
    A(S("s_lshr_b32", sCNT, sN, 1))
    A(S("s_sub_u32", sCNT, sCNT, 3))
    P.add(o)
    lb = step(0, True, True, False) + step(1, True, True, False, ctl=[S("s_sub_u32", sCNT, sCNT, 1), S("s_cmp_lg_u32", sCNT, 0)])
    lb += [I("s_cbranch_scc1", ["A_LOOP"])]
    P.loop("A_LOOP", lb)
    SK = "noskip" not in exp
    o = []
    A = o.append
    if SK:
        o += [S("s_cmp_eq_u32", sWQ, 0), I("s_cbranch_scc1", ["A_E0"])]
    o += step(0, True, True, True)
    if SK:
        o += [S("s_cmp_eq_u32", sWQ, 1), I("s_cbranch_scc1", ["A_E1"])]
    o += step(1, True, True, True)
    A(label("A_PF"))
    A(S("s_sub_u32", sREM, sREM, 1))
    if SK:
        o += [S("s_cmp_le_u32", sWQ, 2), I("s_cbranch_scc1", ["A_E0"])]
    o += step(0, True, True, True)
    A(label("A_E1"))
    o += step(1, True, False, True)
    A(V("v_add_f32", vLs, vLs, vB[0]))
    A(S("s_cmp_eq_u32", sREM, 0))
    A(I("s_cbranch_scc1", ["A_FIN"]))
    A(waitcnt(vm=8))
    A(I("s_barrier"))
    o += guarded_dma()
    A(S("s_sub_u32", sREM, sREM, 1))
    A(label("A_FIN"))

    def fin(half):
        M = [mfma(O[dt], FR[4 * vb + dt], Pb[1 - half][4 * vb:4 * vb + 4], O[dt]) for vb in range(2) for dt in range(4)]
        gaps = [[] for _ in M]
        for j in range(8 - LA):
            gaps[j].append(frag_read(j + LA, half))
        return weave(M, gaps)

    o += fin(0)
    if SK:
        A(I("s_branch", ["A_EPI"]))
        A(label("A_E0"))
        o += step(0, True, False, True)
        A(V("v_add_f32", vLs, vLs, vB[0]))
        o += fin(1)
        A(label("A_EPI"))
    o += st(7)
    A(V("v_mov_b32", t0, vLs))
    A(V("v_permlane32_swap_b32", t0, vLs))
    A(V("v_add_f32", t0, t0, vLs))
    A(V("v_rcp_f32", vF, t0))
    A(S("s_lshl_b32", sT0, sQ0, 13))
    A(S("s_lshl_b32", sT1, sHEAD, 13))
    A(S("s_add_u32", sT0, sT0, sT1))
    A(S("s_add_u32", sT0, sT0, WS_CTX))
    A(S("s_add_u32", sT1, sT0, 4096))
    for dt in range(4):
        Tm, Pk = Sb[dt % 2], Pb[dt % 2]
        for r in range(16):
            A(V("v_accvgpr_read_b32", Tm[r], O[dt][r]))
        for r in range(16):
            A(V("v_mul_f32", Tm[r], Tm[r], vF))
        for r in range(8):
            A(V("v_cvt_pk_bf16_f32", Pk[r], Tm[2 * r], Tm[2 * r + 1]))
        for b in range(2):
            db = 2 * dt + b
            A(bstore4(Pk[4 * b:4 * b + 4], vL16, sWS, sT0 if db < 4 else sT1, (db % 4) * 1024, "" if "ctxplain" in exp else ST))
        for r in range(8):
            A(V("v_accvgpr_write_b32", XA[2 * dt + r // 4][r % 4], Pk[r]))
    A(S("s_cmp_eq_u32", sSUB, 0))
    A(I("s_cbranch_scc1", ["A_SHORT"]))
    A(S("s_cmp_eq_u32", sREM, 0))
    A(I("s_cbranch_scc1", ["A_DONE"]))
    A(I("s_barrier"))
    A(I("s_branch", ["A_DONE"]))
    A(label("A_SHORT"))
    def interval(work):
        return [waitcnt(vm=8), I("s_barrier")] + work + kvdma()

    def checked(vaddr, vres):
        ok = lab("SJ_OK")
        return [V("v_cmp_ne_u32", VCC, 1, vres), nop(2), I("s_cbranch_vccz", [ok])] + poll(vaddr, sWS, 1, vres) + [label(ok)]

    vJ, vJr = v(116), v(117)
    if "noalign" not in exp:
        A(S("s_sub_u32", L[16], sNB, sN))
        A(S("s_lshr_b32", L[16], L[16], 1))
        A(label("A_AL"))
        A(S("s_cmp_lt_u32", sREM, L[16]))
        A(I("s_cbranch_scc1", ["A_AL1"]))
        o += interval([])
        A(S("s_sub_u32", sREM, sREM, 1))
        A(I("s_branch", ["A_AL"]))
        A(label("A_AL1"))
    A(S("s_cmp_ge_u32", sW, 48))
    A(I("s_cbranch_scc1", ["A_NKVR"]))
    sJ, sJo = L[16], L[17]
    A(S("s_lshl_b32", sJ, sW, 2))
    A(S("s_add_u32", sJ, sJ, sWQ))
    A(S("s_mul_i32", sT0, sJ, 43691))
    A(S("s_lshr_b32", sT0, sT0, 20))
    A(S("s_lshr_b32", sT1, sT0, 2))
    A(S("s_and_b32", sT0, sT0, 3))
    A(S("s_lshl_b32", sT0, sT0, 6))
    A(S("s_add_u32", sT0, sT0, sT1))
    A(V("v_bfe_u32", t0, vL, 3, 2))
    A(V("v_lshlrev_b32", t0, 1, t0))
    A(V("v_and_b32", t1, 7, vL))
    A(V("v_lshl_add_u32", t0, t1, 3, t0))
    A(V("v_add_u32", t0, sT0, t0))
    A(V("v_lshlrev_b32", t0, 8, t0))
    A(V("v_add_u32", vJ, WS_FLAG + 4 * F_B1, t0))
    A(S("s_lshl_b32", sJo, sJ, 10))
    A(S("s_add_u32", sJo, sJo, WS_KVP))
    R = [v(32 + 4 * i, 4) for i in range(16)]
    KS_ = v(96, 4)

    def kvr_loads():
        r = []
        for i in range(16):
            r += [bload4(R[i], vL16, sWS, sJo, 0, LD), S("s_add_u32", sJo, sJo, 192 * 1024)]
        return r

    def kvr_sum(first):
        r = [forget(R)]
        for step_ in (1, 2, 4, 8):
            for w in range(0, 16, 2 * step_):
                r += [V("v_add_f32", R[w][q], R[w][q], R[w + step_][q]) for q in range(4)]
        r += [V("v_mov_b32", KS_[q], R[0][q]) if first else V("v_add_f32", KS_[q], KS_[q], R[0][q]) for q in range(4)]
        return r

    o += interval([I("buffer_load_dword", [vJr, vJ, sWS, 0], "offen sc1", dst=[])])
    o += interval(wave_flag(F_CTX) + checked(vJ, vJr) + kvr_loads())
    o += interval(kvr_sum(True) + kvr_loads())
    o += interval(kvr_sum(False) + [
        V("v_cvt_pk_bf16_f32", KS_[0], KS_[0], KS_[1]), V("v_cvt_pk_bf16_f32", KS_[1], KS_[2], KS_[3]),
        S("s_lshr_b32", sT0, sJ, 1), S("s_lshl_b32", sT0, sT0, 10), S("s_and_b32", sT1, sJ, 1), S("s_lshl_b32", sT1, sT1, 3),
        S("s_add_u32", sT0, sT0, sT1), S("s_add_u32", sT0, sT0, WS_KVF),
        I("buffer_store_dwordx2", [KS_[0:2], vL16, sWS, sT0], "offen " + ST)])
    o += interval(wave_flag(F_KVR))
    A(S("s_sub_u32", sREM, sREM, 5))
    A(I("s_branch", ["A_DL0"]))
    A(label("A_NKVR"))
    A(S("s_sub_u32", L[18], sW, 96))
    A(S("s_cmp_ge_u32", L[18], 128))
    A(I("s_cbranch_scc1", ["A_DL0"]))
    sSB, sH0 = L[16], L[17]
    A(S("s_lshr_b32", sSB, L[18], 1))
    A(S("s_and_b32", sH0, L[18], 1))
    A(S("s_lshl_b32", sH0, sH0, 4))
    A(S("s_lshl_b32", sT0, sWQ, 2))
    A(S("s_add_u32", sH0, sH0, sT0))
    A(S("s_mul_i32", sT0, sH0, 6))
    A(V("v_min_u32", t0, 23, vL))
    A(V("v_add_u32", t0, sT0, t0))
    A(V("v_and_b32", t1, 3, t0))
    A(V("v_lshrrev_b32", t0, 2, t0))
    A(V("v_lshlrev_b32", t0, 8, t0))
    A(V("v_lshl_add_u32", t0, t1, 2, t0))
    A(V("v_add_u32", vJ, WS_FLAG + 4 * F_KVR, t0))
    Pf = [[v(32 + 12 * k + 4 * F, 4) for F in range(3)] for k in range(4)]
    Kf = [[a(12 * k + 4 * F, 4) for F in range(3)] for k in range(4)]
    Cs = [v(80, 16), v(96, 16)]
    ld = [S("s_lshl_b32", sT0, sSB, 5), S("s_add_u32", sT0, sT0, sH0), S("s_mul_i32", sT0, sT0, 3072),
          S("s_add_u32", sT0, sT0, WS_PHIQ), S("s_mul_i32", sT1, sH0, 3072), S("s_add_u32", sT1, sT1, WS_KVF)]
    for k in range(4):
        for F in range(3):
            ld += [bload4(Pf[k][F], vL16, sWS, sT0, F * 1024, LD), bload4(Kf[k][F], vL16, sWS, sT1, F * 1024, LD)]
        ld += [S("s_add_u32", sT0, sT0, 3072), S("s_add_u32", sT1, sT1, 3072)]
    cp = [forget([x for k in range(4) for x in Pf[k] + Kf[k]]),
          S("s_mul_i32", sT2, sSB, 36), S("s_add_u32", sT0, sT2, sH0), S("s_lshl_b32", sT0, sT0, 10), S("s_add_u32", sT0, sT0, WS_OF),
          S("s_lshr_b32", sT1, sH0, 3), S("s_add_u32", sT1, sT1, sT2), S("s_lshl_b32", sT1, sT1, 10),
          S("s_add_u32", sT1, sT1, WS_OF + 32 * 1024), S("s_and_b32", sT2, sH0, 7), S("s_lshl_b32", sT2, sT2, 1),
          S("s_add_u32", sT1, sT1, sT2)]
    XO = [v(112), v(113), v(114), v(115)]
    for k in range(4):
        C = Cs[k % 2]
        cp += [mfma(C, Kf[k][F], Pf[k][F], 0 if F == 0 else C) for F in range(3)]
        cp += [V("v_add_f32", t0, 1e-6, C[9]), V("v_rcp_f32", t0, t0)]
        cp += [V("v_mul_f32", C[i], C[i], t0) for i in range(9)]
        cp += [V("v_cvt_pk_bf16_f32", Pf[k][0][p], C[2 * p], C[2 * p + 1]) for p in range(4)]
        cp += [V("v_mov_b32", XO[k], C[8]), bstore4(Pf[k][0], vL16, sWS, sT0, k * 1024, ST)]
    cp += [V("v_cvt_pk_bf16_f32", XO[0], XO[0], XO[1]), V("v_cvt_pk_bf16_f32", XO[1], XO[2], XO[3]),
           I("buffer_store_dwordx2", [v(112, 2), vL16, sWS, sT1], "offen " + ST)]
    o += interval([I("buffer_load_dword", [vJr, vJ, sWS, 0], "offen sc1", dst=[])])
    o += interval(wave_flag(F_CTX) + checked(vJ, vJr) + ld)
    o += interval(cp)
    o += interval(wave_flag(F_O))
    A(S("s_sub_u32", sREM, sREM, 4))
    xl = []
    for i in range(1, 4):
        xl += [S("s_add_u32", sT0, sCQ, i), S("s_and_b32", sT0, sT0, 3), S("s_lshl_b32", sT1, sGR, 2), S("s_add_u32", sT0, sT0, sT1),
               S("s_add_u32", sT0, sT0, sQ0), S("s_lshl_b32", sT0, sT0, 13), S("s_add_u32", sT0, sT0, WS_CTX),
               S("s_add_u32", sT1, sT0, 4096)]
        xl += [I("buffer_load_dwordx4", [XA[8 * i + db], vL16, sWS, sT0 if db < 4 else sT1],
                 f"offen offset:{(db % 4) * 1024}" + (" " + LD if LD else ""), dst=[]) for db in range(8)]
    A(label("A_DL0"))
    A(S("s_cmp_lt_u32", sREM, 4 if "xjob" in exp else 1000))
    A(I("s_cbranch_scc1", ["A_DL1"]))
    o += interval([])
    o += interval(wave_flag(F_CTX) + [])
    o += interval(poll(vPC, sWS, 1, vP1) + xl)
    A(S("s_sub_u32", sREM, sREM, 3))
    A(S("s_mov_b32", sXD, 0))
    A(label("A_DL1"))
    P.add(o)
    lb = [waitcnt(vm=8), I("s_barrier")] + kvdma()
    lb += [S("s_sub_u32", sREM, sREM, 1), S("s_cmp_lg_u32", sREM, 0), I("s_cbranch_scc1", ["A_DL"])]
    P.loop("A_DL", lb)
    o = [waitcnt(vm=0)] + wave_flag(F_CTX)
    A = o.append
    A(label("A_DONE"))
    o += st(8)
    A(I("s_barrier"))
    o += st(16)
    A(S("s_lshl_b32", sT1, sSUB, 14))
    A(S("s_add_u32", sT0, sW3, sT1))
    A(S("s_add_u32", sT1, sT1, sPX))
    A(S("s_add_u32", M0, sT1, sSL))
    for q in range(4):
        A(dmal(vKVg, sWS, sT0, q * 1024))
    pacc = [v(32 + 16 * j, 16) for j in range(5)]
    WR = [v(112, 4), v(116, 4), v(120, 4), v(10, 4), v(14, 4)]
    seq = [(k, j) for k in range(8) for j in range(5)] + [(k, j) for j in range(5) for k in range(8, 32)]
    WLA = 4

    def wread(n):
        k, j = seq[n]
        if j < 4:
            return dsr128(WR[n % 5], vWB[k // 8], (k % 8) * 4096 + j * 1024)
        return dsr128(WR[n % 5], vWHf, k * 512)

    sPT0 = L[9]
    A(S("s_lshl_b32", sPT0, sPI, 2))
    A(S("s_add_u32", sPT0, sPT0, sCQ))
    A(S("s_lshl_b32", sPT0, sPT0, 3))
    A(S("s_add_u32", sT0, sPT0, sWV))
    A(S("s_lshl_b32", sT0, sT0, 3))
    A(S("s_add_u32", sT0, sT0, sGR))
    A(S("s_mul_i32", sT0, sT0, 9216))
    sPTs = [L[0], L[1], L[2]]
    A(S("s_add_u32", sPTs[0], sT0, WS_PT))
    A(S("s_add_u32", sPTs[1], sPTs[0], 4096))
    A(S("s_add_u32", sPTs[2], sPTs[0], 8192))

    def pstore(j):
        r = []
        for b in range(2 if j < 4 else 1):
            r += [V("v_cvt_pk_bf16_f32", pacc[j][4 * b + q], pacc[j][8 * b + 2 * q], pacc[j][8 * b + 2 * q + 1]) for q in range(4)]
            pi_ = 2 * j + b
            r.append(bstore4(pacc[j][4 * b:4 * b + 4], vL16, sWS, sPTs[pi_ // 4], (pi_ % 4) * 1024, ST))
        return r

    for n in range(WLA):
        A(wread(n))
    pend = []
    NF, NP = (3, 14)
    vTK, vTO, vTA = v(27), v(28), v(29)
    A(V("v_mov_b32", t1, BIG))
    A(V("v_mov_b32", t0, 8))
    A(V("v_cmp_eq_u32", VCC, 0, vL))
    A(V("v_cndmask_b32", vTO, t1, t0, VCC))

    def ticket():
        return onlyw(7, [V("v_mov_b32", vTK, 1), I("buffer_atomic_add", [vTK, vTO, sDBG, 0], "offen sc0 sc1", dst=[])])

    for n, (k, j) in enumerate(seq):
        A(mfma(pacc[j], WR[n % 5], XA[k], 0 if k == 0 else pacc[j]))
        if n == 48:
            A(I("s_barrier"))
        if n + WLA < len(seq):
            A(wread(n + WLA))
        if n == NF:
            o += only(sSUB, [waitcnt(vm=4)] + wave_flag(F_CTX))
        if n == NP:
            o += poll(vPC, sWS, 1, vP1) + xl + st(9)
        if n in (39, 47, 55):
            A(waitcnt(vm={39: 16, 47: 8, 55: 0}[n]))
        if k == 12 and j > 0:
            pend = pstore(j - 1)
        if k == 20 and j == 4:
            o += ticket()
        if pend:
            o += pend[:2]
            pend = pend[2:]
    o += pstore(4)
    o += st(10)
    vW2, vLx, vW2x, vWr, vSt, vPO = v(22), v(23), v(24), v(25), v(26), v(20)
    vRdw = [v(30), v(31), v(123)]
    RS = 304
    A(V("v_and_b32", t0, 7, vL))
    A(V("v_lshrrev_b32", t1, 5, vL))
    A(V("v_lshlrev_b32", t1, 7, t1))
    A(V("v_lshl_add_u32", vW2, t0, 4, t1))
    A(V("v_mov_b32", t2, BIG))
    A(S("s_cmp_lt_u32", sWV, 4))
    A(S("s_cselect_b64", sM, -1, 0))
    A(V("v_cndmask_b32", vLx, t2, vL16, sM))
    A(V("v_cndmask_b32", vW2x, t2, vW2, sM))
    A(V("v_and_b32", t0, 31, vL))
    A(V("v_mul_u32_u24", t0, RS, t0))
    A(V("v_lshrrev_b32", t1, 5, vL))
    A(V("v_lshl_add_u32", t0, t1, 4, t0))
    A(S("s_mul_i32", sT0, sWV, 64 * RS))
    A(V("v_add_u32", vWr, sT0, t0))
    A(V("v_mul_u32_u24", t1, 43691, v(0)))
    A(V("v_lshrrev_b32", t1, 18, t1))
    A(V("v_mul_u32_u24", t2, 6, t1))
    A(V("v_sub_u32", t2, v(0), t2))
    A(V("v_mul_u32_u24", t0, RS, t1))
    A(V("v_mul_u32_u24", t3, 48, t2))
    A(V("v_add_u32", vRdw[0], t0, t3))
    A(V("v_add_u32", vRdw[1], 3 * 64 * RS, vRdw[0]))
    A(V("v_add_u32", vRdw[2], 6 * 64 * RS, vRdw[0]))
    A(V("v_mul_u32_u24", t1, 2304, t1))
    A(V("v_mul_u32_u24", t3, 24, t2))
    A(V("v_add_u32", vSt, t1, t3))
    A(V("v_bfe_u32", t0, vL, 2, 2))
    A(V("v_lshlrev_b32", t0, 8, t0))
    A(V("v_and_b32", t1, 3, vL))
    A(V("v_lshl_add_u32", t0, t1, 2, t0))
    A(V("v_add_u32", vPO, WS_FLAG + 96 * 256 + 4 * F_O, t0))
    sOUT = sA
    o += mk_srd(sOUT, "out")
    sXo0, sXo1, sWo_ = L[13], L[14], L[15]
    bfr = [a(64 + 4 * i, 4) for i in range(16)] + [v(64 + 4 * i, 4) for i in range(4)] + [v(96 + 4 * i, 4) for i in range(5)]
    bacc = [[a(0, 16), a(16, 16), a(32, 16)], [a(48, 16), v(32, 16), v(48, 16)]]

    def oloads(X, W, xstep, wstep, masked=False, x=True, w=True):
        va, vw = (vLx, vW2x) if masked else (vL16, vW2)
        r = []
        if x:
            r += [bload4(X[0], va, sWS, sXo0, 0, LD), bload4(X[1], va, sWS, sXo1, 0, LD),
                  S("s_add_u32", sXo0, sXo0, xstep), S("s_add_u32", sXo1, sXo1, xstep)]
        if w:
            r += [bload4(W[0], va, sWS, sWo_, 0, LD), bload4(W[1], va, sWS, sWo_, 1024, LD),
                  bload4(W[2], vw, sWS, sWo_, 2048, LD), S("s_add_u32", sWo_, sWo_, wstep)]
        return r

    def bout_loads():
        r = [S("s_mul_i32", sXo0, sRB1, 72), S("s_add_u32", sXo0, sXo0, sWV), S("s_lshl_b32", sXo0, sXo0, 10),
             S("s_add_u32", sXo0, sXo0, WS_OF), S("s_add_u32", sXo1, sXo0, 36 * 1024), S("s_mul_i32", sWo_, sG1, WOF_CG),
             S("s_mul_i32", sT0, sWV, 2304), S("s_add_u32", sWo_, sWo_, sT0), S("s_add_u32", sWo_, sWo_, WS_WOF + 256 * 2304)]
        for it in range(5):
            r += oloads(bfr[5 * it:5 * it + 2], bfr[5 * it + 2:5 * it + 5], 8192, 8 * 2304, masked=(it == 4))
        return r

    A(waitcnt(vm=0))
    o += wave_flag(F_PT)
    TKA = 160000
    A(V("v_mov_b32", vTA, TKA))
    A(label("B_TOP"))
    o += onlyw(7, [waitcnt(vm=0), V("v_readfirstlane_b32", sT0, vTK), V("v_mov_b32", vTK, sT0), I("ds_write_b32", [vTA, vTK])])
    A(waitcnt(lgkm=0))
    A(I("s_barrier"))
    A(I("ds_read_b32", [t0, vTA]))
    A(V("v_readfirstlane_b32", sT0, t0))
    A(S("s_cmp_ge_u32", sT0, 256))
    A(I("s_cbranch_scc1", ["B_END"]))
    A(S("s_lshr_b32", sRB1, sT0, 3))
    A(S("s_and_b32", sG1, sT0, 7))
    A(S("s_lshl_b32", sT2, sRB1, 10))
    o += poll(vPO, sWS, 1, vP1, sT2)
    o += bout_loads()
    for it in range(5):
        X, W = bfr[5 * it:5 * it + 2], bfr[5 * it + 2:5 * it + 5]
        o += [mfma(bacc[qb][j], W[j], X[qb], 0 if it == 0 else bacc[qb][j]) for j in range(3) for qb in range(2)]
    o += st(11)
    o += ticket()
    for qb in range(2):
        for j in range(3):
            for g in range(4 if j < 2 else 1):
                A(I("ds_write_b128", [vWr, bacc[qb][j][4 * g:4 * g + 4]], f"offset:{qb * 32 * RS + (32 * j + 8 * g) * 4}"))
    sk = lab("O_SK")
    o += [waitcnt(lgkm=0), I("s_barrier"), S("s_cmp_ge_u32", sWV, 6), I("s_cbranch_scc1", [sk])]
    RR = [[v(32 + 12 * w + 4 * q, 4) for q in range(3)] for w in range(7)] + [[v(116, 4), v(10, 4), v(14, 4)]]
    for ww in range(8):
        o += [dsr128(RR[ww][q], vRdw[ww // 3], (ww % 3) * 64 * RS + 16 * q) for q in range(3)]
    for step_ in (1, 2, 4):
        for w in range(0, 8, 2 * step_):
            o += [V("v_add_f32", RR[w][q][r], RR[w][q][r], RR[w + step_][q][r]) for q in range(3) for r in range(4)]
    PKo = v(44, 6)
    o += [V("v_cvt_pk_bf16_f32", PKo[x], RR[0][x // 2][(2 * x) % 4], RR[0][x // 2][(2 * x) % 4 + 1]) for x in range(6)]
    o += [S("s_mul_i32", sT0, sRB1, 64 * 2304), S("s_mul_i32", sT1, sG1, 144), S("s_add_u32", sT0, sT0, sT1),
          S("s_add_u32", sT0, sT0, 1152), bstore4(PKo[0:4], vSt, sOUT, sT0),
          I("buffer_store_dwordx2", [PKo[4:6], vSt, sOUT, sT0], "offen offset:16")]
    A(label(sk))
    A(nop(8))
    A(I("s_branch", ["B_TOP"]))
    A(label("B_END"))
    o += st(12)
    A(S("s_and_b32", sT0, sW, 0xf8))
    A(S("s_lshl_b32", sT0, sT0, 8))
    A(S("s_lshl_b32", sT1, sGR, 2))
    A(S("s_add_u32", sT0, sT0, sT1))
    A(S("s_add_u32", sT0, sT0, WS_FLAG + 4 * F_PT))
    A(V("v_and_b32", t0, 7, vL))
    A(V("v_lshlrev_b32", t0, 8, t0))
    A(V("v_add_u32", t0, sT0, t0))
    o += poll(t0, sWS, 1, vP1)
    o += st(25)
    A(S("s_sub_u32", sT0, 15, sPI))
    A(S("s_cmp_lt_u32", sGR, 4))
    A(S("s_cselect_b32", sT0, sPI, sT0))
    A(S("s_lshl_b32", sT0, sT0, 7))
    A(S("s_and_b32", sT1, sGR, 3))
    A(S("s_lshl_b32", sT1, sT1, 5))
    A(S("s_add_u32", sT0, sT0, sT1))
    A(V("v_and_b32", t0, 31, vL))
    A(V("v_add_u32", t0, sT0, t0))
    A(V("v_mul_u32_u24", t0, 2304, t0))
    A(V("v_lshrrev_b32", t1, 5, vL))
    A(V("v_lshl_add_u32", t0, t1, 4, t0))
    A(S("s_mul_i32", sT0, sCQ, 288))
    A(V("v_add_u32", t0, sT0, t0))
    A(S("s_add_u32", sT0, sPT0, sGR))
    A(S("s_mul_i32", sT0, sT0, 8 * 9216))
    A(S("s_add_u32", L[10], sT0, WS_PT))

    def gather(spiece):
        G_ = [v(32 + 4 * i, 4) for i in range(8)]
        Sm = [v(64 + i) for i in range(8)]
        r = [S("s_lshl_b32", sT0, spiece, 10), S("s_add_u32", sT0, sT0, L[10])]
        for i in range(8):
            r += [bload4(G_[i], vL16, sWS, sT0, 0, LD), S("s_add_u32", sT0, sT0, 9216)]
        for i in range(8):
            for q in range(4):
                if i == 0:
                    r += [V("v_lshlrev_b32", Sm[2 * q], 16, G_[0][q]), V("v_and_b32", Sm[2 * q + 1], 0xffff0000, G_[0][q])]
                else:
                    r += [V("v_lshlrev_b32", t2, 16, G_[i][q]), V("v_and_b32", t3, 0xffff0000, G_[i][q]),
                          V("v_add_f32", Sm[2 * q], Sm[2 * q], t2), V("v_add_f32", Sm[2 * q + 1], Sm[2 * q + 1], t3)]
        D = v(72, 4)
        r += [V("v_cvt_pk_bf16_f32", D[q], Sm[2 * q], Sm[2 * q + 1]) for q in range(4)]
        r += [V("v_permlane32_swap_b32", D[0], D[2]), V("v_permlane32_swap_b32", D[1], D[3]),
              S("s_lshl_b32", sT0, spiece, 5), bstore4(D, t0, sOUT, sT0)]
        return r

    o += gather(sWV)
    A(S("s_mov_b32", L[11], 8))
    o += onlyw(7, gather(L[11]))
    if stamps:
        o += st(13) + [waitcnt(vm=0)] + st(14) + st(63, True)
        A(S("s_lshl_b32", sT0, sW, 3))
        A(S("s_add_u32", sT0, sT0, sWV))
        A(S("s_lshl_b32", sT0, sT0, 8))
        A(S("s_add_u32", sT0, sT0, 200 * MB))
        A(V("v_lshlrev_b32", t0, 2, vL))
        A(I("buffer_store_dword", [vSTP, t0, sWS, sT0], "offen"))
    P.add(o)
    P.out.append(label("F_END"))
    P.out.append(I("s_endpgm"))

    for sl, rt, cb, has_qk in slow_sites:
        P.st = State()
        nb = 1 - cb
        S_ = Sb[cb]
        b = [label(sl), nop(16), nop(4)]
        B = b.append
        b += rowmax(S_, t0, t1)
        B(V("v_max_f32", vDl, 0, t0))
        B(V("v_exp_f32", vF, Neg(vDl)))
        for r in range(16):
            B(V("v_sub_f32", NEGM[r], NEGM[r], vDl))
            B(V("v_sub_f32", S_[r], S_[r], vDl))
            if has_qk:
                B(V("v_sub_f32", Sb[nb][r], Sb[nb][r], vDl))
        B(V("v_mul_f32", vLs, vLs, vF))
        for dt in range(4):
            for r0 in range(0, 16, 8):
                for r in range(8):
                    B(V("v_accvgpr_read_b32", T[8 + r], O[dt][r0 + r]))
                for r in range(8):
                    B(V("v_mul_f32", T[8 + r], T[8 + r], vF))
                for r in range(8):
                    B(V("v_accvgpr_write_b32", O[dt][r0 + r], T[8 + r]))
        b += softmax(cb, False)
        B(nop(4))
        B(I("s_branch", [rt]))
        P.add(b)
    P.out.append(label("F_CODE_END"))
    P.out.append(I("s_endpgm"))
    return kernel_text(name, P, 256, 128, nsgpr=102)
```

```python
from common import *


def gemm_phase(P, name, NE, NSLOT, ndma, dma_chunk, reads, mfmas, addr_update, sE, extra=None, prologue=True,
               vm_extra=0, rd_span=None):
    o = []
    if prologue:
        for c in range(min(NSLOT - 1, NE)):
            o += dma_chunk()

    def body(e_first, with_dma, vm, fill=()):
        b = [waitcnt(vm=min(vm, 63), lgkm=0), I("s_barrier")]
        b += addr_update()
        d = dma_chunk() if with_dma else []
        fill = list(fill)
        h = len(fill) // 2
        if e_first:
            b += reads(0, 0)
            b += d
            m0 = mfmas(0, True)
            n = len(m0)
            b += weave(m0, interleave(m0, reads(1, 1), 0, rd_span or max(1, n * 3 // 4)), interleave(m0, fill, 0, n))
        else:
            m1 = mfmas(1, False)
            n = len(m1)
            sp = rd_span or max(1, n * 3 // 4)
            b += weave(m1, interleave(m1, reads(0, 0), 0, sp), interleave(m1, d, 0, n), interleave(m1, fill[:h], 0, n))
            m0 = mfmas(0, False)
            b += weave(m0, interleave(m0, reads(1, 1), 0, sp), interleave(m0, fill[h:], 0, n))
        return b

    last_dma = NE - NSLOT
    steady = ndma * (NSLOT - 2) + vm_extra
    ex = extra or {}
    o += body(True, 0 <= last_dma, min(steady, ndma * (NE - 1)), ex.get(0, ()))
    if extra is None and last_dma >= 2:
        o.append(S("s_mov_b32", sE, 1))
        P.add(o)
        lb = body(False, True, steady)
        lb.append(S("s_add_u32", sE, sE, 1))
        lb.append(S("s_cmp_le_u32", sE, last_dma))
        lb.append(I("s_cbranch_scc1", [name + "_LOOP"]))
        P.loop(name + "_LOOP", lb)
        o = []
        first_tail = last_dma + 1
    else:
        first_tail = 1
    for e in range(first_tail, NE):
        if e <= last_dma:
            o += body(False, True, steady, ex.get(e, ()))
        else:
            o += body(False, False, ndma * (NE - 1 - e), ex.get(e, ()))
    o += mfmas(1, False)
    P.add(o)


def ring_advance(regs, slot, nslot, tmp, base=0):
    d = []
    for r in regs:
        d.append(S("s_add_u32", r, r, slot))
    d.append(S("s_cmp_ge_u32", regs[0], base + nslot * slot))
    d.append(S("s_cselect_b32", tmp, nslot * slot, 0))
    for r in regs:
        d.append(S("s_sub_u32", r, r, tmp))
    return d


class Stamps:
    def __init__(self, on, base=80):
        self.on, self.base = on, base

    def __call__(self, i, real=False):
        if not self.on:
            return []
        r = s(self.base + 2 * i, 2)
        return [I("s_memrealtime" if real else "s_memtime", [r], cls="smem", dst=r.regs(), src=[]), waitcnt(lgkm=0)]

    def dump(self, sWS, sWV, nw, t0, t1, sT0, n=8, off=200 * MB):
        if not self.on:
            return []
        o = [S("s_mul_i32", sT0, s(2), nw), S("s_add_u32", sT0, sT0, sWV), S("s_lshl_b32", sT0, sT0, 6),
             S("s_add_u32", sT0, sT0, off), V("v_mov_b32", t0, 0)]
        for i in range(2 * n):
            o.append(V("v_mov_b32", t1, s(self.base + i)))
            o.append(I("buffer_store_dword", [t1, t0, sWS, sT0], f"offen offset:{4 * i}"))
        return o


def gemm_phase2(P, name, NE, NSLOT, ndma, dma_chunk, reads, mfmas, addr_update, sE, pre, extra=None,
                tail_hook=None, rd_span=None, first_vm=None, pre_hook=None, last_head=None):
    ex = extra or {}

    def body(e_first, nchunks, vm, fill=(), hook=(), head=None):
        b = list(head) if head else [waitcnt(vm=min(vm, 63), lgkm=0), I("s_barrier")]
        b += addr_update()
        d = []
        for _ in range(nchunks):
            d += dma_chunk()
        d += list(hook)
        fill = list(fill)
        h = len(fill) // 2
        if e_first:
            b += reads(0, 0)
            b += d
            m0 = mfmas(0, True)
            n = len(m0)
            b += weave(m0, interleave(m0, reads(1, 1), 0, rd_span or max(1, n * 3 // 4)), interleave(m0, fill, 0, n))
        else:
            m1 = mfmas(1, False)
            n = len(m1)
            sp = rd_span or max(1, n * 3 // 4)
            m0 = mfmas(0, False)
            gf = interleave(m1 + m0, fill, 0, 2 * n)
            b += weave(m1, interleave(m1, reads(0, 0), 0, sp), interleave(m1, d, 0, n), gf[:n])
            b += weave(m0, interleave(m0, reads(1, 1), 0, sp), gf[n:])
        return b

    last_dma = NE - NSLOT
    steady = ndma * (NSLOT - 2)
    o = body(True, NSLOT - pre, ndma * (pre - 1) if first_vm is None else first_vm, ex.get(0, ()))
    e = 1
    nun = max([k for k in ex if k <= last_dma], default=0)
    while e <= nun:
        o += body(False, 1, steady, ex.get(e, ()))
        e += 1
    if last_dma - e + 1 >= 2:
        o.append(S("s_mov_b32", sE, e))
        P.add(o)
        lb = body(False, 1, steady)
        lb.append(S("s_add_u32", sE, sE, 1))
        lb.append(S("s_cmp_le_u32", sE, last_dma))
        lb.append(I("s_cbranch_scc1", [name + "_LOOP"]))
        P.loop(name + "_LOOP", lb)
        o = []
        e = last_dma + 1
    while e < NE:
        if e == NE - 1 and pre_hook:
            o += pre_hook
        o += body(False, 1 if e <= last_dma else 0, steady if e <= last_dma else ndma * (NE - 1 - e), ex.get(e, ()),
                  tail_hook if (e == NE - 1 and tail_hook) else (), last_head if e == NE - 1 else None)
        e += 1
    o += mfmas(1, False)
    P.add(o)


_glab = [0]


def gemm_phase3(P, name, NE, NSLOT, ndma, dma_issue, dma_adv, reads, mfmas, addr_update, sE, sDW, pre, extra=None,
                tail_hook=None, rd_span=None, first_vm=None, pre_hook=None, est=None):
    ex = extra or {}

    def guard(code):
        _glab[0] += 1
        sk = f"{name}_G{_glab[0]}"
        return [S("s_cmp_eq_u32", sDW, 0), I("s_cbranch_scc1", [sk])] + code + [label(sk)]

    def body(e_first, nchunks, vm, fill=(), hook=()):
        b = guard([waitcnt(vm=min(vm, 63))]) + [waitcnt(lgkm=0)]
        if est:
            b += est()
        b += [I("s_barrier")]
        b += addr_update()
        d = []
        for _ in range(nchunks):
            d += guard(dma_issue()) + dma_adv()
        d += list(hook)
        fill = list(fill)
        if e_first:
            b += reads(0, 0)
            b += d
            m0 = mfmas(0, True)
            n = len(m0)
            b += weave(m0, interleave(m0, reads(1, 1), 0, rd_span or max(1, n * 3 // 4)), interleave(m0, fill, 0, n))
        else:
            m1 = mfmas(1, False)
            n = len(m1)
            sp = rd_span or max(1, n * 3 // 4)
            m0 = mfmas(0, False)
            gf = interleave(m1 + m0, fill, 0, 2 * n)
            b += weave(m1, interleave(m1, reads(0, 0), 0, sp), interleave(m1, d, 0, n), gf[:n])
            b += weave(m0, interleave(m0, reads(1, 1), 0, sp), gf[n:])
        return b

    last_dma = NE - NSLOT
    steady = ndma * (NSLOT - 2)
    o = body(True, NSLOT - pre, ndma * (pre - 1) if first_vm is None else first_vm, ex.get(0, ()))
    e = 1
    nun = max([k for k in ex if k <= last_dma], default=0)
    while e <= nun:
        o += body(False, 1, steady, ex.get(e, ()))
        e += 1
    if last_dma - e + 1 >= 2:
        o.append(S("s_mov_b32", sE, e))
        P.add(o)
        lb = body(False, 1, steady)
        lb.append(S("s_add_u32", sE, sE, 1))
        lb.append(S("s_cmp_le_u32", sE, last_dma))
        lb.append(I("s_cbranch_scc1", [name + "_LOOP"]))
        P.loop(name + "_LOOP", lb)
        o = []
        e = last_dma + 1
    while e < NE:
        if e == NE - 1 and pre_hook:
            o += pre_hook
        o += body(False, 1 if e <= last_dma else 0, steady if e <= last_dma else ndma * (NE - 1 - e), ex.get(e, ()),
                  tail_hook if (e == NE - 1 and tail_hook) else ())
        e += 1
    o += mfmas(1, False)
    P.add(o)


class LdsAddr:
    def __init__(self, regs):
        self.regs = regs

    def setup(self, src):
        o = []
        for i, r in enumerate(self.regs):
            if i == 0:
                if str(r) != str(src):
                    o.append(V("v_mov_b32", r, src))
            else:
                o.append(V("v_add_u32", r, 65536 * i, self.regs[0]))
        return o

    def at(self, off):
        return self.regs[off >> 16], off & 65535


def gemm4(P, name, NE, KS, NSLOT, ndma, issue, reads, mfmas, pre, extra=None, tail_hook=None, first_vm=None,
          pre_hook=None, est=None, rd_span=None, vm_bias=None):
    ex = extra or {}

    def guard(code):
        _glab[0] += 1
        sk = f"{name}_G{_glab[0]}"
        return [I("s_cbranch_vccz", [sk])] + code + [label(sk)]

    o = []
    nxt = pre
    g = 0
    for e in range(NE):
        if e == NE - 1 and pre_hook:
            o += pre_hook
        younger = nxt - 1 - e
        vm = ndma * younger if not (e == 0 and first_vm is not None) else first_vm
        vm += (vm_bias or {}).get(e, 0)
        o += guard([waitcnt(vm=min(vm, 63))]) + [waitcnt(lgkm=0)]
        if est:
            o += est()
        o.append(I("s_barrier"))
        d = []
        while nxt < NE and nxt <= e + NSLOT - 1:
            d += guard(issue(nxt))
            nxt += 1
        if e == NE - 1 and tail_hook:
            d += list(tail_hook)
        M, R = [], []
        if e == 0:
            o += reads(0, 0, 0)
            o += d
            d = []
            groups = [(mfmas(ks % 2, ks == 0), reads(0, ks + 1, (ks + 1) % 2)) for ks in range(KS - 1)]
            g = KS - 1
        else:
            groups = []
            for ks in range(KS):
                groups.append((mfmas(g % 2, False), reads(e, ks, (g + 1) % 2)))
                g += 1
        allm = [m for ms, _ in groups for m in ms]
        n = len(groups[0][0])
        gf = interleave(allm, list(ex.get(e, ())), 0, len(allm))
        gd = interleave(allm, d, 0, max(n, len(allm) // 2))
        k = 0
        for ms, rs in groups:
            sp = rd_span or max(1, n * 3 // 4)
            o += weave(ms, interleave(ms, rs, 0, sp), gd[k:k + n], gf[k:k + n])
            k += n
    o += mfmas(g % 2, False)
    P.add(o)


def gemm5(P, NE, KS, NSLOT, head, issue, reads, mfmas, pre, extra=None, est=None, post=None, issue2=None):
    ex = extra or {}
    o = []
    nxt = pre
    g = 0
    for e in range(NE):
        o += head(e, nxt) + [waitcnt(lgkm=0)]
        if est:
            o += est()
        o.append(I("s_barrier"))
        d, d2 = [], []
        while nxt < NE and nxt <= e + NSLOT - 1:
            d += issue(nxt)
            if issue2:
                d2 += issue2(nxt)
            nxt += 1
        if e == 0:
            o += reads(0, 0, 0) + d + d2
            d, d2 = [], []
            groups = [(mfmas(ks, ks % 2), reads(0, ks + 1, (ks + 1) % 2)) for ks in range(KS - 1)]
            g = KS - 1
        else:
            groups = []
            for ks in range(KS):
                groups.append((mfmas(g, g % 2), reads(e, ks, (g + 1) % 2)))
                g += 1
        allm = [m for ms, _ in groups for m in ms]
        gf = interleave(allm, list(ex.get(e, ())), 0, len(allm))
        gd = interleave(allm, d, 0, max(1, len(allm) // 2))
        if d2:
            gd[(len(allm) * 2) // 5] += d2
        k = 0
        for ms, rs in groups:
            n = len(ms)
            gr = interleave(ms, rs, 0, max(1, n * 3 // 4))
            for j in range(n):
                for x in gr[j]:
                    for mm in ms[j + 1:]:
                        assert not (set(x.dst) & set(mm.src)), (e, x.text(), mm.text())
            o += weave(ms, gr, gd[k:k + n], gf[k:k + n])
            k += n
        o += list((post or {}).get(e, ()))
    o += mfmas(g, g % 2)
    P.add(o)


def gemm6(P, name, NE, KS, vm_at, dma_at, reads, mfmas, extra=None, est=None):
    ex = extra or {}

    def guard(code):
        _glab[0] += 1
        sk = f"{name}_G{_glab[0]}"
        return [I("s_cbranch_vccz", [sk])] + code + [label(sk)]

    o = []
    g = 0
    for e in range(NE):
        o += guard([waitcnt(vm=min(63, vm_at(e)))]) + [waitcnt(lgkm=0)]
        if est:
            o += est()
        o.append(I("s_barrier"))
        d = dma_at(e)
        d = guard(d) if d else []
        if e == 0:
            o += reads(0, 0, 0) + d
            d = []
            groups = [(mfmas(ks % 2, ks == 0), reads(0, ks + 1, (ks + 1) % 2)) for ks in range(KS - 1)]
            g = KS - 1
        else:
            groups = []
            for ks in range(KS):
                groups.append((mfmas(g % 2, False), reads(e, ks, (g + 1) % 2)))
                g += 1
        allm = [m for ms, _ in groups for m in ms]
        n = len(groups[0][0])
        gf = interleave(allm, list(ex.get(e, ())), 0, len(allm))
        gd = interleave(allm, d, 0, max(n, len(allm) // 2))
        k = 0
        for ms, rs in groups:
            o += weave(ms, interleave(ms, rs, 0, max(1, n * 3 // 4)), gd[k:k + n], gf[k:k + n])
            k += n
    o += mfmas(g % 2, False)
    P.add(o)
```

```python
import sys
from common import *
import fused_v18 as fused
from gen import build
NAME = "concat_heads__compressed_kv_cla__linear_kernel_hedgehog__prompt_kernel"
if __name__ == "__main__":
    out = sys.argv[1]
    kw = {}
    kw["LD"] = "" if "ldplain" in sys.argv else "sc1"
    ks = [(NAME, 256, 512, 163840, fused.gen_fused(NAME, stamps=("stamps" in sys.argv), exp=" ".join(sys.argv), **kw))]
    build(out, ks)
```

```python
from common import *
from gemm import *
import math

LOG2E = math.log2(math.e)
CSCALE = (128 ** -0.5) * LOG2E
WS_PHIQ = WS_B
WS_KVP = WS_B + 8 * MB
WS_KVF = WS_B + 15 * MB
WS_OF = WS_B + 16 * MB
WS_WOF = WS_B + 20 * MB
WS_FLAG = WS_B + 28 * MB
WOF_CG = 292 * 2304
WS_WA = WS_PART
WS_WH = WS_PART + 4 * MB
WS_PT = WS_PART + 8 * MB
F_PT = 24
BIG = 0x7fffff00
F_B1, F_KV, F_KVR, F_O, F_CTX = 0, 1, 4, 8, 16

THR_LOG2 = 60.0
HEADROOM = 40.0
LA = 6
ORDER = ["A_x", "A_c_kv", "A_w_q", "A_w_uk", "A_w_uv", "A_w_o", "B_x", "B_wqkv", "B_w_phi", "B_wo", "out", "dbg", "ws"]


def gen_fused(name, stamps=False, exp="", LD="", ST="sc1"):
    P = Prog()
    PTR = {n: s(64 + 2 * i, 2) for i, n in enumerate(ORDER)}
    sW, sWV = s(2), s(3)
    sM = s(4, 2)
    sT0, sT1, sT2 = s(6), s(7), s(90)
    sWS, sA, sB, sC, sD, sDBG = s(8, 4), s(12, 4), s(16, 4), s(20, 4), s(24, 4), s(28, 4)
    sRB1, sG1, sHEAD, sPI, sE, sFB, sSPIN = s(32), s(33), s(34), s(35), s(36), s(37), s(38)
    L = [s(40 + i) for i in range(24)]
    vL, vL16, vFZ, vOne = v(1), v(2), v(3), v(4)
    vSTP = v(127)
    t0, t1, t2, t3, t4 = [v(5 + i) for i in range(5)]
    nlab = [0]

    def lab(p):
        nlab[0] += 1
        return f"{p}{nlab[0]}"

    def mk_srd(dst, nm):
        return [S("s_mov_b32", dst[0], PTR[nm][0]), S("s_mov_b32", dst[1], PTR[nm][1]),
                S("s_mov_b32", dst[2], NBYTES[nm]), S("s_mov_b32", dst[3], 0x20000)]

    def st(i, real=False):
        if not stamps:
            return []
        r = s(92, 2)
        x = [I("s_memrealtime" if real else "s_memtime", [r], cls="smem", dst=r.regs(), src=[]), waitcnt(lgkm=0),
             I("v_writelane_b32", [vSTP, r[0], i])]
        if not real and i < 15:
            x += [I("s_memrealtime", [r], cls="smem", dst=r.regs(), src=[]), waitcnt(lgkm=0), I("v_writelane_b32", [vSTP, r[0], 40 + i])]
        return x

    ecnt = [16]

    def est(ph):
        if not (stamps and ("est" + ph) in exp):
            return None

        def fn():
            ecnt[0] += 1
            return st(ecnt[0] - 1)
        return fn

    def poll(vaddr, srd, expect, vt, soff=0):
        lp, dn = lab("PL"), lab("PD")
        return [S("s_mov_b32", sSPIN, 0), label(lp),
                I("buffer_load_dword", [vt, vaddr, srd, soff], "offen sc1"), waitcnt(vm=0),
                V("v_cmp_ne_u32", VCC, expect, vt), S("s_add_u32", sSPIN, sSPIN, 1),
                I("s_cbranch_vccz", [dn]), S("s_sleep", 1), S("s_cmp_lt_u32", sSPIN, 200000),
                I("s_cbranch_scc1", [lp]), label(dn)]

    def wg_flag(word):
        return [I("buffer_store_dword", [vOne, vFZ, sWS, sFB], f"offen offset:{4 * word} sc1")]

    def dmal(voff, srd, soff, off=0):
        return I("buffer_load_dwordx4", [voff, srd, soff],
                 ("offen" + (f" offset:{off}" if off else "") + (" " + LD if LD else "") + " lds"))

    o = []
    A = o.append
    A(S("s_cmp_ge_u32", sW, 256))
    A(I("s_cbranch_scc1", ["F_END"]))
    if "latepf" not in exp and "nocodepf" not in exp:
        NPF = 32 if "pf32" in exp else 16
        A(S("s_cmp_ge_u32", sW, NPF))
        A(I("s_cbranch_scc1", ["F_NOPF"]))
        A(I("s_getpc_b64", [s(98, 2)]))
        A(label("F_PC"))
        A(S("s_lshr_b32", sT0, sW, 3))
        A(S("s_and_b32", sT0, sT0, 1))
        A(S("s_lshl_b32", sT0, sT0, 16))
        A(V("v_lshlrev_b32", v(31), 7, v(0)))
        A(V("v_add_u32", v(31), sT0, v(31)))
        A(V("v_min_u32", v(31), "F_CODE_END-F_PC-4", v(31)))
        A(I("global_load_dword", [v(31), v(31), s(98, 2)], "", dst=[]))
        A(label("F_NOPF"))
    A(I("s_load_dwordx16", [s(64, 16), s(0, 2), 0]))
    A(I("s_load_dwordx8", [s(80, 8), s(0, 2), 64]))
    A(I("s_load_dwordx2", [s(88, 2), s(0, 2), 96]))
    if stamps:
        A(V("v_mov_b32", vSTP, 0))
    A(V("v_lshrrev_b32", t0, 6, v(0)))
    A(V("v_and_b32", vL, 63, v(0)))
    A(V("v_readfirstlane_b32", sWV, t0))
    A(V("v_lshlrev_b32", vL16, 4, vL))
    A(S("s_and_b32", sT0, sW, 7))
    A(S("s_lshr_b32", sT1, sW, 3))
    A(S("s_lshr_b32", sRB1, sT0, 1))
    A(S("s_lshl_b32", sRB1, sRB1, 3))
    A(S("s_and_b32", sT2, sT1, 7))
    A(S("s_add_u32", sRB1, sRB1, sT2))
    A(S("s_and_b32", sG1, sT0, 1))
    A(S("s_lshl_b32", sG1, sG1, 2))
    A(S("s_lshr_b32", sT2, sT1, 3))
    A(S("s_add_u32", sG1, sG1, sT2))
    A(S("s_lshl_b32", sHEAD, sT0, 2))
    A(S("s_and_b32", sT2, sT1, 3))
    A(S("s_add_u32", sHEAD, sHEAD, sT2))
    A(S("s_lshr_b32", sPI, sT1, 2))
    A(S("s_lshl_b32", sFB, sW, 8))
    A(S("s_add_u32", sFB, sFB, WS_FLAG))
    A(V("v_mov_b32", vOne, 1))
    A(V("v_mov_b32", t1, BIG))
    A(V("v_cmp_eq_u32", VCC, 0, v(0)))
    A(V("v_cndmask_b32", vFZ, t1, 0, VCC) if False else V("v_cndmask_b32", vFZ, t1, v(0), VCC))

    sSUB, sWQ, sN, sNB, sQ0, sLO4 = s(39), s(91), s(94), s(95), s(96), s(97)
    sM2 = s(98, 2)
    vTD = v(31)
    vFS = v(30)
    vS7 = v(29)
    A(V("v_mov_b32", t2, 0))
    A(V("v_cmp_eq_u32", VCC, 256, v(0)))
    A(V("v_cndmask_b32", vFS, t1, t2, VCC))
    A(V("v_lshlrev_b32", vS7, 7, v(0)))
    A(S("s_lshr_b32", sSUB, sWV, 2))
    A(S("s_and_b32", sWQ, sWV, 3))
    A(S("s_xor_b32", sLO4, sSUB, 1))

    def only(sreg, code, inv=False):
        sk = lab("ONLY")
        return [S("s_cmp_lg_u32" if inv else "s_cmp_eq_u32", sreg, 0), I("s_cbranch_scc1", [sk])] + code + [label(sk)]

    def onlyw(wv, code):
        sk = lab("ONLYW")
        return [S("s_cmp_lg_u32", sWV, wv), I("s_cbranch_scc1", [sk])] + code + [label(sk)]

    def role(sreg):
        return [S("s_cmp_lg_u32", sreg, 0), S("s_cselect_b64", VCC, -1, 0)]

    def w_off(dst, sidx, A=None):
        A = A or o.append
        A(S("s_lshl_b32", sT0, sidx, 6))
        A(V("v_add_u32", t0, sT0, vL))
        A(V("v_mul_u32_u24", t1, 9363, t0))
        A(V("v_lshrrev_b32", t1, 18, t1))
        A(V("v_mul_u32_u24", t2, 28, t1))
        A(V("v_sub_u32", t2, t0, t2))
        A(V("v_mul_u32_u24", t3, 57, t2))
        A(V("v_lshrrev_b32", t3, 9, t3))
        A(V("v_min_u32", t3, 2, t3))
        A(V("v_mul_u32_u24", t4, 1152 - 144, t3))
        A(V("v_lshl_add_u32", t4, t2, 4, t4))
        A(V("v_mul_u32_u24", t1, 3456, t1))
        A(V("v_add_u32", t4, t4, t1))
        A(S("s_mul_i32", sT0, sG1, 144))
        A(V("v_add_u32", dst, sT0, t4))

    def x_off(dst, srow0, stride, A=None):
        A = A or o.append
        A(V("v_lshrrev_b32", t0, 2, vL))
        A(V("v_add_u32", t0, srow0, t0))
        A(V("v_mul_u32_u24", t0, stride, t0))
        A(V("v_lshrrev_b32", t1, 4, vL))
        A(V("v_xor_b32", t1, t1, vL))
        A(V("v_and_b32", t1, 3, t1))
        A(V("v_lshl_add_u32", dst, t1, 4, t0))

    def x_read_consts(dst2, sbase):
        A(V("v_and_b32", t0, 31, vL))
        A(V("v_lshlrev_b32", t1, 6, t0))
        if sbase is not None:
            A(V("v_add_u32", t1, sbase, t1))
        A(V("v_lshrrev_b32", t2, 5, vL))
        A(V("v_bfe_u32", t3, vL, 2, 2))
        A(V("v_xor_b32", t2, t2, t3))
        A(V("v_lshl_add_u32", dst2[0], t2, 4, t1))
        A(V("v_xor_b32", dst2[1], 32, dst2[0]))

    def tr_lane(dst, hshift, rs):
        A(V("v_lshrrev_b32", t0, 5, vL))
        A(V("v_bfe_u32", t1, vL, 2, 2))
        A(V("v_lshl_add_u32", t0, t0, hshift, t1))
        A(V("v_mul_u32_u24", t0, rs, t0))
        A(V("v_bfe_u32", t2, vL, 4, 1))
        A(V("v_lshl_add_u32", t0, t2, 5, t0))
        A(V("v_and_b32", t2, 3, vL))
        A(V("v_lshl_add_u32", dst, t2, 3, t0))


    B1_SUB, B1_BASE, B1_IMG, PHI_BASE = 18432, 16384, 126976, 98304
    bslot = lambda e: B1_BASE + (e % 3) * 2 * B1_SUB
    IMG_RS, PHI_RS = 144, 112
    R_BASE = B1_IMG
    sHD, sSO0, sSO3, sSt3, sLD1, sLD3 = L[0:6]
    sXb, sWb, sPH, sB2 = sA, sB, sC, sD
    vG = [v(114 + i) for i in range(9)]
    vI, vH2 = v(25), v(26)
    A(S("s_and_b32", sT0, sWQ, 1))
    A(S("s_cmp_eq_u32", sT0, 1))
    A(S("s_cselect_b64", sM2, -1, 0))
    A(S("s_cselect_b32", sSt3, 64, 32 * 3456))
    A(S("s_mul_i32", L[6], sT0, 9))
    gsetup = []
    o_save, o = o, gsetup
    A = o.append
    for i in range(9):
        A(S("s_add_u32", sT2, L[6], i))
        w_off(vG[i], sT2, A)
        comp = 1024 * (i if i < 4 else 0 if i == 4 else i - 5)
        if i >= 5:
            A(S("s_lshl_b32", sT0, sRB1, 6))
            A(S("s_add_u32", sT2, sT0, 16 * (i - 5)))
            x_off(t4, sT2, 1152, A)
            A(V("v_cndmask_b32", vG[i], vG[i], t4, sM2))
        if comp:
            A(V("v_subrev_u32", vG[i], comp, vG[i]))
    o = o_save
    A = o.append
    o += gsetup
    A(S("s_lshr_b32", sT1, sWQ, 1))
    A(S("s_mul_i32", sSO0, sT1, 32 * 3456))
    A(S("s_mul_i32", sSO3, sT1, sSt3))
    A(S("s_lshl_b32", sSt3, sSt3, 1))
    A(S("s_mul_i32", L[7], sSt3, 9))
    A(S("s_and_b32", sT0, sG1, 3))
    A(S("s_lshl_b32", sT0, sT0, 1))
    A(S("s_and_b32", sT2, sRB1, 7))
    A(S("s_add_u32", sT0, sT0, sT2))
    A(S("s_cmp_ge_u32", sT0, 9))
    A(S("s_cselect_b32", sT2, 9, 0))
    A(S("s_sub_u32", sT0, sT0, sT2))
    A(S("s_mul_i32", sT0, sT0, 1 if "rotB" in exp else 0))
    A(S("s_mul_i32", sT2, sT0, 64 * 3456))
    A(S("s_add_u32", sSO0, sSO0, sT2))
    A(S("s_mul_i32", sT2, sT0, sSt3))
    A(S("s_add_u32", sSO3, sSO3, sT2))
    A(S("s_mul_i32", sT1, sT1, B1_SUB))
    A(S("s_lshl_b32", sT0, L[6], 10))
    A(S("s_add_u32", sLD1, sT1, sT0))
    A(S("s_add_u32", sLD1, sLD1, 4096))
    A(S("s_add_u32", sT0, sT1, 4096 + 5120))
    A(S("s_cmp_eq_u32", L[6], 0))
    A(S("s_cselect_b32", sLD3, sT0, sT1))
    A(waitcnt(lgkm=0))
    o += st(0) + st(62, True)
    o += mk_srd(sXb, "B_x") + mk_srd(sWb, "B_wqkv") + mk_srd(sC, "A_w_o") + mk_srd(sWS, "ws") + mk_srd(sDBG, "dbg")
    o += [S("s_cmp_eq_u32", L[6], 0), S("s_cselect_b32", sB2[0], sWb[0], sXb[0]), S("s_cselect_b32", sB2[1], sWb[1], sXb[1]),
          S("s_cselect_b32", sB2[2], sWb[2], sXb[2]), S("s_mov_b32", sB2[3], 0x20000)]

    def b1_issue(e):
        d = [S("s_add_u32", M0, sLD1, bslot(e))]
        d += [dma(vG[i], sWb, sSO0, i * 1024) for i in range(4)]
        d.append(S("s_add_u32", M0, sLD1, bslot(e) + 4096))
        d.append(dma(vG[4], sWb, sSO0))
        d.append(S("s_add_u32", M0, sLD3, bslot(e)))
        d += [dma(vG[5 + i], sB2, sSO3, i * 1024) for i in range(4)]
        d += [S("s_add_u32", sSO0, sSO0, 64 * 3456), S("s_add_u32", sSO3, sSO3, sSt3),
              S("s_cmp_ge_u32", sSO0, 9 * 64 * 3456), S("s_cselect_b32", sT0, 9 * 64 * 3456, 0), S("s_cselect_b32", sT1, L[7], 0),
              S("s_sub_u32", sSO0, sSO0, sT0), S("s_sub_u32", sSO3, sSO3, sT1)]
        return d

    def stage_rows(srd, sbytes, n):
        r = [S("s_mul_i32", sT0, sWQ, n * 1024), S("s_add_u32", sT1, sT0, sbytes)]
        for g0 in range(0, n, 4):
            r.append(S("s_add_u32", M0, sT0, R_BASE + g0 * 1024))
            r += [I("buffer_load_dwordx4", [vL16, srd, sT1], f"offen offset:{i * 1024}" + (" nt" if "rnt" in exp else "") + " lds") for i in range(min(4, n - g0))]
            r.append(S("s_add_u32", sT1, sT1, 4096))
        return r

    o += only(sLO4, b1_issue(0) + b1_issue(1))
    A(V("v_subrev_u32", t0, 256, v(0)))
    A(V("v_cmp_gt_u32", VCC, 64, t0))
    A(V("v_lshlrev_b32", t0, 2, t0))
    A(V("v_mov_b32", t1, BIG))
    A(V("v_cndmask_b32", t0, t1, t0, VCC))
    A(V("v_mov_b32", t2, 0))
    svc = [I("buffer_store_dword", [t2, t0, sWS, sFB], "offen sc1"), S("s_mul_i32", sT2, sW, 16 * 1152)] + stage_rows(sC, sT2, 5)
    if "latepf" in exp:
        svc += only(sWQ, [I("s_getpc_b64", [sM2]), label("F_PC"), S("s_lshr_b32", sT0, sW, 3), S("s_lshl_b32", sT0, sT0, 12),
                          V("v_and_b32", t3, 31, vL), V("v_lshlrev_b32", t3, 7, t3), V("v_add_u32", t3, sT0, t3),
                          V("v_min_u32", t3, "F_CODE_END-F_PC-4", t3),
                          I("global_load_dword", [vTD, t3, sM2], "", dst=[])], inv=True)
    o += only(sSUB, svc)
    sTD = s(56, 4)
    sR0, sALT, sR1 = L[8], L[9], L[20]
    A(S("s_add_u32", sT0, sW, 256))
    A(S("s_cmp_eq_u32", sWV, 7))
    A(S("s_cselect_b32", sT2, sW, sT0))
    A(S("s_cselect_b32", sALT, 1, 0))
    A(S("s_cmp_lt_u32", sW, 32))
    A(S("s_cselect_b32", sT0, 6, 99))
    A(S("s_cmp_eq_u32", sWV, sT0))
    A(S("s_cselect_b32", sALT, 1, sALT))
    A(S("s_and_b32", sT0, sT2, 7))
    A(S("s_mul_i32", sR0, sT0, WOF_CG))
    A(S("s_mul_i32", L[22], sT0, 144))
    A(S("s_lshr_b32", sT2, sT2, 3))
    A(S("s_add_u32", sT0, sT2, 256))
    A(S("s_mul_i32", sT0, sT0, 2304))
    A(S("s_add_u32", sR0, sR0, sT0))
    A(S("s_add_u32", sR0, sR0, WS_WOF))
    A(S("s_mul_i32", sT0, sT2, 18))
    A(S("s_mul_i32", sT1, sT2, 144))
    A(S("s_sub_u32", sT1, sT1, 32 * 144 - 8))
    A(S("s_cmp_lt_u32", sT2, 32))
    A(S("s_cselect_b32", sT0, sT0, sT1))
    A(S("s_cselect_b32", sT2, 1, 18))
    A(S("s_mul_i32", sT0, sT0, 1152))
    A(S("s_add_u32", L[22], L[22], sT0))
    BJ = R_BASE + 20480
    A(S("s_and_b32", sT1, sWV, 1))
    A(S("s_mul_i32", L[21], sT1, 3072))
    A(S("s_add_u32", L[21], L[21], BJ))
    alt = mk_srd(sTD, "B_wo") + [S("s_mov_b32", M0, L[21])]
    for i in range(3):
        alt += [V("v_add_u32", t0, 64 * i, vL), V("v_min_u32", t0, 143, t0), V("v_mul_u32_u24", t1, 57, t0), V("v_lshrrev_b32", t1, 9, t1),
                V("v_mul_u32_u24", t2, 9, t1), V("v_sub_u32", t0, t0, t2),
                V("v_lshrrev_b32", t2, 3, t1), V("v_and_b32", t3, 3, t1), V("v_lshl_add_u32", t2, t2, 2, t3),
                V("v_mul_u32_u24", t2, sT2, t2), V("v_bfe_u32", t3, t1, 2, 1), V("v_mad_u32_u24", t2, t3, 9, t2),
                V("v_mul_u32_u24", t2, 1152, t2), V("v_lshl_add_u32", t2, t0, 4, t2), V("v_add_u32", t2, 4096 - 1024 * i, t2),
                S("s_sub_u32", sT0, L[22], 4096) if False else S("s_mov_b32", sT0, L[22]),
                V("v_add_u32", t2, sT0, t2), V("v_subrev_u32", t2, 4096, t2),
                dma(t2, sTD, 0, i * 1024)]
    o += only(sALT, alt)

    def touch_jobs(lst):
        jobs = []
        for nm, per in lst:
            for f0 in range(0, per, 64):
                n = min(64, per - f0)
                jobs.append(mk_srd(sTD, nm) + [S("s_mul_i32", L[23], sW, per * 128), S("s_add_u32", L[23], L[23], f0 * 128),
                                               V("v_min_u32", t0, n - 1, vL), V("v_lshlrev_b32", t0, 7, t0),
                                               I("buffer_load_dword", [vTD, t0, sTD, L[23]], "offen", dst=[])])
        return jobs

    def xtouch_jobs(nm, rows):
        jobs = []
        per = rows // 32
        for r0 in range(0, per, 8):
            n = min(8, per - r0) * 8
            jobs.append(mk_srd(sTD, nm) + [S("s_lshr_b32", L[23], sW, 3), S("s_mul_i32", L[23], L[23], per * 8192),
                                           S("s_and_b32", L[22], sW, 7), S("s_lshl_b32", L[22], L[22], 10),
                                           S("s_add_u32", L[23], L[23], L[22]), S("s_add_u32", L[23], L[23], r0 * 8192),
                                           V("v_min_u32", t0, n - 1, vL), V("v_and_b32", t1, 7, t0), V("v_lshrrev_b32", t0, 3, t0),
                                           V("v_lshlrev_b32", t0, 13, t0), V("v_lshl_add_u32", t0, t1, 7, t0),
                                           I("buffer_load_dword", [vTD, t0, sTD, L[23]], "offen" + (" nt" if "xnt" in exp else ""), dst=[])])
        return jobs

    A(S("s_lshl_b32", sT0, sG1, 2))
    A(S("s_add_u32", sHD, sWQ, sT0))
    A(V("v_bfe_u32", t0, vL, 3, 2))
    A(V("v_and_b32", t1, 3, vL))
    A(V("v_lshl_add_u32", vI, t0, 2, t1))
    A(V("v_bfe_u32", vH2, vL, 2, 1))
    raw_ = [v(88 + i) for i in range(8)] + [v(112), v(113)]
    WP = [v(96, 4), v(100, 4)]
    o += mk_srd(sPH, "B_w_phi")
    A(V("v_mad_u32_u24", t0, vH2, 9, vI))
    A(V("v_lshrrev_b32", t1, 5, vL))
    A(V("v_mul_u32_u24", t2, 8 * 36, t1))
    A(V("v_lshl_add_u32", t2, t0, 1, t2))
    A(S("s_mul_i32", sT0, sHD, 648))
    A(V("v_add_u32", t2, sT0, t2))
    A(V("v_mov_b32", t4, BIG))
    A(V("v_cmp_lt_u32", sM, vI, 9))
    A(V("v_cndmask_b32", t2, t4, t2, sM))
    A(V("v_cmp_eq_u32", sM, t1, 0))
    A(V("v_cndmask_b32", t3, t4, t2, sM))
    for j in range(8):
        A(I("buffer_load_ushort", [raw_[j], t2, sPH, 0], f"offen offset:{36 * j}" if j else "offen"))
    for j in range(2):
        A(I("buffer_load_ushort", [raw_[8 + j], t3, sPH, 0], f"offen offset:{36 * (16 + j)}"))
    kjobs = touch_jobs([("A_c_kv", 64), ("A_w_uk", 128), ("A_w_uv", 128)]) if "notouch" not in exp else []
    if "xt" in exp:
        kjobs = touch_jobs([("A_c_kv", 64)]) + xtouch_jobs("A_w_uk", 512) + xtouch_jobs("A_w_uv", 512)
    if "nokt" in exp:
        kjobs = []
    if "kt0" in exp:
        for e, r in enumerate(kjobs):
            o += onlyw(4 + e % 4, r)
        kjobs = []
    bXa = [LdsAddr([v(16), v(17)]), LdsAddr([v(18), v(19)])]
    bWa = LdsAddr([v(20), v(21)])
    x_read_consts([v(16), v(18)], None)
    tr_lane(t3, 3, 448)
    A(S("s_lshl_b32", sT0, sWV, 6))
    A(V("v_add_u32", v(20), sT0, t3))
    o += bXa[0].setup(v(16)) + bXa[1].setup(v(18)) + bWa.setup(v(20))
    acc = [v(32, 16), v(48, 16)]
    Xf = [[v(64 + (b * 2 + m) * 4, 4) for m in range(2)] for b in range(2)]
    Wf = [v(80, 4), v(84, 4)]

    def b1_reads(e, k4, b):
        sl, ks = bslot(e) + (k4 >> 1) * B1_SUB, k4 & 1
        r = [dsr128(Xf[b][0], *bXa[ks].at(sl))]
        for t in range(2):
            r.append(dsrtr(Wf[b][2 * t:2 * t + 2], *bWa.at(sl + 4096 + (16 * ks + 4 * t) * 448)))
        r.append(dsr128(Xf[b][1], *bXa[ks].at(sl + 2048)))
        return r

    def b1_mfmas(b, first):
        return [mfma(acc[m], Xf[b][m], Wf[b], 0 if first else acc[m]) for m in range(2)]

    A(S("s_sub_u32", sT0, 15, sPI))
    A(S("s_cmp_eq_u32", sSUB, 0))
    A(S("s_cselect_b32", sT2, sPI, sT0))
    A(S("s_add_u32", sN, sT2, 1))
    A(S("s_lshl_b32", sN, sN, 2))
    A(S("s_add_u32", sNB, sT0, 1))
    A(S("s_lshl_b32", sNB, sNB, 2))
    A(S("s_lshl_b32", sQ0, sT2, 7))
    A(S("s_lshl_b32", sT1, sWQ, 5))
    A(S("s_add_u32", sQ0, sQ0, sT1))
    kslot = lambda c: (c % 5) * 32768
    kXg, kWg = [v(10), v(11), v(12), v(13)], [v(14), v(15)]
    sPX, sPW, sO1, sO2, kWM, kWN = L[10:16]
    sCK, sWk, sWv = sA, sB, sC
    A(S("s_lshl_b32", sT0, sPI, 8))
    A(S("s_lshl_b32", sT1, sWQ, 6))
    A(S("s_add_u32", sT2, sT0, sT1))
    x_off(kXg[0], sT2, 1024)
    for i in range(1, 4):
        A(V("v_add_u32", kXg[i], i * (16384 - 1024), kXg[0]))
    A(S("s_lshl_b32", sT0, sWQ, 3))
    A(V("v_lshrrev_b32", t0, 4, vL))
    A(V("v_add_u32", t1, sT0, t0))
    A(V("v_lshlrev_b32", t1, 13, t1))
    A(V("v_lshrrev_b32", t2, 2, vL))
    A(V("v_xor_b32", t2, t2, t0))
    A(V("v_and_b32", t2, 3, t2))
    A(V("v_and_b32", t3, 3, vL))
    A(V("v_lshl_add_u32", t2, t2, 2, t3))
    A(V("v_lshl_add_u32", t1, t2, 4, t1))
    A(S("s_lshl_b32", sT0, sHEAD, 8))
    A(V("v_add_u32", kWg[0], sT0, t1))
    A(V("v_add_u32", kWg[1], 4 * 8192 - 1024, kWg[0]))
    A(S("s_lshl_b32", sPX, sWQ, 12))
    A(S("s_lshl_b32", sPW, sWQ, 11))
    A(S("s_add_u32", sPW, sPW, 16384))
    A(S("s_and_b32", kWM, sWV, 1))
    A(S("s_lshr_b32", kWN, sWV, 1))

    sKC = L[21]
    A(S("s_and_b32", sT0, sHEAD, 3))
    A(S("s_lshl_b32", sT0, sT0, 1))
    A(S("s_add_u32", sKC, sT0, sPI))
    A(S("s_lshl_b32", sKC, sKC, 1))
    A(S("s_and_b32", sKC, sKC, 15))
    A(S("s_mul_i32", sKC, sKC, 1 if "rotK" in exp else 0))

    def kv_issue(c):
        d = [S("s_add_u32", M0, sPX, kslot(c)), S("s_lshl_b32", sO1, sKC, 6)]
        d += [dma(kXg[i], sCK, sO1, i * 1024) for i in range(4)]
        d += [S("s_add_u32", M0, sPW, kslot(c)), S("s_lshl_b32", sO2, sKC, 18)]
        d += [dma(kWg[i], sWk, sO2, i * 1024) for i in range(2)]
        d.append(S("s_add_u32", M0, sPW, kslot(c) + 8192))
        d += [dma(kWg[i], sWv, sO2, i * 1024) for i in range(2)]
        d += [S("s_add_u32", sKC, sKC, 1), S("s_and_b32", sKC, sKC, 15)]
        return d

    vRr, vRs, vRs2, vRrB, vRs3 = v(104), v(105), v(106), v(110), v(111)
    RF = [a(4 * j, 4) for j in range(3)]
    XE = [v(107 + j) for j in range(3)]
    tr_lane(t3, 2, 1152)
    A(S("s_lshr_b32", sT0, sWV, 1))
    A(S("s_mul_i32", sT0, sT0, 288))
    A(S("s_lshl_b32", sT1, kWM, 7))
    A(S("s_add_u32", sT0, sT0, sT1))
    A(S("s_add_u32", sT0, sT0, R_BASE))
    A(V("v_add_u32", vRr, sT0, t3))
    A(S("s_mul_i32", sT0, sWV, 144))
    A(S("s_add_u32", sT0, sT0, R_BASE))
    A(V("v_and_b32", t0, 31, vL))
    A(V("v_lshrrev_b32", t1, 5, vL))
    A(V("v_bfe_u32", t4, vL, 2, 2))
    A(V("v_lshl_add_u32", t4, t1, 2, t4))
    A(V("v_mul_u32_u24", t4, 1152 - 144, t4))
    A(V("v_sub_u32", t4, t3, t4))
    A(S("s_and_b32", sT1, sWV, 1))
    A(S("s_mul_i32", sT1, sT1, 3072))
    A(S("s_add_u32", sT1, sT1, BJ))
    A(V("v_add_u32", vRrB, sT1, t4))
    A(V("v_lshlrev_b32", t4, 7, t1))
    A(V("v_lshl_add_u32", t4, t0, 4, t4))
    A(V("v_mov_b32", t2, BIG))
    A(V("v_cmp_gt_u32", VCC, 8, t0))
    A(V("v_cndmask_b32", vRs2, t2, t4, VCC))
    A(V("v_lshlrev_b32", t4, 8, t1))
    A(V("v_lshl_add_u32", t4, t0, 4, t4))
    A(S("s_lshl_b32", sT1, kWM, 4))
    A(V("v_cmp_gt_u32", VCC, sT1, t0))
    A(V("v_cndmask_b32", vRs3, t2, t4, VCC))
    A(S("s_lshr_b32", sT0, sWV, 1))
    A(S("s_lshl_b32", sT0, sT0, 8))
    A(S("s_add_u32", sT0, sT0, sW))
    A(S("s_lshl_b32", sR1, sT0, 12))
    A(S("s_lshl_b32", sT1, kWM, 11))
    A(S("s_add_u32", sR1, sR1, sT1))
    A(S("s_add_u32", sR1, sR1, WS_WA))
    A(S("s_lshl_b32", sT0, sT0, 9))
    A(S("s_add_u32", sT0, sT0, WS_WH))
    A(V("v_add_u32", vRs3, sT0, vRs3))
    r1 = [dsrtr(RF[j][2 * t:2 * t + 2], vRr, 8 * t * 1152 + 64 * j) for j in range(3) for t in range(2)]
    r1 += [bstore4(RF[0], vL16, sWS, sR1, 0, ST), bstore4(RF[1], vL16, sWS, sR1, 1024, ST), bstore4(RF[2], vRs3, sWS, 0, 0, ST)]
    a2 = [dsrtr(RF[j][2 * t:2 * t + 2], vRrB, 8 * t * 144 + 64 * j) for j in range(3) for t in range(2)]
    a2 += [bstore4(RF[0], vL16, sWS, sR0, 0, ST), bstore4(RF[1], vL16, sWS, sR0, 1024, ST), bstore4(RF[2], vRs2, sWS, sR0, 2048, ST)]
    pk_ = [forget(raw_)] + [V("v_lshl_or_b32", WP[0][p], raw_[2 * p + 1], 16, raw_[2 * p]) for p in range(4)]
    pk_ += [V("v_lshl_or_b32", WP[1][0], raw_[9], 16, raw_[8])] + [V("v_mov_b32", WP[1][p], 0) for p in range(1, 4)]
    extra = {e: [] for e in range(9)}
    extra[1] = only(sSUB, [waitcnt(vm=0)]) + onlyw(4, [I("buffer_atomic_add", [vOne, vFS, sDBG, 0], "offen sc1")])
    extra[2] = r1
    extra[3] = pk_ + only(sALT, a2)
    for e, r in enumerate(kjobs):
        extra[4 if "kt4" in exp else 6] += onlyw(4 + e % 4, r)
    extra[7] = mk_srd(sCK, "A_c_kv") + mk_srd(sWk, "A_w_uk") + mk_srd(sWv, "A_w_uv") + only(sLO4, kv_issue(0))
    hook = only(sLO4, kv_issue(1))
    o += role(sLO4)
    P.add(o)
    gemm4(P, "B1", 9, 4, 3, 9, b1_issue, b1_reads, b1_mfmas, pre=2, rd_span=2, tail_hook=hook, extra=extra,
          first_vm=9 + 10, est=est("B1"), vm_bias={8: 8})
    o = []
    A = o.append
    o += st(1)
    vIW, vQr = v(22), v(23)
    A(V("v_and_b32", t0, 31, vL))
    A(S("s_lshl_b32", sT0, sWV, 5))
    A(V("v_add_u32", t0, sT0, t0))
    A(V("v_mul_u32_u24", t0, IMG_RS, t0))
    A(V("v_lshrrev_b32", t1, 5, vL))
    A(V("v_lshl_add_u32", t0, t1, 3, t0))
    A(V("v_add_u32", vIW, B1_IMG, t0))
    pk = v(64, 16)
    for m in range(2):
        for r in range(8):
            A(V("v_cvt_pk_bf16_f32", pk[8 * m + r], acc[m][2 * r], acc[m][2 * r + 1]))
    A(S("s_cmp_lg_u32", sWV, 7))
    A(I("s_cbranch_scc1", ["B1_NZ"]))
    for r in range(16):
        A(V("v_mov_b32", pk[r], 0))
    A(label("B1_NZ"))
    for m in range(2):
        for g in range(4):
            A(I("ds_write_b64", [vIW, pk[8 * m + 2 * g:8 * m + 2 * g + 2]], f"offset:{(32 * m + 8 * g) * 2}"))
    tr_lane(t3, 3, IMG_RS)
    A(S("s_mul_i32", sT0, sWV, 18 * IMG_RS))
    A(S("s_add_u32", sT0, sT0, B1_IMG))
    A(V("v_add_u32", vQr, sT0, t3))
    A(waitcnt(lgkm=0))
    A(I("s_barrier"))
    o += only(sLO4, kv_issue(2))
    Qf = [[v(64 + (sb * 2 + ks) * 4, 4) for ks in range(2)] for sb in range(2)]
    for sb in range(2):
        for ks in range(2):
            for t in range(2):
                A(dsrtr(Qf[sb][ks][2 * t:2 * t + 2], vQr, (16 * ks + 4 * t) * IMG_RS + 64 * sb))
    for sb in range(2):
        for ks in range(2):
            A(mfma(acc[sb], WP[ks], Qf[sb][ks], 0 if ks == 0 else acc[sb]))
    PHI = [v(64, 12), v(76, 12)]
    E = [v(96 + i) for i in range(18)]
    sL2 = sT2
    A(S("s_mov_b32", sL2, float(LOG2E)))
    for sb in range(2):
        x = acc[sb]
        mx, mn, u0, u1 = t0, t1, t2, t3
        A(V("v_max3_f32", mx, x[0], x[1], x[2]))
        A(V("v_min3_f32", mn, x[0], x[1], x[2]))
        for r in (3, 5, 7):
            A(V("v_max3_f32", mx, mx, x[r], x[r + 1]))
            A(V("v_min3_f32", mn, mn, x[r], x[r + 1]))
        A(V("v_mov_b32", u0, mx))
        A(V("v_mov_b32", u1, mn))
        A(V("v_permlane32_swap_b32", mx, u0))
        A(V("v_permlane32_swap_b32", mn, u1))
        A(V("v_max_f32", mx, mx, u0))
        A(V("v_min_f32", mn, mn, u1))
        A(V("v_mul_f32", mx, sL2, mx))
        A(V("v_mul_f32", mn, sL2, mn))
        for i in range(9):
            A(V("v_fma_f32", E[i], x[i], sL2, Neg(mx)))
            A(V("v_fma_f32", E[9 + i], Neg(x[i]), sL2, mn))
        for i in range(18):
            A(V("v_exp_f32", E[i], E[i]))
        sp, sn = mx, mn
        A(V("v_add_f32", sp, E[0], E[1]))
        A(V("v_add_f32", sn, E[9], E[10]))
        for i in range(2, 9):
            A(V("v_add_f32", sp, sp, E[i]))
            A(V("v_add_f32", sn, sn, E[9 + i]))
        A(V("v_mov_b32", u0, sp))
        A(V("v_mov_b32", u1, sn))
        A(V("v_permlane32_swap_b32", sp, u0))
        A(V("v_permlane32_swap_b32", sn, u1))
        A(V("v_add_f32", sp, sp, u0))
        A(V("v_add_f32", sn, sn, u1))
        A(V("v_rcp_f32", sp, sp))
        A(V("v_rcp_f32", sn, sn))
        for i in range(9):
            A(V("v_mul_f32", E[i], E[i], sp))
            A(V("v_mul_f32", E[9 + i], E[9 + i], sn))
        for p in range(9):
            A(V("v_cvt_pk_bf16_f32", PHI[sb][p], E[2 * p], E[2 * p + 1]))
        for p in range(9, 12):
            A(V("v_mov_b32", PHI[sb][p], 0))
    A(S("s_cmp_ge_u32", sWV, 4))
    A(I("s_cbranch_scc1", ["B1_K"]))
    A(S("s_lshl_b32", sT0, sRB1, 6))
    A(S("s_add_u32", sT0, sT0, sHD))
    A(S("s_mul_i32", sT0, sT0, 3072))
    A(S("s_add_u32", sT0, sT0, WS_PHIQ))
    A(S("s_add_u32", sT1, sT0, 32 * 3072))
    for sb in range(2):
        for F in range(3):
            A(bstore4(PHI[sb][4 * F:4 * F + 4], vL16, sWS, sT1 if sb else sT0, F * 1024, ST))
    A(I("s_branch", ["B1_DONE"]))
    A(label("B1_K"))
    vPW, vPR, vVR, vPR1 = v(24), v(27), v(28), v(114)
    A(S("s_sub_u32", sT0, sWV, 4))
    A(S("s_mul_i32", sT0, sT0, 64 * PHI_RS))
    A(S("s_add_u32", sT0, sT0, PHI_BASE))
    A(V("v_and_b32", t0, 31, vL))
    A(V("v_mul_u32_u24", t0, PHI_RS, t0))
    A(V("v_lshrrev_b32", t1, 5, vL))
    A(V("v_mul_u32_u24", t2, 48, t1))
    A(V("v_add3_u32", vPW, t0, t2, sT0))
    for sb in range(2):
        for F in range(3):
            A(I("ds_write_b128", [vPW, PHI[sb][4 * F:4 * F + 4]], f"offset:{sb * 32 * PHI_RS + 16 * F}"))
    A(V("v_bfe_u32", t2, vL, 2, 2))
    A(V("v_lshl_add_u32", t0, t1, 3, t2))
    A(V("v_mul_u32_u24", t0, PHI_RS, t0))
    A(V("v_and_b32", t2, 1, vL))
    A(V("v_mul_u32_u24", t2, 48, t2))
    A(V("v_add_u32", t0, t0, t2))
    A(V("v_bfe_u32", t2, vL, 1, 1))
    A(V("v_lshl_add_u32", t0, t2, 3, t0))
    A(V("v_add_u32", t0, sT0, t0))
    A(V("v_bfe_u32", t2, vL, 4, 1))
    A(V("v_lshl_add_u32", vPR, t2, 4, t0))
    A(V("v_add_u32", vPR1, 32, t0))
    A(V("v_min_u32", t0, 8, vI))
    A(V("v_mad_u32_u24", t0, vH2, 9, t0))
    A(S("s_mul_i32", sT0, sWV, 18))
    A(S("s_add_u32", sT0, sT0, 72))
    A(V("v_add_u32", t0, sT0, t0))
    A(V("v_mul_u32_u24", t0, IMG_RS, t0))
    A(V("v_lshl_add_u32", t0, t1, 4, t0))
    A(V("v_add_u32", vVR, B1_IMG, t0))
    Vf = [v(96 + 4 * ks, 4) for ks in range(4)]
    Af = [[a(64 + (T * 4 + ks) * 4, 4) for ks in range(4)] for T in range(2)]
    for ks in range(4):
        A(dsr128(Vf[ks], vVR, 32 * ks))
    for T in range(2):
        for ks in range(4):
            for t in range(2):
                A(dsrtr(Af[T][ks][2 * t:2 * t + 2], vPR1 if T else vPR, (16 * ks + 4 * t) * PHI_RS))
    A(V("v_cmp_eq_u32", sM, vI, 9))
    A(V("v_mov_b32", t4, 0x3f803f80))
    for ks in range(4):
        for r in range(4):
            A(V("v_cndmask_b32", Vf[ks][r], Vf[ks][r], t4, sM))
    for T in range(2):
        for ks in range(4):
            A(mfma(acc[T], Af[T][ks], Vf[ks], 0 if ks == 0 else acc[T]))
    A(S("s_lshl_b32", sT0, sRB1, 5))
    A(S("s_add_u32", sT0, sT0, sHD))
    A(S("s_mul_i32", sT0, sT0, 6144))
    A(S("s_add_u32", sT0, sT0, WS_KVP))
    A(S("s_add_u32", sT1, sT0, 4096))
    for g in range(6):
        A(bstore4(acc[g // 4][4 * (g % 4):4 * (g % 4) + 4], vL16, sWS, sT1 if g >= 4 else sT0, (g % 4) * 1024, ST))
    A(label("B1_DONE"))
    o += st(2)

    kXa = [LdsAddr([v(16), v(17), v(18)]), LdsAddr([v(19), v(20), v(21)])]
    kWa = LdsAddr([v(22), v(23), v(24)])
    A(S("s_lshl_b32", sT2, kWM, 13))
    x_read_consts([v(16), v(19)], sT2)
    tr_lane(t3, 3, 256)
    A(V("v_xor_b32", t1, kWN, t1))
    A(V("v_lshl_add_u32", v(22), t1, 6, t3))
    o += kXa[0].setup(v(16)) + kXa[1].setup(v(19)) + kWa.setup(v(22))
    kacc = [[a((m * 2 + j) * 16, 16) for j in range(2)] for m in range(4)]
    kXf = [[v(32 + (b * 4 + m) * 4, 4) for m in range(4)] for b in range(2)]
    kWf = [[v(64 + (b * 2 + j) * 4, 4) for j in range(2)] for b in range(2)]

    def kv_reads(c, ks, b):
        sl = kslot(c)
        r = [dsr128(kXf[b][0], *kXa[ks].at(sl))]
        for j in range(2):
            for t in range(2):
                r.append(dsrtr(kWf[b][j][2 * t:2 * t + 2], *kWa.at(sl + 16384 + j * 8192 + (16 * ks + 4 * t) * 256)))
        for m in range(1, 4):
            r.append(dsr128(kXf[b][m], *kXa[ks].at(sl + m * 2048)))
        return r

    def kv_mfmas(b, first):
        r = []
        for m in range(4):
            r.append(mfma(kacc[m][0], kWf[b][0], kXf[b][m], 0 if first else kacc[m][0]))
            r.append(mfma(kacc[m][1], kXf[b][m], kWf[b][1], 0 if first else kacc[m][1]))
        return r

    QS = 49152
    qslot = lambda c: 16384 + ((c + 1) % 3) * QS
    qXg = [v(123), v(124), v(125), v(126)]
    sQX, sQW, sQWo = L[2], L[3], L[4]
    qsetup = []
    o_save, o = o, qsetup
    A = o.append
    A(S("s_mul_i32", L[0], sPI, 128))
    A(S("s_mul_i32", L[1], sPI, -128))
    A(V("v_mov_b32", t2, L[1]))
    A(V("v_add_u32", t2, 15 * 128, t2))
    A(V("v_mov_b32", t3, L[0]))
    A(V("v_cmp_gt_u32", sM, 2, sWQ))
    A(V("v_cndmask_b32", t3, t2, t3, sM))
    A(V("v_mov_b32", t2, sWQ))
    A(V("v_and_b32", t2, 1, t2))
    A(V("v_lshl_add_u32", t3, t2, 6, t3))
    A(V("v_lshrrev_b32", t0, 3, vL))
    A(V("v_add_u32", t0, t3, t0))
    A(V("v_mul_u32_u24", t0, 1152, t0))
    A(V("v_lshrrev_b32", t1, 4, vL))
    A(V("v_xor_b32", t1, t1, vL))
    A(V("v_and_b32", t1, 7, t1))
    A(V("v_lshl_add_u32", qXg[0], t1, 4, t0))
    A(V("v_xor_b32", t1, 4, t1))
    A(V("v_lshl_add_u32", qXg[1], t1, 4, t0))
    A(V("v_add_u32", qXg[1], 8 * 1152 - 1024, qXg[1]))
    A(V("v_add_u32", qXg[2], 16 * 1152 - 2048, qXg[0]))
    A(V("v_add_u32", qXg[3], 16 * 1152 - 2048, qXg[1]))
    A(S("s_mul_i32", sQX, sWQ, 8192))
    A(S("s_mul_i32", sQW, sWQ, 4096))
    A(S("s_mul_i32", sQWo, sWQ, 8 * 8192))
    o = o_save
    A = o.append
    sXq, sWqq = sA, sB

    def q_issue(c):
        d = []
        for hf in range(2):
            d += [S("s_add_u32", M0, sQX, qslot(c) + 4096 * hf), S("s_mov_b32", sO1, 128 * c + hf * 32 * 1152)]
            d += [dma(qXg[i], sXq, sO1, i * 1024) for i in range(4)]
        for hf in range(2):
            d += [S("s_add_u32", M0, sQW, qslot(c) + 32768 + 2048 * hf), S("s_add_u32", sO2, sQWo, (64 * c + 8 * hf) * 8192)]
            d += [dma(kWg[i], sWqq, sO2, i * 1024) for i in range(2)]
        return d

    vPZ, vPZr = v(80), v(81)
    A(V("v_mov_b32", vPZ, 0))
    extra = {e: [] for e in range(16)}
    extra[1] = qsetup
    extra[3] = only(sSUB, [waitcnt(vm=0)])
    extra[4] = onlyw(4, [I("buffer_store_dword", [vOne, vFS, sWS, sFB], f"offen offset:{4 * F_B1} sc1")])
    if "l2q" in exp:
        for e, r in enumerate(touch_jobs([("A_x", 72)]) + xtouch_jobs("A_w_q", 576)):
            extra[2] += onlyw(5 + e % 3, r)
        for e in range(9):
            r = mk_srd(sTD, "A_x") + [S("s_lshr_b32", L[23], sW, 3), S("s_mul_i32", L[23], L[23], 576 * 128),
                                      S("s_add_u32", L[23], L[23], e * 8192), V("v_lshlrev_b32", t0, 7, vL),
                                      I("buffer_load_dword", [vTD, t0, sTD, L[23]], "offen", dst=[])]
            ep = (6 + e // 2) if "l2thin" in exp else (8 + 2 * (e // 5))
            extra[ep] += onlyw(5 + e % 3, r)
    elif "notouch" not in exp:
        qj = touch_jobs([("A_x", 72), ("A_w_q", 144)])
        for e, r in enumerate(qj):
            extra[5 + 3 * (e // 3)] += onlyw(5 + e % 3, r)
    okz = lab("Z_OK")
    extra[7] += onlyw(4, [I("buffer_load_dword", [vPZr, vPZ, sDBG, 0], "offen sc1", dst=[])])
    extra[11] += onlyw(4, [waitcnt(vm=0), V("v_cmp_ne_u32", VCC, 256, vPZr), nop(2), I("s_cbranch_vccz", [okz])] +
                       poll(vPZ, sDBG, 256, vPZr) + [label(okz), S("s_mov_b64", VCC, 0)])
    vPB, vPBr = v(82), v(83)
    A(V("v_and_b32", vPB, 255, v(0)))
    A(V("v_lshlrev_b32", vPB, 8, vPB))
    A(V("v_add_u32", vPB, WS_FLAG + 4 * F_B1, vPB))
    okb = lab("B_OK")
    extra[12] += only(sSUB, [I("buffer_load_dword", [vPBr, vPB, sWS, 0], "offen sc1", dst=[])])
    extra[14] += only(sSUB, [waitcnt(vm=0), V("v_cmp_ne_u32", VCC, 1, vPBr), nop(2), I("s_cbranch_vccz", [okb])] +
                      poll(vPB, sWS, 1, vPBr) + [label(okb), S("s_mov_b64", VCC, 0)])
    extra[14] += mk_srd(sXq, "A_x") + mk_srd(sWqq, "A_w_q") + only(sSUB, q_issue(0))
    hook = only(sSUB, q_issue(1))
    o += role(sLO4)
    P.add(o)
    gemm4(P, "KV", 16, 2, 5, 8, kv_issue, kv_reads, kv_mfmas, pre=3, tail_hook=hook, extra=extra, est=est("KV"))
    o = []
    A = o.append
    o += st(3)
    kK, kV0, kV1 = L[18], L[19], L[20]
    A(S("s_lshl_b32", sT0, sHEAD, 19))
    A(S("s_lshl_b32", sT1, sPI, 16))
    A(S("s_add_u32", sT0, sT0, sT1))
    A(S("s_lshl_b32", sT1, kWM, 15))
    A(S("s_add_u32", sT0, sT0, sT1))
    vSTm = [v(10), v(11), v(12), v(13)]
    A(V("v_add_u32", vSTm[0], sT0, vL16))
    for m in range(1, 4):
        A(V("v_add_u32", vSTm[m], 8192 * m, vSTm[0]))
    A(S("s_lshl_b32", kK, kWN, 11))
    A(S("s_lshl_b32", kV0, kWN, 10))
    A(S("s_add_u32", kK, kK, WS_KF))
    A(S("s_add_u32", kV0, kV0, WS_VF))
    A(S("s_add_u32", kV1, kV0, 4096))
    TT = [v(96 + i) for i in range(16)]
    CV = [v(112 + i) for i in range(8)]
    PKs = [v(28, 4), v(112, 4)]

    def kv_st(n):
        tile, b = n // 2, n % 2
        m, j = tile // 2, tile % 2
        src = a(16 * tile + 8 * b, 8)
        pk = PKs[0]
        r = [V("v_accvgpr_read_b32", CV[q], src[q]) for q in range(8)]
        r += [V("v_cvt_pk_bf16_f32", pk[q], CV[2 * q], CV[2 * q + 1]) for q in range(4)]
        KST = "" if "kvplain" in exp else ST
        if j == 0:
            r.append(bstore4(pk, vSTm[m], sWS, kK, b * 1024, KST))
        else:
            r.append(bstore4(pk, vSTm[m], sWS, kV1 if b else kV0, 0, KST))
        return r

    o += only(sSUB, [waitcnt(vm=24)])
    for n in (12, 13):
        o += kv_st(n)
    o += st(4)

    qXa = [v(16), v(17), v(18), v(19)]
    qWa = [v(20), v(21)]
    A(S("s_lshr_b32", sT2, sWV, 1))
    A(S("s_lshl_b32", sT2, sT2, 13))
    A(S("s_add_u32", sT2, sT2, qslot(0)))
    A(V("v_and_b32", t0, 31, vL))
    A(V("v_lshlrev_b32", t1, 7, t0))
    A(V("v_add_u32", t1, sT2, t1))
    A(V("v_lshrrev_b32", t2, 5, vL))
    A(V("v_bfe_u32", t3, vL, 1, 3))
    A(V("v_xor_b32", t2, t2, t3))
    A(V("v_lshl_add_u32", qXa[0], t2, 4, t1))
    for ks in range(1, 4):
        A(V("v_xor_b32", qXa[ks], ks << 5, qXa[0]))
    tr_lane(t3, 3, 256)
    A(S("s_and_b32", sT0, sWV, 1))
    A(S("s_lshl_b32", sT0, sT0, 1))
    A(V("v_xor_b32", t1, sT0, t1))
    A(V("v_lshl_add_u32", qWa[0], t1, 6, t3))
    A(V("v_add_u32", qWa[0], qslot(0) + 32768, qWa[0]))
    A(V("v_xor_b32", qWa[1], 64, qWa[0]))
    Sb = [v(32, 16), v(48, 16)]
    NEGM = v(64, 16)
    Pb = [v(80, 8), v(88, 8)]
    T = TT
    O = [a(16 * i, 16) for i in range(4)]
    Q = [a(64 + 4 * i, 4) for i in range(8)]
    FR = [a(96 + 4 * i, 4) for i in range(8)]
    qacc = [[v(32 + 16 * (2 * m + j), 16) for j in range(2)] for m in range(2)]
    qXf = [[v(96 + (2 * b + m) * 4, 4) for m in range(2)] for b in range(2)]
    qWf = [[FR[2 * b + j] for j in range(2)] for b in range(2)]

    def q_reads(c, ks, b):
        r = []
        if ks == 0 and c > 0:
            r += [V("v_add_u32", x, qslot(c) - qslot(c - 1), x) for x in qXa + qWa]
        r.append(dsr128(qXf[b][0], qXa[ks]))
        for j in range(2):
            for t in range(2):
                r.append(dsrtr(qWf[b][j][2 * t:2 * t + 2], qWa[j], (16 * ks + 4 * t) * 256))
        r.append(dsr128(qXf[b][1], qXa[ks], 4096))
        return r

    def q_mfmas(b, first):
        return [mfma(qacc[m][j], qWf[b][j], qXf[b][m], 0 if first else qacc[m][j]) for m in range(2) for j in range(2)]

    ASLOT = 32768
    sK, sV = sC, sD
    sKO, sVO, sWRA, sRDA, sCNT, sREM = L[0:6]
    sMk = [s(56 + 2 * i, 2) for i in range(4)]
    vKVg, vAc, vAn = v(124), v(125), v(126)
    zo = [V("v_accvgpr_write_b32", O[dt][r], 0) for dt in range(4) for r in range(16)]
    todo = [n for n in range(16) if n not in (12, 13)]
    extra = {e: [] for e in range(9)}
    for i, n in enumerate(todo):
        extra[i // 4] += kv_st(n)
    extra[4] = zo[:32] + only(sLO4, [waitcnt(vm=0)]) + only(sSUB, [waitcnt(vm=12)])
    extra[5] = onlyw(0, wg_flag(F_KV)) + zo[32:]
    vP0, vP1 = v(120), v(121)
    o += [S("s_and_b32", sT0, sW, 31), V("v_and_b32", vP0, 3 if "stag" in exp else 7, vL), V("v_lshlrev_b32", vP0, 5, vP0),
          V("v_add_u32", vP0, sT0, vP0), V("v_lshlrev_b32", vP0, 8, vP0), V("v_add_u32", vP0, WS_FLAG + 4 * F_KV, vP0)]
    extra[7] = onlyw(0, [I("buffer_load_dword", [vP1, vP0, sWS, 0], "offen sc1", dst=[])])
    okl = lab("Q_OK")
    pre = onlyw(0, [waitcnt(vm=0), V("v_cmp_ne_u32", VCC, 1, vP1), nop(2), I("s_cbranch_vccz", [okl])] +
                poll(vP0, sWS, 1, vP1) + [label(okl), S("s_mov_b64", VCC, 0)])
    sGR, sCQ = L[6], L[7]
    sUN, sU0, sWH_, sW1, sW2, sW3, sKB = s(20), s(21), s(22), s(23), s(24), s(25), s(26)

    def wblock(dst, i):
        return [S("s_add_u32", dst, sCQ, i), S("s_and_b32", dst, dst, 3), S("s_lshl_b32", sT1, sGR, 2), S("s_add_u32", dst, dst, sT1),
                S("s_lshl_b32", sT1, sCQ, 5), S("s_add_u32", dst, dst, sT1), S("s_lshl_b32", dst, dst, 15),
                S("s_add_u32", dst, dst, WS_WA)]

    A(S("s_lshr_b32", sGR, sHEAD, 2))
    A(S("s_and_b32", sCQ, sHEAD, 3))
    o += wblock(sW1, 1) + wblock(sW2, 2) + wblock(sW3, 3) + wblock(sWH_, sWQ)
    A(S("s_sub_u32", sWH_, sWH_, WS_WA))
    A(S("s_lshr_b32", sWH_, sWH_, 3))
    A(S("s_add_u32", sWH_, sWH_, WS_WH))
    A(S("s_sub_u32", sWH_, sWH_, sPX))
    A(S("s_lshr_b32", sU0, sNB, 1))
    A(S("s_lshl_b32", sKB, sHEAD, 19))
    hook = [V("v_add_u32", vKVg, sPX, vL16)]
    H = hook.append
    H(S("s_lshl_b32", sT0, sSUB, 15))
    H(S("s_add_u32", sT0, sT0, sPX))
    H(S("s_add_u32", sT0, sT0, 2 * ASLOT))
    H(S("s_mov_b32", M0, sT0))
    H(S("s_lshl_b32", sT1, sSUB, 14))
    H(S("s_add_u32", sT1, sT1, sKB))
    H(S("s_add_u32", sT1, sT1, WS_KF + 8192))
    for i in range(4):
        H(dmal(vKVg, sWS, sT1, i * 1024))
    H(S("s_add_u32", M0, sT0, 16384))
    H(S("s_cmp_ge_u32", sWQ, 2))
    H(S("s_cselect_b32", sT1, WS_VF - 8192, WS_KF))
    H(S("s_cmp_eq_u32", sSUB, 1))
    H(S("s_cselect_b32", sT1, WS_VF + 8192, sT1))
    H(S("s_add_u32", sT1, sT1, sKB))
    for i in range(4):
        H(dmal(vKVg, sWS, sT1, i * 1024))
    hook += wblock(sT0, 0)
    H(S("s_lshl_b32", sT1, sSUB, 14))
    H(S("s_add_u32", sT0, sT0, sT1))
    H(S("s_add_u32", sT1, sT1, sPX))
    H(S("s_add_u32", M0, sT1, 131072))
    for i in range(4):
        H(dmal(vKVg, sWS, sT0, i * 1024))

    def kvdma():
        d = [S("s_mov_b32", M0, sWRA)]
        for i in range(4):
            d.append(dmal(vKVg, sWS, sKO, i * 1024))
        d.append(S("s_add_u32", M0, sWRA, 16384))
        for i in range(4):
            d.append(dmal(vKVg, sWS, sVO, i * 1024))
        d += [S("s_add_u32", sKO, sKO, 16384), S("s_add_u32", sVO, sVO, 16384), S("s_add_u32", sWRA, sWRA, ASLOT),
              S("s_and_b32", sWRA, sWRA, 4 * ASLOT - 1), S("s_add_u32", sUN, sUN, 1),
              S("s_cmp_eq_u32", sUN, sU0), S("s_cselect_b32", sKO, sWH_, sKO),
              S("s_sub_u32", sT0, sUN, 1), S("s_cmp_eq_u32", sT0, sU0), S("s_cselect_b32", sKO, sW1, sKO),
              S("s_sub_u32", sT0, sUN, 2), S("s_cmp_eq_u32", sT0, sU0), S("s_cselect_b32", sKO, sW2, sKO),
              S("s_add_u32", sT0, sKO, 16384), S("s_cmp_gt_u32", sUN, sU0), S("s_cselect_b32", sVO, sT0, sVO)]
        return d

    def guarded_dma():
        lb = lab("A_ND")
        return [S("s_cmp_lg_u32", sSUB, 0), I("s_cbranch_scc1", [lb])] + kvdma() + [label(lb)]

    H(S("s_mov_b32", sWRA, sPX))
    H(S("s_add_u32", sKO, sKB, WS_KF + 5 * 8192))
    H(S("s_add_u32", sVO, sKB, WS_VF + 3 * 8192))
    H(S("s_mov_b32", sUN, 2))
    o += role(sSUB)
    P.add(o)
    gemm4(P, "Q", 9, 4, 3, 12, q_issue, q_reads, q_mfmas, pre=2, extra=extra, tail_hook=hook, pre_hook=pre, est=est("Q"),
          first_vm=12 + 2)
    o = []
    A = o.append
    o += st(5)
    sCc = sT1
    A(S("s_mov_b32", sCc, float(CSCALE)))
    A(S("s_lshr_b32", sT0, sWV, 1))
    A(S("s_lshl_b32", sT0, sT0, 14))
    A(S("s_and_b32", sT2, sWV, 1))
    A(S("s_lshl_b32", sT2, sT2, 12))
    A(S("s_add_u32", sT0, sT0, sT2))
    A(V("v_add_u32", t0, sT0, vL16))
    A(I("s_barrier"))
    for m in range(2):
        for j in range(2):
            x = qacc[m][j]
            for r in range(16):
                A(V("v_mul_f32", x[r], sCc, x[r]))
            for r in range(8):
                A(V("v_cvt_pk_bf16_f32", x[r], x[2 * r], x[2 * r + 1]))
            for b in range(2):
                A(I("ds_write_b128", [t0, x[4 * b:4 * b + 4]], f"offset:{m * 8192 + (2 * j + b) * 1024}"))
    A(S("s_lshl_b32", sT0, sWV, 13))
    A(V("v_add_u32", v(122), sT0, vL16))
    o += st(6)

    vPC, vP1 = v(20), v(21)
    sXD = s(27)
    A(S("s_mov_b32", sXD, 1))
    vWB = [v(22), v(23), v(24), v(25)]
    vWHf = v(26)
    A(S("s_lshl_b32", sT0, sPI, 5))
    A(S("s_add_u32", sT0, sT0, sGR))
    A(S("s_lshl_b32", sT0, sT0, 8))
    A(S("s_lshl_b32", sT1, sWV, 2))
    A(S("s_add_u32", sT0, sT0, sT1))
    A(S("s_add_u32", sT0, sT0, WS_FLAG + 4 * F_CTX))
    A(V("v_and_b32", t0, 3, vL))
    A(V("v_lshlrev_b32", t0, 11, t0))
    A(V("v_add_u32", vPC, sT0, t0))
    A(V("v_add_u32", vWB[0], 131072, vL16))
    sSL = L[8]
    for i in range(1, 5):
        A(S("s_add_u32", sT0, sU0, (i % 4) + 2))
        A(S("s_and_b32", sT0, sT0, 3))
        A(S("s_lshl_b32", sT0, sT0, 15))
        if i < 4:
            A(V("v_add_u32", vWB[i], sT0, vL16))
        if i == 3:
            A(S("s_mov_b32", sSL, sT0))
    A(V("v_and_b32", t0, 15, vL))
    A(V("v_lshrrev_b32", t1, 5, vL))
    A(V("v_lshlrev_b32", t1, 8, t1))
    A(V("v_lshl_add_u32", t0, t0, 4, t1))
    A(V("v_add_u32", vWHf, sT0, t0))
    XA = [a(64 + 4 * i, 4) for i in range(8)] + [a(4 * i, 4) for i in range(16)] + [a(96 + 4 * i, 4) for i in range(8)]

    vLs, vThr, vLB, vD, vNINF = v(10), v(11), v(12), v(13), v(14)
    vB = [v(15), v(16)]
    vF, vDl, vFW = v(17), v(18), v(19)
    A(V("v_mov_b32", vLs, 0))
    A(V("v_mov_b32", vThr, float(2.0 ** THR_LOG2)))
    A(V("v_mov_b32", vNINF, 0xff800000))
    A(V("v_and_b32", t0, 31, vL))
    A(V("v_lshrrev_b32", t1, 5, vL))
    A(V("v_lshlrev_b32", t1, 2, t1))
    A(V("v_sub_u32", t0, t0, t1))
    A(V("v_add_u32", vD, sQ0, t0))
    A(S("s_lshl_b32", sT0, sWV, 2))
    A(V("v_mov_b32", t0, sT0))
    A(V("v_mov_b32", t1, BIG))
    A(V("v_cmp_eq_u32", VCC, 0, vL))
    A(V("v_cndmask_b32", vFW, t1, t0, VCC))

    def wave_flag(word):
        return [I("buffer_store_dword", [vOne, vFW, sWS, sFB], f"offen offset:{4 * word} sc1")]

    if "prio" in exp:
        o += only(sSUB, [S("s_setprio", 1)])
    A(waitcnt(vm=0, lgkm=0))
    A(I("s_barrier"))
    vA = vAc
    A(V("v_add_u32", vA, 2 * ASLOT, vL16))
    for db in range(8):
        A(dsr128(Q[db], v(122), db * 1024))
    for db in range(8):
        A(dsr128(FR[db], vA, 16384 + db * 1024))
    A(waitcnt(lgkm=8))
    A(I("s_barrier"))
    o += guarded_dma()
    for db in range(8):
        A(mfma(Sb[0], FR[db], Q[db], 0 if db == 0 else Sb[0]))
    A(S("s_mov_b32", sRDA, 2 * ASLOT))

    def frag_read(n, half):
        off = 16384 + half * 8192 + n * 1024 if n < 8 else half * 8192 + (n - 8) * 1024
        return dsr128(FR[n % 8], vA, off)

    def tail_pair(p, q0, q1, P_):
        r = []
        if p == 0:
            r.append(V("v_mov_b32", vB[0], q0))
            r.append(V("v_mov_b32", vB[1], q1))
        else:
            r.append(V("v_add_f32", vB[0], vB[0], q0))
            r.append(V("v_add_f32", vB[1], vB[1], q1))
        r.append(V("v_cvt_pk_bf16_f32", P_[p], q0, q1))
        return r

    def mask_ops(S_):
        r = []
        for g in range(4):
            for k in range(4):
                r.append(V("v_cmp_lt_i32", sMk[k], vD, 8 * g + k))
            for k in range(4):
                r.append(V("v_cndmask_b32", S_[4 * g + k], S_[4 * g + k], vNINF, sMk[k]))
        r.append(V("v_subrev_u32", vD, 32, vD))
        return r

    def softmax(cb, masked):
        S_, P_ = Sb[cb], Pb[cb]
        r = mask_ops(S_) if masked else []
        for p in range(8):
            r.append(V("v_exp_f32", T[(2 * p) % 8], S_[2 * p]))
            r.append(V("v_exp_f32", T[(2 * p + 1) % 8], S_[2 * p + 1]))
            if p > 0:
                r += tail_pair(p - 1, T[(2 * p - 2) % 8], T[(2 * p - 1) % 8], P_)
        r += tail_pair(7, T[6], T[7], P_)
        r.append(V("v_add_f32", vB[0], vB[0], vB[1]))
        return r

    def rowmax(S_, dst, tmp):
        r = [V("v_max3_f32", dst, S_[0], S_[1], S_[2])]
        for q in range(3, 15, 2):
            r.append(V("v_max3_f32", dst, dst, S_[q], S_[q + 1]))
        r += [V("v_max_f32", dst, dst, S_[15]), V("v_mov_b32", tmp, dst), V("v_permlane32_swap_b32", dst, tmp),
              V("v_max_f32", dst, dst, tmp), V("v_add_f32", dst, HEADROOM, dst)]
        return r

    slow_sites = []

    def step(half, has_pv, has_qk, masked, ctl=()):
        cb, nb = half, 1 - half
        M, frs = [], []
        if has_pv:
            for vb in range(2):
                for dt in range(4):
                    M.append(mfma(O[dt], FR[(4 * vb + dt) % 8], Pb[nb][4 * vb:4 * vb + 4], O[dt]))
                    frs.append(4 * vb + dt)
        if has_qk:
            for db in range(8):
                M.append(mfma(Sb[nb], FR[db], Q[db], NEGM if db == 0 else Sb[nb]))
                frs.append(8 + db)
        n = len(M)
        seq = [(x, half) for x in frs] + [(x, 1 - half) for x in range(16)]
        gaps = [[] for _ in M]
        g3 = [[] for _ in M]
        for j in range(n):
            if half == 1 and j + LA == n:
                gaps[j].append(V("v_add_u32", vA, sRDA, vL16))
            gaps[j].append(frag_read(*seq[j + LA]))
            if j % 2 == 1 and j + 1 < n:
                g3[j].append(waitcnt(lgkm=LA - 2))
        if has_pv:
            gaps[0].append(V("v_add_f32", vLs, vLs, vB[0]))
        if half == 0:
            gaps[0] += [waitcnt(vm=8), I("s_barrier")]
            gaps[1] += guarded_dma()
        else:
            gaps[0] += [S("s_add_u32", sRDA, sRDA, ASLOT), S("s_and_b32", sRDA, sRDA, 4 * ASLOT - 1)]
            gaps[1] += list(ctl)
        smx = softmax(cb, masked) + [V("v_cmp_gt_f32", VCC, vB[0], vThr)]
        g2 = interleave(M, smx, 2 if has_pv else 1, n - 1)
        sl, rt = lab("A_SLOW"), lab("A_RET")
        g3[n - 1] += [I("s_cbranch_vccnz", [sl]), label(rt)]
        slow_sites.append((sl, rt, cb, has_qk))
        return weave(M, gaps, g2, g3)

    for n in range(LA):
        A(dsr128(FR[n], vA, n * 1024))
    o += mask_ops(Sb[0]) + rowmax(Sb[0], vDl, t1)
    for r in range(16):
        A(V("v_sub_f32", NEGM[r], 0, vDl))
    for r in range(16):
        A(V("v_sub_f32", Sb[0][r], Sb[0][r], vDl))
    o += step(0, False, True, False) + step(1, True, True, True)
    if "stag" in exp:
        o += onlyw(4, [V("v_add_u32", v(120), 128 * 256, v(120))] + poll(v(120), sWS, 1, v(121)))
    A(S("s_sub_u32", sREM, sNB, sN))
    A(S("s_lshr_b32", sREM, sREM, 1))
    A(S("s_add_u32", sREM, sREM, 1))
    A(S("s_cmp_eq_u32", sN, 4))
    A(I("s_cbranch_scc1", ["A_PF"]))
    A(S("s_sub_u32", sT0, sN, 6))
    A(S("s_lshl_b32", sT0, sT0, 5))
    A(V("v_subrev_u32", vD, sT0, vD))
    A(S("s_lshr_b32", sCNT, sN, 1))
    A(S("s_sub_u32", sCNT, sCNT, 3))
    P.add(o)
    lb = step(0, True, True, False) + step(1, True, True, False, ctl=[S("s_sub_u32", sCNT, sCNT, 1), S("s_cmp_lg_u32", sCNT, 0)])
    lb += [I("s_cbranch_scc1", ["A_LOOP"])]
    P.loop("A_LOOP", lb)
    SK = "noskip" not in exp
    o = []
    A = o.append
    if SK:
        o += [S("s_cmp_eq_u32", sWQ, 0), I("s_cbranch_scc1", ["A_E0"])]
    o += step(0, True, True, True)
    if SK:
        o += [S("s_cmp_eq_u32", sWQ, 1), I("s_cbranch_scc1", ["A_E1"])]
    o += step(1, True, True, True)
    A(label("A_PF"))
    A(S("s_sub_u32", sREM, sREM, 1))
    if SK:
        o += [S("s_cmp_le_u32", sWQ, 2), I("s_cbranch_scc1", ["A_E0"])]
    o += step(0, True, True, True)
    A(label("A_E1"))
    o += step(1, True, False, True)
    A(V("v_add_f32", vLs, vLs, vB[0]))
    A(S("s_cmp_eq_u32", sREM, 0))
    A(I("s_cbranch_scc1", ["A_FIN"]))
    A(waitcnt(vm=8))
    A(I("s_barrier"))
    o += guarded_dma()
    A(S("s_sub_u32", sREM, sREM, 1))
    A(label("A_FIN"))

    def fin(half):
        M = [mfma(O[dt], FR[4 * vb + dt], Pb[1 - half][4 * vb:4 * vb + 4], O[dt]) for vb in range(2) for dt in range(4)]
        gaps = [[] for _ in M]
        for j in range(8 - LA):
            gaps[j].append(frag_read(j + LA, half))
        return weave(M, gaps)

    o += fin(0)
    if SK:
        A(I("s_branch", ["A_EPI"]))
        A(label("A_E0"))
        o += step(0, True, False, True)
        A(V("v_add_f32", vLs, vLs, vB[0]))
        o += fin(1)
        A(label("A_EPI"))
    o += st(7)
    A(V("v_mov_b32", t0, vLs))
    A(V("v_permlane32_swap_b32", t0, vLs))
    A(V("v_add_f32", t0, t0, vLs))
    A(V("v_rcp_f32", vF, t0))
    A(S("s_lshl_b32", sT0, sQ0, 13))
    A(S("s_lshl_b32", sT1, sHEAD, 13))
    A(S("s_add_u32", sT0, sT0, sT1))
    A(S("s_add_u32", sT0, sT0, WS_CTX))
    A(S("s_add_u32", sT1, sT0, 4096))
    for dt in range(4):
        Tm, Pk = Sb[dt % 2], Pb[dt % 2]
        for r in range(16):
            A(V("v_accvgpr_read_b32", Tm[r], O[dt][r]))
        for r in range(16):
            A(V("v_mul_f32", Tm[r], Tm[r], vF))
        for r in range(8):
            A(V("v_cvt_pk_bf16_f32", Pk[r], Tm[2 * r], Tm[2 * r + 1]))
        for b in range(2):
            db = 2 * dt + b
            A(bstore4(Pk[4 * b:4 * b + 4], vL16, sWS, sT0 if db < 4 else sT1, (db % 4) * 1024, "" if "ctxplain" in exp else ST))
        for r in range(8):
            A(V("v_accvgpr_write_b32", XA[2 * dt + r // 4][r % 4], Pk[r]))
    A(S("s_cmp_eq_u32", sSUB, 0))
    A(I("s_cbranch_scc1", ["A_SHORT"]))
    A(S("s_cmp_eq_u32", sREM, 0))
    A(I("s_cbranch_scc1", ["A_DONE"]))
    A(I("s_barrier"))
    A(I("s_branch", ["A_DONE"]))
    A(label("A_SHORT"))
    def interval(work):
        return [waitcnt(vm=8), I("s_barrier")] + work + kvdma()

    def checked(vaddr, vres):
        ok = lab("SJ_OK")
        return [V("v_cmp_ne_u32", VCC, 1, vres), nop(2), I("s_cbranch_vccz", [ok])] + poll(vaddr, sWS, 1, vres) + [label(ok)]

    vJ, vJr = v(116), v(117)
    if "noalign" not in exp:
        A(S("s_sub_u32", L[16], sNB, sN))
        A(S("s_lshr_b32", L[16], L[16], 1))
        A(label("A_AL"))
        A(S("s_cmp_lt_u32", sREM, L[16]))
        A(I("s_cbranch_scc1", ["A_AL1"]))
        o += interval([])
        A(S("s_sub_u32", sREM, sREM, 1))
        A(I("s_branch", ["A_AL"]))
        A(label("A_AL1"))
    A(S("s_cmp_ge_u32", sW, 48))
    A(I("s_cbranch_scc1", ["A_NKVR"]))
    sJ, sJo = L[16], L[17]
    A(S("s_lshl_b32", sJ, sW, 2))
    A(S("s_add_u32", sJ, sJ, sWQ))
    A(S("s_mul_i32", sT0, sJ, 43691))
    A(S("s_lshr_b32", sT0, sT0, 20))
    A(S("s_lshr_b32", sT1, sT0, 2))
    A(S("s_and_b32", sT0, sT0, 3))
    A(S("s_lshl_b32", sT0, sT0, 6))
    A(S("s_add_u32", sT0, sT0, sT1))
    A(V("v_bfe_u32", t0, vL, 3, 2))
    A(V("v_lshlrev_b32", t0, 1, t0))
    A(V("v_and_b32", t1, 7, vL))
    A(V("v_lshl_add_u32", t0, t1, 3, t0))
    A(V("v_add_u32", t0, sT0, t0))
    A(V("v_lshlrev_b32", t0, 8, t0))
    A(V("v_add_u32", vJ, WS_FLAG + 4 * F_B1, t0))
    A(S("s_lshl_b32", sJo, sJ, 10))
    A(S("s_add_u32", sJo, sJo, WS_KVP))
    R = [v(32 + 4 * i, 4) for i in range(16)]
    KS_ = v(96, 4)

    def kvr_loads():
        r = []
        for i in range(16):
            r += [bload4(R[i], vL16, sWS, sJo, 0, LD), S("s_add_u32", sJo, sJo, 192 * 1024)]
        return r

    def kvr_sum(first):
        r = [forget(R)]
        for step_ in (1, 2, 4, 8):
            for w in range(0, 16, 2 * step_):
                r += [V("v_add_f32", R[w][q], R[w][q], R[w + step_][q]) for q in range(4)]
        r += [V("v_mov_b32", KS_[q], R[0][q]) if first else V("v_add_f32", KS_[q], KS_[q], R[0][q]) for q in range(4)]
        return r

    o += interval([I("buffer_load_dword", [vJr, vJ, sWS, 0], "offen sc1", dst=[])])
    o += interval(wave_flag(F_CTX) + checked(vJ, vJr) + kvr_loads())
    o += interval(kvr_sum(True) + kvr_loads())
    o += interval(kvr_sum(False) + [
        V("v_cvt_pk_bf16_f32", KS_[0], KS_[0], KS_[1]), V("v_cvt_pk_bf16_f32", KS_[1], KS_[2], KS_[3]),
        S("s_lshr_b32", sT0, sJ, 1), S("s_lshl_b32", sT0, sT0, 10), S("s_and_b32", sT1, sJ, 1), S("s_lshl_b32", sT1, sT1, 3),
        S("s_add_u32", sT0, sT0, sT1), S("s_add_u32", sT0, sT0, WS_KVF),
        I("buffer_store_dwordx2", [KS_[0:2], vL16, sWS, sT0], "offen " + ST)])
    o += interval(wave_flag(F_KVR))
    A(S("s_sub_u32", sREM, sREM, 5))
    A(I("s_branch", ["A_DL0"]))
    A(label("A_NKVR"))
    A(S("s_sub_u32", L[18], sW, 96))
    A(S("s_cmp_ge_u32", L[18], 128))
    A(I("s_cbranch_scc1", ["A_DL0"]))
    sSB, sH0 = L[16], L[17]
    A(S("s_lshr_b32", sSB, L[18], 1))
    A(S("s_and_b32", sH0, L[18], 1))
    A(S("s_lshl_b32", sH0, sH0, 4))
    A(S("s_lshl_b32", sT0, sWQ, 2))
    A(S("s_add_u32", sH0, sH0, sT0))
    A(S("s_mul_i32", sT0, sH0, 6))
    A(V("v_min_u32", t0, 23, vL))
    A(V("v_add_u32", t0, sT0, t0))
    A(V("v_and_b32", t1, 3, t0))
    A(V("v_lshrrev_b32", t0, 2, t0))
    A(V("v_lshlrev_b32", t0, 8, t0))
    A(V("v_lshl_add_u32", t0, t1, 2, t0))
    A(V("v_add_u32", vJ, WS_FLAG + 4 * F_KVR, t0))
    Pf = [[v(32 + 12 * k + 4 * F, 4) for F in range(3)] for k in range(4)]
    Kf = [[a(12 * k + 4 * F, 4) for F in range(3)] for k in range(4)]
    Cs = [v(80, 16), v(96, 16)]
    ld = [S("s_lshl_b32", sT0, sSB, 5), S("s_add_u32", sT0, sT0, sH0), S("s_mul_i32", sT0, sT0, 3072),
          S("s_add_u32", sT0, sT0, WS_PHIQ), S("s_mul_i32", sT1, sH0, 3072), S("s_add_u32", sT1, sT1, WS_KVF)]
    for k in range(4):
        for F in range(3):
            ld += [bload4(Pf[k][F], vL16, sWS, sT0, F * 1024, LD), bload4(Kf[k][F], vL16, sWS, sT1, F * 1024, LD)]
        ld += [S("s_add_u32", sT0, sT0, 3072), S("s_add_u32", sT1, sT1, 3072)]
    cp = [forget([x for k in range(4) for x in Pf[k] + Kf[k]]),
          S("s_mul_i32", sT2, sSB, 36), S("s_add_u32", sT0, sT2, sH0), S("s_lshl_b32", sT0, sT0, 10), S("s_add_u32", sT0, sT0, WS_OF),
          S("s_lshr_b32", sT1, sH0, 3), S("s_add_u32", sT1, sT1, sT2), S("s_lshl_b32", sT1, sT1, 10),
          S("s_add_u32", sT1, sT1, WS_OF + 32 * 1024), S("s_and_b32", sT2, sH0, 7), S("s_lshl_b32", sT2, sT2, 1),
          S("s_add_u32", sT1, sT1, sT2)]
    XO = [v(112), v(113), v(114), v(115)]
    for k in range(4):
        C = Cs[k % 2]
        cp += [mfma(C, Kf[k][F], Pf[k][F], 0 if F == 0 else C) for F in range(3)]
        cp += [V("v_add_f32", t0, 1e-6, C[9]), V("v_rcp_f32", t0, t0)]
        cp += [V("v_mul_f32", C[i], C[i], t0) for i in range(9)]
        cp += [V("v_cvt_pk_bf16_f32", Pf[k][0][p], C[2 * p], C[2 * p + 1]) for p in range(4)]
        cp += [V("v_mov_b32", XO[k], C[8]), bstore4(Pf[k][0], vL16, sWS, sT0, k * 1024, ST)]
    cp += [V("v_cvt_pk_bf16_f32", XO[0], XO[0], XO[1]), V("v_cvt_pk_bf16_f32", XO[1], XO[2], XO[3]),
           I("buffer_store_dwordx2", [v(112, 2), vL16, sWS, sT1], "offen " + ST)]
    o += interval([I("buffer_load_dword", [vJr, vJ, sWS, 0], "offen sc1", dst=[])])
    o += interval(wave_flag(F_CTX) + checked(vJ, vJr) + ld)
    o += interval(cp)
    o += interval(wave_flag(F_O))
    A(S("s_sub_u32", sREM, sREM, 4))
    xl = []
    for i in range(1, 4):
        xl += [S("s_add_u32", sT0, sCQ, i), S("s_and_b32", sT0, sT0, 3), S("s_lshl_b32", sT1, sGR, 2), S("s_add_u32", sT0, sT0, sT1),
               S("s_add_u32", sT0, sT0, sQ0), S("s_lshl_b32", sT0, sT0, 13), S("s_add_u32", sT0, sT0, WS_CTX),
               S("s_add_u32", sT1, sT0, 4096)]
        xl += [I("buffer_load_dwordx4", [XA[8 * i + db], vL16, sWS, sT0 if db < 4 else sT1],
                 f"offen offset:{(db % 4) * 1024}" + (" " + LD if LD else ""), dst=[]) for db in range(8)]
    A(label("A_DL0"))
    A(S("s_cmp_lt_u32", sREM, 4 if "xjob" in exp else 1000))
    A(I("s_cbranch_scc1", ["A_DL1"]))
    o += interval([])
    o += interval(wave_flag(F_CTX) + [])
    o += interval(poll(vPC, sWS, 1, vP1) + xl)
    A(S("s_sub_u32", sREM, sREM, 3))
    A(S("s_mov_b32", sXD, 0))
    A(label("A_DL1"))
    P.add(o)
    lb = [waitcnt(vm=8), I("s_barrier")] + kvdma()
    lb += [S("s_sub_u32", sREM, sREM, 1), S("s_cmp_lg_u32", sREM, 0), I("s_cbranch_scc1", ["A_DL"])]
    P.loop("A_DL", lb)
    o = [waitcnt(vm=0)] + wave_flag(F_CTX)
    A = o.append
    A(label("A_DONE"))
    o += st(8)
    A(I("s_barrier"))
    o += st(16)
    A(S("s_lshl_b32", sT1, sSUB, 14))
    A(S("s_add_u32", sT0, sW3, sT1))
    A(S("s_add_u32", sT1, sT1, sPX))
    A(S("s_add_u32", M0, sT1, sSL))
    for q in range(4):
        A(dmal(vKVg, sWS, sT0, q * 1024))
    pacc = [v(32 + 16 * j, 16) for j in range(5)]
    WR = [v(112, 4), v(116, 4), v(120, 4), v(10, 4), v(14, 4)]
    seq = [(k, j) for k in range(8) for j in range(5)] + [(k, j) for j in range(5) for k in range(8, 32)]
    WLA = 4

    def wread(n):
        k, j = seq[n]
        if j < 4:
            return dsr128(WR[n % 5], vWB[k // 8], (k % 8) * 4096 + j * 1024)
        return dsr128(WR[n % 5], vWHf, k * 512)

    sPT0 = L[9]
    A(S("s_lshl_b32", sPT0, sPI, 2))
    A(S("s_add_u32", sPT0, sPT0, sCQ))
    A(S("s_lshl_b32", sPT0, sPT0, 3))
    A(S("s_add_u32", sT0, sPT0, sWV))
    A(S("s_lshl_b32", sT0, sT0, 3))
    A(S("s_add_u32", sT0, sT0, sGR))
    A(S("s_mul_i32", sT0, sT0, 9216))
    sPTs = [L[0], L[1], L[2]]
    A(S("s_add_u32", sPTs[0], sT0, WS_PT))
    A(S("s_add_u32", sPTs[1], sPTs[0], 4096))
    A(S("s_add_u32", sPTs[2], sPTs[0], 8192))

    def pstore(j):
        r = []
        for b in range(2 if j < 4 else 1):
            r += [V("v_cvt_pk_bf16_f32", pacc[j][4 * b + q], pacc[j][8 * b + 2 * q], pacc[j][8 * b + 2 * q + 1]) for q in range(4)]
            pi_ = 2 * j + b
            r.append(bstore4(pacc[j][4 * b:4 * b + 4], vL16, sWS, sPTs[pi_ // 4], (pi_ % 4) * 1024, ST))
        return r

    for n in range(WLA):
        A(wread(n))
    pend = []
    NF, NP = (3, 14)
    vTK, vTO, vTA = v(27), v(28), v(29)
    A(V("v_mov_b32", t1, BIG))
    A(V("v_mov_b32", t0, WS_FLAG + 252))
    A(V("v_cmp_eq_u32", VCC, 0, vL))
    A(V("v_cndmask_b32", vTO, t1, t0, VCC))

    def ticket():
        return onlyw(7, [V("v_mov_b32", vTK, 1), I("buffer_atomic_add", [vTK, vTO, sWS, 0], "offen sc0 sc1", dst=[])])

    for n, (k, j) in enumerate(seq):
        A(mfma(pacc[j], WR[n % 5], XA[k], 0 if k == 0 else pacc[j]))
        if n == 48:
            A(I("s_barrier"))
        if n + WLA < len(seq):
            A(wread(n + WLA))
        if n == NF:
            o += only(sSUB, [waitcnt(vm=4)] + wave_flag(F_CTX))
        if n == NP:
            o += poll(vPC, sWS, 1, vP1) + xl + st(9)
        if n in (39, 47, 55):
            A(waitcnt(vm={39: 16, 47: 8, 55: 0}[n]))
        if k == 12 and j > 0:
            pend = pstore(j - 1)
        if k == 20 and j == 4:
            o += ticket()
        if pend:
            o += pend[:2]
            pend = pend[2:]
    o += pstore(4)
    o += st(10)
    vW2, vLx, vW2x, vWr, vSt, vPO = v(22), v(23), v(24), v(25), v(26), v(20)
    vRdw = [v(30), v(31), v(123)]
    RS = 304
    A(V("v_and_b32", t0, 7, vL))
    A(V("v_lshrrev_b32", t1, 5, vL))
    A(V("v_lshlrev_b32", t1, 7, t1))
    A(V("v_lshl_add_u32", vW2, t0, 4, t1))
    A(V("v_mov_b32", t2, BIG))
    A(S("s_cmp_lt_u32", sWV, 4))
    A(S("s_cselect_b64", sM, -1, 0))
    A(V("v_cndmask_b32", vLx, t2, vL16, sM))
    A(V("v_cndmask_b32", vW2x, t2, vW2, sM))
    A(V("v_and_b32", t0, 31, vL))
    A(V("v_mul_u32_u24", t0, RS, t0))
    A(V("v_lshrrev_b32", t1, 5, vL))
    A(V("v_lshl_add_u32", t0, t1, 4, t0))
    A(S("s_mul_i32", sT0, sWV, 64 * RS))
    A(V("v_add_u32", vWr, sT0, t0))
    A(V("v_mul_u32_u24", t1, 43691, v(0)))
    A(V("v_lshrrev_b32", t1, 18, t1))
    A(V("v_mul_u32_u24", t2, 6, t1))
    A(V("v_sub_u32", t2, v(0), t2))
    A(V("v_mul_u32_u24", t0, RS, t1))
    A(V("v_mul_u32_u24", t3, 48, t2))
    A(V("v_add_u32", vRdw[0], t0, t3))
    A(V("v_add_u32", vRdw[1], 3 * 64 * RS, vRdw[0]))
    A(V("v_add_u32", vRdw[2], 6 * 64 * RS, vRdw[0]))
    A(V("v_mul_u32_u24", t1, 2304, t1))
    A(V("v_mul_u32_u24", t3, 24, t2))
    A(V("v_add_u32", vSt, t1, t3))
    A(V("v_bfe_u32", t0, vL, 2, 2))
    A(V("v_lshlrev_b32", t0, 8, t0))
    A(V("v_and_b32", t1, 3, vL))
    A(V("v_lshl_add_u32", t0, t1, 2, t0))
    A(V("v_add_u32", vPO, WS_FLAG + 96 * 256 + 4 * F_O, t0))
    sOUT = sA
    o += mk_srd(sOUT, "out")
    sXo0, sXo1, sWo_ = L[13], L[14], L[15]
    bfr = [a(64 + 4 * i, 4) for i in range(16)] + [v(64 + 4 * i, 4) for i in range(4)] + [v(96 + 4 * i, 4) for i in range(5)]
    bacc = [[a(0, 16), a(16, 16), a(32, 16)], [a(48, 16), v(32, 16), v(48, 16)]]

    def oloads(X, W, xstep, wstep, masked=False, x=True, w=True):
        va, vw = (vLx, vW2x) if masked else (vL16, vW2)
        r = []
        if x:
            r += [bload4(X[0], va, sWS, sXo0, 0, LD), bload4(X[1], va, sWS, sXo1, 0, LD),
                  S("s_add_u32", sXo0, sXo0, xstep), S("s_add_u32", sXo1, sXo1, xstep)]
        if w:
            r += [bload4(W[0], va, sWS, sWo_, 0, LD), bload4(W[1], va, sWS, sWo_, 1024, LD),
                  bload4(W[2], vw, sWS, sWo_, 2048, LD), S("s_add_u32", sWo_, sWo_, wstep)]
        return r

    def bout_loads():
        r = [S("s_mul_i32", sXo0, sRB1, 72), S("s_add_u32", sXo0, sXo0, sWV), S("s_lshl_b32", sXo0, sXo0, 10),
             S("s_add_u32", sXo0, sXo0, WS_OF), S("s_add_u32", sXo1, sXo0, 36 * 1024), S("s_mul_i32", sWo_, sG1, WOF_CG),
             S("s_mul_i32", sT0, sWV, 2304), S("s_add_u32", sWo_, sWo_, sT0), S("s_add_u32", sWo_, sWo_, WS_WOF + 256 * 2304)]
        for it in range(5):
            r += oloads(bfr[5 * it:5 * it + 2], bfr[5 * it + 2:5 * it + 5], 8192, 8 * 2304, masked=(it == 4))
        return r

    A(waitcnt(vm=0))
    o += wave_flag(F_PT)
    TKA = 160000
    A(V("v_mov_b32", vTA, TKA))
    A(label("B_TOP"))
    o += onlyw(7, [waitcnt(vm=0), V("v_readfirstlane_b32", sT0, vTK), V("v_mov_b32", vTK, sT0), I("ds_write_b32", [vTA, vTK])])
    A(waitcnt(lgkm=0))
    A(I("s_barrier"))
    A(I("ds_read_b32", [t0, vTA]))
    A(V("v_readfirstlane_b32", sT0, t0))
    A(S("s_cmp_ge_u32", sT0, 256))
    A(I("s_cbranch_scc1", ["B_END"]))
    A(S("s_lshr_b32", sRB1, sT0, 3))
    A(S("s_and_b32", sG1, sT0, 7))
    A(S("s_lshl_b32", sT2, sRB1, 10))
    o += poll(vPO, sWS, 1, vP1, sT2)
    o += bout_loads()
    for it in range(5):
        X, W = bfr[5 * it:5 * it + 2], bfr[5 * it + 2:5 * it + 5]
        o += [mfma(bacc[qb][j], W[j], X[qb], 0 if it == 0 else bacc[qb][j]) for j in range(3) for qb in range(2)]
    o += st(11)
    o += ticket()
    for qb in range(2):
        for j in range(3):
            for g in range(4 if j < 2 else 1):
                A(I("ds_write_b128", [vWr, bacc[qb][j][4 * g:4 * g + 4]], f"offset:{qb * 32 * RS + (32 * j + 8 * g) * 4}"))
    sk = lab("O_SK")
    o += [waitcnt(lgkm=0), I("s_barrier"), S("s_cmp_ge_u32", sWV, 6), I("s_cbranch_scc1", [sk])]
    RR = [[v(32 + 12 * w + 4 * q, 4) for q in range(3)] for w in range(7)] + [[v(116, 4), v(10, 4), v(14, 4)]]
    for ww in range(8):
        o += [dsr128(RR[ww][q], vRdw[ww // 3], (ww % 3) * 64 * RS + 16 * q) for q in range(3)]
    for step_ in (1, 2, 4):
        for w in range(0, 8, 2 * step_):
            o += [V("v_add_f32", RR[w][q][r], RR[w][q][r], RR[w + step_][q][r]) for q in range(3) for r in range(4)]
    PKo = v(44, 6)
    o += [V("v_cvt_pk_bf16_f32", PKo[x], RR[0][x // 2][(2 * x) % 4], RR[0][x // 2][(2 * x) % 4 + 1]) for x in range(6)]
    o += [S("s_mul_i32", sT0, sRB1, 64 * 2304), S("s_mul_i32", sT1, sG1, 144), S("s_add_u32", sT0, sT0, sT1),
          S("s_add_u32", sT0, sT0, 1152), bstore4(PKo[0:4], vSt, sOUT, sT0),
          I("buffer_store_dwordx2", [PKo[4:6], vSt, sOUT, sT0], "offen offset:16")]
    A(label(sk))
    A(nop(8))
    A(I("s_branch", ["B_TOP"]))
    A(label("B_END"))
    o += st(12)
    A(S("s_and_b32", sT0, sW, 0xf8))
    A(S("s_lshl_b32", sT0, sT0, 8))
    A(S("s_lshl_b32", sT1, sGR, 2))
    A(S("s_add_u32", sT0, sT0, sT1))
    A(S("s_add_u32", sT0, sT0, WS_FLAG + 4 * F_PT))
    A(V("v_and_b32", t0, 7, vL))
    A(V("v_lshlrev_b32", t0, 8, t0))
    A(V("v_add_u32", t0, sT0, t0))
    o += poll(t0, sWS, 1, vP1)
    o += st(25)
    A(S("s_sub_u32", sT0, 15, sPI))
    A(S("s_cmp_lt_u32", sGR, 4))
    A(S("s_cselect_b32", sT0, sPI, sT0))
    A(S("s_lshl_b32", sT0, sT0, 7))
    A(S("s_and_b32", sT1, sGR, 3))
    A(S("s_lshl_b32", sT1, sT1, 5))
    A(S("s_add_u32", sT0, sT0, sT1))
    A(V("v_and_b32", t0, 31, vL))
    A(V("v_add_u32", t0, sT0, t0))
    A(V("v_mul_u32_u24", t0, 2304, t0))
    A(V("v_lshrrev_b32", t1, 5, vL))
    A(V("v_lshl_add_u32", t0, t1, 4, t0))
    A(S("s_mul_i32", sT0, sCQ, 288))
    A(V("v_add_u32", t0, sT0, t0))
    A(S("s_add_u32", sT0, sPT0, sGR))
    A(S("s_mul_i32", sT0, sT0, 8 * 9216))
    A(S("s_add_u32", L[10], sT0, WS_PT))

    def gather(spiece):
        G_ = [v(32 + 4 * i, 4) for i in range(8)]
        Sm = [v(64 + i) for i in range(8)]
        r = [S("s_lshl_b32", sT0, spiece, 10), S("s_add_u32", sT0, sT0, L[10])]
        for i in range(8):
            r += [bload4(G_[i], vL16, sWS, sT0, 0, LD), S("s_add_u32", sT0, sT0, 9216)]
        for i in range(8):
            for q in range(4):
                if i == 0:
                    r += [V("v_lshlrev_b32", Sm[2 * q], 16, G_[0][q]), V("v_and_b32", Sm[2 * q + 1], 0xffff0000, G_[0][q])]
                else:
                    r += [V("v_lshlrev_b32", t2, 16, G_[i][q]), V("v_and_b32", t3, 0xffff0000, G_[i][q]),
                          V("v_add_f32", Sm[2 * q], Sm[2 * q], t2), V("v_add_f32", Sm[2 * q + 1], Sm[2 * q + 1], t3)]
        D = v(72, 4)
        r += [V("v_cvt_pk_bf16_f32", D[q], Sm[2 * q], Sm[2 * q + 1]) for q in range(4)]
        r += [V("v_permlane32_swap_b32", D[0], D[2]), V("v_permlane32_swap_b32", D[1], D[3]),
              S("s_lshl_b32", sT0, spiece, 5), bstore4(D, t0, sOUT, sT0)]
        return r

    o += gather(sWV)
    A(S("s_mov_b32", L[11], 8))
    o += onlyw(7, gather(L[11]))
    if stamps:
        o += st(13) + [waitcnt(vm=0)] + st(14) + st(63, True)
        A(S("s_lshl_b32", sT0, sW, 3))
        A(S("s_add_u32", sT0, sT0, sWV))
        A(S("s_lshl_b32", sT0, sT0, 8))
        A(S("s_add_u32", sT0, sT0, 200 * MB))
        A(V("v_lshlrev_b32", t0, 2, vL))
        A(I("buffer_store_dword", [vSTP, t0, sWS, sT0], "offen"))
    P.add(o)
    P.out.append(label("F_END"))
    P.out.append(I("s_endpgm"))

    for sl, rt, cb, has_qk in slow_sites:
        P.st = State()
        nb = 1 - cb
        S_ = Sb[cb]
        b = [label(sl), nop(16), nop(4)]
        B = b.append
        b += rowmax(S_, t0, t1)
        B(V("v_max_f32", vDl, 0, t0))
        B(V("v_exp_f32", vF, Neg(vDl)))
        for r in range(16):
            B(V("v_sub_f32", NEGM[r], NEGM[r], vDl))
            B(V("v_sub_f32", S_[r], S_[r], vDl))
            if has_qk:
                B(V("v_sub_f32", Sb[nb][r], Sb[nb][r], vDl))
        B(V("v_mul_f32", vLs, vLs, vF))
        for dt in range(4):
            for r0 in range(0, 16, 8):
                for r in range(8):
                    B(V("v_accvgpr_read_b32", T[8 + r], O[dt][r0 + r]))
                for r in range(8):
                    B(V("v_mul_f32", T[8 + r], T[8 + r], vF))
                for r in range(8):
                    B(V("v_accvgpr_write_b32", O[dt][r0 + r], T[8 + r]))
        b += softmax(cb, False)
        B(nop(4))
        B(I("s_branch", [rt]))
        P.add(b)
    P.out.append(label("F_CODE_END"))
    P.out.append(I("s_endpgm"))
    return kernel_text(name, P, 256, 128, nsgpr=102)
```

```python
import sys
from common import *
import fused_v21 as fused
from gen import build
NAME = "concat_heads__compressed_kv_cla__linear_kernel_hedgehog__prompt_kernel"
if __name__ == "__main__":
    out = sys.argv[1]
    kw = {}
    kw["LD"] = "" if "ldplain" in sys.argv else "sc1"
    ks = [(NAME, 256, 512, 163840, fused.gen_fused(NAME, stamps=("stamps" in sys.argv), exp=" ".join(sys.argv), **kw))]
    build(out, ks)
```

```python
from common import *
from gemm import *
import math

LOG2E = math.log2(math.e)
CSCALE = (128 ** -0.5) * LOG2E
WS_PHIQ = WS_B
WS_KVP = WS_B + 8 * MB
WS_KVF = WS_B + 15 * MB
WS_OF = WS_B + 16 * MB
WS_WOF = WS_B + 20 * MB
WS_FLAG = WS_B + 28 * MB
WOF_CG = 292 * 2304
WS_WA = WS_PART
WS_WH = WS_PART + 4 * MB
WS_PT = WS_PART + 8 * MB
F_PT = 24
BIG = 0x7fffff00
F_B1, F_KV, F_KVR, F_O, F_CTX = 0, 1, 4, 8, 16

THR_LOG2 = 60.0
HEADROOM = 40.0
import sys
LA = 7 if "la7" in sys.argv else 5 if "la5" in sys.argv else 6
ORDER = ["A_x", "A_c_kv", "A_w_q", "A_w_uk", "A_w_uv", "A_w_o", "B_x", "B_wqkv", "B_w_phi", "B_wo", "out", "dbg", "ws"]


def gen_fused(name, stamps=False, exp="", LD="", ST="sc1"):
    P = Prog()
    PTR = {n: s(64 + 2 * i, 2) for i, n in enumerate(ORDER)}
    sW, sWV = s(2), s(3)
    sM = s(4, 2)
    sT0, sT1, sT2 = s(6), s(7), s(90)
    sWS, sA, sB, sC, sD, sDBG = s(8, 4), s(12, 4), s(16, 4), s(20, 4), s(24, 4), s(28, 4)
    sRB1, sG1, sHEAD, sPI, sE, sFB, sSPIN = s(32), s(33), s(34), s(35), s(36), s(37), s(38)
    L = [s(40 + i) for i in range(24)]
    vL, vL16, vFZ, vOne = v(1), v(2), v(3), v(4)
    vSTP = v(127)
    t0, t1, t2, t3, t4 = [v(5 + i) for i in range(5)]
    nlab = [0]

    def lab(p):
        nlab[0] += 1
        return f"{p}{nlab[0]}"

    def mk_srd(dst, nm):
        return [S("s_mov_b32", dst[0], PTR[nm][0]), S("s_mov_b32", dst[1], PTR[nm][1]),
                S("s_mov_b32", dst[2], NBYTES[nm]), S("s_mov_b32", dst[3], 0x20000)]

    def st(i, real=False):
        if not stamps:
            return []
        r = s(92, 2)
        x = [I("s_memrealtime" if real else "s_memtime", [r], cls="smem", dst=r.regs(), src=[]), waitcnt(lgkm=0),
             I("v_writelane_b32", [vSTP, r[0], i])]
        if not real and i < 15:
            x += [I("s_memrealtime", [r], cls="smem", dst=r.regs(), src=[]), waitcnt(lgkm=0), I("v_writelane_b32", [vSTP, r[0], 40 + i])]
        return x

    ecnt = [16]

    def est(ph):
        if not (stamps and ("est" + ph) in exp):
            return None

        def fn():
            ecnt[0] += 1
            return st(ecnt[0] - 1)
        return fn

    def poll(vaddr, srd, expect, vt, soff=0):
        lp, dn = lab("PL"), lab("PD")
        return [S("s_mov_b32", sSPIN, 0), label(lp),
                I("buffer_load_dword", [vt, vaddr, srd, soff], "offen sc1"), waitcnt(vm=0),
                V("v_cmp_ne_u32", VCC, expect, vt), S("s_add_u32", sSPIN, sSPIN, 1),
                I("s_cbranch_vccz", [dn]), S("s_sleep", 8 if "sl8" in exp else 1), S("s_cmp_lt_u32", sSPIN, 200000),
                I("s_cbranch_scc1", [lp]), label(dn)]

    def wg_flag(word):
        return [I("buffer_store_dword", [vOne, vFZ, sWS, sFB], f"offen offset:{4 * word} sc1")]

    def dmal(voff, srd, soff, off=0):
        return I("buffer_load_dwordx4", [voff, srd, soff],
                 ("offen" + (f" offset:{off}" if off else "") + (" " + LD if LD else "") + " lds"))

    o = []
    A = o.append
    A(S("s_cmp_ge_u32", sW, 256))
    A(I("s_cbranch_scc1", ["F_END"]))
    if "latepf" not in exp and "nocodepf" not in exp:
        NPF = 32 if "pf32" in exp else 16
        A(S("s_cmp_ge_u32", sW, NPF))
        A(I("s_cbranch_scc1", ["F_NOPF"]))
        A(I("s_getpc_b64", [s(98, 2)]))
        A(label("F_PC"))
        A(S("s_lshr_b32", sT0, sW, 3))
        A(S("s_and_b32", sT0, sT0, 1))
        A(S("s_lshl_b32", sT0, sT0, 16))
        A(V("v_lshlrev_b32", v(31), 7, v(0)))
        A(V("v_add_u32", v(31), sT0, v(31)))
        A(V("v_min_u32", v(31), "F_CODE_END-F_PC-4", v(31)))
        A(I("global_load_dword", [v(31), v(31), s(98, 2)], "", dst=[]))
        A(label("F_NOPF"))
    A(I("s_load_dwordx16", [s(64, 16), s(0, 2), 0]))
    A(I("s_load_dwordx8", [s(80, 8), s(0, 2), 64]))
    A(I("s_load_dwordx2", [s(88, 2), s(0, 2), 96]))
    if stamps:
        A(V("v_mov_b32", vSTP, 0))
    A(V("v_lshrrev_b32", t0, 6, v(0)))
    A(V("v_and_b32", vL, 63, v(0)))
    A(V("v_readfirstlane_b32", sWV, t0))
    A(V("v_lshlrev_b32", vL16, 4, vL))
    A(S("s_and_b32", sT0, sW, 7))
    A(S("s_lshr_b32", sT1, sW, 3))
    A(S("s_lshr_b32", sRB1, sT0, 1))
    A(S("s_lshl_b32", sRB1, sRB1, 3))
    A(S("s_and_b32", sT2, sT1, 7))
    A(S("s_add_u32", sRB1, sRB1, sT2))
    A(S("s_and_b32", sG1, sT0, 1))
    A(S("s_lshl_b32", sG1, sG1, 2))
    A(S("s_lshr_b32", sT2, sT1, 3))
    A(S("s_add_u32", sG1, sG1, sT2))
    A(S("s_lshl_b32", sHEAD, sT0, 2))
    A(S("s_and_b32", sT2, sT1, 3))
    A(S("s_add_u32", sHEAD, sHEAD, sT2))
    A(S("s_lshr_b32", sPI, sT1, 2))
    A(S("s_lshl_b32", sFB, sW, 8))
    A(S("s_add_u32", sFB, sFB, WS_FLAG))
    A(V("v_mov_b32", vOne, 1))
    A(V("v_mov_b32", t1, BIG))
    A(V("v_cmp_eq_u32", VCC, 0, v(0)))
    A(V("v_cndmask_b32", vFZ, t1, 0, VCC) if False else V("v_cndmask_b32", vFZ, t1, v(0), VCC))

    sSUB, sWQ, sN, sNB, sQ0, sLO4 = s(39), s(91), s(94), s(95), s(96), s(97)
    sM2 = s(98, 2)
    vTD = v(31)
    vFS = v(30)
    vS7 = v(29)
    A(V("v_mov_b32", t2, 0))
    A(V("v_cmp_eq_u32", VCC, 256, v(0)))
    A(V("v_cndmask_b32", vFS, t1, t2, VCC))
    A(V("v_lshlrev_b32", vS7, 7, v(0)))
    A(S("s_lshr_b32", sSUB, sWV, 2))
    A(S("s_and_b32", sWQ, sWV, 3))
    A(S("s_xor_b32", sLO4, sSUB, 1))

    def only(sreg, code, inv=False):
        sk = lab("ONLY")
        return [S("s_cmp_lg_u32" if inv else "s_cmp_eq_u32", sreg, 0), I("s_cbranch_scc1", [sk])] + code + [label(sk)]

    def onlyw(wv, code):
        sk = lab("ONLYW")
        return [S("s_cmp_lg_u32", sWV, wv), I("s_cbranch_scc1", [sk])] + code + [label(sk)]

    def role(sreg):
        return [S("s_cmp_lg_u32", sreg, 0), S("s_cselect_b64", VCC, -1, 0)]

    def w_off(dst, sidx, A=None):
        A = A or o.append
        A(S("s_lshl_b32", sT0, sidx, 6))
        A(V("v_add_u32", t0, sT0, vL))
        A(V("v_mul_u32_u24", t1, 9363, t0))
        A(V("v_lshrrev_b32", t1, 18, t1))
        A(V("v_mul_u32_u24", t2, 28, t1))
        A(V("v_sub_u32", t2, t0, t2))
        A(V("v_mul_u32_u24", t3, 57, t2))
        A(V("v_lshrrev_b32", t3, 9, t3))
        A(V("v_min_u32", t3, 2, t3))
        A(V("v_mul_u32_u24", t4, 1152 - 144, t3))
        A(V("v_lshl_add_u32", t4, t2, 4, t4))
        A(V("v_mul_u32_u24", t1, 3456, t1))
        A(V("v_add_u32", t4, t4, t1))
        A(S("s_mul_i32", sT0, sG1, 144))
        A(V("v_add_u32", dst, sT0, t4))

    def x_off(dst, srow0, stride, A=None):
        A = A or o.append
        A(V("v_lshrrev_b32", t0, 2, vL))
        A(V("v_add_u32", t0, srow0, t0))
        A(V("v_mul_u32_u24", t0, stride, t0))
        A(V("v_lshrrev_b32", t1, 4, vL))
        A(V("v_xor_b32", t1, t1, vL))
        A(V("v_and_b32", t1, 3, t1))
        A(V("v_lshl_add_u32", dst, t1, 4, t0))

    def x_read_consts(dst2, sbase):
        A(V("v_and_b32", t0, 31, vL))
        A(V("v_lshlrev_b32", t1, 6, t0))
        if sbase is not None:
            A(V("v_add_u32", t1, sbase, t1))
        A(V("v_lshrrev_b32", t2, 5, vL))
        A(V("v_bfe_u32", t3, vL, 2, 2))
        A(V("v_xor_b32", t2, t2, t3))
        A(V("v_lshl_add_u32", dst2[0], t2, 4, t1))
        A(V("v_xor_b32", dst2[1], 32, dst2[0]))

    def tr_lane(dst, hshift, rs):
        A(V("v_lshrrev_b32", t0, 5, vL))
        A(V("v_bfe_u32", t1, vL, 2, 2))
        A(V("v_lshl_add_u32", t0, t0, hshift, t1))
        A(V("v_mul_u32_u24", t0, rs, t0))
        A(V("v_bfe_u32", t2, vL, 4, 1))
        A(V("v_lshl_add_u32", t0, t2, 5, t0))
        A(V("v_and_b32", t2, 3, vL))
        A(V("v_lshl_add_u32", dst, t2, 3, t0))


    B1_SUB, B1_BASE, B1_IMG, PHI_BASE = 18432, 16384, 126976, 98304
    bslot = lambda e: B1_BASE + (e % 3) * 2 * B1_SUB
    IMG_RS, PHI_RS = 144, 112
    R_BASE = B1_IMG
    sHD, sSO0, sSO3, sSt3, sLD1, sLD3 = L[0:6]
    sXb, sWb, sPH, sB2 = sA, sB, sC, sD
    vG = [v(114 + i) for i in range(9)]
    vI, vH2 = v(25), v(26)
    A(S("s_and_b32", sT0, sWQ, 1))
    A(S("s_cmp_eq_u32", sT0, 1))
    A(S("s_cselect_b64", sM2, -1, 0))
    A(S("s_cselect_b32", sSt3, 64, 32 * 3456))
    A(S("s_mul_i32", L[6], sT0, 9))
    gsetup = []
    o_save, o = o, gsetup
    A = o.append
    for i in range(9):
        A(S("s_add_u32", sT2, L[6], i))
        w_off(vG[i], sT2, A)
        comp = 1024 * (i if i < 4 else 0 if i == 4 else i - 5)
        if i >= 5:
            A(S("s_lshl_b32", sT0, sRB1, 6))
            A(S("s_add_u32", sT2, sT0, 16 * (i - 5)))
            x_off(t4, sT2, 1152, A)
            A(V("v_cndmask_b32", vG[i], vG[i], t4, sM2))
        if comp:
            A(V("v_subrev_u32", vG[i], comp, vG[i]))
    o = o_save
    A = o.append
    o += gsetup
    A(S("s_lshr_b32", sT1, sWQ, 1))
    A(S("s_mul_i32", sSO0, sT1, 32 * 3456))
    A(S("s_mul_i32", sSO3, sT1, sSt3))
    A(S("s_lshl_b32", sSt3, sSt3, 1))
    A(S("s_mul_i32", L[7], sSt3, 9))
    A(S("s_and_b32", sT0, sG1, 3))
    A(S("s_lshl_b32", sT0, sT0, 1))
    A(S("s_and_b32", sT2, sRB1, 7))
    A(S("s_add_u32", sT0, sT0, sT2))
    A(S("s_cmp_ge_u32", sT0, 9))
    A(S("s_cselect_b32", sT2, 9, 0))
    A(S("s_sub_u32", sT0, sT0, sT2))
    A(S("s_mul_i32", sT0, sT0, 1 if "rotB" in exp else 0))
    A(S("s_mul_i32", sT2, sT0, 64 * 3456))
    A(S("s_add_u32", sSO0, sSO0, sT2))
    A(S("s_mul_i32", sT2, sT0, sSt3))
    A(S("s_add_u32", sSO3, sSO3, sT2))
    A(S("s_mul_i32", sT1, sT1, B1_SUB))
    A(S("s_lshl_b32", sT0, L[6], 10))
    A(S("s_add_u32", sLD1, sT1, sT0))
    A(S("s_add_u32", sLD1, sLD1, 4096))
    A(S("s_add_u32", sT0, sT1, 4096 + 5120))
    A(S("s_cmp_eq_u32", L[6], 0))
    A(S("s_cselect_b32", sLD3, sT0, sT1))
    A(waitcnt(lgkm=0))
    o += st(0) + st(62, True)
    o += mk_srd(sXb, "B_x") + mk_srd(sWb, "B_wqkv") + mk_srd(sC, "A_w_o") + mk_srd(sWS, "ws") + mk_srd(sDBG, "dbg")
    o += [S("s_cmp_eq_u32", L[6], 0), S("s_cselect_b32", sB2[0], sWb[0], sXb[0]), S("s_cselect_b32", sB2[1], sWb[1], sXb[1]),
          S("s_cselect_b32", sB2[2], sWb[2], sXb[2]), S("s_mov_b32", sB2[3], 0x20000)]

    def b1_issue(e):
        d = [S("s_add_u32", M0, sLD1, bslot(e))]
        d += [dma(vG[i], sWb, sSO0, i * 1024) for i in range(4)]
        d.append(S("s_add_u32", M0, sLD1, bslot(e) + 4096))
        d.append(dma(vG[4], sWb, sSO0))
        d.append(S("s_add_u32", M0, sLD3, bslot(e)))
        d += [dma(vG[5 + i], sB2, sSO3, i * 1024) for i in range(4)]
        d += [S("s_add_u32", sSO0, sSO0, 64 * 3456), S("s_add_u32", sSO3, sSO3, sSt3),
              S("s_cmp_ge_u32", sSO0, 9 * 64 * 3456), S("s_cselect_b32", sT0, 9 * 64 * 3456, 0), S("s_cselect_b32", sT1, L[7], 0),
              S("s_sub_u32", sSO0, sSO0, sT0), S("s_sub_u32", sSO3, sSO3, sT1)]
        return d

    def stage_rows(srd, sbytes, n):
        r = [S("s_mul_i32", sT0, sWQ, n * 1024), S("s_add_u32", sT1, sT0, sbytes)]
        for g0 in range(0, n, 4):
            r.append(S("s_add_u32", M0, sT0, R_BASE + g0 * 1024))
            r += [I("buffer_load_dwordx4", [vL16, srd, sT1], f"offen offset:{i * 1024}" + (" nt" if "rnt" in exp else "") + " lds") for i in range(min(4, n - g0))]
            r.append(S("s_add_u32", sT1, sT1, 4096))
        return r

    o += only(sLO4, b1_issue(0) + b1_issue(1))
    A(V("v_subrev_u32", t0, 256, v(0)))
    A(V("v_cmp_gt_u32", VCC, 64, t0))
    A(V("v_lshlrev_b32", t0, 2, t0))
    A(V("v_mov_b32", t1, BIG))
    A(V("v_cndmask_b32", t0, t1, t0, VCC))
    A(V("v_mov_b32", t2, 0))
    svc = [I("buffer_store_dword", [t2, t0, sWS, sFB], "offen sc1"), S("s_mul_i32", sT2, sW, 16 * 1152)] + stage_rows(sC, sT2, 5)
    if "latepf" in exp:
        svc += only(sWQ, [I("s_getpc_b64", [sM2]), label("F_PC"), S("s_lshr_b32", sT0, sW, 3), S("s_lshl_b32", sT0, sT0, 12),
                          V("v_and_b32", t3, 31, vL), V("v_lshlrev_b32", t3, 7, t3), V("v_add_u32", t3, sT0, t3),
                          V("v_min_u32", t3, "F_CODE_END-F_PC-4", t3),
                          I("global_load_dword", [vTD, t3, sM2], "", dst=[])], inv=True)
    o += only(sSUB, svc)
    sTD = s(56, 4)
    sR0, sALT, sR1 = L[8], L[9], L[20]
    A(S("s_add_u32", sT0, sW, 256))
    A(S("s_cmp_eq_u32", sWV, 7))
    A(S("s_cselect_b32", sT2, sW, sT0))
    A(S("s_cselect_b32", sALT, 1, 0))
    A(S("s_cmp_lt_u32", sW, 32))
    A(S("s_cselect_b32", sT0, 6, 99))
    A(S("s_cmp_eq_u32", sWV, sT0))
    A(S("s_cselect_b32", sALT, 1, sALT))
    A(S("s_and_b32", sT0, sT2, 7))
    A(S("s_mul_i32", sR0, sT0, WOF_CG))
    A(S("s_mul_i32", L[22], sT0, 144))
    A(S("s_lshr_b32", sT2, sT2, 3))
    A(S("s_add_u32", sT0, sT2, 256))
    A(S("s_mul_i32", sT0, sT0, 2304))
    A(S("s_add_u32", sR0, sR0, sT0))
    A(S("s_add_u32", sR0, sR0, WS_WOF))
    A(S("s_mul_i32", sT0, sT2, 18))
    A(S("s_mul_i32", sT1, sT2, 144))
    A(S("s_sub_u32", sT1, sT1, 32 * 144 - 8))
    A(S("s_cmp_lt_u32", sT2, 32))
    A(S("s_cselect_b32", sT0, sT0, sT1))
    A(S("s_cselect_b32", sT2, 1, 18))
    A(S("s_mul_i32", sT0, sT0, 1152))
    A(S("s_add_u32", L[22], L[22], sT0))
    BJ = R_BASE + 20480
    A(S("s_and_b32", sT1, sWV, 1))
    A(S("s_mul_i32", L[21], sT1, 3072))
    A(S("s_add_u32", L[21], L[21], BJ))
    alt = mk_srd(sTD, "B_wo") + [S("s_mov_b32", M0, L[21])]
    for i in range(3):
        alt += [V("v_add_u32", t0, 64 * i, vL), V("v_min_u32", t0, 143, t0), V("v_mul_u32_u24", t1, 57, t0), V("v_lshrrev_b32", t1, 9, t1),
                V("v_mul_u32_u24", t2, 9, t1), V("v_sub_u32", t0, t0, t2),
                V("v_lshrrev_b32", t2, 3, t1), V("v_and_b32", t3, 3, t1), V("v_lshl_add_u32", t2, t2, 2, t3),
                V("v_mul_u32_u24", t2, sT2, t2), V("v_bfe_u32", t3, t1, 2, 1), V("v_mad_u32_u24", t2, t3, 9, t2),
                V("v_mul_u32_u24", t2, 1152, t2), V("v_lshl_add_u32", t2, t0, 4, t2), V("v_add_u32", t2, 4096 - 1024 * i, t2),
                S("s_sub_u32", sT0, L[22], 4096) if False else S("s_mov_b32", sT0, L[22]),
                V("v_add_u32", t2, sT0, t2), V("v_subrev_u32", t2, 4096, t2),
                dma(t2, sTD, 0, i * 1024)]
    o += only(sALT, alt)

    def touch_jobs(lst):
        jobs = []
        for nm, per in lst:
            for f0 in range(0, per, 64):
                n = min(64, per - f0)
                jobs.append(mk_srd(sTD, nm) + [S("s_mul_i32", L[23], sW, per * 128), S("s_add_u32", L[23], L[23], f0 * 128),
                                               V("v_min_u32", t0, n - 1, vL), V("v_lshlrev_b32", t0, 7, t0),
                                               I("buffer_load_dword", [vTD, t0, sTD, L[23]], "offen", dst=[])])
        return jobs

    def xtouch_jobs(nm, rows):
        jobs = []
        per = rows // 32
        for r0 in range(0, per, 8):
            n = min(8, per - r0) * 8
            jobs.append(mk_srd(sTD, nm) + [S("s_lshr_b32", L[23], sW, 3), S("s_mul_i32", L[23], L[23], per * 8192),
                                           S("s_and_b32", L[22], sW, 7), S("s_lshl_b32", L[22], L[22], 10),
                                           S("s_add_u32", L[23], L[23], L[22]), S("s_add_u32", L[23], L[23], r0 * 8192),
                                           V("v_min_u32", t0, n - 1, vL), V("v_and_b32", t1, 7, t0), V("v_lshrrev_b32", t0, 3, t0),
                                           V("v_lshlrev_b32", t0, 13, t0), V("v_lshl_add_u32", t0, t1, 7, t0),
                                           I("buffer_load_dword", [vTD, t0, sTD, L[23]], "offen" + (" nt" if "xnt" in exp else ""), dst=[])])
        return jobs

    A(S("s_lshl_b32", sT0, sG1, 2))
    A(S("s_add_u32", sHD, sWQ, sT0))
    A(V("v_bfe_u32", t0, vL, 3, 2))
    A(V("v_and_b32", t1, 3, vL))
    A(V("v_lshl_add_u32", vI, t0, 2, t1))
    A(V("v_bfe_u32", vH2, vL, 2, 1))
    raw_ = [v(88 + i) for i in range(8)] + [v(112), v(113)]
    WP = [v(96, 4), v(100, 4)]
    o += mk_srd(sPH, "B_w_phi")
    A(V("v_mad_u32_u24", t0, vH2, 9, vI))
    A(V("v_lshrrev_b32", t1, 5, vL))
    A(V("v_mul_u32_u24", t2, 8 * 36, t1))
    A(V("v_lshl_add_u32", t2, t0, 1, t2))
    A(S("s_mul_i32", sT0, sHD, 648))
    A(V("v_add_u32", t2, sT0, t2))
    A(V("v_mov_b32", t4, BIG))
    A(V("v_cmp_lt_u32", sM, vI, 9))
    A(V("v_cndmask_b32", t2, t4, t2, sM))
    A(V("v_cmp_eq_u32", sM, t1, 0))
    A(V("v_cndmask_b32", t3, t4, t2, sM))
    for j in range(8):
        A(I("buffer_load_ushort", [raw_[j], t2, sPH, 0], f"offen offset:{36 * j}" if j else "offen"))
    for j in range(2):
        A(I("buffer_load_ushort", [raw_[8 + j], t3, sPH, 0], f"offen offset:{36 * (16 + j)}"))
    kjobs = touch_jobs([("A_c_kv", 64), ("A_w_uk", 128), ("A_w_uv", 128)]) if "notouch" not in exp else []
    if "xt" in exp:
        kjobs = touch_jobs([("A_c_kv", 64)]) + xtouch_jobs("A_w_uk", 512) + xtouch_jobs("A_w_uv", 512)
    if "nokt" in exp:
        kjobs = []
    if "kt0" in exp:
        for e, r in enumerate(kjobs):
            o += onlyw(4 + e % 4, r)
        kjobs = []
    bXa = [LdsAddr([v(16), v(17)]), LdsAddr([v(18), v(19)])]
    bWa = LdsAddr([v(20), v(21)])
    x_read_consts([v(16), v(18)], None)
    tr_lane(t3, 3, 448)
    A(S("s_lshl_b32", sT0, sWV, 6))
    A(V("v_add_u32", v(20), sT0, t3))
    o += bXa[0].setup(v(16)) + bXa[1].setup(v(18)) + bWa.setup(v(20))
    acc = [v(32, 16), v(48, 16)]
    Xf = [[v(64 + (b * 2 + m) * 4, 4) for m in range(2)] for b in range(2)]
    Wf = [v(80, 4), v(84, 4)]

    def b1_reads(e, k4, b):
        sl, ks = bslot(e) + (k4 >> 1) * B1_SUB, k4 & 1
        r = [dsr128(Xf[b][0], *bXa[ks].at(sl))]
        for t in range(2):
            r.append(dsrtr(Wf[b][2 * t:2 * t + 2], *bWa.at(sl + 4096 + (16 * ks + 4 * t) * 448)))
        r.append(dsr128(Xf[b][1], *bXa[ks].at(sl + 2048)))
        return r

    def b1_mfmas(b, first):
        return [mfma(acc[m], Xf[b][m], Wf[b], 0 if first else acc[m]) for m in range(2)]

    A(S("s_sub_u32", sT0, 15, sPI))
    A(S("s_cmp_eq_u32", sSUB, 0))
    A(S("s_cselect_b32", sT2, sPI, sT0))
    A(S("s_add_u32", sN, sT2, 1))
    A(S("s_lshl_b32", sN, sN, 2))
    A(S("s_add_u32", sNB, sT0, 1))
    A(S("s_lshl_b32", sNB, sNB, 2))
    A(S("s_lshl_b32", sQ0, sT2, 7))
    A(S("s_lshl_b32", sT1, sWQ, 5))
    A(S("s_add_u32", sQ0, sQ0, sT1))
    kslot = lambda c: (c % 5) * 32768
    kXg, kWg = [v(10), v(11), v(12), v(13)], [v(14), v(15)]
    sPX, sPW, sO1, sO2, kWM, kWN = L[10:16]
    sCK, sWk, sWv = sA, sB, sC
    A(S("s_lshl_b32", sT0, sPI, 8))
    A(S("s_lshl_b32", sT1, sWQ, 6))
    A(S("s_add_u32", sT2, sT0, sT1))
    x_off(kXg[0], sT2, 1024)
    for i in range(1, 4):
        A(V("v_add_u32", kXg[i], i * (16384 - 1024), kXg[0]))
    A(S("s_lshl_b32", sT0, sWQ, 3))
    A(V("v_lshrrev_b32", t0, 4, vL))
    A(V("v_add_u32", t1, sT0, t0))
    A(V("v_lshlrev_b32", t1, 13, t1))
    A(V("v_lshrrev_b32", t2, 2, vL))
    A(V("v_xor_b32", t2, t2, t0))
    A(V("v_and_b32", t2, 3, t2))
    A(V("v_and_b32", t3, 3, vL))
    A(V("v_lshl_add_u32", t2, t2, 2, t3))
    A(V("v_lshl_add_u32", t1, t2, 4, t1))
    A(S("s_lshl_b32", sT0, sHEAD, 8))
    A(V("v_add_u32", kWg[0], sT0, t1))
    A(V("v_add_u32", kWg[1], 4 * 8192 - 1024, kWg[0]))
    A(S("s_lshl_b32", sPX, sWQ, 12))
    A(S("s_lshl_b32", sPW, sWQ, 11))
    A(S("s_add_u32", sPW, sPW, 16384))
    A(S("s_and_b32", kWM, sWV, 1))
    A(S("s_lshr_b32", kWN, sWV, 1))

    sKC = L[21]
    A(S("s_and_b32", sT0, sHEAD, 3))
    A(S("s_lshl_b32", sT0, sT0, 1))
    A(S("s_add_u32", sKC, sT0, sPI))
    A(S("s_lshl_b32", sKC, sKC, 1))
    A(S("s_and_b32", sKC, sKC, 15))
    A(S("s_mul_i32", sKC, sKC, 1 if "rotK" in exp else 0))

    def kv_issue(c):
        d = [S("s_add_u32", M0, sPX, kslot(c)), S("s_lshl_b32", sO1, sKC, 6)]
        d += [dma(kXg[i], sCK, sO1, i * 1024) for i in range(4)]
        d += [S("s_add_u32", M0, sPW, kslot(c)), S("s_lshl_b32", sO2, sKC, 18)]
        d += [dma(kWg[i], sWk, sO2, i * 1024) for i in range(2)]
        d.append(S("s_add_u32", M0, sPW, kslot(c) + 8192))
        d += [dma(kWg[i], sWv, sO2, i * 1024) for i in range(2)]
        d += [S("s_add_u32", sKC, sKC, 1), S("s_and_b32", sKC, sKC, 15)]
        return d

    vRr, vRs, vRs2, vRrB, vRs3 = v(104), v(105), v(106), v(110), v(111)
    RF = [a(4 * j, 4) for j in range(3)]
    XE = [v(107 + j) for j in range(3)]
    tr_lane(t3, 2, 1152)
    A(S("s_lshr_b32", sT0, sWV, 1))
    A(S("s_mul_i32", sT0, sT0, 288))
    A(S("s_lshl_b32", sT1, kWM, 7))
    A(S("s_add_u32", sT0, sT0, sT1))
    A(S("s_add_u32", sT0, sT0, R_BASE))
    A(V("v_add_u32", vRr, sT0, t3))
    A(S("s_mul_i32", sT0, sWV, 144))
    A(S("s_add_u32", sT0, sT0, R_BASE))
    A(V("v_and_b32", t0, 31, vL))
    A(V("v_lshrrev_b32", t1, 5, vL))
    A(V("v_bfe_u32", t4, vL, 2, 2))
    A(V("v_lshl_add_u32", t4, t1, 2, t4))
    A(V("v_mul_u32_u24", t4, 1152 - 144, t4))
    A(V("v_sub_u32", t4, t3, t4))
    A(S("s_and_b32", sT1, sWV, 1))
    A(S("s_mul_i32", sT1, sT1, 3072))
    A(S("s_add_u32", sT1, sT1, BJ))
    A(V("v_add_u32", vRrB, sT1, t4))
    A(V("v_lshlrev_b32", t4, 7, t1))
    A(V("v_lshl_add_u32", t4, t0, 4, t4))
    A(V("v_mov_b32", t2, BIG))
    A(V("v_cmp_gt_u32", VCC, 8, t0))
    A(V("v_cndmask_b32", vRs2, t2, t4, VCC))
    A(V("v_lshlrev_b32", t4, 8, t1))
    A(V("v_lshl_add_u32", t4, t0, 4, t4))
    A(S("s_lshl_b32", sT1, kWM, 4))
    A(V("v_cmp_gt_u32", VCC, sT1, t0))
    A(V("v_cndmask_b32", vRs3, t2, t4, VCC))
    A(S("s_lshr_b32", sT0, sWV, 1))
    A(S("s_lshl_b32", sT0, sT0, 8))
    A(S("s_add_u32", sT0, sT0, sW))
    A(S("s_lshl_b32", sR1, sT0, 12))
    A(S("s_lshl_b32", sT1, kWM, 11))
    A(S("s_add_u32", sR1, sR1, sT1))
    A(S("s_add_u32", sR1, sR1, WS_WA))
    A(S("s_lshl_b32", sT0, sT0, 9))
    A(S("s_add_u32", sT0, sT0, WS_WH))
    A(V("v_add_u32", vRs3, sT0, vRs3))
    r1 = [dsrtr(RF[j][2 * t:2 * t + 2], vRr, 8 * t * 1152 + 64 * j) for j in range(3) for t in range(2)]
    r1 += [bstore4(RF[0], vL16, sWS, sR1, 0, ST), bstore4(RF[1], vL16, sWS, sR1, 1024, ST), bstore4(RF[2], vRs3, sWS, 0, 0, ST)]
    a2 = [dsrtr(RF[j][2 * t:2 * t + 2], vRrB, 8 * t * 144 + 64 * j) for j in range(3) for t in range(2)]
    a2 += [bstore4(RF[0], vL16, sWS, sR0, 0, ST), bstore4(RF[1], vL16, sWS, sR0, 1024, ST), bstore4(RF[2], vRs2, sWS, sR0, 2048, ST)]
    pk_ = [forget(raw_)] + [V("v_lshl_or_b32", WP[0][p], raw_[2 * p + 1], 16, raw_[2 * p]) for p in range(4)]
    pk_ += [V("v_lshl_or_b32", WP[1][0], raw_[9], 16, raw_[8])] + [V("v_mov_b32", WP[1][p], 0) for p in range(1, 4)]
    extra = {e: [] for e in range(9)}
    extra[1] = only(sSUB, [waitcnt(vm=0)]) + onlyw(4, [I("buffer_atomic_add", [vOne, vFS, sDBG, 0], "offen sc1")])
    extra[2] = r1
    extra[3] = pk_ + only(sALT, a2)
    for e, r in enumerate(kjobs):
        extra[4 if "kt4" in exp else 6] += onlyw(4 + e % 4, r)
    extra[7] = mk_srd(sCK, "A_c_kv") + mk_srd(sWk, "A_w_uk") + mk_srd(sWv, "A_w_uv") + only(sLO4, kv_issue(0))
    hook = only(sLO4, kv_issue(1))
    o += role(sLO4)
    P.add(o)
    gemm4(P, "B1", 9, 4, 3, 9, b1_issue, b1_reads, b1_mfmas, pre=2, rd_span=2, tail_hook=hook, extra=extra,
          first_vm=9 + 10, est=est("B1"), vm_bias={8: 8})
    o = []
    A = o.append
    o += st(1)
    vIW, vQr = v(22), v(23)
    A(V("v_and_b32", t0, 31, vL))
    A(S("s_lshl_b32", sT0, sWV, 5))
    A(V("v_add_u32", t0, sT0, t0))
    A(V("v_mul_u32_u24", t0, IMG_RS, t0))
    A(V("v_lshrrev_b32", t1, 5, vL))
    A(V("v_lshl_add_u32", t0, t1, 3, t0))
    A(V("v_add_u32", vIW, B1_IMG, t0))
    pk = v(64, 16)
    for m in range(2):
        for r in range(8):
            A(V("v_cvt_pk_bf16_f32", pk[8 * m + r], acc[m][2 * r], acc[m][2 * r + 1]))
    A(S("s_cmp_lg_u32", sWV, 7))
    A(I("s_cbranch_scc1", ["B1_NZ"]))
    for r in range(16):
        A(V("v_mov_b32", pk[r], 0))
    A(label("B1_NZ"))
    for m in range(2):
        for g in range(4):
            A(I("ds_write_b64", [vIW, pk[8 * m + 2 * g:8 * m + 2 * g + 2]], f"offset:{(32 * m + 8 * g) * 2}"))
    tr_lane(t3, 3, IMG_RS)
    A(S("s_mul_i32", sT0, sWV, 18 * IMG_RS))
    A(S("s_add_u32", sT0, sT0, B1_IMG))
    A(V("v_add_u32", vQr, sT0, t3))
    A(waitcnt(lgkm=0))
    A(I("s_barrier"))
    o += only(sLO4, kv_issue(2))
    Qf = [[v(64 + (sb * 2 + ks) * 4, 4) for ks in range(2)] for sb in range(2)]
    for sb in range(2):
        for ks in range(2):
            for t in range(2):
                A(dsrtr(Qf[sb][ks][2 * t:2 * t + 2], vQr, (16 * ks + 4 * t) * IMG_RS + 64 * sb))
    for sb in range(2):
        for ks in range(2):
            A(mfma(acc[sb], WP[ks], Qf[sb][ks], 0 if ks == 0 else acc[sb]))
    PHI = [v(64, 12), v(76, 12)]
    E = [v(96 + i) for i in range(18)]
    sL2 = sT2
    A(S("s_mov_b32", sL2, float(LOG2E)))
    for sb in range(2):
        x = acc[sb]
        mx, mn, u0, u1 = t0, t1, t2, t3
        A(V("v_max3_f32", mx, x[0], x[1], x[2]))
        A(V("v_min3_f32", mn, x[0], x[1], x[2]))
        for r in (3, 5, 7):
            A(V("v_max3_f32", mx, mx, x[r], x[r + 1]))
            A(V("v_min3_f32", mn, mn, x[r], x[r + 1]))
        A(V("v_mov_b32", u0, mx))
        A(V("v_mov_b32", u1, mn))
        A(V("v_permlane32_swap_b32", mx, u0))
        A(V("v_permlane32_swap_b32", mn, u1))
        A(V("v_max_f32", mx, mx, u0))
        A(V("v_min_f32", mn, mn, u1))
        A(V("v_mul_f32", mx, sL2, mx))
        A(V("v_mul_f32", mn, sL2, mn))
        for i in range(9):
            A(V("v_fma_f32", E[i], x[i], sL2, Neg(mx)))
            A(V("v_fma_f32", E[9 + i], Neg(x[i]), sL2, mn))
        for i in range(18):
            A(V("v_exp_f32", E[i], E[i]))
        sp, sn = mx, mn
        A(V("v_add_f32", sp, E[0], E[1]))
        A(V("v_add_f32", sn, E[9], E[10]))
        for i in range(2, 9):
            A(V("v_add_f32", sp, sp, E[i]))
            A(V("v_add_f32", sn, sn, E[9 + i]))
        A(V("v_mov_b32", u0, sp))
        A(V("v_mov_b32", u1, sn))
        A(V("v_permlane32_swap_b32", sp, u0))
        A(V("v_permlane32_swap_b32", sn, u1))
        A(V("v_add_f32", sp, sp, u0))
        A(V("v_add_f32", sn, sn, u1))
        A(V("v_rcp_f32", sp, sp))
        A(V("v_rcp_f32", sn, sn))
        for i in range(9):
            A(V("v_mul_f32", E[i], E[i], sp))
            A(V("v_mul_f32", E[9 + i], E[9 + i], sn))
        for p in range(9):
            A(V("v_cvt_pk_bf16_f32", PHI[sb][p], E[2 * p], E[2 * p + 1]))
        for p in range(9, 12):
            A(V("v_mov_b32", PHI[sb][p], 0))
    A(S("s_cmp_ge_u32", sWV, 4))
    A(I("s_cbranch_scc1", ["B1_K"]))
    A(S("s_lshl_b32", sT0, sRB1, 6))
    A(S("s_add_u32", sT0, sT0, sHD))
    A(S("s_mul_i32", sT0, sT0, 3072))
    A(S("s_add_u32", sT0, sT0, WS_PHIQ))
    A(S("s_add_u32", sT1, sT0, 32 * 3072))
    for sb in range(2):
        for F in range(3):
            A(bstore4(PHI[sb][4 * F:4 * F + 4], vL16, sWS, sT1 if sb else sT0, F * 1024, ST))
    A(I("s_branch", ["B1_DONE"]))
    A(label("B1_K"))
    vPW, vPR, vVR, vPR1 = v(24), v(27), v(28), v(114)
    A(S("s_sub_u32", sT0, sWV, 4))
    A(S("s_mul_i32", sT0, sT0, 64 * PHI_RS))
    A(S("s_add_u32", sT0, sT0, PHI_BASE))
    A(V("v_and_b32", t0, 31, vL))
    A(V("v_mul_u32_u24", t0, PHI_RS, t0))
    A(V("v_lshrrev_b32", t1, 5, vL))
    A(V("v_mul_u32_u24", t2, 48, t1))
    A(V("v_add3_u32", vPW, t0, t2, sT0))
    for sb in range(2):
        for F in range(3):
            A(I("ds_write_b128", [vPW, PHI[sb][4 * F:4 * F + 4]], f"offset:{sb * 32 * PHI_RS + 16 * F}"))
    A(V("v_bfe_u32", t2, vL, 2, 2))
    A(V("v_lshl_add_u32", t0, t1, 3, t2))
    A(V("v_mul_u32_u24", t0, PHI_RS, t0))
    A(V("v_and_b32", t2, 1, vL))
    A(V("v_mul_u32_u24", t2, 48, t2))
    A(V("v_add_u32", t0, t0, t2))
    A(V("v_bfe_u32", t2, vL, 1, 1))
    A(V("v_lshl_add_u32", t0, t2, 3, t0))
    A(V("v_add_u32", t0, sT0, t0))
    A(V("v_bfe_u32", t2, vL, 4, 1))
    A(V("v_lshl_add_u32", vPR, t2, 4, t0))
    A(V("v_add_u32", vPR1, 32, t0))
    A(V("v_min_u32", t0, 8, vI))
    A(V("v_mad_u32_u24", t0, vH2, 9, t0))
    A(S("s_mul_i32", sT0, sWV, 18))
    A(S("s_add_u32", sT0, sT0, 72))
    A(V("v_add_u32", t0, sT0, t0))
    A(V("v_mul_u32_u24", t0, IMG_RS, t0))
    A(V("v_lshl_add_u32", t0, t1, 4, t0))
    A(V("v_add_u32", vVR, B1_IMG, t0))
    Vf = [v(96 + 4 * ks, 4) for ks in range(4)]
    Af = [[a(64 + (T * 4 + ks) * 4, 4) for ks in range(4)] for T in range(2)]
    for ks in range(4):
        A(dsr128(Vf[ks], vVR, 32 * ks))
    for T in range(2):
        for ks in range(4):
            for t in range(2):
                A(dsrtr(Af[T][ks][2 * t:2 * t + 2], vPR1 if T else vPR, (16 * ks + 4 * t) * PHI_RS))
    A(V("v_cmp_eq_u32", sM, vI, 9))
    A(V("v_mov_b32", t4, 0x3f803f80))
    for ks in range(4):
        for r in range(4):
            A(V("v_cndmask_b32", Vf[ks][r], Vf[ks][r], t4, sM))
    for T in range(2):
        for ks in range(4):
            A(mfma(acc[T], Af[T][ks], Vf[ks], 0 if ks == 0 else acc[T]))
    A(S("s_lshl_b32", sT0, sRB1, 5))
    A(S("s_add_u32", sT0, sT0, sHD))
    A(S("s_mul_i32", sT0, sT0, 6144))
    A(S("s_add_u32", sT0, sT0, WS_KVP))
    A(S("s_add_u32", sT1, sT0, 4096))
    for g in range(6):
        A(bstore4(acc[g // 4][4 * (g % 4):4 * (g % 4) + 4], vL16, sWS, sT1 if g >= 4 else sT0, (g % 4) * 1024, ST))
    A(label("B1_DONE"))
    o += st(2)

    kXa = [LdsAddr([v(16), v(17), v(18)]), LdsAddr([v(19), v(20), v(21)])]
    kWa = LdsAddr([v(22), v(23), v(24)])
    A(S("s_lshl_b32", sT2, kWM, 13))
    x_read_consts([v(16), v(19)], sT2)
    tr_lane(t3, 3, 256)
    A(V("v_xor_b32", t1, kWN, t1))
    A(V("v_lshl_add_u32", v(22), t1, 6, t3))
    o += kXa[0].setup(v(16)) + kXa[1].setup(v(19)) + kWa.setup(v(22))
    kacc = [[a((m * 2 + j) * 16, 16) for j in range(2)] for m in range(4)]
    kXf = [[v(32 + (b * 4 + m) * 4, 4) for m in range(4)] for b in range(2)]
    kWf = [[v(64 + (b * 2 + j) * 4, 4) for j in range(2)] for b in range(2)]

    def kv_reads(c, ks, b):
        sl = kslot(c)
        r = [dsr128(kXf[b][0], *kXa[ks].at(sl))]
        for j in range(2):
            for t in range(2):
                r.append(dsrtr(kWf[b][j][2 * t:2 * t + 2], *kWa.at(sl + 16384 + j * 8192 + (16 * ks + 4 * t) * 256)))
        for m in range(1, 4):
            r.append(dsr128(kXf[b][m], *kXa[ks].at(sl + m * 2048)))
        return r

    def kv_mfmas(b, first):
        r = []
        for m in range(4):
            r.append(mfma(kacc[m][0], kWf[b][0], kXf[b][m], 0 if first else kacc[m][0]))
            r.append(mfma(kacc[m][1], kXf[b][m], kWf[b][1], 0 if first else kacc[m][1]))
        return r

    QS = 49152
    qslot = lambda c: 16384 + ((c + 1) % 3) * QS
    qXg = [v(123), v(124), v(125), v(126)]
    sQX, sQW, sQWo = L[2], L[3], L[4]
    qsetup = []
    o_save, o = o, qsetup
    A = o.append
    A(S("s_mul_i32", L[0], sPI, 128))
    A(S("s_mul_i32", L[1], sPI, -128))
    A(V("v_mov_b32", t2, L[1]))
    A(V("v_add_u32", t2, 15 * 128, t2))
    A(V("v_mov_b32", t3, L[0]))
    A(V("v_cmp_gt_u32", sM, 2, sWQ))
    A(V("v_cndmask_b32", t3, t2, t3, sM))
    A(V("v_mov_b32", t2, sWQ))
    A(V("v_and_b32", t2, 1, t2))
    A(V("v_lshl_add_u32", t3, t2, 6, t3))
    A(V("v_lshrrev_b32", t0, 3, vL))
    A(V("v_add_u32", t0, t3, t0))
    A(V("v_mul_u32_u24", t0, 1152, t0))
    A(V("v_lshrrev_b32", t1, 4, vL))
    A(V("v_xor_b32", t1, t1, vL))
    A(V("v_and_b32", t1, 7, t1))
    A(V("v_lshl_add_u32", qXg[0], t1, 4, t0))
    A(V("v_xor_b32", t1, 4, t1))
    A(V("v_lshl_add_u32", qXg[1], t1, 4, t0))
    A(V("v_add_u32", qXg[1], 8 * 1152 - 1024, qXg[1]))
    A(V("v_add_u32", qXg[2], 16 * 1152 - 2048, qXg[0]))
    A(V("v_add_u32", qXg[3], 16 * 1152 - 2048, qXg[1]))
    A(S("s_mul_i32", sQX, sWQ, 8192))
    A(S("s_mul_i32", sQW, sWQ, 4096))
    A(S("s_mul_i32", sQWo, sWQ, 8 * 8192))
    o = o_save
    A = o.append
    sXq, sWqq = sA, sB

    def q_issue(c):
        d = []
        for hf in range(2):
            d += [S("s_add_u32", M0, sQX, qslot(c) + 4096 * hf), S("s_mov_b32", sO1, 128 * c + hf * 32 * 1152)]
            d += [dma(qXg[i], sXq, sO1, i * 1024) for i in range(4)]
        for hf in range(2):
            d += [S("s_add_u32", M0, sQW, qslot(c) + 32768 + 2048 * hf), S("s_add_u32", sO2, sQWo, (64 * c + 8 * hf) * 8192)]
            d += [dma(kWg[i], sWqq, sO2, i * 1024) for i in range(2)]
        return d

    vPZ, vPZr = v(80), v(81)
    A(V("v_mov_b32", vPZ, 0))
    extra = {e: [] for e in range(16)}
    extra[1] = qsetup
    extra[3] = only(sSUB, [waitcnt(vm=0)])
    extra[4] = onlyw(4, [I("buffer_store_dword", [vOne, vFS, sWS, sFB], f"offen offset:{4 * F_B1} sc1")])
    if "l2q" in exp:
        for e, r in enumerate(touch_jobs([("A_x", 72)]) + xtouch_jobs("A_w_q", 576)):
            extra[2] += onlyw(5 + e % 3, r)
        for e in range(9):
            r = mk_srd(sTD, "A_x") + [S("s_lshr_b32", L[23], sW, 3), S("s_mul_i32", L[23], L[23], 576 * 128),
                                      S("s_add_u32", L[23], L[23], e * 8192), V("v_lshlrev_b32", t0, 7, vL),
                                      I("buffer_load_dword", [vTD, t0, sTD, L[23]], "offen", dst=[])]
            ep = (6 + e // 2) if "l2thin" in exp else (8 + 2 * (e // 5))
            extra[ep] += onlyw(5 + e % 3, r)
    elif "notouch" not in exp:
        qj = touch_jobs([("A_x", 72), ("A_w_q", 144)])
        for e, r in enumerate(qj):
            extra[5 + 3 * (e // 3)] += onlyw(5 + e % 3, r)
    okz = lab("Z_OK")
    extra[7] += onlyw(4, [I("buffer_load_dword", [vPZr, vPZ, sDBG, 0], "offen sc1", dst=[])])
    extra[11] += onlyw(4, [waitcnt(vm=0), V("v_cmp_ne_u32", VCC, 256, vPZr), nop(2), I("s_cbranch_vccz", [okz])] +
                       poll(vPZ, sDBG, 256, vPZr) + [label(okz), S("s_mov_b64", VCC, 0)])
    vPB, vPBr = v(82), v(83)
    A(V("v_and_b32", vPB, 255, v(0)))
    A(V("v_lshlrev_b32", vPB, 8, vPB))
    A(V("v_add_u32", vPB, WS_FLAG + 4 * F_B1, vPB))
    okb = lab("B_OK")
    extra[12] += only(sSUB, [I("buffer_load_dword", [vPBr, vPB, sWS, 0], "offen sc1", dst=[])])
    extra[14] += only(sSUB, [waitcnt(vm=0), V("v_cmp_ne_u32", VCC, 1, vPBr), nop(2), I("s_cbranch_vccz", [okb])] +
                      poll(vPB, sWS, 1, vPBr) + [label(okb), S("s_mov_b64", VCC, 0)])
    extra[14] += mk_srd(sXq, "A_x") + mk_srd(sWqq, "A_w_q") + only(sSUB, q_issue(0))
    hook = only(sSUB, q_issue(1))
    o += role(sLO4)
    P.add(o)
    gemm4(P, "KV", 16, 2, 5, 8, kv_issue, kv_reads, kv_mfmas, pre=3, tail_hook=hook, extra=extra, est=est("KV"))
    o = []
    A = o.append
    o += st(3)
    kK, kV0, kV1 = L[18], L[19], L[20]
    A(S("s_lshl_b32", sT0, sHEAD, 19))
    A(S("s_lshl_b32", sT1, sPI, 16))
    A(S("s_add_u32", sT0, sT0, sT1))
    A(S("s_lshl_b32", sT1, kWM, 15))
    A(S("s_add_u32", sT0, sT0, sT1))
    vSTm = [v(10), v(11), v(12), v(13)]
    A(V("v_add_u32", vSTm[0], sT0, vL16))
    for m in range(1, 4):
        A(V("v_add_u32", vSTm[m], 8192 * m, vSTm[0]))
    A(S("s_lshl_b32", kK, kWN, 11))
    A(S("s_lshl_b32", kV0, kWN, 10))
    A(S("s_add_u32", kK, kK, WS_KF))
    A(S("s_add_u32", kV0, kV0, WS_VF))
    A(S("s_add_u32", kV1, kV0, 4096))
    TT = [v(96 + i) for i in range(16)]
    CV = [v(112 + i) for i in range(8)]
    PKs = [v(28, 4), v(112, 4)]

    def kv_st(n):
        tile, b = n // 2, n % 2
        m, j = tile // 2, tile % 2
        src = a(16 * tile + 8 * b, 8)
        pk = PKs[0]
        r = [V("v_accvgpr_read_b32", CV[q], src[q]) for q in range(8)]
        r += [V("v_cvt_pk_bf16_f32", pk[q], CV[2 * q], CV[2 * q + 1]) for q in range(4)]
        KST = "" if "kvplain" in exp else ST
        if j == 0:
            r.append(bstore4(pk, vSTm[m], sWS, kK, b * 1024, KST))
        else:
            r.append(bstore4(pk, vSTm[m], sWS, kV1 if b else kV0, 0, KST))
        return r

    o += only(sSUB, [waitcnt(vm=24)])
    for n in (12, 13):
        o += kv_st(n)
    o += st(4)

    qXa = [v(16), v(17), v(18), v(19)]
    qWa = [v(20), v(21)]
    A(S("s_lshr_b32", sT2, sWV, 1))
    A(S("s_lshl_b32", sT2, sT2, 13))
    A(S("s_add_u32", sT2, sT2, qslot(0)))
    A(V("v_and_b32", t0, 31, vL))
    A(V("v_lshlrev_b32", t1, 7, t0))
    A(V("v_add_u32", t1, sT2, t1))
    A(V("v_lshrrev_b32", t2, 5, vL))
    A(V("v_bfe_u32", t3, vL, 1, 3))
    A(V("v_xor_b32", t2, t2, t3))
    A(V("v_lshl_add_u32", qXa[0], t2, 4, t1))
    for ks in range(1, 4):
        A(V("v_xor_b32", qXa[ks], ks << 5, qXa[0]))
    tr_lane(t3, 3, 256)
    A(S("s_and_b32", sT0, sWV, 1))
    A(S("s_lshl_b32", sT0, sT0, 1))
    A(V("v_xor_b32", t1, sT0, t1))
    A(V("v_lshl_add_u32", qWa[0], t1, 6, t3))
    A(V("v_add_u32", qWa[0], qslot(0) + 32768, qWa[0]))
    A(V("v_xor_b32", qWa[1], 64, qWa[0]))
    Sb = [v(32, 16), v(48, 16)]
    NEGM = v(64, 16)
    Pb = [v(80, 8), v(88, 8)]
    T = TT
    O = [a(16 * i, 16) for i in range(4)]
    Q = [a(64 + 4 * i, 4) for i in range(8)]
    FR = [a(96 + 4 * i, 4) for i in range(8)]
    qacc = [[v(32 + 16 * (2 * m + j), 16) for j in range(2)] for m in range(2)]
    qXf = [[v(96 + (2 * b + m) * 4, 4) for m in range(2)] for b in range(2)]
    qWf = [[FR[2 * b + j] for j in range(2)] for b in range(2)]

    def q_reads(c, ks, b):
        r = []
        if ks == 0 and c > 0:
            r += [V("v_add_u32", x, qslot(c) - qslot(c - 1), x) for x in qXa + qWa]
        r.append(dsr128(qXf[b][0], qXa[ks]))
        for j in range(2):
            for t in range(2):
                r.append(dsrtr(qWf[b][j][2 * t:2 * t + 2], qWa[j], (16 * ks + 4 * t) * 256))
        r.append(dsr128(qXf[b][1], qXa[ks], 4096))
        return r

    def q_mfmas(b, first):
        return [mfma(qacc[m][j], qWf[b][j], qXf[b][m], 0 if first else qacc[m][j]) for m in range(2) for j in range(2)]

    ASLOT = 32768
    sK, sV = sC, sD
    sKO, sVO, sWRA, sRDA, sCNT, sREM = L[0:6]
    sMk = [s(56 + 2 * i, 2) for i in range(4)]
    vKVg, vAc, vAn = v(124), v(125), v(126)
    zo = [V("v_accvgpr_write_b32", O[dt][r], 0) for dt in range(4) for r in range(16)]
    todo = [n for n in range(16) if n not in (12, 13)]
    extra = {e: [] for e in range(9)}
    for i, n in enumerate(todo):
        extra[i // 4] += kv_st(n)
    extra[4] = zo[:32] + only(sLO4, [waitcnt(vm=0)]) + only(sSUB, [waitcnt(vm=12)])
    extra[5] = onlyw(0, wg_flag(F_KV)) + zo[32:]
    vP0, vP1 = v(120), v(121)
    o += [S("s_and_b32", sT0, sW, 31), V("v_and_b32", vP0, 3 if "stag" in exp else 7, vL), V("v_lshlrev_b32", vP0, 5, vP0),
          V("v_add_u32", vP0, sT0, vP0), V("v_lshlrev_b32", vP0, 8, vP0), V("v_add_u32", vP0, WS_FLAG + 4 * F_KV, vP0)]
    extra[7] = onlyw(0, [I("buffer_load_dword", [vP1, vP0, sWS, 0], "offen sc1", dst=[])])
    okl = lab("Q_OK")
    pre = onlyw(0, [waitcnt(vm=0), V("v_cmp_ne_u32", VCC, 1, vP1), nop(2), I("s_cbranch_vccz", [okl])] +
                poll(vP0, sWS, 1, vP1) + [label(okl), S("s_mov_b64", VCC, 0)])
    sGR, sCQ = L[6], L[7]
    sUN, sU0, sWH_, sW1, sW2, sW3, sKB = s(20), s(21), s(22), s(23), s(24), s(25), s(26)

    def wblock(dst, i):
        return [S("s_add_u32", dst, sCQ, i), S("s_and_b32", dst, dst, 3), S("s_lshl_b32", sT1, sGR, 2), S("s_add_u32", dst, dst, sT1),
                S("s_lshl_b32", sT1, sCQ, 5), S("s_add_u32", dst, dst, sT1), S("s_lshl_b32", dst, dst, 15),
                S("s_add_u32", dst, dst, WS_WA)]

    A(S("s_lshr_b32", sGR, sHEAD, 2))
    A(S("s_and_b32", sCQ, sHEAD, 3))
    o += wblock(sW1, 1) + wblock(sW2, 2) + wblock(sW3, 3) + wblock(sWH_, sWQ)
    A(S("s_sub_u32", sWH_, sWH_, WS_WA))
    A(S("s_lshr_b32", sWH_, sWH_, 3))
    A(S("s_add_u32", sWH_, sWH_, WS_WH))
    A(S("s_sub_u32", sWH_, sWH_, sPX))
    A(S("s_lshr_b32", sU0, sNB, 1))
    A(S("s_lshl_b32", sKB, sHEAD, 19))
    hook = [V("v_add_u32", vKVg, sPX, vL16)]
    H = hook.append
    H(S("s_lshl_b32", sT0, sSUB, 15))
    H(S("s_add_u32", sT0, sT0, sPX))
    H(S("s_add_u32", sT0, sT0, 2 * ASLOT))
    H(S("s_mov_b32", M0, sT0))
    H(S("s_lshl_b32", sT1, sSUB, 14))
    H(S("s_add_u32", sT1, sT1, sKB))
    H(S("s_add_u32", sT1, sT1, WS_KF + 8192))
    for i in range(4):
        H(dmal(vKVg, sWS, sT1, i * 1024))
    H(S("s_add_u32", M0, sT0, 16384))
    H(S("s_cmp_ge_u32", sWQ, 2))
    H(S("s_cselect_b32", sT1, WS_VF - 8192, WS_KF))
    H(S("s_cmp_eq_u32", sSUB, 1))
    H(S("s_cselect_b32", sT1, WS_VF + 8192, sT1))
    H(S("s_add_u32", sT1, sT1, sKB))
    for i in range(4):
        H(dmal(vKVg, sWS, sT1, i * 1024))
    hook += wblock(sT0, 0)
    H(S("s_lshl_b32", sT1, sSUB, 14))
    H(S("s_add_u32", sT0, sT0, sT1))
    H(S("s_add_u32", sT1, sT1, sPX))
    H(S("s_add_u32", M0, sT1, 131072))
    for i in range(4):
        H(dmal(vKVg, sWS, sT0, i * 1024))

    def kvdma():
        d = [S("s_mov_b32", M0, sWRA)]
        for i in range(4):
            d.append(dmal(vKVg, sWS, sKO, i * 1024))
        d.append(S("s_add_u32", M0, sWRA, 16384))
        for i in range(4):
            d.append(dmal(vKVg, sWS, sVO, i * 1024))
        d += [S("s_add_u32", sKO, sKO, 16384), S("s_add_u32", sVO, sVO, 16384), S("s_add_u32", sWRA, sWRA, ASLOT),
              S("s_and_b32", sWRA, sWRA, 4 * ASLOT - 1), S("s_add_u32", sUN, sUN, 1),
              S("s_cmp_eq_u32", sUN, sU0), S("s_cselect_b32", sKO, sWH_, sKO),
              S("s_sub_u32", sT0, sUN, 1), S("s_cmp_eq_u32", sT0, sU0), S("s_cselect_b32", sKO, sW1, sKO),
              S("s_sub_u32", sT0, sUN, 2), S("s_cmp_eq_u32", sT0, sU0), S("s_cselect_b32", sKO, sW2, sKO),
              S("s_add_u32", sT0, sKO, 16384), S("s_cmp_gt_u32", sUN, sU0), S("s_cselect_b32", sVO, sT0, sVO)]
        return d

    def guarded_dma():
        lb = lab("A_ND")
        return [S("s_cmp_lg_u32", sSUB, 0), I("s_cbranch_scc1", [lb])] + kvdma() + [label(lb)]

    H(S("s_mov_b32", sWRA, sPX))
    H(S("s_add_u32", sKO, sKB, WS_KF + 5 * 8192))
    H(S("s_add_u32", sVO, sKB, WS_VF + 3 * 8192))
    H(S("s_mov_b32", sUN, 2))
    o += role(sSUB)
    P.add(o)
    gemm4(P, "Q", 9, 4, 3, 12, q_issue, q_reads, q_mfmas, pre=2, extra=extra, tail_hook=hook, pre_hook=pre, est=est("Q"),
          first_vm=12 + 2)
    o = []
    A = o.append
    o += st(5)
    sCc = sT1
    A(S("s_mov_b32", sCc, float(CSCALE)))
    A(S("s_lshr_b32", sT0, sWV, 1))
    A(S("s_lshl_b32", sT0, sT0, 14))
    A(S("s_and_b32", sT2, sWV, 1))
    A(S("s_lshl_b32", sT2, sT2, 12))
    A(S("s_add_u32", sT0, sT0, sT2))
    A(V("v_add_u32", t0, sT0, vL16))
    A(I("s_barrier"))
    for m in range(2):
        for j in range(2):
            x = qacc[m][j]
            for r in range(16):
                A(V("v_mul_f32", x[r], sCc, x[r]))
            for r in range(8):
                A(V("v_cvt_pk_bf16_f32", x[r], x[2 * r], x[2 * r + 1]))
            for b in range(2):
                A(I("ds_write_b128", [t0, x[4 * b:4 * b + 4]], f"offset:{m * 8192 + (2 * j + b) * 1024}"))
    A(S("s_lshl_b32", sT0, sWV, 13))
    A(V("v_add_u32", v(122), sT0, vL16))
    o += st(6)

    vPC, vP1 = v(20), v(21)
    sXD = s(27)
    A(S("s_mov_b32", sXD, 1))
    vWB = [v(22), v(23), v(24), v(25)]
    vWHf = v(26)
    A(S("s_lshl_b32", sT0, sPI, 5))
    A(S("s_add_u32", sT0, sT0, sGR))
    A(S("s_lshl_b32", sT0, sT0, 8))
    A(S("s_lshl_b32", sT1, sWV, 2))
    A(S("s_add_u32", sT0, sT0, sT1))
    A(S("s_add_u32", sT0, sT0, WS_FLAG + 4 * F_CTX))
    A(V("v_and_b32", t0, 3, vL))
    A(V("v_lshlrev_b32", t0, 11, t0))
    A(V("v_add_u32", vPC, sT0, t0))
    A(V("v_add_u32", vWB[0], 131072, vL16))
    sSL = L[8]
    for i in range(1, 5):
        A(S("s_add_u32", sT0, sU0, (i % 4) + 2))
        A(S("s_and_b32", sT0, sT0, 3))
        A(S("s_lshl_b32", sT0, sT0, 15))
        if i < 4:
            A(V("v_add_u32", vWB[i], sT0, vL16))
        if i == 3:
            A(S("s_mov_b32", sSL, sT0))
    A(V("v_and_b32", t0, 15, vL))
    A(V("v_lshrrev_b32", t1, 5, vL))
    A(V("v_lshlrev_b32", t1, 8, t1))
    A(V("v_lshl_add_u32", t0, t0, 4, t1))
    A(V("v_add_u32", vWHf, sT0, t0))
    XA = [a(64 + 4 * i, 4) for i in range(8)] + [a(4 * i, 4) for i in range(16)] + [a(96 + 4 * i, 4) for i in range(8)]

    vLs, vThr, vLB, vD, vNINF = v(10), v(11), v(12), v(13), v(14)
    vB = [v(15), v(16)]
    vF, vDl, vFW = v(17), v(18), v(19)
    A(V("v_mov_b32", vLs, 0))
    A(V("v_mov_b32", vThr, float(2.0 ** THR_LOG2)))
    A(V("v_mov_b32", vNINF, 0xff800000))
    A(V("v_and_b32", t0, 31, vL))
    A(V("v_lshrrev_b32", t1, 5, vL))
    A(V("v_lshlrev_b32", t1, 2, t1))
    A(V("v_sub_u32", t0, t0, t1))
    A(V("v_add_u32", vD, sQ0, t0))
    A(S("s_lshl_b32", sT0, sWV, 2))
    A(V("v_mov_b32", t0, sT0))
    A(V("v_mov_b32", t1, BIG))
    A(V("v_cmp_eq_u32", VCC, 0, vL))
    A(V("v_cndmask_b32", vFW, t1, t0, VCC))

    def wave_flag(word):
        return [I("buffer_store_dword", [vOne, vFW, sWS, sFB], f"offen offset:{4 * word} sc1")]

    if "prio" in exp:
        o += only(sSUB, [S("s_setprio", 1)])
    A(waitcnt(vm=0, lgkm=0))
    A(I("s_barrier"))
    vA = vAc
    A(V("v_add_u32", vA, 2 * ASLOT, vL16))
    for db in range(8):
        A(dsr128(Q[db], v(122), db * 1024))
    for db in range(8):
        A(dsr128(FR[db], vA, 16384 + db * 1024))
    A(waitcnt(lgkm=8))
    A(I("s_barrier"))
    o += guarded_dma()
    for db in range(8):
        A(mfma(Sb[0], FR[db], Q[db], 0 if db == 0 else Sb[0]))
    A(S("s_mov_b32", sRDA, 2 * ASLOT))

    def frag_read(n, half):
        off = 16384 + half * 8192 + n * 1024 if n < 8 else half * 8192 + (n - 8) * 1024
        return dsr128(FR[n % 8], vA, off)

    def tail_pair(p, q0, q1, P_):
        r = []
        if p == 0:
            r.append(V("v_mov_b32", vB[0], q0))
            r.append(V("v_mov_b32", vB[1], q1))
        else:
            r.append(V("v_add_f32", vB[0], vB[0], q0))
            r.append(V("v_add_f32", vB[1], vB[1], q1))
        r.append(V("v_cvt_pk_bf16_f32", P_[p], q0, q1))
        return r

    def mask_ops(S_):
        r = []
        for g in range(4):
            for k in range(4):
                r.append(V("v_cmp_lt_i32", sMk[k], vD, 8 * g + k))
            for k in range(4):
                r.append(V("v_cndmask_b32", S_[4 * g + k], S_[4 * g + k], vNINF, sMk[k]))
        r.append(V("v_subrev_u32", vD, 32, vD))
        return r

    def softmax(cb, masked):
        S_, P_ = Sb[cb], Pb[cb]
        r = mask_ops(S_) if masked else []
        for p in range(8):
            r.append(V("v_exp_f32", T[(2 * p) % 8], S_[2 * p]))
            r.append(V("v_exp_f32", T[(2 * p + 1) % 8], S_[2 * p + 1]))
            if p > 0:
                r += tail_pair(p - 1, T[(2 * p - 2) % 8], T[(2 * p - 1) % 8], P_)
        r += tail_pair(7, T[6], T[7], P_)
        r.append(V("v_add_f32", vB[0], vB[0], vB[1]))
        return r

    def rowmax(S_, dst, tmp):
        r = [V("v_max3_f32", dst, S_[0], S_[1], S_[2])]
        for q in range(3, 15, 2):
            r.append(V("v_max3_f32", dst, dst, S_[q], S_[q + 1]))
        r += [V("v_max_f32", dst, dst, S_[15]), V("v_mov_b32", tmp, dst), V("v_permlane32_swap_b32", dst, tmp),
              V("v_max_f32", dst, dst, tmp), V("v_add_f32", dst, HEADROOM, dst)]
        return r

    slow_sites = []

    def step(half, has_pv, has_qk, masked, ctl=()):
        cb, nb = half, 1 - half
        M, frs = [], []
        if has_pv:
            for vb in range(2):
                for dt in range(4):
                    M.append(mfma(O[dt], FR[(4 * vb + dt) % 8], Pb[nb][4 * vb:4 * vb + 4], O[dt]))
                    frs.append(4 * vb + dt)
        if has_qk:
            for db in range(8):
                M.append(mfma(Sb[nb], FR[db], Q[db], NEGM if db == 0 else Sb[nb]))
                frs.append(8 + db)
        n = len(M)
        seq = [(x, half) for x in frs] + [(x, 1 - half) for x in range(16)]
        gaps = [[] for _ in M]
        g3 = [[] for _ in M]
        for j in range(n):
            if half == 1 and j + LA == n:
                gaps[j].append(V("v_add_u32", vA, sRDA, vL16))
            gaps[j].append(frag_read(*seq[j + LA]))
            if j % 2 == 1 and j + 1 < n:
                g3[j].append(waitcnt(lgkm=LA - 2))
        if has_pv:
            gaps[0].append(V("v_add_f32", vLs, vLs, vB[0]))
        if half == 0:
            gaps[0] += [waitcnt(vm=8), I("s_barrier")]
            gaps[1] += guarded_dma()
        else:
            gaps[0] += [S("s_add_u32", sRDA, sRDA, ASLOT), S("s_and_b32", sRDA, sRDA, 4 * ASLOT - 1)]
            gaps[1] += list(ctl)
        smx = softmax(cb, masked) + [V("v_cmp_gt_f32", VCC, vB[0], vThr)]
        g2 = interleave(M, smx, 2 if has_pv else 1, n - 1)
        sl, rt = lab("A_SLOW"), lab("A_RET")
        g3[n - 1] += [I("s_cbranch_vccnz", [sl]), label(rt)]
        slow_sites.append((sl, rt, cb, has_qk))
        return weave(M, gaps, g2, g3)

    for n in range(LA):
        A(dsr128(FR[n], vA, n * 1024))
    o += mask_ops(Sb[0]) + rowmax(Sb[0], vDl, t1)
    for r in range(16):
        A(V("v_sub_f32", NEGM[r], 0, vDl))
    for r in range(16):
        A(V("v_sub_f32", Sb[0][r], Sb[0][r], vDl))
    o += step(0, False, True, False) + step(1, True, True, True)
    if "stag" in exp:
        o += onlyw(4, [V("v_add_u32", v(120), 128 * 256, v(120))] + poll(v(120), sWS, 1, v(121)))
    A(S("s_sub_u32", sREM, sNB, sN))
    A(S("s_lshr_b32", sREM, sREM, 1))
    A(S("s_add_u32", sREM, sREM, 1))
    A(S("s_cmp_eq_u32", sN, 4))
    A(I("s_cbranch_scc1", ["A_PF"]))
    A(S("s_sub_u32", sT0, sN, 6))
    A(S("s_lshl_b32", sT0, sT0, 5))
    A(V("v_subrev_u32", vD, sT0, vD))
    A(S("s_lshr_b32", sCNT, sN, 1))
    A(S("s_sub_u32", sCNT, sCNT, 3))
    P.add(o)
    lb = step(0, True, True, False) + step(1, True, True, False, ctl=[S("s_sub_u32", sCNT, sCNT, 1), S("s_cmp_lg_u32", sCNT, 0)])
    lb += [I("s_cbranch_scc1", ["A_LOOP"])]
    P.loop("A_LOOP", lb)
    SK = "noskip" not in exp
    o = []
    A = o.append
    if SK:
        o += [S("s_cmp_eq_u32", sWQ, 0), I("s_cbranch_scc1", ["A_E0"])]
    o += step(0, True, True, True)
    if SK:
        o += [S("s_cmp_eq_u32", sWQ, 1), I("s_cbranch_scc1", ["A_E1"])]
    o += step(1, True, True, True)
    A(label("A_PF"))
    A(S("s_sub_u32", sREM, sREM, 1))
    if SK:
        o += [S("s_cmp_le_u32", sWQ, 2), I("s_cbranch_scc1", ["A_E0"])]
    o += step(0, True, True, True)
    A(label("A_E1"))
    o += step(1, True, False, True)
    A(V("v_add_f32", vLs, vLs, vB[0]))
    A(S("s_cmp_eq_u32", sREM, 0))
    A(I("s_cbranch_scc1", ["A_FIN"]))
    A(waitcnt(vm=8))
    A(I("s_barrier"))
    o += guarded_dma()
    A(S("s_sub_u32", sREM, sREM, 1))
    A(label("A_FIN"))

    def fin(half):
        M = [mfma(O[dt], FR[4 * vb + dt], Pb[1 - half][4 * vb:4 * vb + 4], O[dt]) for vb in range(2) for dt in range(4)]
        gaps = [[] for _ in M]
        for j in range(8 - LA):
            gaps[j].append(frag_read(j + LA, half))
        return weave(M, gaps)

    o += fin(0)
    if SK:
        A(I("s_branch", ["A_EPI"]))
        A(label("A_E0"))
        o += step(0, True, False, True)
        A(V("v_add_f32", vLs, vLs, vB[0]))
        o += fin(1)
        A(label("A_EPI"))
    o += st(7)
    A(V("v_mov_b32", t0, vLs))
    A(V("v_permlane32_swap_b32", t0, vLs))
    A(V("v_add_f32", t0, t0, vLs))
    A(V("v_rcp_f32", vF, t0))
    A(S("s_lshl_b32", sT0, sQ0, 13))
    A(S("s_lshl_b32", sT1, sHEAD, 13))
    A(S("s_add_u32", sT0, sT0, sT1))
    A(S("s_add_u32", sT0, sT0, WS_CTX))
    A(S("s_add_u32", sT1, sT0, 4096))
    for dt in range(4):
        Tm, Pk = Sb[dt % 2], Pb[dt % 2]
        for r in range(16):
            A(V("v_accvgpr_read_b32", Tm[r], O[dt][r]))
        for r in range(16):
            A(V("v_mul_f32", Tm[r], Tm[r], vF))
        for r in range(8):
            A(V("v_cvt_pk_bf16_f32", Pk[r], Tm[2 * r], Tm[2 * r + 1]))
        for b in range(2):
            db = 2 * dt + b
            A(bstore4(Pk[4 * b:4 * b + 4], vL16, sWS, sT0 if db < 4 else sT1, (db % 4) * 1024, "" if "ctxplain" in exp else ST))
        for r in range(8):
            A(V("v_accvgpr_write_b32", XA[2 * dt + r // 4][r % 4], Pk[r]))
    A(S("s_cmp_eq_u32", sSUB, 0))
    A(I("s_cbranch_scc1", ["A_SHORT"]))
    A(S("s_cmp_eq_u32", sREM, 0))
    A(I("s_cbranch_scc1", ["A_DONE"]))
    A(I("s_barrier"))
    A(I("s_branch", ["A_DONE"]))
    A(label("A_SHORT"))
    def interval(work):
        return [waitcnt(vm=8), I("s_barrier")] + work + kvdma()

    def checked(vaddr, vres):
        ok = lab("SJ_OK")
        return [V("v_cmp_ne_u32", VCC, 1, vres), nop(2), I("s_cbranch_vccz", [ok])] + poll(vaddr, sWS, 1, vres) + [label(ok)]

    vJ, vJr = v(116), v(117)
    if "noalign" not in exp:
        A(S("s_sub_u32", L[16], sNB, sN))
        A(S("s_lshr_b32", L[16], L[16], 1))
        A(label("A_AL"))
        A(S("s_cmp_lt_u32", sREM, L[16]))
        A(I("s_cbranch_scc1", ["A_AL1"]))
        o += interval([])
        A(S("s_sub_u32", sREM, sREM, 1))
        A(I("s_branch", ["A_AL"]))
        A(label("A_AL1"))
    A(S("s_cmp_ge_u32", sW, 48))
    A(I("s_cbranch_scc1", ["A_NKVR"]))
    sJ, sJo = L[16], L[17]
    A(S("s_lshl_b32", sJ, sW, 2))
    A(S("s_add_u32", sJ, sJ, sWQ))
    A(S("s_mul_i32", sT0, sJ, 43691))
    A(S("s_lshr_b32", sT0, sT0, 20))
    A(S("s_lshr_b32", sT1, sT0, 2))
    A(S("s_and_b32", sT0, sT0, 3))
    A(S("s_lshl_b32", sT0, sT0, 6))
    A(S("s_add_u32", sT0, sT0, sT1))
    A(V("v_bfe_u32", t0, vL, 3, 2))
    A(V("v_lshlrev_b32", t0, 1, t0))
    A(V("v_and_b32", t1, 7, vL))
    A(V("v_lshl_add_u32", t0, t1, 3, t0))
    A(V("v_add_u32", t0, sT0, t0))
    A(V("v_lshlrev_b32", t0, 8, t0))
    A(V("v_add_u32", vJ, WS_FLAG + 4 * F_B1, t0))
    A(S("s_lshl_b32", sJo, sJ, 10))
    A(S("s_add_u32", sJo, sJo, WS_KVP))
    R = [v(32 + 4 * i, 4) for i in range(16)]
    KS_ = v(96, 4)

    def kvr_loads():
        r = []
        for i in range(16):
            r += [bload4(R[i], vL16, sWS, sJo, 0, LD), S("s_add_u32", sJo, sJo, 192 * 1024)]
        return r

    def kvr_sum(first):
        r = [forget(R)]
        for step_ in (1, 2, 4, 8):
            for w in range(0, 16, 2 * step_):
                r += [V("v_add_f32", R[w][q], R[w][q], R[w + step_][q]) for q in range(4)]
        r += [V("v_mov_b32", KS_[q], R[0][q]) if first else V("v_add_f32", KS_[q], KS_[q], R[0][q]) for q in range(4)]
        return r

    o += interval([I("buffer_load_dword", [vJr, vJ, sWS, 0], "offen sc1", dst=[])])
    o += interval(wave_flag(F_CTX) + checked(vJ, vJr) + kvr_loads())
    o += interval(kvr_sum(True) + kvr_loads())
    o += interval(kvr_sum(False) + [
        V("v_cvt_pk_bf16_f32", KS_[0], KS_[0], KS_[1]), V("v_cvt_pk_bf16_f32", KS_[1], KS_[2], KS_[3]),
        S("s_lshr_b32", sT0, sJ, 1), S("s_lshl_b32", sT0, sT0, 10), S("s_and_b32", sT1, sJ, 1), S("s_lshl_b32", sT1, sT1, 3),
        S("s_add_u32", sT0, sT0, sT1), S("s_add_u32", sT0, sT0, WS_KVF),
        I("buffer_store_dwordx2", [KS_[0:2], vL16, sWS, sT0], "offen " + ST)])
    o += interval(wave_flag(F_KVR))
    A(S("s_sub_u32", sREM, sREM, 5))
    A(I("s_branch", ["A_DL0"]))
    A(label("A_NKVR"))
    A(S("s_sub_u32", L[18], sW, 96))
    A(S("s_cmp_ge_u32", L[18], 128))
    A(I("s_cbranch_scc1", ["A_DL0"]))
    sSB, sH0 = L[16], L[17]
    A(S("s_lshr_b32", sSB, L[18], 1))
    A(S("s_and_b32", sH0, L[18], 1))
    A(S("s_lshl_b32", sH0, sH0, 4))
    A(S("s_lshl_b32", sT0, sWQ, 2))
    A(S("s_add_u32", sH0, sH0, sT0))
    A(S("s_mul_i32", sT0, sH0, 6))
    A(V("v_min_u32", t0, 23, vL))
    A(V("v_add_u32", t0, sT0, t0))
    A(V("v_and_b32", t1, 3, t0))
    A(V("v_lshrrev_b32", t0, 2, t0))
    A(V("v_lshlrev_b32", t0, 8, t0))
    A(V("v_lshl_add_u32", t0, t1, 2, t0))
    A(V("v_add_u32", vJ, WS_FLAG + 4 * F_KVR, t0))
    Pf = [[v(32 + 12 * k + 4 * F, 4) for F in range(3)] for k in range(4)]
    Kf = [[a(12 * k + 4 * F, 4) for F in range(3)] for k in range(4)]
    Cs = [v(80, 16), v(96, 16)]
    ld = [S("s_lshl_b32", sT0, sSB, 5), S("s_add_u32", sT0, sT0, sH0), S("s_mul_i32", sT0, sT0, 3072),
          S("s_add_u32", sT0, sT0, WS_PHIQ), S("s_mul_i32", sT1, sH0, 3072), S("s_add_u32", sT1, sT1, WS_KVF)]
    for k in range(4):
        for F in range(3):
            ld += [bload4(Pf[k][F], vL16, sWS, sT0, F * 1024, LD), bload4(Kf[k][F], vL16, sWS, sT1, F * 1024, LD)]
        ld += [S("s_add_u32", sT0, sT0, 3072), S("s_add_u32", sT1, sT1, 3072)]
    cp = [forget([x for k in range(4) for x in Pf[k] + Kf[k]]),
          S("s_mul_i32", sT2, sSB, 36), S("s_add_u32", sT0, sT2, sH0), S("s_lshl_b32", sT0, sT0, 10), S("s_add_u32", sT0, sT0, WS_OF),
          S("s_lshr_b32", sT1, sH0, 3), S("s_add_u32", sT1, sT1, sT2), S("s_lshl_b32", sT1, sT1, 10),
          S("s_add_u32", sT1, sT1, WS_OF + 32 * 1024), S("s_and_b32", sT2, sH0, 7), S("s_lshl_b32", sT2, sT2, 1),
          S("s_add_u32", sT1, sT1, sT2)]
    XO = [v(112), v(113), v(114), v(115)]
    for k in range(4):
        C = Cs[k % 2]
        cp += [mfma(C, Kf[k][F], Pf[k][F], 0 if F == 0 else C) for F in range(3)]
        cp += [V("v_add_f32", t0, 1e-6, C[9]), V("v_rcp_f32", t0, t0)]
        cp += [V("v_mul_f32", C[i], C[i], t0) for i in range(9)]
        cp += [V("v_cvt_pk_bf16_f32", Pf[k][0][p], C[2 * p], C[2 * p + 1]) for p in range(4)]
        cp += [V("v_mov_b32", XO[k], C[8]), bstore4(Pf[k][0], vL16, sWS, sT0, k * 1024, ST)]
    cp += [V("v_cvt_pk_bf16_f32", XO[0], XO[0], XO[1]), V("v_cvt_pk_bf16_f32", XO[1], XO[2], XO[3]),
           I("buffer_store_dwordx2", [v(112, 2), vL16, sWS, sT1], "offen " + ST)]
    o += interval([I("buffer_load_dword", [vJr, vJ, sWS, 0], "offen sc1", dst=[])])
    o += interval(wave_flag(F_CTX) + checked(vJ, vJr) + ld)
    o += interval(cp)
    o += interval(wave_flag(F_O))
    A(S("s_sub_u32", sREM, sREM, 4))
    xl = []
    for i in range(1, 4):
        xl += [S("s_add_u32", sT0, sCQ, i), S("s_and_b32", sT0, sT0, 3), S("s_lshl_b32", sT1, sGR, 2), S("s_add_u32", sT0, sT0, sT1),
               S("s_add_u32", sT0, sT0, sQ0), S("s_lshl_b32", sT0, sT0, 13), S("s_add_u32", sT0, sT0, WS_CTX),
               S("s_add_u32", sT1, sT0, 4096)]
        xl += [I("buffer_load_dwordx4", [XA[8 * i + db], vL16, sWS, sT0 if db < 4 else sT1],
                 f"offen offset:{(db % 4) * 1024}" + (" " + LD if LD else ""), dst=[]) for db in range(8)]
    A(label("A_DL0"))
    A(S("s_cmp_lt_u32", sREM, 4 if "xjob" in exp else 1000))
    A(I("s_cbranch_scc1", ["A_DL1"]))
    o += interval([])
    o += interval(wave_flag(F_CTX) + [])
    o += interval(poll(vPC, sWS, 1, vP1) + xl)
    A(S("s_sub_u32", sREM, sREM, 3))
    A(S("s_mov_b32", sXD, 0))
    A(label("A_DL1"))
    P.add(o)
    lb = [waitcnt(vm=8), I("s_barrier")] + kvdma()
    lb += [S("s_sub_u32", sREM, sREM, 1), S("s_cmp_lg_u32", sREM, 0), I("s_cbranch_scc1", ["A_DL"])]
    P.loop("A_DL", lb)
    o = [waitcnt(vm=0)] + wave_flag(F_CTX)
    A = o.append
    A(label("A_DONE"))
    o += st(8)
    A(I("s_barrier"))
    o += st(16)
    A(S("s_lshl_b32", sT1, sSUB, 14))
    A(S("s_add_u32", sT0, sW3, sT1))
    A(S("s_add_u32", sT1, sT1, sPX))
    A(S("s_add_u32", M0, sT1, sSL))
    for q in range(4):
        A(dmal(vKVg, sWS, sT0, q * 1024))
    pacc = [v(32 + 16 * j, 16) for j in range(5)]
    WR = [v(112, 4), v(116, 4), v(120, 4), v(10, 4), v(14, 4)]
    seq = [(k, j) for k in range(8) for j in range(5)] + [(k, j) for j in range(5) for k in range(8, 32)]
    WLA = 4

    def wread(n):
        k, j = seq[n]
        if j < 4:
            return dsr128(WR[n % 5], vWB[k // 8], (k % 8) * 4096 + j * 1024)
        return dsr128(WR[n % 5], vWHf, k * 512)

    sPT0 = L[9]
    A(S("s_lshl_b32", sPT0, sPI, 2))
    A(S("s_add_u32", sPT0, sPT0, sCQ))
    A(S("s_lshl_b32", sPT0, sPT0, 3))
    A(S("s_add_u32", sT0, sPT0, sWV))
    A(S("s_lshl_b32", sT0, sT0, 3))
    A(S("s_add_u32", sT0, sT0, sGR))
    A(S("s_mul_i32", sT0, sT0, 9216))
    sPTs = [L[0], L[1], L[2]]
    A(S("s_add_u32", sPTs[0], sT0, WS_PT))
    A(S("s_add_u32", sPTs[1], sPTs[0], 4096))
    A(S("s_add_u32", sPTs[2], sPTs[0], 8192))

    def pstore(j):
        r = []
        for b in range(2 if j < 4 else 1):
            r += [V("v_cvt_pk_bf16_f32", pacc[j][4 * b + q], pacc[j][8 * b + 2 * q], pacc[j][8 * b + 2 * q + 1]) for q in range(4)]
            pi_ = 2 * j + b
            r.append(bstore4(pacc[j][4 * b:4 * b + 4], vL16, sWS, sPTs[pi_ // 4], (pi_ % 4) * 1024, ST))
        return r

    for n in range(WLA):
        A(wread(n))
    pend = []
    NF, NP = (3, 24 if "np24" in exp else 34 if "np34" in exp else 14)
    vTK, vTO, vTA = v(27), v(28), v(29)
    A(V("v_mov_b32", t1, BIG))
    A(V("v_mov_b32", t0, WS_FLAG + 252))
    A(V("v_cmp_eq_u32", VCC, 0, vL))
    A(V("v_cndmask_b32", vTO, t1, t0, VCC))

    def ticket():
        return onlyw(7, [V("v_mov_b32", vTK, 1), I("buffer_atomic_add", [vTK, vTO, sWS, 0], "offen sc0 sc1", dst=[])])

    for n, (k, j) in enumerate(seq):
        A(mfma(pacc[j], WR[n % 5], XA[k], 0 if k == 0 else pacc[j]))
        if n == 48:
            A(I("s_barrier"))
        if n + WLA < len(seq):
            A(wread(n + WLA))
        if n == NF:
            o += only(sSUB, [waitcnt(vm=4)] + wave_flag(F_CTX))
        if n == NP:
            o += poll(vPC, sWS, 1, vP1) + xl + st(9)
        if n in (39, 47, 55):
            A(waitcnt(vm={39: 16, 47: 8, 55: 0}[n]))
        if k == 12 and j > 0:
            pend = pstore(j - 1)
        if k == 20 and j == 4:
            o += ticket()
        if pend:
            o += pend[:2]
            pend = pend[2:]
    o += pstore(4)
    o += st(10)
    vW2, vLx, vW2x, vWr, vSt, vPO = v(22), v(23), v(24), v(25), v(26), v(20)
    vRdw = [v(30), v(31), v(123)]
    RS = 304
    A(V("v_and_b32", t0, 7, vL))
    A(V("v_lshrrev_b32", t1, 5, vL))
    A(V("v_lshlrev_b32", t1, 7, t1))
    A(V("v_lshl_add_u32", vW2, t0, 4, t1))
    A(V("v_mov_b32", t2, BIG))
    A(S("s_cmp_lt_u32", sWV, 4))
    A(S("s_cselect_b64", sM, -1, 0))
    A(V("v_cndmask_b32", vLx, t2, vL16, sM))
    A(V("v_cndmask_b32", vW2x, t2, vW2, sM))
    A(V("v_and_b32", t0, 31, vL))
    A(V("v_mul_u32_u24", t0, RS, t0))
    A(V("v_lshrrev_b32", t1, 5, vL))
    A(V("v_lshl_add_u32", t0, t1, 4, t0))
    A(S("s_mul_i32", sT0, sWV, 64 * RS))
    A(V("v_add_u32", vWr, sT0, t0))
    A(V("v_mul_u32_u24", t1, 43691, v(0)))
    A(V("v_lshrrev_b32", t1, 18, t1))
    A(V("v_mul_u32_u24", t2, 6, t1))
    A(V("v_sub_u32", t2, v(0), t2))
    A(V("v_mul_u32_u24", t0, RS, t1))
    A(V("v_mul_u32_u24", t3, 48, t2))
    A(V("v_add_u32", vRdw[0], t0, t3))
    A(V("v_add_u32", vRdw[1], 3 * 64 * RS, vRdw[0]))
    A(V("v_add_u32", vRdw[2], 6 * 64 * RS, vRdw[0]))
    A(V("v_mul_u32_u24", t1, 2304, t1))
    A(V("v_mul_u32_u24", t3, 24, t2))
    A(V("v_add_u32", vSt, t1, t3))
    A(V("v_bfe_u32", t0, vL, 2, 2))
    A(V("v_lshlrev_b32", t0, 8, t0))
    A(V("v_and_b32", t1, 3, vL))
    A(V("v_lshl_add_u32", t0, t1, 2, t0))
    A(V("v_add_u32", vPO, WS_FLAG + 96 * 256 + 4 * F_O, t0))
    sOUT = sA
    o += mk_srd(sOUT, "out")
    sXo0, sXo1, sWo_ = L[13], L[14], L[15]
    bfr = [a(64 + 4 * i, 4) for i in range(16)] + [v(64 + 4 * i, 4) for i in range(4)] + [v(96 + 4 * i, 4) for i in range(5)]
    bacc = [[a(0, 16), a(16, 16), a(32, 16)], [a(48, 16), v(32, 16), v(48, 16)]]

    def oloads(X, W, xstep, wstep, masked=False, x=True, w=True):
        va, vw = (vLx, vW2x) if masked else (vL16, vW2)
        r = []
        if x:
            r += [bload4(X[0], va, sWS, sXo0, 0, LD), bload4(X[1], va, sWS, sXo1, 0, LD),
                  S("s_add_u32", sXo0, sXo0, xstep), S("s_add_u32", sXo1, sXo1, xstep)]
        if w:
            r += [bload4(W[0], va, sWS, sWo_, 0, LD), bload4(W[1], va, sWS, sWo_, 1024, LD),
                  bload4(W[2], vw, sWS, sWo_, 2048, LD), S("s_add_u32", sWo_, sWo_, wstep)]
        return r

    def bout_loads():
        r = [S("s_mul_i32", sXo0, sRB1, 72), S("s_add_u32", sXo0, sXo0, sWV), S("s_lshl_b32", sXo0, sXo0, 10),
             S("s_add_u32", sXo0, sXo0, WS_OF), S("s_add_u32", sXo1, sXo0, 36 * 1024), S("s_mul_i32", sWo_, sG1, WOF_CG),
             S("s_mul_i32", sT0, sWV, 2304), S("s_add_u32", sWo_, sWo_, sT0), S("s_add_u32", sWo_, sWo_, WS_WOF + 256 * 2304)]
        for it in range(5):
            r += oloads(bfr[5 * it:5 * it + 2], bfr[5 * it + 2:5 * it + 5], 8192, 8 * 2304, masked=(it == 4))
        return r

    A(waitcnt(vm=0))
    o += wave_flag(F_PT)
    TKA = 160000
    A(V("v_mov_b32", vTA, TKA))
    A(label("B_TOP"))
    o += onlyw(7, [waitcnt(vm=0), V("v_readfirstlane_b32", sT0, vTK), V("v_mov_b32", vTK, sT0), I("ds_write_b32", [vTA, vTK])])
    A(waitcnt(lgkm=0))
    A(I("s_barrier"))
    A(I("ds_read_b32", [t0, vTA]))
    A(V("v_readfirstlane_b32", sT0, t0))
    A(S("s_cmp_ge_u32", sT0, 256))
    A(I("s_cbranch_scc1", ["B_END"]))
    A(S("s_lshr_b32", sRB1, sT0, 3))
    A(S("s_and_b32", sG1, sT0, 7))
    A(S("s_lshl_b32", sT2, sRB1, 10))
    o += poll(vPO, sWS, 1, vP1, sT2)
    o += bout_loads()
    for it in range(5):
        X, W = bfr[5 * it:5 * it + 2], bfr[5 * it + 2:5 * it + 5]
        o += [mfma(bacc[qb][j], W[j], X[qb], 0 if it == 0 else bacc[qb][j]) for j in range(3) for qb in range(2)]
    o += st(11)
    o += ticket()
    for qb in range(2):
        for j in range(3):
            for g in range(4 if j < 2 else 1):
                A(I("ds_write_b128", [vWr, bacc[qb][j][4 * g:4 * g + 4]], f"offset:{qb * 32 * RS + (32 * j + 8 * g) * 4}"))
    sk = lab("O_SK")
    o += [waitcnt(lgkm=0), I("s_barrier"), S("s_cmp_ge_u32", sWV, 6), I("s_cbranch_scc1", [sk])]
    RR = [[v(32 + 12 * w + 4 * q, 4) for q in range(3)] for w in range(7)] + [[v(116, 4), v(10, 4), v(14, 4)]]
    for ww in range(8):
        o += [dsr128(RR[ww][q], vRdw[ww // 3], (ww % 3) * 64 * RS + 16 * q) for q in range(3)]
    for step_ in (1, 2, 4):
        for w in range(0, 8, 2 * step_):
            o += [V("v_add_f32", RR[w][q][r], RR[w][q][r], RR[w + step_][q][r]) for q in range(3) for r in range(4)]
    PKo = v(44, 6)
    o += [V("v_cvt_pk_bf16_f32", PKo[x], RR[0][x // 2][(2 * x) % 4], RR[0][x // 2][(2 * x) % 4 + 1]) for x in range(6)]
    o += [S("s_mul_i32", sT0, sRB1, 64 * 2304), S("s_mul_i32", sT1, sG1, 144), S("s_add_u32", sT0, sT0, sT1),
          S("s_add_u32", sT0, sT0, 1152), bstore4(PKo[0:4], vSt, sOUT, sT0),
          I("buffer_store_dwordx2", [PKo[4:6], vSt, sOUT, sT0], "offen offset:16")]
    A(label(sk))
    A(nop(8))
    A(I("s_branch", ["B_TOP"]))
    A(label("B_END"))
    o += st(12)
    A(S("s_and_b32", sT0, sW, 0xf8))
    A(S("s_lshl_b32", sT0, sT0, 8))
    A(S("s_lshl_b32", sT1, sGR, 2))
    A(S("s_add_u32", sT0, sT0, sT1))
    A(S("s_add_u32", sT0, sT0, WS_FLAG + 4 * F_PT))
    A(V("v_and_b32", t0, 7, vL))
    A(V("v_lshlrev_b32", t0, 8, t0))
    A(V("v_add_u32", t0, sT0, t0))
    o += poll(t0, sWS, 1, vP1)
    o += st(25)
    A(S("s_sub_u32", sT0, 15, sPI))
    A(S("s_cmp_lt_u32", sGR, 4))
    A(S("s_cselect_b32", sT0, sPI, sT0))
    A(S("s_lshl_b32", sT0, sT0, 7))
    A(S("s_and_b32", sT1, sGR, 3))
    A(S("s_lshl_b32", sT1, sT1, 5))
    A(S("s_add_u32", sT0, sT0, sT1))
    A(V("v_and_b32", t0, 31, vL))
    A(V("v_add_u32", t0, sT0, t0))
    A(V("v_mul_u32_u24", t0, 2304, t0))
    A(V("v_lshrrev_b32", t1, 5, vL))
    A(V("v_lshl_add_u32", t0, t1, 4, t0))
    A(S("s_mul_i32", sT0, sCQ, 288))
    A(V("v_add_u32", t0, sT0, t0))
    A(S("s_add_u32", sT0, sPT0, sGR))
    A(S("s_mul_i32", sT0, sT0, 8 * 9216))
    A(S("s_add_u32", L[10], sT0, WS_PT))

    def gather(spiece):
        G_ = [v(32 + 4 * i, 4) for i in range(8)]
        Sm = [v(64 + i) for i in range(8)]
        r = [S("s_lshl_b32", sT0, spiece, 10), S("s_add_u32", sT0, sT0, L[10])]
        for i in range(8):
            r += [bload4(G_[i], vL16, sWS, sT0, 0, LD), S("s_add_u32", sT0, sT0, 9216)]
        for i in range(8):
            for q in range(4):
                if i == 0:
                    r += [V("v_lshlrev_b32", Sm[2 * q], 16, G_[0][q]), V("v_and_b32", Sm[2 * q + 1], 0xffff0000, G_[0][q])]
                else:
                    r += [V("v_lshlrev_b32", t2, 16, G_[i][q]), V("v_and_b32", t3, 0xffff0000, G_[i][q]),
                          V("v_add_f32", Sm[2 * q], Sm[2 * q], t2), V("v_add_f32", Sm[2 * q + 1], Sm[2 * q + 1], t3)]
        D = v(72, 4)
        r += [V("v_cvt_pk_bf16_f32", D[q], Sm[2 * q], Sm[2 * q + 1]) for q in range(4)]
        r += [V("v_permlane32_swap_b32", D[0], D[2]), V("v_permlane32_swap_b32", D[1], D[3]),
              S("s_lshl_b32", sT0, spiece, 5), bstore4(D, t0, sOUT, sT0)]
        return r

    o += gather(sWV)
    A(S("s_mov_b32", L[11], 8))
    o += onlyw(7, gather(L[11]))
    if stamps:
        o += st(13) + [waitcnt(vm=0)] + st(14) + st(63, True)
        A(S("s_lshl_b32", sT0, sW, 3))
        A(S("s_add_u32", sT0, sT0, sWV))
        A(S("s_lshl_b32", sT0, sT0, 8))
        A(S("s_add_u32", sT0, sT0, 200 * MB))
        A(V("v_lshlrev_b32", t0, 2, vL))
        A(I("buffer_store_dword", [vSTP, t0, sWS, sT0], "offen"))
    P.add(o)
    P.out.append(label("F_END"))
    P.out.append(I("s_endpgm"))

    for sl, rt, cb, has_qk in slow_sites:
        P.st = State()
        nb = 1 - cb
        S_ = Sb[cb]
        b = [label(sl), nop(16), nop(4)]
        B = b.append
        b += rowmax(S_, t0, t1)
        B(V("v_max_f32", vDl, 0, t0))
        B(V("v_exp_f32", vF, Neg(vDl)))
        for r in range(16):
            B(V("v_sub_f32", NEGM[r], NEGM[r], vDl))
            B(V("v_sub_f32", S_[r], S_[r], vDl))
            if has_qk:
                B(V("v_sub_f32", Sb[nb][r], Sb[nb][r], vDl))
        B(V("v_mul_f32", vLs, vLs, vF))
        for dt in range(4):
            for r0 in range(0, 16, 8):
                for r in range(8):
                    B(V("v_accvgpr_read_b32", T[8 + r], O[dt][r0 + r]))
                for r in range(8):
                    B(V("v_mul_f32", T[8 + r], T[8 + r], vF))
                for r in range(8):
                    B(V("v_accvgpr_write_b32", O[dt][r0 + r], T[8 + r]))
        b += softmax(cb, False)
        B(nop(4))
        B(I("s_branch", [rt]))
        P.add(b)
    P.out.append(label("F_CODE_END"))
    P.out.append(I("s_endpgm"))
    return kernel_text(name, P, 256, 128, nsgpr=102)
```

```python
import sys
from common import *
import fused_v24 as fused
from gen import build
NAME = "concat_heads__compressed_kv_cla__linear_kernel_hedgehog__prompt_kernel"
if __name__ == "__main__":
    out = sys.argv[1]
    kw = {}
    kw["LD"] = "" if "ldplain" in sys.argv else "sc1"
    ks = [(NAME, 256, 512, 163840, fused.gen_fused(NAME, stamps=("stamps" in sys.argv), exp=" ".join(sys.argv), **kw))]
    build(out, ks)
```
